```python
import torch

def _softmax(x, axis=-1):
    return torch.softmax(x, dim=axis)
def _gelu(x):
    return torch.nn.functional.gelu(x, approximate="tanh")
def _silu(x):
    return torch.nn.functional.silu(x)
def _sigmoid(x):
    return torch.sigmoid(x)
def _layernorm(x, axis=-1, eps=1e-5):
    m = x.mean(dim=axis, keepdim=True)
    v = x.var(dim=axis, keepdim=True, unbiased=False)
    return (x - m) / torch.sqrt(v + eps)
def _scatter_add(tgt, idx, src, axis=0):
    return tgt.clone().index_add_(axis, idx, src)
def _segment_sum(src, seg, n):
    out = torch.zeros((n,) + src.shape[1:], dtype=src.dtype)
    return out.index_add_(0, seg, src)
def _pad(x, pw):
    flat = tuple(v for pair in reversed(pw) for v in pair)
    return torch.nn.functional.pad(x, flat)

kernel_name = 'sequential_preLN__gqa_block_cached__glu_gated_geglu__decode'

def setup_inputs():

    _w = (lambda a: (lambda t: t.to(torch.bfloat16) if t.is_floating_point() else t)(torch.as_tensor(a)))
    def _A_setup():
        B, Sq, D = 1, 1, 640
        Hq, Hkv, Sk, Dh = 32, 32, 4096, 128
        assert Hq % Hkv == 0, (Hq, Hkv)
        return {
            "x": _w((lambda *s: torch.randn(*s, dtype=torch.bfloat16) * 0.05)(B, Sq, D)),
            "k_cache": _w((lambda *s: torch.randn(*s, dtype=torch.bfloat16) * 1.6)(B, Hkv, Sk, Dh)),
            "v_cache": _w((lambda *s: torch.randn(*s, dtype=torch.bfloat16) * 0.8)(B, Hkv, Sk, Dh)),
            "wq": _w((lambda *s: torch.randn(*s, dtype=torch.bfloat16) * 1.6)(D, Hq * Dh) * (D ** -0.5)),
            "wo": _w((lambda *s: torch.randn(*s, dtype=torch.bfloat16) * 0.8)(Hq * Dh, D) * ((Hq * Dh) ** -0.5)),
        }
    _A_in = _A_setup()

    def _B_setup():
        B, S, Dm, Df = 1, 1, 640, 1728
        return {
            "x": _w((lambda *s: torch.randn(*s, dtype=torch.bfloat16) * 0.05)(B, S, Dm)),
            "w_gate": _w((lambda *s: torch.randn(*s, dtype=torch.bfloat16) * 0.4)(Dm, Df) * (Dm ** -0.5)),
            "w_up": _w((lambda *s: torch.randn(*s, dtype=torch.bfloat16) * 0.4)(Dm, Df) * (Dm ** -0.5)),
            "w_down": _w((lambda *s: torch.randn(*s, dtype=torch.bfloat16) * 0.4)(Df, Dm) * (Df ** -0.5)),
        }
    _B_in = _B_setup()

    return {
        "A_x": _A_in["x"],
        "A_k_cache": _A_in["k_cache"],
        "A_v_cache": _A_in["v_cache"],
        "A_wq": _A_in["wq"],
        "A_wo": _A_in["wo"],
        "B_x": _B_in["x"],
        "B_w_gate": _B_in["w_gate"],
        "B_w_up": _B_in["w_up"],
        "B_w_down": _B_in["w_down"],
    }

def reference(A_x, A_k_cache, A_v_cache, A_wq, A_wo, B_x, B_w_gate, B_w_up, B_w_down):
    def _A_ref(x, k_cache, v_cache, wq, wo):
        B, Sq, D = x.shape
        Hq, Dh = 32, 128
        Hkv = k_cache.shape[1]
        rep = Hq // Hkv
        q = (lambda x, *d: x.permute(*d))((x @ wq).reshape(B, Sq, Hq, Dh), 0, 2, 1, 3)
        k = (lambda x, n, axis: torch.repeat_interleave(x, n, dim=axis))(k_cache, rep, axis=1)
        v = (lambda x, n, axis: torch.repeat_interleave(x, n, dim=axis))(v_cache, rep, axis=1)
        scores = torch.einsum("bhqd,bhkd->bhqk", q, k) * (Dh ** -0.5)
        p = _softmax(scores, axis=-1)
        o = torch.einsum("bhqk,bhkd->bhqd", p, v)
        return (lambda x, *d: x.permute(*d))(o, 0, 2, 1, 3).reshape(B, Sq, Hq * Dh) @ wo

    def _B_ref(x, w_gate, w_up, w_down):
        g = torch.einsum("bsd,df->bsf", x, w_gate)
        u = torch.einsum("bsd,df->bsf", x, w_up)
        h = _gelu(g) * u
        return torch.einsum("bsf,fd->bsd", h, w_down)

    x = A_x
    h = x + _A_ref(_layernorm(x, axis=-1), A_k_cache, A_v_cache, A_wq, A_wo)
    h2 = h + _B_ref(_layernorm(h, axis=-1), B_w_gate, B_w_up, B_w_down)
    return h2
```

```python
import re
TRANS = ("v_exp_f32","v_log_f32","v_rcp_f32","v_rsq_f32","v_sqrt_f32","v_sin_f32","v_cos_f32")
def regs_of(op):
    op = op.strip()
    neg = op.lstrip("-|").rstrip("|")
    m = re.fullmatch(r"([vs])(\d+)", neg)
    if m: return [(m.group(1), int(m.group(2)))]
    m = re.fullmatch(r"([vs])\[(\d+):(\d+)\]", neg)
    if m: return [(m.group(1), i) for i in range(int(m.group(2)), int(m.group(3)) + 1)]
    if neg == "vcc": return [("s", "vcc")]
    if neg in ("vcc_lo", "vcc_hi"): return [("s", "vcc")]
    if neg in ("exec", "exec_lo", "exec_hi"): return [("s", "exec")]
    if neg == "m0": return [("s", "m0")]
    return []
class I:
    def __init__(s, text):
        s.text = text
        t = text.split(";")[0].strip()
        s.label = t[:-1] if t.endswith(":") else None
        s.mn = ""; s.defs = set(); s.uses = set(); s.kind = "none"; s.dpp = False; s.target = None
        s.srcC = set(); s.srcAB = set(); s.wide_data = set(); s.lanesel = set()
        if s.label or not t or t.startswith("."): return
        p = t.split(None, 1); mn = p[0]; s.mn = mn
        rest = p[1] if len(p) > 1 else ""
        ops = [o.strip() for o in re.split(r",(?![^\[]*\])", rest)] if rest else []
        if ops:
            last = ops[-1].split()
            ops[-1] = last[0]; mods = " ".join(last[1:])
        else: mods = ""
        R = [regs_of(o) for o in ops]
        flat = lambda L: set(x for l in L for x in l)
        if mn.startswith("v_mfma") or mn.startswith("v_smfmac"):
            s.kind = "mfma"; s.defs = set(R[0]); s.srcAB = flat(R[1:3]); s.srcC = set(R[3]) if len(R) > 3 else set()
            if mn.startswith("v_smfmac"): s.srcAB |= s.srcC; s.srcC = set(R[0])
            s.uses = s.srcAB | s.srcC
        elif mn.startswith("v_"):
            s.kind = "valu"
            s.dpp = "_dpp" in mn or any(k in mods for k in ("quad_perm", "row_", "wave_"))
            if mn.startswith("v_permlane"):
                s.defs = flat(R[:2]); s.uses = flat(R[:2]); s.kind = "perm"
            elif mn.startswith("v_cmp"):
                s.defs = set(R[0]); s.uses = flat(R[1:])
            elif mn.startswith("v_readlane") or mn.startswith("v_readfirstlane"):
                s.defs = set(R[0]); s.uses = flat(R[1:]); s.kind = "rdlane"
                if len(R) > 2: s.lanesel = set(R[2])
            elif mn.startswith("v_writelane"):
                s.defs = set(R[0]); s.uses = flat(R); s.lanesel = set(R[2])
            elif mn == "v_nop": pass
            else:
                s.defs = set(R[0]); s.uses = flat(R[1:])
                if s.dpp or "fmac" in mn or "_mac_" in mn or "dot2c" in mn: s.uses |= s.defs
                if mn.startswith("v_cndmask") and len(ops) == 3: s.uses.add(("s", "vcc"))
                if "_co_" in mn: s.defs |= set(R[1])
            s.trans = any(mn.startswith(x) for x in TRANS)
        elif mn.startswith("buffer_") or mn.startswith("global_"):
            s.kind = "vmem"
            if "load" in mn and " lds" not in " " + mods:
                s.defs = set(R[0]); s.uses = flat(R[1:])
            else:
                s.uses = flat(R)
                if "x4" in mn or "x3" in mn: s.wide_data = set(R[0]) if mn.startswith("buffer_") else set(R[1])
        elif mn.startswith("ds_"):
            s.kind = "ds"
            if "read" in mn or "permute" in mn or "rtn" in mn or "swizzle" in mn:
                s.defs = set(R[0]); s.uses = flat(R[1:])
            else: s.uses = flat(R)
        elif mn.startswith("s_"):
            s.kind = "salu"
            if mn.startswith("s_cbranch") or mn == "s_branch": s.target = ops[0]
            elif mn.startswith("s_cmp") or mn in ("s_waitcnt", "s_nop", "s_barrier", "s_endpgm", "s_sleep", "s_setprio"): s.uses = flat(R)
            else:
                if R: s.defs = set(R[0]); s.uses = flat(R[1:])
        else: raise ValueError("unknown instr " + text)
    def states(s):
        if s.mn == "s_nop": return int(s.text.split()[1]) + 1
        return 0 if s.kind == "none" else 1
def need(p, c):
    n = 0
    pv = p.kind in ("valu", "perm", "rdlane"); cv = c.kind in ("valu", "perm", "rdlane")
    if pv:
        vd = {r for r in p.defs if r[0] == "v"}; sd = {r for r in p.defs if r[0] == "s"}
        if vd & c.uses:
            if c.dpp or c.kind == "perm" or c.kind == "mfma": n = max(n, 2)
            if c.kind == "rdlane": n = max(n, 1)
            if getattr(p, "trans", False) and cv: n = max(n, 1)
        if sd & c.uses:
            if cv: n = max(n, 2)
            if sd & c.lanesel: n = max(n, 4)
            if c.kind == "vmem": n = max(n, 5)
    if p.kind == "mfma":
        if c.kind == "mfma":
            if p.defs & c.srcAB: n = max(n, 8)
            if p.defs & c.srcC and p.defs != c.srcC: n = max(n, 6)
            if p.defs & c.defs and not (p.defs & c.srcC): n = max(n, 8)
        elif c.kind in ("valu", "perm", "rdlane", "vmem", "ds"):
            if p.defs & (c.uses | c.defs): n = max(n, 8)
            if cv and p.srcC & c.defs: n = max(n, 3)
    if p.wide_data and p.wide_data & c.defs: n = max(n, 2)
    if p.kind == "salu" and ("s", "m0") in p.defs and c.kind == "vmem" and "lds" in c.text: n = max(n, 1)
    return n
def hazard_pass(lines):
    ins = [I(l) for l in lines]
    at_label = {}
    for it in range(4):
        out = []; hist = []
        changed = False
        def merge(a, b):
            d = {}
            for i, g in a + b: d[id(i)] = (i, min(g, d[id(i)][1])) if id(i) in d else (i, g)
            return list(d.values())
        dead = False
        for i in ins:
            if i.label:
                hist = merge([] if dead else hist, at_label.get(i.label, [])); dead = False
                out.append(i.text); continue
            if i.kind == "none": out.append(i.text); continue
            k = 0
            for p, age in hist: k = max(k, need(p, i) - age)
            if k > 0:
                out.append(f"s_nop {k-1}"); hist = [(p, a + k) for p, a in hist]
            out.append(i.text)
            st = i.states()
            hist = [(p, a + st) for p, a in hist if a + st < 12]
            hist.append((i, 0))
            if i.target:
                old = at_label.get(i.target, [])
                new = merge(old, hist)
                if sorted((id(a), b) for a, b in new) != sorted((id(a), b) for a, b in old): changed = True
                at_label[i.target] = new
            if i.mn in ("s_branch", "s_endpgm"): dead = True
        if not changed: break
    return out
class A:
    def __init__(s): s.L = []
    def __call__(s, txt):
        for l in txt.split("\n"):
            l = l.strip()
            if l: s.L.append(l)
    def text(s): return "\n".join(hazard_pass(s.L)) + "\n"
def v(a, n=1): return f"v{a}" if n == 1 else f"v[{a}:{a+n-1}]"
def sr(a, n=1): return f"s{a}" if n == 1 else f"s[{a}:{a+n-1}]"
```

```python
import sys, struct
sys.path.insert(0, "exp")
from asmlib import *
KN = "sequential_preLN__gqa_block_cached__glu_gated_geglu__decode"
def f2u(x): return "0x%08x" % struct.unpack("<I", struct.pack("<f", x))[0]
LOG2E = 1.4426950408889634
QM, OM, YM, DM, MBX = 0, 49152, 172032, 182272, 262144
OOB = 0x80000000
STAMP_OFF = 128 << 20
LH, LP, LO, LY, LD, LDUMP, LDS_SIZE = 0, 3072, 11776, 15872, 20992, 42496, 46592
DEF = dict(kv="", wt="", kbar=False, stamps=False, gate=True, hdr=True, shots=[(0,40),(1,32),(2,24),(3,12)], prio=0, il=2)
def gen(**kw):
    o = dict(DEF); o.update(kw)
    a = A()
    KV = o["kv"]; WT = o["wt"]
    def stamp(k):
        if o["stamps"]: a(f"s_memrealtime s[100:101]\ns_waitcnt lgkmcnt(0)\nv_writelane_b32 v1, s100, {k}")
    def stamp_out():
        if o["stamps"]:
            a(f"""s_add_u32 s96, s26, {STAMP_OFF}
            s_addc_u32 s97, s27, 0
            s_mov_b32 s98, 0x100000
            s_mov_b32 s99, 0x20000
            s_lshl_b32 s94, s2, 3
            s_add_u32 s94, s94, s3
            s_lshl_b32 s94, s94, 8
            s_mov_b64 exec, -1
            v_lshlrev_b32 v2, 2, v0
            buffer_store_dword v1, v2, s[96:99], s94 offen""")
    def srd(d, b, n, add=None):
        if add is None: a(f"s_mov_b32 s{d}, s{b}\ns_mov_b32 s{d+1}, s{b+1}")
        else: a(f"s_add_u32 s{d}, s{b}, {add}\ns_addc_u32 s{d+1}, s{b+1}, 0")
        a(f"s_mov_b32 s{d+2}, {n}\ns_mov_b32 s{d+3}, 0x20000")
    def spin(lbl, sb):
        a(f"s_sub_u32 s{sb}, s{sb}, 1\ns_cbranch_scc0 {lbl}\ns_mov_b32 s{sb}, 0")
    def wait_counter(tag, srdn, vt, sb, st, shots):
        for sec, n in shots:
            if n is not None: a(f"s_waitcnt vmcnt({n})")
            a(f"""s_load_dword s{st}, s[24:25], {64*sec}
            s_waitcnt lgkmcnt(0)
            s_cmp_eq_u32 s{st}, 64
            s_cbranch_scc1 L_cntok_{tag}""")
        a(f"""L_cnt_{tag}:
        buffer_load_dword v{vt}, off, s[{srdn}:{srdn+3}], 0 sc1
        s_waitcnt vmcnt(0)
        v_cmp_eq_u32 vcc, 64, v{vt}
        s_cbranch_vccnz L_cntok_{tag}""")
        spin(f"L_cnt_{tag}", sb)
        a(f"L_cntok_{tag}:")
    def masks(dst, andm, t0, t1):
        a(f"""v_and_b32 v{t0}, 1, v0
        v_lshlrev_b32 v{t0}, 4, v{t0}
        v_mov_b32 v{t1}, 0xffff
        v_lshlrev_b32 v{t0}, v{t0}, v{t1}
        v_and_b32 v{t1}, {andm}, v0
        v_lshrrev_b32 v{t1}, 1, v{t1}""")
        for r in range(4):
            a(f"v_cmp_eq_u32 vcc, {r}, v{t1}\nv_cndmask_b32 v{dst+r}, 0, v{t0}, vcc")
    a(f"{KN}_kernel:")
    if o["stamps"]: a("s_memrealtime s[100:101]")
    a("""s_cmp_ge_u32 s2, 256
    s_cbranch_scc1 L_end
    s_load_dwordx16 s[4:19], s[0:1], 0
    s_load_dwordx8 s[20:27], s[0:1], 64
    v_lshrrev_b32 v2, 6, v0
    v_and_b32 v0, 63, v0
    v_readfirstlane_b32 s3, v2
    s_cmp_lt_u32 s2, 64
    s_cbranch_scc1 L_aux""")
    for i in range(192): assert (i * 171) >> 10 == i // 6
    K0, V0, AQ, DQ, ACC, MK, S0 = 16, 112, 208, 224, 248, 4, 8
    LQ = 5632
    a(f"""s_sub_u32 s36, s2, 64
    s_mul_i32 s37, s36, 171
    s_lshr_b32 s37, s37, 10
    s_mul_i32 s38, s37, 6
    s_sub_u32 s38, s36, s38
    s_mul_i32 s39, s38, 43
    s_cmp_eq_u32 s38, 5
    s_cselect_b32 s40, 1, 0
    s_sub_u32 s39, s39, s40
    s_cmp_lt_u32 s38, 4
    s_cselect_b32 s40, 3, 2
    s_min_u32 s41, s3, s40
    s_mul_i32 s42, s3, 5
    s_add_u32 s39, s39, s41
    s_add_u32 s39, s39, s42
    s_cmp_lt_u32 s3, s40
    s_cselect_b32 s41, 0, 1
    s_cselect_b32 s43, 0, {OOB}
    s_cselect_b32 s44, 0, 0xff800000
    s_sub_u32 s39, s39, s41
    s_lshl_b32 s39, s39, 12
    s_lshl_b32 s42, s37, 20
    s_add_u32 s39, s39, s42
    v_bfe_u32 v2, v0, 2, 2
    v_lshrrev_b32 v3, 4, v0
    v_and_b32 v4, 3, v0
    v_lshlrev_b32 v2, 8, v2
    v_lshlrev_b32 v4, 4, v4
    v_lshl_add_u32 v2, v3, 6, v2
    v_add3_u32 v252, v2, v4, s39
    v_and_b32 v4, 15, v0
    v_lshlrev_b32 v3, 10, v3
    v_lshlrev_b32 v4, 4, v4
    v_add3_u32 v254, v3, v4, s39
    v_or_b32 v253, s43, v252
    v_or_b32 v255, s43, v254
    v_mov_b32 v2, 0
    v_mov_b32 v3, 0
    v_lshlrev_b32 v4, 3, v0
    ds_write_b64 v4, v[2:3] offset:{LQ}
    s_waitcnt lgkmcnt(0)
    s_barrier""")
    if o["stamps"]: a("v_mov_b32 v1, 0\nv_writelane_b32 v1, s100, 0")
    srd(28, 6, 1 << 25); srd(32, 8, 1 << 25)
    if o["prio"]: a(f"s_cmp_lg_u32 s3, 0\ns_cbranch_scc1 L_noprio\ns_setprio {o['prio']}\nL_noprio:")
    for s_ in range(1, 6): a(f"s_mov_b32 s{15+s_}, {4096*s_}")
    for sl in range(6):
        for t in range(4):
            a(f"buffer_load_dwordx4 {v(K0+16*sl+4*t,4)}, {'v253' if sl==0 else 'v252'}, s[28:31], {'0' if sl==0 else 's%d'%(15+sl)} offen offset:{1024*t} {KV}")
    if o["kbar"]: a("s_barrier")
    for sl in range(6):
        for t in range(4):
            a(f"buffer_load_dwordx4 {v(V0+16*sl+4*t,4)}, {'v255' if sl==0 else 'v254'}, s[32:35], {'0' if sl==0 else 's%d'%(15+sl)} offen offset:{256*t} {KV}")
    stamp(1)
    srd(12, 26, MBX)
    srd(28, 24, 256)
    a(f"""s_lshl_b32 s5, s36, 8
    s_add_u32 s10, s26, s5
    s_addc_u32 s11, s27, 0
    s_mov_b32 s4, 0x100000
    s_mov_b32 s5, s44
    s_mul_i32 s6, s36, 640
    s_add_u32 s6, s6, {OM}
    s_mul_i32 s7, s3, 544
    s_mov_b32 s8, {f2u(LOG2E)}
    s_mov_b32 s9, 0x3db504f3
    s_mov_b32 s21, 0xffff0000
    """)
    masks(MK, 15, 2, 3)
    a(f"""v_and_b32 v2, 15, v0
    v_lshrrev_b32 v3, 4, v0
    v_lshlrev_b32 v2, 5, v2
    v_lshl_add_u32 v2, v3, 4, v2
    v_add_u32 v2, s7, v2
    v_lshlrev_b32 v3, 4, v0
    v_add_u32 v3, 4352, v3
    v_cmp_gt_u32 vcc, 32, v0
    v_cndmask_b32 v252, v3, v2, vcc
    s_add_u32 s22, s7, 512
    v_mov_b32 v2, s22
    v_cmp_eq_u32 vcc, 0, v0
    v_cndmask_b32 v253, v3, v2, vcc
    s_add_u32 s22, s6, 512
    v_mov_b32 v2, s22
    v_mov_b32 v3, {OOB}
    v_cndmask_b32 v15, v3, v2, vcc
    v_and_b32 v2, 7, v0
    v_mul_u32_u24 v255, 544, v2
    v_cmp_eq_u32 vcc, 0, v2
    v_lshrrev_b32 v2, 3, v0
    v_lshlrev_b32 v2, 4, v2
    s_lshl_b32 s22, s3, 7
    v_add_u32 v2, s22, v2
    v_add_u32 v254, v255, v2
    v_add_u32 v2, s6, v2
    v_cndmask_b32 v14, v3, v2, vcc
    v_bfe_u32 v2, v0, 2, 2
    v_lshrrev_b32 v3, 4, v0
    v_and_b32 v8, 3, v0
    v_lshlrev_b32 v3, 6, v3
    v_lshl_add_u32 v3, v8, 4, v3
    v_mov_b32 v12, 256""")
    for t in range(4): a(f"v_cmp_eq_u32 vcc, {t}, v2\nv_cndmask_b32 v{8+t}, v12, v3, vcc")
    a("s_cmp_lg_u32 s3, 0\ns_cbranch_scc1 L_qwait")
    wait_counter("att", 28, 2, 4, 22, o["shots"])
    stamp(2)
    a(f"""L_q:
    s_load_dword s36, s[10:11], 252 glc
    s_waitcnt lgkmcnt(0)
    s_cmp_eq_u32 s36, -1
    s_cbranch_scc1 L_qre
    s_load_dwordx16 s[36:51], s[10:11], 0 glc
    s_load_dwordx16 s[68:83], s[10:11], 128 glc
    s_load_dwordx16 s[52:67], s[10:11], 64 glc
    s_load_dwordx16 s[84:99], s[10:11], 192 glc
    s_waitcnt lgkmcnt(0)""")
    for d in range(64): a(f"v_writelane_b32 v2, s{36+d}, {d}")
    a(f"""v_cmp_eq_u32 vcc, -1, v2
    s_cbranch_vccz L_qok
    L_qre:""")
    spin("L_q", 4)
    a(f"""L_qok:
    v_lshlrev_b32 v3, 2, v0
    v_mov_b32 v13, 1
    ds_write_b32 v3, v2 offset:{LQ}
    ds_write_b32 v12, v13 offset:{LQ+16}
    L_qwait:
    ds_read_b32 v13, v12 offset:{LQ+16}
    s_waitcnt lgkmcnt(0)
    v_cmp_eq_u32 vcc, 1, v13
    s_cbranch_vccnz L_qgo
    s_sleep 2""")
    spin("L_qwait", 4)
    a("L_qgo:")
    for t in range(4): a(f"ds_read_b128 {v(AQ+4*t,4)}, v{8+t} offset:{LQ}")
    a("s_waitcnt lgkmcnt(0)")
    stamp(3)
    for sl in range(6):
        a(f"s_waitcnt vmcnt({44-4*sl})")
        for t in range(4):
            a(f"v_mfma_f32_16x16x32_bf16 {v(DQ+4*sl,4)}, {v(AQ+4*t,4)}, {v(K0+16*sl+4*t,4)}, {'0' if t==0 else v(DQ+4*sl,4)}")
    stamp(4)
    for r in range(4):
        for sl in range(6):
            qp = f"quad_perm:[{r},{r},{r},{r}] row_mask:0xf bank_mask:0xf"
            if r == 0: a(f"v_mov_b32_dpp v{S0+sl}, v{DQ+4*sl} {qp}")
            else: a(f"v_add_f32_dpp v{S0+sl}, v{DQ+4*sl+r}, v{S0+sl} {qp}")
    T = AQ
    for rnd in range(2):
        for p in range(3): a(f"v_cvt_pk_bf16_f32 v{T+p}, v{S0+2*p}, v{S0+2*p+1}")
        for p in range(3): a(f"v_lshlrev_b32 v{S0+2*p}, 16, v{T+p}\nv_and_b32 v{S0+2*p+1}, s21, v{T+p}")
        if rnd == 0:
            for sl in range(6): a(f"v_mul_f32 v{S0+sl}, s9, v{S0+sl}")
    M, L_, TT = T + 4, T + 5, T + 6
    a(f"""v_add_f32 v{S0}, s5, v{S0}
    v_max3_f32 v{M}, v{S0+1}, v{S0+2}, v{S0+3}
    v_max3_f32 v{TT}, v{S0+4}, v{S0+5}, v{S0}
    v_max_f32 v{M}, v{M}, v{TT}
    v_max_f32_dpp v{M}, v{M}, v{M} row_ror:4 row_mask:0xf bank_mask:0xf
    v_max_f32_dpp v{M}, v{M}, v{M} row_ror:8 row_mask:0xf bank_mask:0xf
    v_mov_b32 v{TT}, v{M}
    v_permlane16_swap_b32 v{M}, v{TT}
    v_max_f32 v{M}, v{M}, v{TT}
    v_mov_b32 v{TT}, v{M}
    v_permlane32_swap_b32 v{M}, v{TT}
    v_max_f32 v{M}, v{M}, v{TT}
    v_mul_f32 v{M}, s8, v{M}""")
    for sl in range(6): a(f"v_fma_f32 v{S0+sl}, v{S0+sl}, s8, -v{M}")
    for sl in range(6): a(f"v_exp_f32 v{S0+sl}, v{S0+sl}")
    PK = T + 8
    for sl in range(6): a(f"v_cvt_pk_bf16_f32 v{PK+sl}, v{S0+sl}, v{S0+sl}")
    for sl in range(6):
        for k in range(4):
            for r in range(4):
                a(f"v_and_b32_dpp v{K0+16*sl+4*k+r}, v{PK+sl}, v{MK+r} row_newbcast:{4*k} row_mask:0xf bank_mask:0xf")
    a(f"""v_add_f32 v{L_}, v{S0}, v{S0+1}
    v_add_f32 v{TT}, v{S0+2}, v{S0+3}
    v_add_f32 v{S0+4}, v{S0+4}, v{S0+5}
    v_add_f32 v{L_}, v{L_}, v{TT}
    v_add_f32 v{L_}, v{L_}, v{S0+4}
    v_add_f32_dpp v{L_}, v{L_}, v{L_} row_ror:4 row_mask:0xf bank_mask:0xf
    v_add_f32_dpp v{L_}, v{L_}, v{L_} row_ror:8 row_mask:0xf bank_mask:0xf
    v_mov_b32 v{TT}, v{L_}
    v_permlane16_swap_b32 v{L_}, v{TT}
    v_add_f32 v{L_}, v{L_}, v{TT}
    v_mov_b32 v{TT}, v{L_}
    v_permlane32_swap_b32 v{L_}, v{TT}
    v_add_f32 v{L_}, v{L_}, v{TT}
    ds_write_b64 v253, {v(M,2)}""")
    stamp(5)
    for sl in range(6):
        for k in range(4):
            n = 23 - 4 * sl - k
            if k == 0 or sl == 5: a(f"s_waitcnt vmcnt({n - (3 if sl < 5 else 0)})")
            a(f"v_mfma_f32_16x16x32_bf16 {v(ACC,4)}, {v(K0+16*sl+4*k,4)}, {v(V0+16*sl+4*k,4)}, {'0' if sl==0 and k==0 else v(ACC,4)}")
    stamp(6)
    a(f"""ds_write_b128 v252, {v(ACC,4)}
    s_waitcnt lgkmcnt(0)
    s_barrier
    s_cmp_ge_u32 s3, 4
    s_cbranch_scc1 L_att_end
    ds_read_b64 v[16:17], v255 offset:512
    ds_read_b128 v[20:23], v254
    s_waitcnt lgkmcnt(1)
    v_max_f32_dpp v18, v16, v16 quad_perm:[1,0,3,2] row_mask:0xf bank_mask:0xf
    v_max_f32_dpp v18, v18, v18 quad_perm:[2,3,0,1] row_mask:0xf bank_mask:0xf
    v_max_f32_dpp v18, v18, v18 row_half_mirror row_mask:0xf bank_mask:0xf
    v_sub_f32 v16, v16, v18
    v_exp_f32 v16, v16
    s_waitcnt lgkmcnt(0)
    v_mul_f32 v19, v16, v17""")
    for r in range(4): a(f"v_mul_f32 v{20+r}, v16, v{20+r}")
    for dp in ("quad_perm:[1,0,3,2]", "quad_perm:[2,3,0,1]", "row_half_mirror"):
        for r in (20, 21, 22, 23, 19): a(f"v_add_f32_dpp v{r}, v{r}, v{r} {dp} row_mask:0xf bank_mask:0xf")
    a("""buffer_store_dwordx4 v[20:23], v14, s[12:15], 0 offen sc1
    s_cmp_lg_u32 s3, 0
    s_cbranch_scc1 L_att_end
    buffer_store_dwordx2 v[18:19], v15, s[12:15], 0 offen sc1
    L_att_end:""")
    stamp(7); stamp_out()
    a("L_end:\ns_endpgm")
    GU, WO, DN = 16, 96, 160
    M8, M4 = 4, 8
    SB = 80
    HW, HS, HC, PW, PR, YW = 240, 241, 242, 243, 244, 245
    C640, CEPS, CG1, CG2 = 246, 247, 248, 249
    g1 = -2 * LOG2E * 0.7978845608028654
    def gu_list():
        L = []
        for t in range(10):
            so = "0" if t == 0 else f"s{59+t}"
            L.append(f"buffer_load_dwordx4 {v(GU+8*t,4)}, v250, s[32:35], {so} offen {WT}")
            L.append(f"buffer_load_dwordx4 {v(GU+8*t+4,4)}, v250, s[36:39], {so} offen {WT}")
        return L
    def gu_setup():
        srd(32, 16, 2211840); srd(36, 18, 2211840)
        for t in range(1, 10): a(f"s_mov_b32 s{59+t}, {3456*t}")
        a("s_lshl_b32 s72, s77, 7\nv_mul_u32_u24 v250, 3456, v12\nv_lshl_add_u32 v250, v3, 4, v250\nv_add_u32 v250, s72, v250")
    def dn_loads():
        srd(44, 20, 2211840)
        a("""s_lshl_b32 s72, s77, 3
        s_add_u32 s72, s72, s3
        s_mul_i32 s72, s72, 10240
        v_lshrrev_b32 v14, 4, v0
        v_mul_u32_u24 v14, 2560, v14
        v_and_b32 v15, 15, v0
        v_lshl_add_u32 v14, v15, 4, v14
        v_add_u32 v14, s72, v14""")
        for t in range(2):
            for b in range(5): a(f"buffer_load_dwordx4 {v(DN+20*t+4*b,4)}, v14, s[44:47], 0 offen offset:{1280*t+256*b} {WT}")
    def wo_list():
        return [f"buffer_load_dwordx4 {v(WO+4*t,4)}, v251, s[40:43], {'0' if t < 4 else 's%d' % (68 + t//4)} offen offset:{1280*(t&3)} {WT}" for t in range(16)]
    def wq_loads(base, va):
        for t in range(10): a(f"buffer_load_dwordx4 {v(base+4*t,4)}, v{va}, s[52:55], {'0' if t == 0 else 's%d' % (83+t)} offen {WT}")
    def signal(tag, younger):
        a(f"""s_cmp_lg_u32 s3, 0
        s_cbranch_scc1 L_nosig_{tag}
        v_mov_b32 v15, 1
        v_lshlrev_b32 v14, 6, v0
        """)
        stamp(16)
        a(f"s_waitcnt vmcnt({younger})")
        stamp(17)
        a(f"""s_mov_b64 exec, 15
        buffer_atomic_add v15, v14, s[56:59], 0 offen sc1
        s_mov_b64 exec, -1
        L_nosig_{tag}:""")
    def ln(wait_c):
        for p in range(5): a(f"v_pk_add_f32 {v(204+2*p,2)}, {v(204+2*p,2)}, v[214:215] op_sel_hi:[1,0] neg_lo:[0,1] neg_hi:[0,1]")
        a("""v_pk_mul_f32 v[14:15], v[204:205], v[204:205]
        v_pk_add_f32 v[204:205], v[204:205], v[206:207]
        v_pk_fma_f32 v[14:15], v[206:207], v[206:207], v[14:15]
        v_pk_add_f32 v[206:207], v[208:209], v[210:211]
        v_pk_fma_f32 v[14:15], v[208:209], v[208:209], v[14:15]
        v_pk_add_f32 v[204:205], v[204:205], v[212:213]
        v_pk_fma_f32 v[14:15], v[210:211], v[210:211], v[14:15]
        v_pk_add_f32 v[204:205], v[204:205], v[206:207]
        v_pk_fma_f32 v[14:15], v[212:213], v[212:213], v[14:15]
        v_add_f32 v204, v204, v205
        v_add_f32 v14, v14, v15""")
        for dp in ("row_ror:1 row_mask:0xf", "row_ror:2 row_mask:0xf", "row_ror:4 row_mask:0xf", "row_ror:8 row_mask:0xf", "row_bcast:15 row_mask:0xa", "row_bcast:31 row_mask:0xc"):
            a(f"v_add_f32_dpp v204, v204, v204 {dp} bank_mask:0xf\nv_add_f32_dpp v14, v14, v14 {dp} bank_mask:0xf")
        a(f"""v_readlane_b32 s72, v204, 63
        v_readlane_b32 s73, v14, 63
        v_mul_f32 v14, s72, v{C640}
        v_mul_f32 v15, s73, v{C640}
        v_add_f32 v214, v214, v14
        v_fma_f32 v15, -v14, v14, v15
        v_cvt_pk_bf16_f32 v14, v214, v15
        v_and_b32 v15, s81, v14
        v_lshlrev_b32 v214, 16, v14
        v_add_f32 v15, v15, v{CEPS}""")
        a(wait_c)
        pk = [f"v_pk_add_f32 {v(216+2*p,2)}, {v(216+2*p,2)}, v[214:215] op_sel_hi:[1,0] neg_lo:[0,1] neg_hi:[0,1]" for p in range(5)]
        cv = [f"v_cvt_pk_bf16_f32 v{204+p}, v{216+2*p}, v{217+2*p}" for p in range(5)]
        un = [f"v_lshlrev_b32 v{216+2*p}, 16, v{204+p}\nv_and_b32 v{217+2*p}, s81, v{204+p}" for p in range(5)]
        a("v_cvt_pk_bf16_f32 v15, v15, v15"); a(pk[0]); a("v_and_b32 v15, s81, v15"); a(pk[1]); a("v_sqrt_f32 v15, v15")
        a(pk[2]); a(pk[3]); a("v_cvt_pk_bf16_f32 v15, v15, v15"); a(pk[4]); a("v_and_b32 v15, s81, v15"); a(cv[0]); a("v_rcp_f32 v14, v15")
        for x in cv[1:] + un: a(x)
        for p in range(5): a(f"v_pk_mul_f32 {v(216+2*p,2)}, {v(216+2*p,2)}, v[14:15] op_sel_hi:[1,0]")
        for t in range(10): a(f"v_cvt_pk_bf16_f32 v{216+t}, v{216+t}, v{216+t}")
    def qgemv(base, acc, after, nxt):
        nxt = list(nxt); issued = 0
        for t in range(10):
            for r in range(4): a(f"v_and_b32 v{228+4*(t%2)+r}, v{216+t}, v{M8+r}")
            a(f"s_waitcnt vmcnt({9-t+after+issued})")
            a(f"v_mfma_f32_16x16x32_bf16 {v(acc,4)}, {v(228+4*(t%2),4)}, {v(base+4*t,4)}, {'0' if t==0 else v(acc,4)}")
            for k in range(o["il"]):
                if nxt: a(nxt.pop(0)); issued += 1
        return nxt
    def psum():
        a(f"""ds_read2st64_b32 v[204:205], v{PR} offset0:0 offset1:17
        ds_read2st64_b32 v[206:207], v{PR} offset0:1 offset1:18
        s_waitcnt lgkmcnt(1)
        v_add_f32 v204, v204, v205
        s_waitcnt lgkmcnt(0)
        v_add_f32 v206, v206, v207""")
        for dp in ("quad_perm:[1,0,3,2]", "quad_perm:[2,3,0,1]", "row_half_mirror"):
            a(f"v_add_f32_dpp v204, v204, v204 {dp} row_mask:0xf bank_mask:0xf\nv_add_f32_dpp v206, v206, v206 {dp} row_mask:0xf bank_mask:0xf")
    def qpub(reg, su):
        a(f"""v_mov_b32_dpp v15, v{reg} row_ror:8 row_mask:0xf bank_mask:0xf
        s_lshr_b32 s72, s{su}, 1
        s_mul_i32 s72, s72, 1536
        s_and_b32 s73, s{su}, 1
        s_lshl_b32 s73, s73, 7
        s_add_u32 s72, s72, s73
        v_cvt_pk_bf16_f32 v15, v{reg}, v15
        v_min_u32 v15, -2, v15
        buffer_store_dword v15, v14, s[48:51], s72 offen sc1""")
    for i in range(40): assert (i * 26) >> 8 == i // 10
    for col in range(0, 640, 2): assert (col * 52429) >> 19 == col // 10
    a("""L_aux:
    v_lshrrev_b32 v2, 3, v0
    v_and_b32 v3, 7, v0
    s_mul_i32 s72, s3, 80
    v_mul_u32_u24 v12, 10, v2
    v_add_u32 v12, s72, v12
    v_lshlrev_b32 v13, 2, v0
    s_lshl_b32 s72, s3, 8
    v_add_u32 v13, s72, v13
    s_and_b32 s78, s2, 7
    s_lshl_b32 s78, s78, 3
    s_lshr_b32 s72, s2, 3
    s_add_u32 s78, s78, s72
    s_add_u32 s79, s78, 24
    s_lshl_b32 s72, s78, 7
    v_lshlrev_b32 v252, 13, v12
    v_lshl_add_u32 v252, v3, 4, v252
    v_add_u32 v252, s72, v252
    v_add_u32 v253, 3072, v252
    v_mul_u32_u24 v254, 20, v0
    v_lshlrev_b32 v255, 1, v12
    v_mov_b32 v204, -1
    v_mov_b32 v205, -1
    v_mov_b32 v206, -1
    v_mov_b32 v207, -1
    v_lshlrev_b32 v14, 4, v0""")
    for t in range(1, 10): a(f"s_mov_b32 s{83+t}, {8192*t}")
    a("""s_mul_i32 s74, s2, 26
    s_lshr_b32 s74, s74, 8
    s_mul_i32 s75, s74, 10
    s_sub_u32 s75, s2, s75
    s_lshl_b32 s76, s74, 3
    s_add_u32 s76, s76, s3
    s_mul_i32 s72, s76, 163840
    s_lshl_b32 s73, s75, 7
    s_add_u32 s72, s72, s73
    v_mul_u32_u24 v251, 20480, v2
    v_lshl_add_u32 v251, v3, 4, v251
    v_add_u32 v251, s72, v251
    s_mov_b32 s69, 5120
    s_mov_b32 s70, 10240
    s_mov_b32 s71, 15360
    s_sub_u32 s77, s2, 37
    s_lshl_b32 s72, s2, 12
    s_waitcnt lgkmcnt(0)""")
    if o["stamps"]: a("v_mov_b32 v1, 0\nv_writelane_b32 v1, s100, 0")
    srd(48, 26, MBX)
    a("s_cmp_lg_u32 s3, 0\ns_cbranch_scc1 L_noclr")
    for k in range(4): a(f"buffer_store_dwordx4 v[204:207], v14, s[48:51], s72 offen offset:{1024*k} sc1")
    a("L_noclr:")
    srd(28, 4, 1280); srd(52, 10, 5242880); srd(56, 24, 256); srd(40, 12, 5242880)
    a(f"""s_mov_b32 s{SB}, 0x40000
    buffer_load_dword v200, v13, s[28:31], 0 offen
    s_cmp_lt_u32 s77, 3
    s_cbranch_scc0 L_notdual""")
    for x in wo_list(): a(x)
    signal("d", 17)
    a("s_barrier")
    gu_setup()
    for x in gu_list(): a(x)
    dn_loads()
    a("""s_branch L_consts
    L_notdual:
    buffer_load_dwordx4 v[228:231], v254, s[28:31], 0 offen
    buffer_load_dword v232, v254, s[28:31], 0 offen offset:16
    buffer_load_dwordx4 v[236:239], v255, s[28:31], 0 offen
    buffer_load_dword v233, v255, s[28:31], 0 offen offset:16""")
    wq_loads(DN, 252)
    signal("q", 15)
    a("""s_sub_u32 s72, s2, 34
    s_cmp_lt_u32 s72, 3
    s_cbranch_scc0 L_consts""")
    wq_loads(GU, 253)
    a("L_consts:")
    stamp(1)
    masks(M8, 7, 14, 15); masks(M4, 15, 14, 15)
    a(f"""s_mov_b32 s81, 0xffff0000
    v_mov_b32 v{C640}, {f2u(1/640)}
    v_mov_b32 v{CEPS}, {f2u(1e-5)}
    v_mov_b32 v{CG1}, {f2u(g1)}
    v_mov_b32 v{CG2}, {f2u(g1*0.044715)}
    v_lshrrev_b32 v14, 1, v13
    s_mov_b32 s72, 52429
    v_mul_lo_u32 v15, v14, s72
    v_lshrrev_b32 v15, 19, v15
    v_lshlrev_b32 v15, 1, v15
    v_add_u32 v14, v14, v15
    v_lshlrev_b32 v{HW}, 2, v14
    v_mul_u32_u24 v{HS}, 48, v0
    s_lshl_b32 s72, s3, 3
    v_add_u32 v14, s72, v2
    v_mul_u32_u24 v{HC}, 48, v14
    v_lshlrev_b32 v14, 2, v14
    v_mul_u32_u24 v15, 544, v3
    v_add_u32 v{PR}, v14, v15
    v_add_u32 v{PR}, {LP}, v{PR}""")
    a(f"""v_lshrrev_b32 v14, 5, v0
    v_bfe_u32 v15, v0, 3, 1
    v_cmp_eq_u32 vcc, v14, v15
    s_lshl_b32 s72, s3, 1
    v_add_u32 v14, s72, v14
    v_bfe_u32 v15, v0, 4, 1
    v_lshlrev_b32 v15, 4, v15
    v_lshl_add_u32 v15, v3, 5, v15
    v_lshlrev_b32 v201, 4, v0
    v_add_u32 v201, {LDUMP}, v201
    v_mul_u32_u24 v202, 544, v14
    v_add_u32 v202, v202, v15
    v_add_u32 v202, {LP}, v202
    v_cndmask_b32 v{PW}, v201, v202, vcc
    v_mul_u32_u24 v202, 320, v14
    v_add_u32 v202, v202, v15
    v_add_u32 v202, {LY}, v202
    v_cndmask_b32 v{YW}, v201, v202, vcc
    s_cmp_lt_u32 s77, 3
    s_cbranch_scc0 L_qrole
    s_cmp_lg_u32 s3, 0
    s_cbranch_scc1 L_cntok_dual""")
    wait_counter("dual", 56, 14, SB, 72, [(3, None)])
    a("s_barrier\ns_branch L_wo")
    a("L_qrole:\ns_waitcnt vmcnt(10)")
    for p in range(5):
        src = 228 + p; srcc = 236 + p if p < 4 else 233
        a(f"v_lshlrev_b32 v{204+2*p}, 16, v{src}\nv_and_b32 v{205+2*p}, s81, v{src}\nv_lshlrev_b32 v{216+2*p}, 16, v{srcc}\nv_and_b32 v{217+2*p}, s81, v{srcc}")
    a("v_readfirstlane_b32 s72, v204\nv_mov_b32 v214, s72")
    ln("")
    stamp(13)
    a("s_cmp_ge_u32 s2, 40\ns_cbranch_scc1 L_q_f\ns_cmp_ge_u32 s2, 34\ns_cbranch_scc1 L_q_w2")
    rest = qgemv(DN, 204, 0, wo_list())
    for x in rest: a(x)
    a("s_branch L_q_sum\nL_q_w2:")
    qgemv(DN, 204, 10, [])
    rest = qgemv(GU, 208, 0, wo_list())
    for x in rest: a(x)
    a("s_branch L_q_sum\nL_q_f:")
    gu_setup()
    rest = qgemv(DN, 204, 0, gu_list())
    for x in rest: a(x)
    a("L_q_sum:")
    stamp(18)
    a(f"""    ds_write_b128 v{PW}, v[204:207]
    ds_write_b128 v{PW}, v[208:211] offset:256
    s_cmp_lg_u32 s3, 0
    s_cbranch_scc1 L_cntok_q""")
    wait_counter("q", 56, 14, SB, 72, [(3, None)])
    a("s_waitcnt lgkmcnt(0)\ns_barrier")
    stamp(14)
    psum()
    a(f"""v_and_b32 v14, 15, v0
    v_cmp_gt_u32 vcc, 6, v14
    v_lshlrev_b32 v14, 8, v14
    v_lshrrev_b32 v15, 4, v0
    v_lshl_add_u32 v14, v15, 2, v14
    s_lshl_b32 s73, s3, 4
    v_add_u32 v14, s73, v14
    v_mov_b32 v15, {OOB}
    v_cndmask_b32 v14, v15, v14, vcc""")
    qpub(204, 78)
    a("s_sub_u32 s72, s2, 34\ns_cmp_lt_u32 s72, 3\ns_cbranch_scc0 L_q_1")
    qpub(206, 79)
    a("L_q_1:")
    stamp(15)
    a("s_cmp_lt_u32 s2, 40\ns_cbranch_scc1 L_wo")
    dn_loads()
    a("s_branch L_ffn")
    a(f"""L_wo:
    s_mul_i32 s72, s76, 3840
    s_add_u32 s72, s72, {OM}
    v_lshlrev_b32 v202, 3, v0
    v_add_u32 v203, s72, v202
    v_and_b32 v14, 15, v0
    v_cmp_gt_u32 vcc, 6, v14
    v_cndmask_b32 v205, 0, 1.0, vcc
    v_min_u32 v14, 5, v14
    v_mul_u32_u24 v14, 640, v14
    v_add_u32 v204, s72, v14
    s_lshl_b32 s72, s3, 9
    s_add_u32 s72, s72, {LO}
    v_add_u32 v202, s72, v202
    v_lshlrev_b32 v206, 6, v2
    v_add_u32 v206, s72, v206
    v_lshrrev_b32 v14, 2, v0
    v_and_b32 v15, 3, v0
    v_lshlrev_b32 v14, 4, v14
    v_cmp_eq_u32 vcc, 0, v15
    v_mul_u32_u24 v15, 320, v15
    v_add_u32 v207, v14, v15
    s_mul_i32 s72, s74, 2560
    s_lshl_b32 s73, s75, 8
    s_add_u32 s72, s72, s73
    s_add_u32 s72, s72, {YM}
    v_add_u32 v14, s72, v14
    v_mov_b32 v15, {OOB}
    v_cndmask_b32 v208, v15, v14, vcc""")
    if o["gate"]:
        a("""L_h1a:
        buffer_load_dword v210, v204, s[48:51], 0 offen offset:512 sc1
        s_waitcnt vmcnt(0)
        v_cmp_ne_u32 vcc, -1, v210
        s_cbranch_vccnz L_h1""")
        spin("L_h1a", SB)
    a("L_h1:")
    a("buffer_load_dwordx2 v[210:211], v204, s[48:51], 0 offen offset:512 sc1")
    for c in range(6): a(f"buffer_load_dwordx2 {v(212+2*c,2)}, v203, s[48:51], 0 offen offset:{640*c} sc1")
    a("""s_waitcnt vmcnt(0)
    v_max3_u32 v14, v210, v211, v212
    v_max3_u32 v15, v213, v214, v215
    v_max3_u32 v14, v14, v216, v217
    v_max3_u32 v15, v15, v218, v219
    v_max3_u32 v14, v14, v220, v221
    v_max3_u32 v15, v15, v222, v223
    v_max_u32 v14, v14, v15
    v_cmp_eq_u32 vcc, -1, v14
    s_cbranch_vccz L_h1ok""")
    spin("L_h1", SB)
    a("L_h1ok:")
    stamp(3)
    a("""v_max_f32_dpp v14, v210, v210 quad_perm:[1,0,3,2] row_mask:0xf bank_mask:0xf
    v_mul_f32 v211, v211, v205
    v_max_f32_dpp v14, v14, v14 quad_perm:[2,3,0,1] row_mask:0xf bank_mask:0xf
    v_max_f32_dpp v14, v14, v14 row_half_mirror row_mask:0xf bank_mask:0xf
    v_sub_f32 v210, v210, v14
    v_exp_f32 v210, v210
    v_mul_f32 v211, v210, v211
    v_mul_f32_dpp v224, v210, v212 row_newbcast:0 row_mask:0xf bank_mask:0xf
    v_mul_f32_dpp v225, v210, v213 row_newbcast:0 row_mask:0xf bank_mask:0xf
    v_add_f32_dpp v211, v211, v211 quad_perm:[1,0,3,2] row_mask:0xf bank_mask:0xf""")
    seq = []
    for c in range(1, 6):
        for e in range(2): seq.append(f"v_fmac_f32_dpp v{224+e}, v210, v{212+2*c+e} row_newbcast:{c} row_mask:0xf bank_mask:0xf")
    seq.insert(2, "v_add_f32_dpp v211, v211, v211 quad_perm:[2,3,0,1] row_mask:0xf bank_mask:0xf")
    seq.insert(5, "v_add_f32_dpp v211, v211, v211 row_half_mirror row_mask:0xf bank_mask:0xf")
    seq.insert(8, "v_rcp_f32 v211, v211")
    a("\n".join(seq))
    a("""v_mul_f32_dpp v224, v211, v224 row_newbcast:0 row_mask:0xf bank_mask:0xf
    v_mul_f32_dpp v225, v211, v225 row_newbcast:0 row_mask:0xf bank_mask:0xf
    v_cvt_pk_bf16_f32 v224, v224, v224
    v_cvt_pk_bf16_f32 v225, v225, v225
    ds_write_b64 v202, v[224:225]""")
    for k in range(4): a(f"ds_read_b128 {v(208+4+4*k,4)}, v206 offset:{16*k}")
    for t in range(16):
        if t % 4 == 0: a(f"s_waitcnt lgkmcnt({3 - t//4})")
        ab = 228 + 4 * (t % 3)
        for r in range(4): a(f"v_and_b32 v{ab+r}, v{212+t}, v{M8+r}")
        if t > 0: a(f"v_mfma_f32_16x16x32_bf16 v[252:255], {v(228+4*((t-1)%3),4)}, {v(WO+4*(t-1),4)}, {'0' if t==1 else 'v[252:255]'}")
    a(f"v_mfma_f32_16x16x32_bf16 v[252:255], {v(228,4)}, {v(WO+60,4)}, v[252:255]")
    a(f"""ds_write_b128 v{YW}, v[252:255]
    s_waitcnt lgkmcnt(0)
    s_barrier""")
    stamp(4)
    a("s_cmp_lg_u32 s3, 0\ns_cbranch_scc1 L_wo_done")
    for k in range(4): a(f"ds_read_b128 {v(212+4*k,4)}, v207 offset:{LY+1280*k}")
    a("""s_waitcnt lgkmcnt(2)
    v_pk_add_f32 v[212:213], v[212:213], v[216:217]
    v_pk_add_f32 v[214:215], v[214:215], v[218:219]
    s_waitcnt lgkmcnt(0)
    v_pk_add_f32 v[220:221], v[220:221], v[224:225]
    v_pk_add_f32 v[222:223], v[222:223], v[226:227]
    v_pk_add_f32 v[212:213], v[212:213], v[220:221]
    v_pk_add_f32 v[214:215], v[214:215], v[222:223]""")
    for dp in ("quad_perm:[1,0,3,2]", "quad_perm:[2,3,0,1]"):
        for r in range(212, 216): a(f"v_add_f32_dpp v{r}, v{r}, v{r} {dp} row_mask:0xf bank_mask:0xf")
    a("buffer_store_dwordx4 v[212:215], v208, s[48:51], 0 offen sc1\nL_wo_done:")
    stamp(5)
    a("""s_cmp_ge_u32 s2, 37
    s_cbranch_scc1 L_ffn
    s_cmp_ge_u32 s2, 20
    s_cbranch_scc1 L_aux_end
    s_cmp_lg_u32 s3, 7
    s_cbranch_scc1 L_aux_end""")
    srd(52, 22, 1280)
    a(f"""s_lshl_b32 s72, s2, 7
    v_mul_u32_u24 v14, 2560, v2
    v_lshl_add_u32 v14, v3, 4, v14
    v_add_u32 v14, s72, v14
    v_add_u32 v202, {YM}, v14
    v_mov_b32 v15, {OOB}
    v_cmp_gt_u32 vcc, 32, v0
    v_cndmask_b32 v202, v15, v202, vcc
    v_add_u32 v203, {DM}, v14
    v_add_u32 v204, {DM+61440}, v14
    v_cmp_gt_u32 vcc, 24, v0
    v_cndmask_b32 v204, v15, v204, vcc
    v_bfe_u32 v14, v0, 4, 1
    v_lshrrev_b32 v205, 5, v0
    v_lshl_add_u32 v14, v14, 1, v205
    v_lshl_add_u32 v14, v3, 2, v14
    v_lshlrev_b32 v14, 1, v14
    s_lshl_b32 s72, s2, 6
    v_add_u32 v14, s72, v14
    buffer_load_ushort v206, v14, s[28:31], 0 offen
    v_bfe_u32 v205, v0, 3, 1
    v_cmp_eq_u32 vcc, 0, v205
    v_cndmask_b32 v205, v15, v14, vcc
    s_mov_b32 s72, 20480
    s_mov_b32 s73, 40960
    L_ry:
    buffer_load_dwordx4 v[212:215], v202, s[48:51], 0 offen sc1
    s_waitcnt vmcnt(0)
    v_max3_u32 v14, v212, v213, v214
    v_max_u32 v14, v14, v215
    v_cmp_eq_u32 vcc, -1, v14
    s_cbranch_vccz L_ryok""")
    spin("L_ry", SB)
    def rs4(b):
        a(f"""v_permlane32_swap_b32 v{b}, v{b+1}
        v_permlane32_swap_b32 v{b+2}, v{b+3}
        v_add_f32 v{b}, v{b}, v{b+1}
        v_add_f32 v{b+2}, v{b+2}, v{b+3}
        v_permlane16_swap_b32 v{b}, v{b+2}
        v_add_f32 v{b}, v{b}, v{b+2}
        v_add_f32_dpp v{b}, v{b}, v{b} row_ror:8 row_mask:0xf bank_mask:0xf""")
    a("L_ryok:")
    rs4(212)
    a("""v_cvt_pk_bf16_f32 v212, v212, v212
    v_lshlrev_b32 v206, 16, v206
    v_and_b32 v212, s81, v212
    v_add_f32 v212, v212, v206
    v_cvt_pk_bf16_f32 v212, v212, v212
    v_and_b32 v206, s81, v212""")
    stamp(6)
    a("""L_rd:
    buffer_load_dwordx4 v[212:215], v203, s[48:51], 0 offen sc1
    buffer_load_dwordx4 v[216:219], v203, s[48:51], s72 offen sc1
    buffer_load_dwordx4 v[220:223], v203, s[48:51], s73 offen sc1
    buffer_load_dwordx4 v[224:227], v204, s[48:51], 0 offen sc1
    s_waitcnt vmcnt(0)""")
    a("v_max3_u32 v14, v212, v213, v214\nv_max3_u32 v15, v215, v216, v217")
    a("v_max3_u32 v14, v14, v218, v219\nv_max3_u32 v15, v15, v220, v221\nv_max3_u32 v14, v14, v222, v223\nv_max3_u32 v15, v15, v224, v225\nv_max3_u32 v14, v14, v226, v227\nv_max_u32 v14, v14, v15")
    a("v_cmp_eq_u32 vcc, -1, v14\ns_cbranch_vccz L_rdok")
    spin("L_rd", SB)
    a("""L_rdok:
    v_pk_add_f32 v[212:213], v[212:213], v[216:217]
    v_pk_add_f32 v[220:221], v[220:221], v[224:225]
    v_pk_add_f32 v[214:215], v[214:215], v[218:219]
    v_pk_add_f32 v[222:223], v[222:223], v[226:227]
    v_pk_add_f32 v[212:213], v[212:213], v[220:221]
    v_pk_add_f32 v[214:215], v[214:215], v[222:223]""")
    rs4(212)
    a("""v_cvt_pk_bf16_f32 v212, v212, v212
    v_and_b32 v212, s81, v212
    v_add_f32 v212, v212, v206
    v_cvt_pk_bf16_f32 v212, v212, v212
    buffer_store_short v212, v205, s[52:55], 0 offen""")
    stamp(7)
    a("s_branch L_aux_end")
    DW, DR, DS = 250, 251, 201
    a(f"""L_ffn:
    v_and_b32 v14, 15, v0
    v_lshrrev_b32 v15, 4, v0
    v_lshlrev_b32 v14, 5, v14
    v_lshl_add_u32 v14, v15, 4, v14
    s_mul_i32 s72, s3, 2688
    s_add_u32 s72, s72, {LD}
    v_add_u32 v14, s72, v14
    v_lshlrev_b32 v15, 4, v0
    v_add_u32 v15, {LDUMP}, v15
    v_cmp_gt_u32 vcc, 32, v0
    v_cndmask_b32 v{DW}, v15, v14, vcc
    v_lshrrev_b32 v14, 1, v0
    v_lshlrev_b32 v14, 4, v14
    s_lshl_b32 s72, s3, 9
    v_add_u32 v14, s72, v14
    v_and_b32 v15, 1, v0
    v_cmp_eq_u32 vcc, 0, v15
    v_mul_u32_u24 v15, 2688, v15
    v_add_u32 v{DR}, v14, v15
    s_mul_i32 s72, s77, 2560
    s_add_u32 s72, s72, {DM}
    v_add_u32 v14, s72, v14
    v_mov_b32 v15, {OOB}
    v_cndmask_b32 v{DS}, v15, v14, vcc
    s_waitcnt vmcnt(0)
    s_cmp_ge_u32 s3, 5
    s_cbranch_scc1 L_lng_bar
    v_lshlrev_b32 v14, 1, v13
    v_add_u32 v14, {YM}, v14
    s_mov_b32 s72, 5120
    L_h2:
    buffer_load_dwordx2 v[212:213], v14, s[48:51], 0 offen sc1
    buffer_load_dwordx2 v[214:215], v14, s[48:51], 0 offen offset:2560 sc1
    buffer_load_dwordx2 v[216:217], v14, s[48:51], s72 offen sc1
    buffer_load_dwordx2 v[218:219], v14, s[48:51], s72 offen offset:2560 sc1
    s_waitcnt vmcnt(0)
    v_max3_u32 v15, v212, v213, v214
    v_max3_u32 v202, v215, v216, v217
    v_max3_u32 v15, v15, v218, v219
    v_max_u32 v15, v15, v202
    v_cmp_eq_u32 vcc, -1, v15
    s_cbranch_vccz L_h2ok""")
    spin("L_h2", SB)
    a("L_h2ok:")
    stamp(6)
    a("""v_pk_add_f32 v[212:213], v[212:213], v[214:215]
    v_pk_add_f32 v[216:217], v[216:217], v[218:219]
    v_lshlrev_b32 v202, 16, v200
    v_pk_add_f32 v[212:213], v[212:213], v[216:217]
    v_and_b32 v203, s81, v200
    v_cvt_pk_bf16_f32 v212, v212, v213
    v_lshlrev_b32 v214, 16, v212
    v_and_b32 v215, s81, v212
    v_pk_add_f32 v[202:203], v[202:203], v[214:215]
    v_cvt_pk_bf16_f32 v212, v202, v203
    v_lshlrev_b32 v202, 16, v212
    v_and_b32 v203, s81, v212""")
    a(f"""    ds_write_b64 v{HW}, v[202:203]
    s_waitcnt lgkmcnt(0)
    L_lng_bar:
    s_barrier
    v_mov_b32 v14, 0
    ds_read_b128 v[204:207], v{HS}
    ds_read_b32 v214, v14
    ds_read_b128 v[208:211], v{HS} offset:16
    ds_read_b64 v[212:213], v{HS} offset:32
    ds_read_b128 v[216:219], v{HC}
    ds_read_b128 v[220:223], v{HC} offset:16
    ds_read_b64 v[224:225], v{HC} offset:32""")
    stamp(8)
    a("s_waitcnt lgkmcnt(3)")
    ln("s_waitcnt lgkmcnt(0)")
    stamp(9)
    def mf(t):
        ab = 228 + 4 * (t % 3)
        a(f"v_mfma_f32_16x16x32_bf16 v[204:207], {v(ab,4)}, {v(GU+8*t,4)}, {'0' if t==0 else 'v[204:207]'}")
        a(f"v_mfma_f32_16x16x32_bf16 v[208:211], {v(ab,4)}, {v(GU+8*t+4,4)}, {'0' if t==0 else 'v[208:211]'}")
    for t in range(10):
        ab = 228 + 4 * (t % 3)
        for r in range(4): a(f"v_and_b32 v{ab+r}, v{216+t}, v{M8+r}")
        if t > 0: mf(t - 1)
    mf(9)
    a(f"""ds_write_b128 v{PW}, v[204:207]
    ds_write_b128 v{PW}, v[208:211] offset:256
    s_waitcnt lgkmcnt(0)
    s_barrier""")
    stamp(10)
    psum()
    a(f"""
    v_cvt_pk_bf16_f32 v204, v204, v206
    v_lshlrev_b32 v205, 16, v204
    v_and_b32 v206, s81, v204
    v_mul_f32 v207, v205, v205
    v_fma_f32 v207, v207, v{CG2}, v{CG1}
    v_mul_f32 v207, v207, v205
    v_exp_f32 v207, v207
    v_add_f32 v207, 1.0, v207
    v_rcp_f32 v207, v207
    v_mul_f32 v207, v207, v205
    v_cvt_pk_bf16_f32 v207, v207, v207
    v_and_b32 v207, s81, v207
    v_mul_f32 v207, v207, v206
    v_cvt_pk_bf16_f32 v207, v207, v207""")
    for t in range(2):
        for r in range(4): a(f"v_and_b32_dpp v{228+4*t+r}, v207, v{M4+r} row_newbcast:{8*t} row_mask:0xf bank_mask:0xf")
    for t in range(2):
        for b in range(5): a(f"v_mfma_f32_16x16x32_bf16 {v(208+4*b,4)}, {v(228+4*t,4)}, {v(DN+20*t+4*b,4)}, {'0' if t==0 else v(208+4*b,4)}")
    for b in range(5): a(f"ds_write_b128 v{DW}, {v(208+4*b,4)} offset:{512*b}")
    a("s_waitcnt lgkmcnt(0)\ns_barrier")
    stamp(11)
    a("s_cmp_ge_u32 s3, 5\ns_cbranch_scc1 L_aux_end")
    for k in range(4): a(f"ds_read_b128 {v(212+4*k,4)}, v{DR} offset:{LD+5376*k}")
    a("""s_waitcnt lgkmcnt(2)
    v_pk_add_f32 v[212:213], v[212:213], v[216:217]
    v_pk_add_f32 v[214:215], v[214:215], v[218:219]
    s_waitcnt lgkmcnt(0)
    v_pk_add_f32 v[220:221], v[220:221], v[224:225]
    v_pk_add_f32 v[222:223], v[222:223], v[226:227]
    v_pk_add_f32 v[212:213], v[212:213], v[220:221]
    v_pk_add_f32 v[214:215], v[214:215], v[222:223]""")
    for r in range(212, 216): a(f"v_add_f32_dpp v{r}, v{r}, v{r} quad_perm:[1,0,3,2] row_mask:0xf bank_mask:0xf")
    a(f"buffer_store_dwordx4 v[212:215], v{DS}, s[48:51], 0 offen sc1")
    stamp(12)
    a("L_aux_end:")
    stamp_out()
    a("s_endpgm")
    head = open(f"cdna_kernels/{KN}.s.ref").read().split("; Override launch")[0] if o["hdr"] else ""
    return head + f"""; @launch grid=(256,1,1) block=(512,1,1) lds={LDS_SIZE}
.amdgcn_target "amdgcn-amd-amdhsa--gfx950"
.text
.globl {KN}_kernel
.p2align 8
.type {KN}_kernel,@function
""" + a.text() + f""".section .rodata,"a"
.p2align 6
.amdhsa_kernel {KN}_kernel
  .amdhsa_next_free_vgpr 256
  .amdhsa_next_free_sgpr 102
  .amdhsa_accum_offset 256
  .amdhsa_group_segment_fixed_size 0
  .amdhsa_kernarg_size 96
  .amdhsa_user_sgpr_count 2
  .amdhsa_user_sgpr_kernarg_segment_ptr 1
  .amdhsa_system_sgpr_workgroup_id_x 1
.end_amdhsa_kernel
"""
if __name__ == "__main__":
    kw = {}
    out = f"cdna_kernels/{KN}.s"
    for x in sys.argv[1:]:
        k, val = x.split("=", 1)
        if k == "out": out = val
        else: kw[k] = eval(val)
    open(out, "w").write(gen(**kw))
```

```python
import sys, struct
sys.path.insert(0, "exp")
from asmlib import *
KN = "sequential_preLN__gqa_block_cached__glu_gated_geglu__decode"
def f2u(x): return "0x%08x" % struct.unpack("<I", struct.pack("<f", x))[0]
LOG2E = 1.4426950408889634
QM, OM, YM, DM, MBX = 0, 49152, 172032, 182272, 262144
OOB = 0x80000000
STAMP_OFF = 128 << 20
LH, LP, LO, LY, LD, LDUMP, LDS_SIZE = 0, 3072, 11776, 15872, 20992, 42496, 46592
DEF = dict(kv="", wt="", kbar=False, stamps=False, gate=True, hdr=True, shots=[(0,40),(1,32),(2,24),(3,12)], prio=0, il=2, diag=None)
def gen(**kw):
    o = dict(DEF); o.update(kw)
    a = A()
    KV = o["kv"]; WT = o["wt"]
    def stamp(k):
        if o["stamps"] is True or (o["stamps"] and k in o["stamps"]): a(f"s_memrealtime s[100:101]\ns_waitcnt lgkmcnt(0)\nv_writelane_b32 v1, s100, {k}")
    def stamp_out():
        if o["stamps"]:
            a(f"""s_add_u32 s96, s26, {STAMP_OFF}
            s_addc_u32 s97, s27, 0
            s_mov_b32 s98, 0x100000
            s_mov_b32 s99, 0x20000
            s_lshl_b32 s94, s2, 3
            s_add_u32 s94, s94, s3
            s_lshl_b32 s94, s94, 8
            s_mov_b64 exec, -1
            v_lshlrev_b32 v2, 2, v0
            buffer_store_dword v1, v2, s[96:99], s94 offen""")
    def srd(d, b, n, add=None):
        if add is None: a(f"s_mov_b32 s{d}, s{b}\ns_mov_b32 s{d+1}, s{b+1}")
        else: a(f"s_add_u32 s{d}, s{b}, {add}\ns_addc_u32 s{d+1}, s{b+1}, 0")
        a(f"s_mov_b32 s{d+2}, {n}\ns_mov_b32 s{d+3}, 0x20000")
    def spin(lbl, sb):
        a(f"s_sub_u32 s{sb}, s{sb}, 1\ns_cbranch_scc0 {lbl}\ns_mov_b32 s{sb}, 0")
    def wait_counter(tag, srdn, vt, sb, st, shots):
        for sec, n in shots:
            if n is not None: a(f"s_waitcnt vmcnt({n})")
            a(f"""s_load_dword s{st}, s[24:25], {64*sec}
            s_waitcnt lgkmcnt(0)
            s_cmp_eq_u32 s{st}, 64
            s_cbranch_scc1 L_cntok_{tag}""")
        a(f"""L_cnt_{tag}:
        buffer_load_dword v{vt}, off, s[{srdn}:{srdn+3}], 0 sc1
        s_waitcnt vmcnt(0)
        v_cmp_eq_u32 vcc, 64, v{vt}
        s_cbranch_vccnz L_cntok_{tag}""")
        spin(f"L_cnt_{tag}", sb)
        a(f"L_cntok_{tag}:")
    def masks(dst, andm, t0, t1):
        a(f"""v_and_b32 v{t0}, 1, v0
        v_lshlrev_b32 v{t0}, 4, v{t0}
        v_mov_b32 v{t1}, 0xffff
        v_lshlrev_b32 v{t0}, v{t0}, v{t1}
        v_and_b32 v{t1}, {andm}, v0
        v_lshrrev_b32 v{t1}, 1, v{t1}""")
        for r in range(4):
            a(f"v_cmp_eq_u32 vcc, {r}, v{t1}\nv_cndmask_b32 v{dst+r}, 0, v{t0}, vcc")
    a(f"{KN}_kernel:")
    if o["stamps"]: a("s_memrealtime s[100:101]")
    a("""s_cmp_ge_u32 s2, 256
    s_cbranch_scc1 L_end
    s_load_dwordx16 s[4:19], s[0:1], 0
    s_load_dwordx8 s[20:27], s[0:1], 64
    v_lshrrev_b32 v2, 6, v0
    v_and_b32 v0, 63, v0
    v_readfirstlane_b32 s3, v2
    s_cmp_lt_u32 s2, 64
    s_cbranch_scc1 L_aux""")
    for i in range(192): assert (i * 171) >> 10 == i // 6
    K0, V0, AQ, DQ, ACC, MK, S0 = 16, 112, 208, 224, 248, 4, 8
    LQ = 5632
    a(f"""s_sub_u32 s36, s2, 64
    s_mul_i32 s37, s36, 171
    s_lshr_b32 s37, s37, 10
    s_mul_i32 s38, s37, 6
    s_sub_u32 s38, s36, s38
    s_mul_i32 s39, s38, 43
    s_cmp_eq_u32 s38, 5
    s_cselect_b32 s40, 1, 0
    s_sub_u32 s39, s39, s40
    s_cmp_lt_u32 s38, 4
    s_cselect_b32 s40, 3, 2
    s_min_u32 s41, s3, s40
    s_mul_i32 s42, s3, 5
    s_add_u32 s39, s39, s41
    s_add_u32 s39, s39, s42
    s_cmp_lt_u32 s3, s40
    s_cselect_b32 s41, 0, 1
    s_cselect_b32 s43, 0, {OOB}
    s_cselect_b32 s44, 0, 0xff800000
    s_sub_u32 s39, s39, s41
    s_lshl_b32 s39, s39, 12
    s_lshl_b32 s42, s37, 20
    s_add_u32 s39, s39, s42
    v_bfe_u32 v2, v0, 2, 2
    v_lshrrev_b32 v3, 4, v0
    v_and_b32 v4, 3, v0
    v_lshlrev_b32 v2, 8, v2
    v_lshlrev_b32 v4, 4, v4
    v_lshl_add_u32 v2, v3, 6, v2
    v_add3_u32 v252, v2, v4, s39
    v_and_b32 v4, 15, v0
    v_lshlrev_b32 v3, 10, v3
    v_lshlrev_b32 v4, 4, v4
    v_add3_u32 v254, v3, v4, s39
    v_or_b32 v253, s43, v252
    v_or_b32 v255, s43, v254
    v_mov_b32 v2, 0
    v_mov_b32 v3, 0
    v_lshlrev_b32 v4, 3, v0
    ds_write_b64 v4, v[2:3] offset:{LQ}
    s_waitcnt lgkmcnt(0)
    s_barrier""")
    if o["stamps"]: a("v_mov_b32 v1, 0\nv_writelane_b32 v1, s100, 0")
    srd(28, 6, 1 << 25); srd(32, 8, 1 << 25)
    if o["prio"]: a(f"s_cmp_lg_u32 s3, 0\ns_cbranch_scc1 L_noprio\ns_setprio {o['prio']}\nL_noprio:")
    for s_ in range(1, 6): a(f"s_mov_b32 s{15+s_}, {4096*s_}")
    for sl in range(6):
        for t in range(4):
            a(f"buffer_load_dwordx4 {v(K0+16*sl+4*t,4)}, {'v253' if sl==0 else 'v252'}, s[28:31], {'0' if sl==0 else 's%d'%(15+sl)} offen offset:{1024*t} {KV}")
    if o["kbar"]: a("s_barrier")
    for sl in range(6):
        for t in range(4):
            a(f"buffer_load_dwordx4 {v(V0+16*sl+4*t,4)}, {'v255' if sl==0 else 'v254'}, s[32:35], {'0' if sl==0 else 's%d'%(15+sl)} offen offset:{256*t} {KV}")
    stamp(1)
    srd(12, 26, MBX)
    srd(28, 24, 256)
    a(f"""s_lshl_b32 s5, s36, 8
    s_add_u32 s10, s26, s5
    s_addc_u32 s11, s27, 0
    s_mov_b32 s4, 0x100000
    s_mov_b32 s5, s44
    s_mul_i32 s6, s36, 640
    s_add_u32 s6, s6, {OM}
    s_mul_i32 s7, s3, 544
    s_mov_b32 s8, {f2u(LOG2E)}
    s_mov_b32 s9, 0x3db504f3
    s_mov_b32 s21, 0xffff0000
    """)
    masks(MK, 15, 2, 3)
    a(f"""v_and_b32 v2, 15, v0
    v_lshrrev_b32 v3, 4, v0
    v_lshlrev_b32 v2, 5, v2
    v_lshl_add_u32 v2, v3, 4, v2
    v_add_u32 v2, s7, v2
    v_lshlrev_b32 v3, 4, v0
    v_add_u32 v3, 4352, v3
    v_cmp_gt_u32 vcc, 32, v0
    v_cndmask_b32 v252, v3, v2, vcc
    s_add_u32 s22, s7, 512
    v_mov_b32 v2, s22
    v_cmp_eq_u32 vcc, 0, v0
    v_cndmask_b32 v253, v3, v2, vcc
    s_add_u32 s22, s6, 512
    v_mov_b32 v2, s22
    v_mov_b32 v3, {OOB}
    v_cndmask_b32 v15, v3, v2, vcc
    v_and_b32 v2, 7, v0
    v_mul_u32_u24 v255, 544, v2
    v_cmp_eq_u32 vcc, 0, v2
    v_lshrrev_b32 v2, 3, v0
    v_lshlrev_b32 v2, 4, v2
    s_lshl_b32 s22, s3, 7
    v_add_u32 v2, s22, v2
    v_add_u32 v254, v255, v2
    v_add_u32 v2, s6, v2
    v_cndmask_b32 v14, v3, v2, vcc
    v_bfe_u32 v2, v0, 2, 2
    v_lshrrev_b32 v3, 4, v0
    v_and_b32 v8, 3, v0
    v_lshlrev_b32 v3, 6, v3
    v_lshl_add_u32 v3, v8, 4, v3
    v_mov_b32 v12, 256""")
    for t in range(4): a(f"v_cmp_eq_u32 vcc, {t}, v2\nv_cndmask_b32 v{8+t}, v12, v3, vcc")
    a("s_cmp_lg_u32 s3, 0\ns_cbranch_scc1 L_qwait")
    wait_counter("att", 28, 2, 4, 22, o["shots"])
    stamp(2)
    a(f"""L_q:
    s_load_dword s36, s[10:11], 252 glc
    s_waitcnt lgkmcnt(0)
    s_cmp_eq_u32 s36, -1
    s_cbranch_scc1 L_qre
    s_load_dwordx16 s[36:51], s[10:11], 0 glc
    s_load_dwordx16 s[68:83], s[10:11], 128 glc
    s_load_dwordx16 s[52:67], s[10:11], 64 glc
    s_load_dwordx16 s[84:99], s[10:11], 192 glc
    s_waitcnt lgkmcnt(0)""")
    for d in range(64): a(f"v_writelane_b32 v2, s{36+d}, {d}")
    a(f"""v_cmp_eq_u32 vcc, -1, v2
    s_cbranch_vccz L_qok
    L_qre:""")
    spin("L_q", 4)
    a(f"""L_qok:
    v_lshlrev_b32 v3, 2, v0
    v_mov_b32 v13, 1
    ds_write_b32 v3, v2 offset:{LQ}
    ds_write_b32 v12, v13 offset:{LQ+16}
    L_qwait:
    ds_read_b32 v13, v12 offset:{LQ+16}
    s_waitcnt lgkmcnt(0)
    v_cmp_eq_u32 vcc, 1, v13
    s_cbranch_vccnz L_qgo
    s_sleep 2""")
    spin("L_qwait", 4)
    a("L_qgo:")
    for t in range(4): a(f"ds_read_b128 {v(AQ+4*t,4)}, v{8+t} offset:{LQ}")
    a("s_waitcnt lgkmcnt(0)")
    stamp(3)
    for sl in range(6):
        a(f"s_waitcnt vmcnt({44-4*sl})")
        for t in range(4):
            a(f"v_mfma_f32_16x16x32_bf16 {v(DQ+4*sl,4)}, {v(AQ+4*t,4)}, {v(K0+16*sl+4*t,4)}, {'0' if t==0 else v(DQ+4*sl,4)}")
    stamp(4)
    for r in range(4):
        for sl in range(6):
            qp = f"quad_perm:[{r},{r},{r},{r}] row_mask:0xf bank_mask:0xf"
            if r == 0: a(f"v_mov_b32_dpp v{S0+sl}, v{DQ+4*sl} {qp}")
            else: a(f"v_add_f32_dpp v{S0+sl}, v{DQ+4*sl+r}, v{S0+sl} {qp}")
    T = AQ
    for rnd in range(2):
        for p in range(3): a(f"v_cvt_pk_bf16_f32 v{T+p}, v{S0+2*p}, v{S0+2*p+1}")
        for p in range(3): a(f"v_lshlrev_b32 v{S0+2*p}, 16, v{T+p}\nv_and_b32 v{S0+2*p+1}, s21, v{T+p}")
        if rnd == 0:
            for sl in range(6): a(f"v_mul_f32 v{S0+sl}, s9, v{S0+sl}")
    M, L_, TT = T + 4, T + 5, T + 6
    a(f"""v_add_f32 v{S0}, s5, v{S0}
    v_max3_f32 v{M}, v{S0+1}, v{S0+2}, v{S0+3}
    v_max3_f32 v{TT}, v{S0+4}, v{S0+5}, v{S0}
    v_max_f32 v{M}, v{M}, v{TT}
    v_max_f32_dpp v{M}, v{M}, v{M} row_ror:4 row_mask:0xf bank_mask:0xf
    v_max_f32_dpp v{M}, v{M}, v{M} row_ror:8 row_mask:0xf bank_mask:0xf
    v_mov_b32 v{TT}, v{M}
    v_permlane16_swap_b32 v{M}, v{TT}
    v_max_f32 v{M}, v{M}, v{TT}
    v_mov_b32 v{TT}, v{M}
    v_permlane32_swap_b32 v{M}, v{TT}
    v_max_f32 v{M}, v{M}, v{TT}
    v_mul_f32 v{M}, s8, v{M}""")
    for sl in range(6): a(f"v_fma_f32 v{S0+sl}, v{S0+sl}, s8, -v{M}")
    for sl in range(6): a(f"v_exp_f32 v{S0+sl}, v{S0+sl}")
    PK = T + 8
    for sl in range(6): a(f"v_cvt_pk_bf16_f32 v{PK+sl}, v{S0+sl}, v{S0+sl}")
    for sl in range(6):
        for k in range(4):
            for r in range(4):
                a(f"v_and_b32_dpp v{K0+16*sl+4*k+r}, v{PK+sl}, v{MK+r} row_newbcast:{4*k} row_mask:0xf bank_mask:0xf")
    a(f"""v_add_f32 v{L_}, v{S0}, v{S0+1}
    v_add_f32 v{TT}, v{S0+2}, v{S0+3}
    v_add_f32 v{S0+4}, v{S0+4}, v{S0+5}
    v_add_f32 v{L_}, v{L_}, v{TT}
    v_add_f32 v{L_}, v{L_}, v{S0+4}
    v_add_f32_dpp v{L_}, v{L_}, v{L_} row_ror:4 row_mask:0xf bank_mask:0xf
    v_add_f32_dpp v{L_}, v{L_}, v{L_} row_ror:8 row_mask:0xf bank_mask:0xf
    v_mov_b32 v{TT}, v{L_}
    v_permlane16_swap_b32 v{L_}, v{TT}
    v_add_f32 v{L_}, v{L_}, v{TT}
    v_mov_b32 v{TT}, v{L_}
    v_permlane32_swap_b32 v{L_}, v{TT}
    v_add_f32 v{L_}, v{L_}, v{TT}
    ds_write_b64 v253, {v(M,2)}""")
    stamp(5)
    for sl in range(6):
        for k in range(4):
            n = 23 - 4 * sl - k
            if k == 0 or sl == 5: a(f"s_waitcnt vmcnt({n - (3 if sl < 5 else 0)})")
            a(f"v_mfma_f32_16x16x32_bf16 {v(ACC,4)}, {v(K0+16*sl+4*k,4)}, {v(V0+16*sl+4*k,4)}, {'0' if sl==0 and k==0 else v(ACC,4)}")
    stamp(6)
    a(f"""ds_write_b128 v252, {v(ACC,4)}
    s_waitcnt lgkmcnt(0)
    s_barrier
    s_cmp_ge_u32 s3, 4
    s_cbranch_scc1 L_att_end
    ds_read_b64 v[16:17], v255 offset:512
    ds_read_b128 v[20:23], v254
    s_waitcnt lgkmcnt(1)
    v_max_f32_dpp v18, v16, v16 quad_perm:[1,0,3,2] row_mask:0xf bank_mask:0xf
    v_max_f32_dpp v18, v18, v18 quad_perm:[2,3,0,1] row_mask:0xf bank_mask:0xf
    v_max_f32_dpp v18, v18, v18 row_half_mirror row_mask:0xf bank_mask:0xf
    v_sub_f32 v16, v16, v18
    v_exp_f32 v16, v16
    s_waitcnt lgkmcnt(0)
    v_mul_f32 v19, v16, v17""")
    for r in range(4): a(f"v_mul_f32 v{20+r}, v16, v{20+r}")
    for dp in ("quad_perm:[1,0,3,2]", "quad_perm:[2,3,0,1]", "row_half_mirror"):
        for r in (20, 21, 22, 23, 19): a(f"v_add_f32_dpp v{r}, v{r}, v{r} {dp} row_mask:0xf bank_mask:0xf")
    a("""buffer_store_dwordx4 v[20:23], v14, s[12:15], 0 offen sc1
    s_cmp_lg_u32 s3, 0
    s_cbranch_scc1 L_att_end
    buffer_store_dwordx2 v[18:19], v15, s[12:15], 0 offen sc1
    L_att_end:""")
    stamp(7); stamp_out()
    a("L_end:\ns_endpgm")
    GU, WO, DN = 16, 96, 160
    M8, M4 = 4, 8
    SB = 80
    HW, HS, HC, PW, PR, YW = 240, 241, 242, 243, 244, 245
    C640, CEPS, CG1, CG2 = 246, 247, 248, 249
    g1 = -2 * LOG2E * 0.7978845608028654
    def gu_list():
        L = []
        for t in range(10):
            so = "0" if t == 0 else f"s{59+t}"
            L.append(f"buffer_load_dwordx4 {v(GU+8*t,4)}, v250, s[32:35], {so} offen {WT}")
            L.append(f"buffer_load_dwordx4 {v(GU+8*t+4,4)}, v250, s[36:39], {so} offen {WT}")
        return L
    def gu_setup():
        srd(32, 16, 2211840); srd(36, 18, 2211840)
        for t in range(1, 10): a(f"s_mov_b32 s{59+t}, {3456*t}")
        a("s_lshl_b32 s72, s77, 7\nv_mul_u32_u24 v250, 3456, v12\nv_lshl_add_u32 v250, v3, 4, v250\nv_add_u32 v250, s72, v250")
    def dn_loads():
        srd(44, 20, 2211840)
        a("""s_lshl_b32 s72, s77, 3
        s_add_u32 s72, s72, s3
        s_mul_i32 s72, s72, 10240
        v_lshrrev_b32 v14, 4, v0
        v_mul_u32_u24 v14, 2560, v14
        v_and_b32 v15, 15, v0
        v_lshl_add_u32 v14, v15, 4, v14
        v_add_u32 v14, s72, v14""")
        for t in range(2):
            for b in range(5): a(f"buffer_load_dwordx4 {v(DN+20*t+4*b,4)}, v14, s[44:47], 0 offen offset:{1280*t+256*b} {WT}")
    def wo_list():
        return [f"buffer_load_dwordx4 {v(WO+4*t,4)}, v251, s[40:43], {'0' if t < 4 else 's%d' % (68 + t//4)} offen offset:{1280*(t&3)} {WT}" for t in range(16)]
    def wq_loads(base, va):
        for t in range(10): a(f"buffer_load_dwordx4 {v(base+4*t,4)}, v{va}, s[52:55], {'0' if t == 0 else 's%d' % (83+t)} offen {WT}")
    def signal(tag, younger):
        a(f"""s_cmp_lg_u32 s3, 0
        s_cbranch_scc1 L_nosig_{tag}
        v_mov_b32 v15, 1
        v_lshlrev_b32 v14, 6, v0
        """)
        stamp(16)
        a(f"s_waitcnt vmcnt({younger})")
        stamp(17)
        a(f"""s_mov_b64 exec, 15
        buffer_atomic_add v15, v14, s[56:59], 0 offen sc1
        s_mov_b64 exec, -1
        L_nosig_{tag}:""")
    def ln(wait_c):
        for p in range(5): a(f"v_pk_add_f32 {v(204+2*p,2)}, {v(204+2*p,2)}, v[214:215] op_sel_hi:[1,0] neg_lo:[0,1] neg_hi:[0,1]")
        a("""v_pk_mul_f32 v[14:15], v[204:205], v[204:205]
        v_pk_add_f32 v[204:205], v[204:205], v[206:207]
        v_pk_fma_f32 v[14:15], v[206:207], v[206:207], v[14:15]
        v_pk_add_f32 v[206:207], v[208:209], v[210:211]
        v_pk_fma_f32 v[14:15], v[208:209], v[208:209], v[14:15]
        v_pk_add_f32 v[204:205], v[204:205], v[212:213]
        v_pk_fma_f32 v[14:15], v[210:211], v[210:211], v[14:15]
        v_pk_add_f32 v[204:205], v[204:205], v[206:207]
        v_pk_fma_f32 v[14:15], v[212:213], v[212:213], v[14:15]
        v_add_f32 v204, v204, v205
        v_add_f32 v14, v14, v15""")
        for dp in ("row_ror:1 row_mask:0xf", "row_ror:2 row_mask:0xf", "row_ror:4 row_mask:0xf", "row_ror:8 row_mask:0xf", "row_bcast:15 row_mask:0xa", "row_bcast:31 row_mask:0xc"):
            a(f"v_add_f32_dpp v204, v204, v204 {dp} bank_mask:0xf\nv_add_f32_dpp v14, v14, v14 {dp} bank_mask:0xf")
        a(f"""v_readlane_b32 s72, v204, 63
        v_readlane_b32 s73, v14, 63
        v_mul_f32 v14, s72, v{C640}
        v_mul_f32 v15, s73, v{C640}
        v_add_f32 v214, v214, v14
        v_fma_f32 v15, -v14, v14, v15
        v_cvt_pk_bf16_f32 v14, v214, v15
        v_and_b32 v15, s81, v14
        v_lshlrev_b32 v214, 16, v14
        v_add_f32 v15, v15, v{CEPS}""")
        a(wait_c)
        pk = [f"v_pk_add_f32 {v(216+2*p,2)}, {v(216+2*p,2)}, v[214:215] op_sel_hi:[1,0] neg_lo:[0,1] neg_hi:[0,1]" for p in range(5)]
        cv = [f"v_cvt_pk_bf16_f32 v{204+p}, v{216+2*p}, v{217+2*p}" for p in range(5)]
        un = [f"v_lshlrev_b32 v{216+2*p}, 16, v{204+p}\nv_and_b32 v{217+2*p}, s81, v{204+p}" for p in range(5)]
        a("v_cvt_pk_bf16_f32 v15, v15, v15"); a(pk[0]); a("v_and_b32 v15, s81, v15"); a(pk[1]); a("v_sqrt_f32 v15, v15")
        a(pk[2]); a(pk[3]); a("v_cvt_pk_bf16_f32 v15, v15, v15"); a(pk[4]); a("v_and_b32 v15, s81, v15"); a(cv[0]); a("v_rcp_f32 v14, v15")
        for x in cv[1:] + un: a(x)
        for p in range(5): a(f"v_pk_mul_f32 {v(216+2*p,2)}, {v(216+2*p,2)}, v[14:15] op_sel_hi:[1,0]")
        for t in range(10): a(f"v_cvt_pk_bf16_f32 v{216+t}, v{216+t}, v{216+t}")
    def qgemv(base, acc, after, nxt):
        nxt = list(nxt); issued = 0
        for t in range(10):
            for r in range(4): a(f"v_and_b32 v{228+4*(t%2)+r}, v{216+t}, v{M8+r}")
            a(f"s_waitcnt vmcnt({9-t+after+issued})")
            a(f"v_mfma_f32_16x16x32_bf16 {v(acc,4)}, {v(228+4*(t%2),4)}, {v(base+4*t,4)}, {'0' if t==0 else v(acc,4)}")
            for k in range(o["il"]):
                if nxt: a(nxt.pop(0)); issued += 1
        return nxt
    def psum():
        a(f"""ds_read2st64_b32 v[204:205], v{PR} offset0:0 offset1:17
        ds_read2st64_b32 v[206:207], v{PR} offset0:1 offset1:18
        s_waitcnt lgkmcnt(1)
        v_add_f32 v204, v204, v205
        s_waitcnt lgkmcnt(0)
        v_add_f32 v206, v206, v207""")
        for dp in ("quad_perm:[1,0,3,2]", "quad_perm:[2,3,0,1]", "row_half_mirror"):
            a(f"v_add_f32_dpp v204, v204, v204 {dp} row_mask:0xf bank_mask:0xf\nv_add_f32_dpp v206, v206, v206 {dp} row_mask:0xf bank_mask:0xf")
    def qpub(reg, su):
        a(f"""v_mov_b32_dpp v15, v{reg} row_ror:8 row_mask:0xf bank_mask:0xf
        s_lshr_b32 s72, s{su}, 1
        s_mul_i32 s72, s72, 1536
        s_and_b32 s73, s{su}, 1
        s_lshl_b32 s73, s73, 7
        s_add_u32 s72, s72, s73
        v_cvt_pk_bf16_f32 v15, v{reg}, v15
        v_min_u32 v15, -2, v15
        buffer_store_dword v15, v14, s[48:51], s72 offen sc1""")
    for i in range(40): assert (i * 26) >> 8 == i // 10
    for col in range(0, 640, 2): assert (col * 52429) >> 19 == col // 10
    a("""L_aux:
    v_lshrrev_b32 v2, 3, v0
    v_and_b32 v3, 7, v0
    s_mul_i32 s72, s3, 80
    v_mul_u32_u24 v12, 10, v2
    v_add_u32 v12, s72, v12
    v_lshlrev_b32 v13, 2, v0
    s_lshl_b32 s72, s3, 8
    v_add_u32 v13, s72, v13
    s_and_b32 s78, s2, 7
    s_lshl_b32 s78, s78, 3
    s_lshr_b32 s72, s2, 3
    s_add_u32 s78, s78, s72
    s_add_u32 s79, s78, 24
    s_lshl_b32 s72, s78, 7
    v_lshlrev_b32 v252, 13, v12
    v_lshl_add_u32 v252, v3, 4, v252
    v_add_u32 v252, s72, v252
    v_add_u32 v253, 3072, v252
    v_mul_u32_u24 v254, 20, v0
    v_lshlrev_b32 v255, 1, v12
    v_mov_b32 v204, -1
    v_mov_b32 v205, -1
    v_mov_b32 v206, -1
    v_mov_b32 v207, -1
    v_lshlrev_b32 v14, 4, v0""")
    for t in range(1, 10): a(f"s_mov_b32 s{83+t}, {8192*t}")
    a("""s_mul_i32 s74, s2, 26
    s_lshr_b32 s74, s74, 8
    s_mul_i32 s75, s74, 10
    s_sub_u32 s75, s2, s75
    s_lshl_b32 s76, s74, 3
    s_add_u32 s76, s76, s3
    s_mul_i32 s72, s76, 163840
    s_lshl_b32 s73, s75, 7
    s_add_u32 s72, s72, s73
    v_mul_u32_u24 v251, 20480, v2
    v_lshl_add_u32 v251, v3, 4, v251
    v_add_u32 v251, s72, v251
    s_mov_b32 s69, 5120
    s_mov_b32 s70, 10240
    s_mov_b32 s71, 15360
    s_sub_u32 s77, s2, 37
    s_lshl_b32 s72, s2, 12
    s_waitcnt lgkmcnt(0)""")
    if o["stamps"]: a("v_mov_b32 v1, 0\nv_writelane_b32 v1, s100, 0")
    srd(48, 26, MBX)
    a("s_cmp_lg_u32 s3, 0\ns_cbranch_scc1 L_noclr")
    for k in range(4): a(f"buffer_store_dwordx4 v[204:207], v14, s[48:51], s72 offen offset:{1024*k} sc1")
    a("L_noclr:")
    srd(28, 4, 1280); srd(52, 10, 5242880); srd(56, 24, 256); srd(40, 12, 5242880)
    a(f"""s_mov_b32 s{SB}, 0x40000
    buffer_load_dword v200, v13, s[28:31], 0 offen
    s_cmp_lt_u32 s77, 3
    s_cbranch_scc0 L_notdual""")
    for x in wo_list(): a(x)
    signal("d", 17)
    a("s_barrier")
    gu_setup()
    for x in gu_list(): a(x)
    dn_loads()
    a("""s_branch L_consts
    L_notdual:
    buffer_load_dwordx4 v[228:231], v254, s[28:31], 0 offen
    buffer_load_dword v232, v254, s[28:31], 0 offen offset:16
    buffer_load_dwordx4 v[236:239], v255, s[28:31], 0 offen
    buffer_load_dword v233, v255, s[28:31], 0 offen offset:16""")
    wq_loads(DN, 252)
    signal("q", 15)
    a("""s_sub_u32 s72, s2, 34
    s_cmp_lt_u32 s72, 3
    s_cbranch_scc0 L_consts""")
    wq_loads(GU, 253)
    a("L_consts:")
    stamp(1)
    masks(M8, 7, 14, 15); masks(M4, 15, 14, 15)
    a(f"""s_mov_b32 s81, 0xffff0000
    v_mov_b32 v{C640}, {f2u(1/640)}
    v_mov_b32 v{CEPS}, {f2u(1e-5)}
    v_mov_b32 v{CG1}, {f2u(g1)}
    v_mov_b32 v{CG2}, {f2u(g1*0.044715)}
    v_lshrrev_b32 v14, 1, v13
    s_mov_b32 s72, 52429
    v_mul_lo_u32 v15, v14, s72
    v_lshrrev_b32 v15, 19, v15
    v_lshlrev_b32 v15, 1, v15
    v_add_u32 v14, v14, v15
    v_lshlrev_b32 v{HW}, 2, v14
    v_mul_u32_u24 v{HS}, 48, v0
    s_lshl_b32 s72, s3, 3
    v_add_u32 v14, s72, v2
    v_mul_u32_u24 v{HC}, 48, v14
    v_lshlrev_b32 v14, 2, v14
    v_mul_u32_u24 v15, 544, v3
    v_add_u32 v{PR}, v14, v15
    v_add_u32 v{PR}, {LP}, v{PR}""")
    a(f"""v_lshrrev_b32 v14, 5, v0
    v_bfe_u32 v15, v0, 3, 1
    v_cmp_eq_u32 vcc, v14, v15
    s_lshl_b32 s72, s3, 1
    v_add_u32 v14, s72, v14
    v_bfe_u32 v15, v0, 4, 1
    v_lshlrev_b32 v15, 4, v15
    v_lshl_add_u32 v15, v3, 5, v15
    v_lshlrev_b32 v201, 4, v0
    v_add_u32 v201, {LDUMP}, v201
    v_mul_u32_u24 v202, 544, v14
    v_add_u32 v202, v202, v15
    v_add_u32 v202, {LP}, v202
    v_cndmask_b32 v{PW}, v201, v202, vcc
    v_mul_u32_u24 v202, 320, v14
    v_add_u32 v202, v202, v15
    v_add_u32 v202, {LY}, v202
    v_cndmask_b32 v{YW}, v201, v202, vcc
    s_cmp_lt_u32 s77, 3
    s_cbranch_scc0 L_qrole
    s_cmp_lg_u32 s3, 0
    s_cbranch_scc1 L_cntok_dual""")
    wait_counter("dual", 56, 14, SB, 72, [(3, None)])
    a("s_barrier\ns_branch L_wo")
    a("L_qrole:\ns_waitcnt vmcnt(10)")
    for p in range(5):
        src = 228 + p; srcc = 236 + p if p < 4 else 233
        a(f"v_lshlrev_b32 v{204+2*p}, 16, v{src}\nv_and_b32 v{205+2*p}, s81, v{src}\nv_lshlrev_b32 v{216+2*p}, 16, v{srcc}\nv_and_b32 v{217+2*p}, s81, v{srcc}")
    a("v_readfirstlane_b32 s72, v204\nv_mov_b32 v214, s72")
    ln("")
    stamp(13)
    a("s_cmp_ge_u32 s2, 40\ns_cbranch_scc1 L_q_f\ns_cmp_ge_u32 s2, 34\ns_cbranch_scc1 L_q_w2")
    rest = qgemv(DN, 204, 0, wo_list())
    for x in rest: a(x)
    a("s_branch L_q_sum\nL_q_w2:")
    qgemv(DN, 204, 10, [])
    rest = qgemv(GU, 208, 0, wo_list())
    for x in rest: a(x)
    a("s_branch L_q_sum\nL_q_f:")
    gu_setup()
    rest = qgemv(DN, 204, 0, gu_list())
    for x in rest: a(x)
    a("L_q_sum:")
    stamp(18)
    a(f"""    ds_write_b128 v{PW}, v[204:207]
    ds_write_b128 v{PW}, v[208:211] offset:256
    s_cmp_lg_u32 s3, 0
    s_cbranch_scc1 L_cntok_q""")
    wait_counter("q", 56, 14, SB, 72, [(3, None)])
    a("s_waitcnt lgkmcnt(0)\ns_barrier")
    stamp(14)
    psum()
    a(f"""v_and_b32 v14, 15, v0
    v_cmp_gt_u32 vcc, 6, v14
    v_lshlrev_b32 v14, 8, v14
    v_lshrrev_b32 v15, 4, v0
    v_lshl_add_u32 v14, v15, 2, v14
    s_lshl_b32 s73, s3, 4
    v_add_u32 v14, s73, v14
    v_mov_b32 v15, {OOB}
    v_cndmask_b32 v14, v15, v14, vcc""")
    qpub(204, 78)
    a("s_sub_u32 s72, s2, 34\ns_cmp_lt_u32 s72, 3\ns_cbranch_scc0 L_q_1")
    qpub(206, 79)
    a("L_q_1:")
    stamp(15)
    a("s_cmp_lt_u32 s2, 40\ns_cbranch_scc1 L_wo")
    dn_loads()
    a("s_branch L_ffn")
    a(f"""L_wo:
    s_mul_i32 s72, s76, 3840
    s_add_u32 s72, s72, {OM}
    v_lshlrev_b32 v202, 3, v0
    v_add_u32 v203, s72, v202
    v_and_b32 v14, 15, v0
    v_cmp_gt_u32 vcc, 6, v14
    v_cndmask_b32 v205, 0, 1.0, vcc
    v_min_u32 v14, 5, v14
    v_mul_u32_u24 v14, 640, v14
    v_add_u32 v204, s72, v14
    s_lshl_b32 s72, s3, 9
    s_add_u32 s72, s72, {LO}
    v_add_u32 v202, s72, v202
    v_lshlrev_b32 v206, 6, v2
    v_add_u32 v206, s72, v206
    v_lshrrev_b32 v14, 2, v0
    v_and_b32 v15, 3, v0
    v_lshlrev_b32 v14, 4, v14
    v_cmp_eq_u32 vcc, 0, v15
    v_mul_u32_u24 v15, 320, v15
    v_add_u32 v207, v14, v15
    s_mul_i32 s72, s74, 2560
    s_lshl_b32 s73, s75, 8
    s_add_u32 s72, s72, s73
    s_add_u32 s72, s72, {YM}
    v_add_u32 v14, s72, v14
    v_mov_b32 v15, {OOB}
    v_cndmask_b32 v208, v15, v14, vcc""")
    if o["gate"]:
        a("""L_h1a:
        buffer_load_dword v210, v204, s[48:51], 0 offen offset:512 sc1
        s_waitcnt vmcnt(0)
        v_cmp_ne_u32 vcc, -1, v210
        s_cbranch_vccnz L_h1""")
        spin("L_h1a", SB)
    a("L_h1:")
    a("buffer_load_dwordx2 v[210:211], v204, s[48:51], 0 offen offset:512 sc1")
    for c in range(6): a(f"buffer_load_dwordx2 {v(212+2*c,2)}, v203, s[48:51], 0 offen offset:{640*c} sc1")
    a("""s_waitcnt vmcnt(0)
    v_max3_u32 v14, v210, v211, v212
    v_max3_u32 v15, v213, v214, v215
    v_max3_u32 v14, v14, v216, v217
    v_max3_u32 v15, v15, v218, v219
    v_max3_u32 v14, v14, v220, v221
    v_max3_u32 v15, v15, v222, v223
    v_max_u32 v14, v14, v15
    v_cmp_eq_u32 vcc, -1, v14
    s_cbranch_vccz L_h1ok""")
    spin("L_h1", SB)
    a("L_h1ok:")
    stamp(3)
    a("""v_max_f32_dpp v14, v210, v210 quad_perm:[1,0,3,2] row_mask:0xf bank_mask:0xf
    v_mul_f32 v211, v211, v205
    v_max_f32_dpp v14, v14, v14 quad_perm:[2,3,0,1] row_mask:0xf bank_mask:0xf
    v_max_f32_dpp v14, v14, v14 row_half_mirror row_mask:0xf bank_mask:0xf
    v_sub_f32 v210, v210, v14
    v_exp_f32 v210, v210
    v_mul_f32 v211, v210, v211
    v_mul_f32_dpp v224, v210, v212 row_newbcast:0 row_mask:0xf bank_mask:0xf
    v_mul_f32_dpp v225, v210, v213 row_newbcast:0 row_mask:0xf bank_mask:0xf
    v_add_f32_dpp v211, v211, v211 quad_perm:[1,0,3,2] row_mask:0xf bank_mask:0xf""")
    seq = []
    for c in range(1, 6):
        for e in range(2): seq.append(f"v_fmac_f32_dpp v{224+e}, v210, v{212+2*c+e} row_newbcast:{c} row_mask:0xf bank_mask:0xf")
    seq.insert(2, "v_add_f32_dpp v211, v211, v211 quad_perm:[2,3,0,1] row_mask:0xf bank_mask:0xf")
    seq.insert(5, "v_add_f32_dpp v211, v211, v211 row_half_mirror row_mask:0xf bank_mask:0xf")
    seq.insert(8, "v_rcp_f32 v211, v211")
    a("\n".join(seq))
    a("""v_mul_f32_dpp v224, v211, v224 row_newbcast:0 row_mask:0xf bank_mask:0xf
    v_mul_f32_dpp v225, v211, v225 row_newbcast:0 row_mask:0xf bank_mask:0xf
    v_cvt_pk_bf16_f32 v224, v224, v224
    v_cvt_pk_bf16_f32 v225, v225, v225
    ds_write_b64 v202, v[224:225]""")
    for k in range(4): a(f"ds_read_b128 {v(208+4+4*k,4)}, v206 offset:{16*k}")
    for t in range(16):
        if t % 4 == 0: a(f"s_waitcnt lgkmcnt({3 - t//4})")
        ab = 228 + 4 * (t % 3)
        for r in range(4): a(f"v_and_b32 v{ab+r}, v{212+t}, v{M8+r}")
        if t > 0: a(f"v_mfma_f32_16x16x32_bf16 v[252:255], {v(228+4*((t-1)%3),4)}, {v(WO+4*(t-1),4)}, {'0' if t==1 else 'v[252:255]'}")
    a(f"v_mfma_f32_16x16x32_bf16 v[252:255], {v(228,4)}, {v(WO+60,4)}, v[252:255]")
    a(f"""ds_write_b128 v{YW}, v[252:255]
    s_waitcnt lgkmcnt(0)
    s_barrier""")
    stamp(4)
    a("s_cmp_lg_u32 s3, 0\ns_cbranch_scc1 L_wo_done")
    for k in range(4): a(f"ds_read_b128 {v(212+4*k,4)}, v207 offset:{LY+1280*k}")
    a("""s_waitcnt lgkmcnt(2)
    v_pk_add_f32 v[212:213], v[212:213], v[216:217]
    v_pk_add_f32 v[214:215], v[214:215], v[218:219]
    s_waitcnt lgkmcnt(0)
    v_pk_add_f32 v[220:221], v[220:221], v[224:225]
    v_pk_add_f32 v[222:223], v[222:223], v[226:227]
    v_pk_add_f32 v[212:213], v[212:213], v[220:221]
    v_pk_add_f32 v[214:215], v[214:215], v[222:223]""")
    for dp in ("quad_perm:[1,0,3,2]", "quad_perm:[2,3,0,1]"):
        for r in range(212, 216): a(f"v_add_f32_dpp v{r}, v{r}, v{r} {dp} row_mask:0xf bank_mask:0xf")
    a("buffer_store_dwordx4 v[212:215], v208, s[48:51], 0 offen sc1\nL_wo_done:")
    stamp(5)
    a("""s_cmp_ge_u32 s2, 37
    s_cbranch_scc1 L_ffn
    s_cmp_ge_u32 s2, 20
    s_cbranch_scc1 L_aux_end
    s_cmp_lg_u32 s3, 7
    s_cbranch_scc1 L_aux_end""")
    srd(52, 22, 1280)
    a(f"""s_lshl_b32 s72, s2, 7
    v_mul_u32_u24 v14, 2560, v2
    v_lshl_add_u32 v14, v3, 4, v14
    v_add_u32 v14, s72, v14
    v_add_u32 v202, {YM}, v14
    v_mov_b32 v15, {OOB}
    v_cmp_gt_u32 vcc, 32, v0
    v_cndmask_b32 v202, v15, v202, vcc
    v_add_u32 v203, {DM}, v14
    v_add_u32 v204, {DM+61440}, v14
    v_cmp_gt_u32 vcc, 24, v0
    v_cndmask_b32 v204, v15, v204, vcc
    v_bfe_u32 v14, v0, 4, 1
    v_lshrrev_b32 v205, 5, v0
    v_lshl_add_u32 v14, v14, 1, v205
    v_lshl_add_u32 v14, v3, 2, v14
    v_lshlrev_b32 v14, 1, v14
    s_lshl_b32 s72, s2, 6
    v_add_u32 v14, s72, v14
    buffer_load_ushort v206, v14, s[28:31], 0 offen
    v_bfe_u32 v205, v0, 3, 1
    v_cmp_eq_u32 vcc, 0, v205
    v_cndmask_b32 v205, v15, v14, vcc
    s_mov_b32 s72, 20480
    s_mov_b32 s73, 40960
    L_ry:
    buffer_load_dwordx4 v[212:215], v202, s[48:51], 0 offen sc1
    s_waitcnt vmcnt(0)
    v_max3_u32 v14, v212, v213, v214
    v_max_u32 v14, v14, v215
    v_cmp_eq_u32 vcc, -1, v14
    s_cbranch_vccz L_ryok""")
    spin("L_ry", SB)
    def rs4(b):
        a(f"""v_permlane32_swap_b32 v{b}, v{b+1}
        v_permlane32_swap_b32 v{b+2}, v{b+3}
        v_add_f32 v{b}, v{b}, v{b+1}
        v_add_f32 v{b+2}, v{b+2}, v{b+3}
        v_permlane16_swap_b32 v{b}, v{b+2}
        v_add_f32 v{b}, v{b}, v{b+2}
        v_add_f32_dpp v{b}, v{b}, v{b} row_ror:8 row_mask:0xf bank_mask:0xf""")
    a("L_ryok:")
    rs4(212)
    a("""v_cvt_pk_bf16_f32 v212, v212, v212
    v_lshlrev_b32 v206, 16, v206
    v_and_b32 v212, s81, v212
    v_add_f32 v212, v212, v206
    v_cvt_pk_bf16_f32 v212, v212, v212
    v_and_b32 v206, s81, v212""")
    stamp(6)
    a("""L_rd:
    buffer_load_dwordx4 v[212:215], v203, s[48:51], 0 offen sc1
    buffer_load_dwordx4 v[216:219], v203, s[48:51], s72 offen sc1
    buffer_load_dwordx4 v[220:223], v203, s[48:51], s73 offen sc1
    buffer_load_dwordx4 v[224:227], v204, s[48:51], 0 offen sc1
    s_waitcnt vmcnt(0)""")
    a("v_max3_u32 v14, v212, v213, v214\nv_max3_u32 v15, v215, v216, v217")
    a("v_max3_u32 v14, v14, v218, v219\nv_max3_u32 v15, v15, v220, v221\nv_max3_u32 v14, v14, v222, v223\nv_max3_u32 v15, v15, v224, v225\nv_max3_u32 v14, v14, v226, v227\nv_max_u32 v14, v14, v15")
    a("v_cmp_eq_u32 vcc, -1, v14\ns_cbranch_vccz L_rdok")
    spin("L_rd", SB)
    a("""L_rdok:
    v_pk_add_f32 v[212:213], v[212:213], v[216:217]
    v_pk_add_f32 v[220:221], v[220:221], v[224:225]
    v_pk_add_f32 v[214:215], v[214:215], v[218:219]
    v_pk_add_f32 v[222:223], v[222:223], v[226:227]
    v_pk_add_f32 v[212:213], v[212:213], v[220:221]
    v_pk_add_f32 v[214:215], v[214:215], v[222:223]""")
    rs4(212)
    a("""v_cvt_pk_bf16_f32 v212, v212, v212
    v_and_b32 v212, s81, v212
    v_add_f32 v212, v212, v206
    v_cvt_pk_bf16_f32 v212, v212, v212
    buffer_store_short v212, v205, s[52:55], 0 offen""")
    stamp(7)
    a("s_branch L_aux_end")
    DW, DR, DS = 250, 251, 201
    a(f"""L_ffn:
    v_and_b32 v14, 15, v0
    v_lshrrev_b32 v15, 4, v0
    v_lshlrev_b32 v14, 5, v14
    v_lshl_add_u32 v14, v15, 4, v14
    s_mul_i32 s72, s3, 2688
    s_add_u32 s72, s72, {LD}
    v_add_u32 v14, s72, v14
    v_lshlrev_b32 v15, 4, v0
    v_add_u32 v15, {LDUMP}, v15
    v_cmp_gt_u32 vcc, 32, v0
    v_cndmask_b32 v{DW}, v15, v14, vcc
    v_lshrrev_b32 v14, 1, v0
    v_lshlrev_b32 v14, 4, v14
    s_lshl_b32 s72, s3, 9
    v_add_u32 v14, s72, v14
    v_and_b32 v15, 1, v0
    v_cmp_eq_u32 vcc, 0, v15
    v_mul_u32_u24 v15, 2688, v15
    v_add_u32 v{DR}, v14, v15
    s_mul_i32 s72, s77, 2560
    s_add_u32 s72, s72, {DM}
    v_add_u32 v14, s72, v14
    v_mov_b32 v15, {OOB}
    v_cndmask_b32 v{DS}, v15, v14, vcc
    s_waitcnt vmcnt(0)
    s_cmp_ge_u32 s3, 5
    s_cbranch_scc1 L_lng_bar
    v_lshlrev_b32 v14, 1, v13
    v_add_u32 v14, {YM}, v14
    s_mov_b32 s72, 5120
    L_h2:
    buffer_load_dwordx2 v[212:213], v14, s[48:51], 0 offen sc1
    buffer_load_dwordx2 v[214:215], v14, s[48:51], 0 offen offset:2560 sc1
    buffer_load_dwordx2 v[216:217], v14, s[48:51], s72 offen sc1
    buffer_load_dwordx2 v[218:219], v14, s[48:51], s72 offen offset:2560 sc1
    s_waitcnt vmcnt(0)
    v_max3_u32 v15, v212, v213, v214
    v_max3_u32 v202, v215, v216, v217
    v_max3_u32 v15, v15, v218, v219
    v_max_u32 v15, v15, v202
    v_cmp_eq_u32 vcc, -1, v15
    s_cbranch_vccz L_h2ok""")
    spin("L_h2", SB)
    a("L_h2ok:")
    stamp(6)
    a("""v_pk_add_f32 v[212:213], v[212:213], v[214:215]
    v_pk_add_f32 v[216:217], v[216:217], v[218:219]
    v_lshlrev_b32 v202, 16, v200
    v_pk_add_f32 v[212:213], v[212:213], v[216:217]
    v_and_b32 v203, s81, v200
    v_cvt_pk_bf16_f32 v212, v212, v213
    v_lshlrev_b32 v214, 16, v212
    v_and_b32 v215, s81, v212
    v_pk_add_f32 v[202:203], v[202:203], v[214:215]
    v_cvt_pk_bf16_f32 v212, v202, v203
    v_lshlrev_b32 v202, 16, v212
    v_and_b32 v203, s81, v212""")
    a(f"""    ds_write_b64 v{HW}, v[202:203]
    s_waitcnt lgkmcnt(0)
    L_lng_bar:
    s_barrier
    v_mov_b32 v14, 0
    ds_read_b128 v[204:207], v{HS}
    ds_read_b32 v214, v14
    ds_read_b128 v[208:211], v{HS} offset:16
    ds_read_b64 v[212:213], v{HS} offset:32
    ds_read_b128 v[216:219], v{HC}
    ds_read_b128 v[220:223], v{HC} offset:16
    ds_read_b64 v[224:225], v{HC} offset:32""")
    stamp(8)
    a("s_waitcnt lgkmcnt(3)")
    ln("s_waitcnt lgkmcnt(0)")
    stamp(9)
    def mf(t):
        ab = 228 + 4 * (t % 3)
        a(f"v_mfma_f32_16x16x32_bf16 v[204:207], {v(ab,4)}, {v(GU+8*t,4)}, {'0' if t==0 else 'v[204:207]'}")
        a(f"v_mfma_f32_16x16x32_bf16 v[208:211], {v(ab,4)}, {v(GU+8*t+4,4)}, {'0' if t==0 else 'v[208:211]'}")
    for t in range(10):
        ab = 228 + 4 * (t % 3)
        for r in range(4): a(f"v_and_b32 v{ab+r}, v{216+t}, v{M8+r}")
        if t > 0: mf(t - 1)
    mf(9)
    a(f"""ds_write_b128 v{PW}, v[204:207]
    ds_write_b128 v{PW}, v[208:211] offset:256
    s_waitcnt lgkmcnt(0)
    s_barrier""")
    stamp(10)
    psum()
    a(f"""
    v_cvt_pk_bf16_f32 v204, v204, v206
    v_lshlrev_b32 v205, 16, v204
    v_and_b32 v206, s81, v204
    v_mul_f32 v207, v205, v205
    v_fma_f32 v207, v207, v{CG2}, v{CG1}
    v_mul_f32 v207, v207, v205
    v_exp_f32 v207, v207
    v_add_f32 v207, 1.0, v207
    v_rcp_f32 v207, v207
    v_mul_f32 v207, v207, v205
    v_cvt_pk_bf16_f32 v207, v207, v207
    v_and_b32 v207, s81, v207
    v_mul_f32 v207, v207, v206
    v_cvt_pk_bf16_f32 v207, v207, v207""")
    for t in range(2):
        for r in range(4): a(f"v_and_b32_dpp v{228+4*t+r}, v207, v{M4+r} row_newbcast:{8*t} row_mask:0xf bank_mask:0xf")
    for t in range(2):
        for b in range(5): a(f"v_mfma_f32_16x16x32_bf16 {v(208+4*b,4)}, {v(228+4*t,4)}, {v(DN+20*t+4*b,4)}, {'0' if t==0 else v(208+4*b,4)}")
    for b in range(5): a(f"ds_write_b128 v{DW}, {v(208+4*b,4)} offset:{512*b}")
    a("s_waitcnt lgkmcnt(0)\ns_barrier")
    stamp(11)
    a("s_cmp_ge_u32 s3, 5\ns_cbranch_scc1 L_aux_end")
    for k in range(4): a(f"ds_read_b128 {v(212+4*k,4)}, v{DR} offset:{LD+5376*k}")
    a("""s_waitcnt lgkmcnt(2)
    v_pk_add_f32 v[212:213], v[212:213], v[216:217]
    v_pk_add_f32 v[214:215], v[214:215], v[218:219]
    s_waitcnt lgkmcnt(0)
    v_pk_add_f32 v[220:221], v[220:221], v[224:225]
    v_pk_add_f32 v[222:223], v[222:223], v[226:227]
    v_pk_add_f32 v[212:213], v[212:213], v[220:221]
    v_pk_add_f32 v[214:215], v[214:215], v[222:223]""")
    for r in range(212, 216): a(f"v_add_f32_dpp v{r}, v{r}, v{r} quad_perm:[1,0,3,2] row_mask:0xf bank_mask:0xf")
    a(f"buffer_store_dwordx4 v[212:215], v{DS}, s[48:51], 0 offen sc1")
    stamp(12)
    a("L_aux_end:")
    stamp_out()
    a("s_endpgm")
    head = open(f"cdna_kernels/{KN}.s.ref").read().split("; Override launch")[0] if o["hdr"] else ""
    return finish(o, head, a.text(), LDS_SIZE)
def kd(name, vg):
    return f""".p2align 6
.amdhsa_kernel {name}
  .amdhsa_next_free_vgpr {vg}
  .amdhsa_next_free_sgpr 102
  .amdhsa_accum_offset {vg}
  .amdhsa_group_segment_fixed_size 0
  .amdhsa_kernarg_size 96
  .amdhsa_user_sgpr_count 2
  .amdhsa_user_sgpr_kernarg_segment_ptr 1
  .amdhsa_system_sgpr_workgroup_id_x 1
.end_amdhsa_kernel
"""
def diag_kernel(k, w0, w1, K, op, nw=2048):
    init = "0" if op == "max" else "-1"
    return f""".globl diag_kernel
.p2align 8
.type diag_kernel,@function
diag_kernel:
s_cmp_lg_u32 s2, 0
s_cbranch_scc1 LD_end
s_load_dwordx2 s[4:5], s[0:1], 88
s_waitcnt lgkmcnt(0)
s_add_u32 s4, s4, {STAMP_OFF}
s_addc_u32 s5, s5, 0
s_mov_b32 s6, 0x100000
s_mov_b32 s7, 0x20000
v_mov_b32 v1, -1
v_mov_b32 v2, {init}
v_mov_b32 v8, {init}
v_mov_b32 v3, v0
s_mov_b32 s8, 0
s_mov_b32 s12, {w0}
s_mov_b32 s13, {w1}
LD_l:
v_lshlrev_b32 v4, 8, v3
buffer_load_dword v5, v4, s[4:7], 0 offen sc1
buffer_load_dword v6, v4, s[4:7], 0 offen offset:{4*k} sc1
s_waitcnt vmcnt(0)
v_min_u32 v1, v1, v5
v_cmp_le_u32 vcc, s12, v3
s_nop 4
v_cndmask_b32 v6, v8, v6, vcc
v_cmp_gt_u32 vcc, s13, v3
s_nop 4
v_cndmask_b32 v6, v8, v6, vcc
v_cmp_ne_u32 vcc, 0, v6
s_nop 4
v_cndmask_b32 v6, v8, v6, vcc
v_{op}_u32 v2, v2, v6
v_add_u32 v3, 64, v3
s_add_u32 s8, s8, 1
s_cmp_lt_u32 s8, {nw//64}
s_cbranch_scc1 LD_l
s_mov_b32 s8, 0
s_mov_b32 s9, -1
s_mov_b32 s10, {init}
LD_r:
s_nop 4
v_readlane_b32 s11, v1, s8
v_readlane_b32 s14, v2, s8
s_nop 4
s_min_u32 s9, s9, s11
s_{op}_u32 s10, s10, s14
s_add_u32 s8, s8, 1
s_cmp_lt_u32 s8, 64
s_cbranch_scc1 LD_r
s_sub_u32 s10, s10, s9
s_min_u32 s10, s10, 20000
s_mul_i32 s10, s10, {K}
s_memrealtime s[16:17]
s_waitcnt lgkmcnt(0)
LD_s:
s_memrealtime s[18:19]
s_waitcnt lgkmcnt(0)
s_sub_u32 s18, s18, s16
s_cmp_lt_u32 s18, s10
s_cbranch_scc1 LD_s
LD_end:
s_endpgm
"""
def finish(o, head, text, lds, grid=256, blk=512, vg=256):
    if o["diag"]:
        L = f"; @launch kernel={KN}_kernel grid=({grid},1,1) block=({blk},1,1) lds={lds}\n; @launch kernel=diag_kernel grid=(1,1,1) block=(64,1,1) lds=0\n"
        text = text + diag_kernel(*o["diag"]); extra = kd("diag_kernel", 16)
    else:
        L = f"; @launch grid=({grid},1,1) block=({blk},1,1) lds={lds}\n"; extra = ""
    return head + L + f""".amdgcn_target "amdgcn-amd-amdhsa--gfx950"
.text
.globl {KN}_kernel
.p2align 8
.type {KN}_kernel,@function
""" + text + '.section .rodata,"a"\n' + kd(KN + "_kernel", vg) + extra
def _old(a, head):
    return head + f"""; @launch grid=(256,1,1) block=(512,1,1) lds={LDS_SIZE}
.amdgcn_target "amdgcn-amd-amdhsa--gfx950"
.text
.globl {KN}_kernel
.p2align 8
.type {KN}_kernel,@function
""" + a.text() + f""".section .rodata,"a"
.p2align 6
.amdhsa_kernel {KN}_kernel
  .amdhsa_next_free_vgpr 256
  .amdhsa_next_free_sgpr 102
  .amdhsa_accum_offset 256
  .amdhsa_group_segment_fixed_size 0
  .amdhsa_kernarg_size 96
  .amdhsa_user_sgpr_count 2
  .amdhsa_user_sgpr_kernarg_segment_ptr 1
  .amdhsa_system_sgpr_workgroup_id_x 1
.end_amdhsa_kernel
"""
if __name__ == "__main__":
    kw = {}
    out = f"cdna_kernels/{KN}.s"
    for x in sys.argv[1:]:
        k, val = x.split("=", 1)
        if k == "out": out = val
        else: kw[k] = eval(val)
    open(out, "w").write(gen(**kw))
```

```python
import sys, struct
sys.path.insert(0, "exp")
from asmlib import *
KN = "sequential_preLN__gqa_block_cached__glu_gated_geglu__decode"
def f2u(x): return "0x%08x" % struct.unpack("<I", struct.pack("<f", x))[0]
LOG2E = 1.4426950408889634
QM, OM, YM, DM, MBX = 0, 49152, 172032, 182272, 262144
OOB = 0x80000000
STAMP_OFF = 128 << 20
LH, LP, LO, LY, LD, LDUMP, LDS_SIZE = 0, 3072, 11776, 15872, 20992, 42496, 46592
DEF = dict(kv="", wt="", kbar=False, stamps=False, gate=True, hdr=True, shots=[(0,40),(1,32),(2,24),(3,12)], prio=0, il=2, diag=None)
def gen(**kw):
    o = dict(DEF); o.update(kw)
    a = A()
    KV = o["kv"]; WT = o["wt"]
    def stamp(k):
        if o["stamps"] is True or (o["stamps"] and k in o["stamps"]): a(f"s_memrealtime s[100:101]\ns_waitcnt lgkmcnt(0)\nv_writelane_b32 v1, s100, {k}")
    def stamp_out():
        if o["stamps"]:
            a(f"""s_add_u32 s96, s26, {STAMP_OFF}
            s_addc_u32 s97, s27, 0
            s_mov_b32 s98, 0x100000
            s_mov_b32 s99, 0x20000
            s_lshl_b32 s94, s2, 3
            s_add_u32 s94, s94, s3
            s_lshl_b32 s94, s94, 8
            s_mov_b64 exec, -1
            v_lshlrev_b32 v2, 2, v0
            buffer_store_dword v1, v2, s[96:99], s94 offen""")
    def srd(d, b, n, add=None):
        if add is None: a(f"s_mov_b32 s{d}, s{b}\ns_mov_b32 s{d+1}, s{b+1}")
        else: a(f"s_add_u32 s{d}, s{b}, {add}\ns_addc_u32 s{d+1}, s{b+1}, 0")
        a(f"s_mov_b32 s{d+2}, {n}\ns_mov_b32 s{d+3}, 0x20000")
    def spin(lbl, sb):
        a(f"s_sub_u32 s{sb}, s{sb}, 1\ns_cbranch_scc0 {lbl}\ns_mov_b32 s{sb}, 0")
    def wait_counter(tag, srdn, vt, sb, st, shots):
        for sec, n in shots:
            if n is not None: a(f"s_waitcnt vmcnt({n})")
            a(f"""s_load_dword s{st}, s[24:25], {64*sec}
            s_waitcnt lgkmcnt(0)
            s_cmp_eq_u32 s{st}, 64
            s_cbranch_scc1 L_cntok_{tag}""")
        a(f"""L_cnt_{tag}:
        buffer_load_dword v{vt}, off, s[{srdn}:{srdn+3}], 0 sc1
        s_waitcnt vmcnt(0)
        v_cmp_eq_u32 vcc, 64, v{vt}
        s_cbranch_vccnz L_cntok_{tag}""")
        spin(f"L_cnt_{tag}", sb)
        a(f"L_cntok_{tag}:")
    def masks(dst, andm, t0, t1):
        a(f"""v_and_b32 v{t0}, 1, v0
        v_lshlrev_b32 v{t0}, 4, v{t0}
        v_mov_b32 v{t1}, 0xffff
        v_lshlrev_b32 v{t0}, v{t0}, v{t1}
        v_and_b32 v{t1}, {andm}, v0
        v_lshrrev_b32 v{t1}, 1, v{t1}""")
        for r in range(4):
            a(f"v_cmp_eq_u32 vcc, {r}, v{t1}\nv_cndmask_b32 v{dst+r}, 0, v{t0}, vcc")
    a(f"{KN}_kernel:")
    if o["stamps"]: a("s_memrealtime s[100:101]")
    a("""s_cmp_ge_u32 s2, 256
    s_cbranch_scc1 L_end
    s_load_dwordx16 s[4:19], s[0:1], 0
    s_load_dwordx8 s[20:27], s[0:1], 64
    v_lshrrev_b32 v2, 6, v0
    v_and_b32 v0, 63, v0
    v_readfirstlane_b32 s3, v2
    s_cmp_lt_u32 s2, 64
    s_cbranch_scc1 L_aux""")
    for i in range(192): assert (i * 171) >> 10 == i // 6
    K0, V0, AQ, DQ, ACC, MK, S0 = 16, 112, 208, 224, 248, 4, 8
    LQ = 5632
    a(f"""s_sub_u32 s36, s2, 64
    s_mul_i32 s37, s36, 171
    s_lshr_b32 s37, s37, 10
    s_mul_i32 s38, s37, 6
    s_sub_u32 s38, s36, s38
    s_mul_i32 s39, s38, 43
    s_cmp_eq_u32 s38, 5
    s_cselect_b32 s40, 1, 0
    s_sub_u32 s39, s39, s40
    s_cmp_lt_u32 s38, 4
    s_cselect_b32 s40, 3, 2
    s_min_u32 s41, s3, s40
    s_mul_i32 s42, s3, 5
    s_add_u32 s39, s39, s41
    s_add_u32 s39, s39, s42
    s_cmp_lt_u32 s3, s40
    s_cselect_b32 s41, 0, 1
    s_cselect_b32 s43, 0, {OOB}
    s_cselect_b32 s44, 0, 0xff800000
    s_sub_u32 s39, s39, s41
    s_lshl_b32 s39, s39, 12
    s_lshl_b32 s42, s37, 20
    s_add_u32 s39, s39, s42
    v_bfe_u32 v2, v0, 2, 2
    v_lshrrev_b32 v3, 4, v0
    v_and_b32 v4, 3, v0
    v_lshlrev_b32 v2, 8, v2
    v_lshlrev_b32 v4, 4, v4
    v_lshl_add_u32 v2, v3, 6, v2
    v_add3_u32 v252, v2, v4, s39
    v_and_b32 v4, 15, v0
    v_lshlrev_b32 v3, 10, v3
    v_lshlrev_b32 v4, 4, v4
    v_add3_u32 v254, v3, v4, s39
    v_or_b32 v253, s43, v252
    v_or_b32 v255, s43, v254
    v_mov_b32 v2, 0
    v_mov_b32 v3, 0
    v_lshlrev_b32 v4, 3, v0
    ds_write_b64 v4, v[2:3] offset:{LQ}
    s_waitcnt lgkmcnt(0)
    s_barrier""")
    if o["stamps"]: a("v_mov_b32 v1, 0\nv_writelane_b32 v1, s100, 0")
    srd(28, 6, 1 << 25); srd(32, 8, 1 << 25)
    if o["prio"]: a(f"s_cmp_lg_u32 s3, 0\ns_cbranch_scc1 L_noprio\ns_setprio {o['prio']}\nL_noprio:")
    for s_ in range(1, 6): a(f"s_mov_b32 s{15+s_}, {4096*s_}")
    for sl in range(6):
        for t in range(4):
            a(f"buffer_load_dwordx4 {v(K0+16*sl+4*t,4)}, {'v253' if sl==0 else 'v252'}, s[28:31], {'0' if sl==0 else 's%d'%(15+sl)} offen offset:{1024*t} {KV}")
    if o["kbar"]: a("s_barrier")
    for sl in range(6):
        for t in range(4):
            a(f"buffer_load_dwordx4 {v(V0+16*sl+4*t,4)}, {'v255' if sl==0 else 'v254'}, s[32:35], {'0' if sl==0 else 's%d'%(15+sl)} offen offset:{256*t} {KV}")
    stamp(1)
    srd(12, 26, MBX)
    srd(28, 24, 256)
    a(f"""s_lshl_b32 s5, s36, 8
    s_add_u32 s10, s26, s5
    s_addc_u32 s11, s27, 0
    s_mov_b32 s4, 0x100000
    s_mov_b32 s5, s44
    s_mul_i32 s6, s36, 640
    s_add_u32 s6, s6, {OM}
    s_mul_i32 s7, s3, 544
    s_mov_b32 s8, {f2u(LOG2E)}
    s_mov_b32 s9, 0x3db504f3
    s_mov_b32 s21, 0xffff0000
    """)
    masks(MK, 15, 2, 3)
    a(f"""v_and_b32 v2, 15, v0
    v_lshrrev_b32 v3, 4, v0
    v_lshlrev_b32 v2, 5, v2
    v_lshl_add_u32 v2, v3, 4, v2
    v_add_u32 v2, s7, v2
    v_lshlrev_b32 v3, 4, v0
    v_add_u32 v3, 4352, v3
    v_cmp_gt_u32 vcc, 32, v0
    v_cndmask_b32 v252, v3, v2, vcc
    s_add_u32 s22, s7, 512
    v_mov_b32 v2, s22
    v_cmp_eq_u32 vcc, 0, v0
    v_cndmask_b32 v253, v3, v2, vcc
    s_add_u32 s22, s6, 512
    v_mov_b32 v2, s22
    v_mov_b32 v3, {OOB}
    v_cndmask_b32 v15, v3, v2, vcc
    v_and_b32 v2, 7, v0
    v_mul_u32_u24 v255, 544, v2
    v_cmp_eq_u32 vcc, 0, v2
    v_lshrrev_b32 v2, 3, v0
    v_lshlrev_b32 v2, 4, v2
    s_lshl_b32 s22, s3, 7
    v_add_u32 v2, s22, v2
    v_add_u32 v254, v255, v2
    v_add_u32 v2, s6, v2
    v_cndmask_b32 v14, v3, v2, vcc
    v_bfe_u32 v2, v0, 2, 2
    v_lshrrev_b32 v3, 4, v0
    v_and_b32 v8, 3, v0
    v_lshlrev_b32 v3, 6, v3
    v_lshl_add_u32 v3, v8, 4, v3
    v_mov_b32 v12, 256""")
    for t in range(4): a(f"v_cmp_eq_u32 vcc, {t}, v2\nv_cndmask_b32 v{8+t}, v12, v3, vcc")
    a("s_cmp_lg_u32 s3, 0\ns_cbranch_scc1 L_qwait")
    wait_counter("att", 28, 2, 4, 22, o["shots"])
    stamp(2)
    a(f"""L_q:
    s_load_dword s36, s[10:11], 252 glc
    s_waitcnt lgkmcnt(0)
    s_cmp_eq_u32 s36, -1
    s_cbranch_scc1 L_qre
    s_load_dwordx16 s[36:51], s[10:11], 0 glc
    s_load_dwordx16 s[68:83], s[10:11], 128 glc
    s_load_dwordx16 s[52:67], s[10:11], 64 glc
    s_load_dwordx16 s[84:99], s[10:11], 192 glc
    s_waitcnt lgkmcnt(0)""")
    for d in range(64): a(f"v_writelane_b32 v2, s{36+d}, {d}")
    a(f"""v_cmp_eq_u32 vcc, -1, v2
    s_cbranch_vccz L_qok
    L_qre:""")
    spin("L_q", 4)
    a(f"""L_qok:
    v_lshlrev_b32 v3, 2, v0
    v_mov_b32 v13, 1
    ds_write_b32 v3, v2 offset:{LQ}
    ds_write_b32 v12, v13 offset:{LQ+16}
    L_qwait:
    ds_read_b32 v13, v12 offset:{LQ+16}
    s_waitcnt lgkmcnt(0)
    v_cmp_eq_u32 vcc, 1, v13
    s_cbranch_vccnz L_qgo
    s_sleep 2""")
    spin("L_qwait", 4)
    a("L_qgo:")
    for t in range(4): a(f"ds_read_b128 {v(AQ+4*t,4)}, v{8+t} offset:{LQ}")
    a("s_waitcnt lgkmcnt(0)")
    stamp(3)
    for sl in range(6):
        a(f"s_waitcnt vmcnt({44-4*sl})")
        for t in range(4):
            a(f"v_mfma_f32_16x16x32_bf16 {v(DQ+4*sl,4)}, {v(AQ+4*t,4)}, {v(K0+16*sl+4*t,4)}, {'0' if t==0 else v(DQ+4*sl,4)}")
    stamp(4)
    for r in range(4):
        for sl in range(6):
            qp = f"quad_perm:[{r},{r},{r},{r}] row_mask:0xf bank_mask:0xf"
            if r == 0: a(f"v_mov_b32_dpp v{S0+sl}, v{DQ+4*sl} {qp}")
            else: a(f"v_add_f32_dpp v{S0+sl}, v{DQ+4*sl+r}, v{S0+sl} {qp}")
    T = AQ
    for rnd in range(2):
        for p in range(3): a(f"v_cvt_pk_bf16_f32 v{T+p}, v{S0+2*p}, v{S0+2*p+1}")
        for p in range(3): a(f"v_lshlrev_b32 v{S0+2*p}, 16, v{T+p}\nv_and_b32 v{S0+2*p+1}, s21, v{T+p}")
        if rnd == 0:
            for sl in range(6): a(f"v_mul_f32 v{S0+sl}, s9, v{S0+sl}")
    M, L_, TT = T + 4, T + 5, T + 6
    a(f"""v_add_f32 v{S0}, s5, v{S0}
    v_max3_f32 v{M}, v{S0+1}, v{S0+2}, v{S0+3}
    v_max3_f32 v{TT}, v{S0+4}, v{S0+5}, v{S0}
    v_max_f32 v{M}, v{M}, v{TT}
    v_max_f32_dpp v{M}, v{M}, v{M} row_ror:4 row_mask:0xf bank_mask:0xf
    v_max_f32_dpp v{M}, v{M}, v{M} row_ror:8 row_mask:0xf bank_mask:0xf
    v_mov_b32 v{TT}, v{M}
    v_permlane16_swap_b32 v{M}, v{TT}
    v_max_f32 v{M}, v{M}, v{TT}
    v_mov_b32 v{TT}, v{M}
    v_permlane32_swap_b32 v{M}, v{TT}
    v_max_f32 v{M}, v{M}, v{TT}
    v_mul_f32 v{M}, s8, v{M}""")
    for sl in range(6): a(f"v_fma_f32 v{S0+sl}, v{S0+sl}, s8, -v{M}")
    for sl in range(6): a(f"v_exp_f32 v{S0+sl}, v{S0+sl}")
    PK = T + 8
    for sl in range(6): a(f"v_cvt_pk_bf16_f32 v{PK+sl}, v{S0+sl}, v{S0+sl}")
    for sl in range(6):
        for k in range(4):
            for r in range(4):
                a(f"v_and_b32_dpp v{K0+16*sl+4*k+r}, v{PK+sl}, v{MK+r} row_newbcast:{4*k} row_mask:0xf bank_mask:0xf")
    a(f"""v_add_f32 v{L_}, v{S0}, v{S0+1}
    v_add_f32 v{TT}, v{S0+2}, v{S0+3}
    v_add_f32 v{S0+4}, v{S0+4}, v{S0+5}
    v_add_f32 v{L_}, v{L_}, v{TT}
    v_add_f32 v{L_}, v{L_}, v{S0+4}
    v_add_f32_dpp v{L_}, v{L_}, v{L_} row_ror:4 row_mask:0xf bank_mask:0xf
    v_add_f32_dpp v{L_}, v{L_}, v{L_} row_ror:8 row_mask:0xf bank_mask:0xf
    v_mov_b32 v{TT}, v{L_}
    v_permlane16_swap_b32 v{L_}, v{TT}
    v_add_f32 v{L_}, v{L_}, v{TT}
    v_mov_b32 v{TT}, v{L_}
    v_permlane32_swap_b32 v{L_}, v{TT}
    v_add_f32 v{L_}, v{L_}, v{TT}
    ds_write_b64 v253, {v(M,2)}""")
    stamp(5)
    for sl in range(6):
        for k in range(4):
            n = 23 - 4 * sl - k
            if k == 0 or sl == 5: a(f"s_waitcnt vmcnt({n - (3 if sl < 5 else 0)})")
            a(f"v_mfma_f32_16x16x32_bf16 {v(ACC,4)}, {v(K0+16*sl+4*k,4)}, {v(V0+16*sl+4*k,4)}, {'0' if sl==0 and k==0 else v(ACC,4)}")
    stamp(6)
    a(f"""ds_write_b128 v252, {v(ACC,4)}
    s_waitcnt lgkmcnt(0)
    s_barrier
    s_cmp_ge_u32 s3, 4
    s_cbranch_scc1 L_att_end
    ds_read_b64 v[16:17], v255 offset:512
    ds_read_b128 v[20:23], v254
    s_waitcnt lgkmcnt(1)
    v_max_f32_dpp v18, v16, v16 quad_perm:[1,0,3,2] row_mask:0xf bank_mask:0xf
    v_max_f32_dpp v18, v18, v18 quad_perm:[2,3,0,1] row_mask:0xf bank_mask:0xf
    v_max_f32_dpp v18, v18, v18 row_half_mirror row_mask:0xf bank_mask:0xf
    v_sub_f32 v16, v16, v18
    v_exp_f32 v16, v16
    s_waitcnt lgkmcnt(0)
    v_mul_f32 v19, v16, v17""")
    for r in range(4): a(f"v_mul_f32 v{20+r}, v16, v{20+r}")
    for dp in ("quad_perm:[1,0,3,2]", "quad_perm:[2,3,0,1]", "row_half_mirror"):
        for r in (20, 21, 22, 23, 19): a(f"v_add_f32_dpp v{r}, v{r}, v{r} {dp} row_mask:0xf bank_mask:0xf")
    a("""buffer_store_dwordx4 v[20:23], v14, s[12:15], 0 offen sc1
    s_cmp_lg_u32 s3, 0
    s_cbranch_scc1 L_att_end
    buffer_store_dwordx2 v[18:19], v15, s[12:15], 0 offen sc1
    L_att_end:""")
    stamp(7); stamp_out()
    a("L_end:\ns_endpgm")
    GU, WO, DN = 16, 96, 160
    M8, M4 = 4, 8
    SB = 80
    HW, HS, HC, PW, PR, YW = 240, 241, 242, 243, 244, 245
    C640, CEPS, CG1, CG2 = 246, 247, 248, 249
    g1 = -2 * LOG2E * 0.7978845608028654
    def gu_list():
        L = []
        for t in range(10):
            so = "0" if t == 0 else f"s{59+t}"
            L.append(f"buffer_load_dwordx4 {v(GU+8*t,4)}, v250, s[32:35], {so} offen {WT}")
            L.append(f"buffer_load_dwordx4 {v(GU+8*t+4,4)}, v250, s[36:39], {so} offen {WT}")
        return L
    def gu_setup():
        srd(32, 16, 2211840); srd(36, 18, 2211840)
        for t in range(1, 10): a(f"s_mov_b32 s{59+t}, {3456*t}")
        a("s_lshl_b32 s72, s77, 7\nv_mul_u32_u24 v250, 3456, v12\nv_lshl_add_u32 v250, v3, 4, v250\nv_add_u32 v250, s72, v250")
    def dn_loads():
        srd(44, 20, 2211840)
        a("""s_lshl_b32 s72, s77, 3
        s_add_u32 s72, s72, s3
        s_mul_i32 s72, s72, 10240
        v_lshrrev_b32 v14, 4, v0
        v_mul_u32_u24 v14, 2560, v14
        v_and_b32 v15, 15, v0
        v_lshl_add_u32 v14, v15, 4, v14
        v_add_u32 v14, s72, v14""")
        for t in range(2):
            for b in range(5): a(f"buffer_load_dwordx4 {v(DN+20*t+4*b,4)}, v14, s[44:47], 0 offen offset:{1280*t+256*b} {WT}")
    def wo_list():
        return [f"buffer_load_dwordx4 {v(WO+4*t,4)}, v251, s[40:43], {'0' if t < 4 else 's%d' % (68 + t//4)} offen offset:{1280*(t&3)} {WT}" for t in range(16)]
    def wq_loads(base, va):
        for t in range(10): a(f"buffer_load_dwordx4 {v(base+4*t,4)}, v{va}, s[52:55], {'0' if t == 0 else 's%d' % (83+t)} offen {WT}")
    def signal(tag, younger):
        a(f"""s_cmp_lg_u32 s3, 0
        s_cbranch_scc1 L_nosig_{tag}
        v_mov_b32 v15, 1
        v_lshlrev_b32 v14, 6, v0
        """)
        stamp(16)
        a(f"s_waitcnt vmcnt({younger})")
        stamp(17)
        a(f"""s_mov_b64 exec, 15
        buffer_atomic_add v15, v14, s[56:59], 0 offen sc1
        s_mov_b64 exec, -1
        L_nosig_{tag}:""")
    def ln(wait_c):
        for p in range(5): a(f"v_pk_add_f32 {v(204+2*p,2)}, {v(204+2*p,2)}, v[214:215] op_sel_hi:[1,0] neg_lo:[0,1] neg_hi:[0,1]")
        a("""v_pk_mul_f32 v[14:15], v[204:205], v[204:205]
        v_pk_add_f32 v[204:205], v[204:205], v[206:207]
        v_pk_fma_f32 v[14:15], v[206:207], v[206:207], v[14:15]
        v_pk_add_f32 v[206:207], v[208:209], v[210:211]
        v_pk_fma_f32 v[14:15], v[208:209], v[208:209], v[14:15]
        v_pk_add_f32 v[204:205], v[204:205], v[212:213]
        v_pk_fma_f32 v[14:15], v[210:211], v[210:211], v[14:15]
        v_pk_add_f32 v[204:205], v[204:205], v[206:207]
        v_pk_fma_f32 v[14:15], v[212:213], v[212:213], v[14:15]
        v_add_f32 v204, v204, v205
        v_add_f32 v14, v14, v15""")
        for dp in ("row_ror:1 row_mask:0xf", "row_ror:2 row_mask:0xf", "row_ror:4 row_mask:0xf", "row_ror:8 row_mask:0xf", "row_bcast:15 row_mask:0xa", "row_bcast:31 row_mask:0xc"):
            a(f"v_add_f32_dpp v204, v204, v204 {dp} bank_mask:0xf\nv_add_f32_dpp v14, v14, v14 {dp} bank_mask:0xf")
        a(f"""v_readlane_b32 s72, v204, 63
        v_readlane_b32 s73, v14, 63
        v_mul_f32 v14, s72, v{C640}
        v_mul_f32 v15, s73, v{C640}
        v_add_f32 v214, v214, v14
        v_fma_f32 v15, -v14, v14, v15
        v_cvt_pk_bf16_f32 v14, v214, v15
        v_and_b32 v15, s81, v14
        v_lshlrev_b32 v214, 16, v14
        v_add_f32 v15, v15, v{CEPS}""")
        a(wait_c)
        pk = [f"v_pk_add_f32 {v(216+2*p,2)}, {v(216+2*p,2)}, v[214:215] op_sel_hi:[1,0] neg_lo:[0,1] neg_hi:[0,1]" for p in range(5)]
        cv = [f"v_cvt_pk_bf16_f32 v{204+p}, v{216+2*p}, v{217+2*p}" for p in range(5)]
        un = [f"v_lshlrev_b32 v{216+2*p}, 16, v{204+p}\nv_and_b32 v{217+2*p}, s81, v{204+p}" for p in range(5)]
        a("v_cvt_pk_bf16_f32 v15, v15, v15"); a(pk[0]); a("v_and_b32 v15, s81, v15"); a(pk[1]); a("v_sqrt_f32 v15, v15")
        a(pk[2]); a(pk[3]); a("v_cvt_pk_bf16_f32 v15, v15, v15"); a(pk[4]); a("v_and_b32 v15, s81, v15"); a(cv[0]); a("v_rcp_f32 v14, v15")
        for x in cv[1:] + un: a(x)
        for p in range(5): a(f"v_pk_mul_f32 {v(216+2*p,2)}, {v(216+2*p,2)}, v[14:15] op_sel_hi:[1,0]")
        for t in range(10): a(f"v_cvt_pk_bf16_f32 v{216+t}, v{216+t}, v{216+t}")
    def qgemv(base, acc, after, nxt):
        nxt = list(nxt); issued = 0
        for t in range(10):
            for r in range(4): a(f"v_and_b32 v{228+4*(t%2)+r}, v{216+t}, v{M8+r}")
            a(f"s_waitcnt vmcnt({9-t+after+issued})")
            a(f"v_mfma_f32_16x16x32_bf16 {v(acc,4)}, {v(228+4*(t%2),4)}, {v(base+4*t,4)}, {'0' if t==0 else v(acc,4)}")
            for k in range(o["il"]):
                if nxt: a(nxt.pop(0)); issued += 1
        return nxt
    def psum():
        a(f"""ds_read2st64_b32 v[204:205], v{PR} offset0:0 offset1:17
        ds_read2st64_b32 v[206:207], v{PR} offset0:1 offset1:18
        s_waitcnt lgkmcnt(1)
        v_add_f32 v204, v204, v205
        s_waitcnt lgkmcnt(0)
        v_add_f32 v206, v206, v207""")
        for dp in ("quad_perm:[1,0,3,2]", "quad_perm:[2,3,0,1]", "row_half_mirror"):
            a(f"v_add_f32_dpp v204, v204, v204 {dp} row_mask:0xf bank_mask:0xf\nv_add_f32_dpp v206, v206, v206 {dp} row_mask:0xf bank_mask:0xf")
    def qpub(reg, su):
        a(f"""v_mov_b32_dpp v15, v{reg} row_ror:8 row_mask:0xf bank_mask:0xf
        s_lshr_b32 s72, s{su}, 1
        s_mul_i32 s72, s72, 1536
        s_and_b32 s73, s{su}, 1
        s_lshl_b32 s73, s73, 7
        s_add_u32 s72, s72, s73
        v_cvt_pk_bf16_f32 v15, v{reg}, v15
        v_min_u32 v15, -2, v15
        buffer_store_dword v15, v14, s[48:51], s72 offen sc1""")
    for i in range(40): assert (i * 26) >> 8 == i // 10
    for col in range(0, 640, 2): assert (col * 52429) >> 19 == col // 10
    a("""L_aux:
    v_lshrrev_b32 v2, 3, v0
    v_and_b32 v3, 7, v0
    s_mul_i32 s72, s3, 80
    v_mul_u32_u24 v12, 10, v2
    v_add_u32 v12, s72, v12
    v_lshlrev_b32 v13, 2, v0
    s_lshl_b32 s72, s3, 8
    v_add_u32 v13, s72, v13
    s_and_b32 s78, s2, 7
    s_lshl_b32 s78, s78, 3
    s_lshr_b32 s72, s2, 3
    s_add_u32 s78, s78, s72
    s_add_u32 s79, s78, 24
    s_lshl_b32 s72, s78, 7
    v_lshlrev_b32 v252, 13, v12
    v_lshl_add_u32 v252, v3, 4, v252
    v_add_u32 v252, s72, v252
    v_add_u32 v253, 3072, v252
    v_mul_u32_u24 v254, 20, v0
    v_lshlrev_b32 v255, 1, v12
    v_mov_b32 v204, -1
    v_mov_b32 v205, -1
    v_mov_b32 v206, -1
    v_mov_b32 v207, -1
    v_lshlrev_b32 v14, 4, v0""")
    for t in range(1, 10): a(f"s_mov_b32 s{83+t}, {8192*t}")
    a("""s_mul_i32 s74, s2, 26
    s_lshr_b32 s74, s74, 8
    s_mul_i32 s75, s74, 10
    s_sub_u32 s75, s2, s75
    s_lshl_b32 s76, s74, 3
    s_add_u32 s76, s76, s3
    s_mul_i32 s72, s76, 163840
    s_lshl_b32 s73, s75, 7
    s_add_u32 s72, s72, s73
    v_mul_u32_u24 v251, 20480, v2
    v_lshl_add_u32 v251, v3, 4, v251
    v_add_u32 v251, s72, v251
    s_mov_b32 s69, 5120
    s_mov_b32 s70, 10240
    s_mov_b32 s71, 15360
    s_sub_u32 s77, s2, 37
    s_lshl_b32 s72, s2, 12
    s_waitcnt lgkmcnt(0)""")
    if o["stamps"]: a("v_mov_b32 v1, 0\nv_writelane_b32 v1, s100, 0")
    srd(48, 26, MBX)
    a("s_cmp_lg_u32 s3, 0\ns_cbranch_scc1 L_noclr")
    for k in range(4): a(f"buffer_store_dwordx4 v[204:207], v14, s[48:51], s72 offen offset:{1024*k} sc1")
    a("L_noclr:")
    srd(28, 4, 1280); srd(52, 10, 5242880); srd(56, 24, 256); srd(40, 12, 5242880)
    a(f"""s_mov_b32 s{SB}, 0x40000
    buffer_load_dword v200, v13, s[28:31], 0 offen
    s_cmp_lt_u32 s77, 3
    s_cbranch_scc0 L_notdual""")
    for x in wo_list(): a(x)
    signal("d", 17)
    a("s_barrier")
    gu_setup()
    for x in gu_list(): a(x)
    dn_loads()
    a("""s_branch L_consts
    L_notdual:
    buffer_load_dwordx4 v[228:231], v254, s[28:31], 0 offen
    buffer_load_dword v232, v254, s[28:31], 0 offen offset:16
    buffer_load_dwordx4 v[236:239], v255, s[28:31], 0 offen
    buffer_load_dword v233, v255, s[28:31], 0 offen offset:16""")
    wq_loads(DN, 252)
    signal("q", 15)
    a("""s_sub_u32 s72, s2, 34
    s_cmp_lt_u32 s72, 3
    s_cbranch_scc0 L_consts""")
    wq_loads(GU, 253)
    a("L_consts:")
    stamp(1)
    masks(M8, 7, 14, 15); masks(M4, 15, 14, 15)
    a(f"""s_mov_b32 s81, 0xffff0000
    v_mov_b32 v{C640}, {f2u(1/640)}
    v_mov_b32 v{CEPS}, {f2u(1e-5)}
    v_mov_b32 v{CG1}, {f2u(g1)}
    v_mov_b32 v{CG2}, {f2u(g1*0.044715)}
    v_lshrrev_b32 v14, 1, v13
    s_mov_b32 s72, 52429
    v_mul_lo_u32 v15, v14, s72
    v_lshrrev_b32 v15, 19, v15
    v_lshlrev_b32 v15, 1, v15
    v_add_u32 v14, v14, v15
    v_lshlrev_b32 v{HW}, 2, v14
    v_mul_u32_u24 v{HS}, 48, v0
    s_lshl_b32 s72, s3, 3
    v_add_u32 v14, s72, v2
    v_mul_u32_u24 v{HC}, 48, v14
    v_lshlrev_b32 v14, 2, v14
    v_mul_u32_u24 v15, 544, v3
    v_add_u32 v{PR}, v14, v15
    v_add_u32 v{PR}, {LP}, v{PR}""")
    a(f"""v_lshrrev_b32 v14, 5, v0
    v_bfe_u32 v15, v0, 3, 1
    v_cmp_eq_u32 vcc, v14, v15
    s_lshl_b32 s72, s3, 1
    v_add_u32 v14, s72, v14
    v_bfe_u32 v15, v0, 4, 1
    v_lshlrev_b32 v15, 4, v15
    v_lshl_add_u32 v15, v3, 5, v15
    v_lshlrev_b32 v201, 4, v0
    v_add_u32 v201, {LDUMP}, v201
    v_mul_u32_u24 v202, 544, v14
    v_add_u32 v202, v202, v15
    v_add_u32 v202, {LP}, v202
    v_cndmask_b32 v{PW}, v201, v202, vcc
    v_mul_u32_u24 v202, 320, v14
    v_add_u32 v202, v202, v15
    v_add_u32 v202, {LY}, v202
    v_cndmask_b32 v{YW}, v201, v202, vcc
    s_cmp_lt_u32 s77, 3
    s_cbranch_scc0 L_qrole
    s_cmp_lg_u32 s3, 0
    s_cbranch_scc1 L_cntok_dual""")
    wait_counter("dual", 56, 14, SB, 72, [(3, None)])
    a("s_barrier\ns_branch L_wo")
    a("L_qrole:\ns_waitcnt vmcnt(10)")
    for p in range(5):
        src = 228 + p; srcc = 236 + p if p < 4 else 233
        a(f"v_lshlrev_b32 v{204+2*p}, 16, v{src}\nv_and_b32 v{205+2*p}, s81, v{src}\nv_lshlrev_b32 v{216+2*p}, 16, v{srcc}\nv_and_b32 v{217+2*p}, s81, v{srcc}")
    a("v_readfirstlane_b32 s72, v204\nv_mov_b32 v214, s72")
    ln("")
    stamp(13)
    a("s_cmp_ge_u32 s2, 40\ns_cbranch_scc1 L_q_f\ns_cmp_ge_u32 s2, 34\ns_cbranch_scc1 L_q_w2")
    rest = qgemv(DN, 204, 0, wo_list())
    for x in rest: a(x)
    a("s_branch L_q_sum\nL_q_w2:")
    qgemv(DN, 204, 10, [])
    rest = qgemv(GU, 208, 0, wo_list())
    for x in rest: a(x)
    a("s_branch L_q_sum\nL_q_f:")
    gu_setup()
    rest = qgemv(DN, 204, 0, gu_list())
    for x in rest: a(x)
    a("L_q_sum:")
    stamp(18)
    a(f"""    ds_write_b128 v{PW}, v[204:207]
    ds_write_b128 v{PW}, v[208:211] offset:256
    s_cmp_lg_u32 s3, 0
    s_cbranch_scc1 L_cntok_q""")
    wait_counter("q", 56, 14, SB, 72, [(3, None)])
    a("s_waitcnt lgkmcnt(0)\ns_barrier")
    stamp(14)
    psum()
    a(f"""v_and_b32 v14, 15, v0
    v_cmp_gt_u32 vcc, 6, v14
    v_lshlrev_b32 v14, 8, v14
    v_lshrrev_b32 v15, 4, v0
    v_lshl_add_u32 v14, v15, 2, v14
    s_lshl_b32 s73, s3, 4
    v_add_u32 v14, s73, v14
    v_mov_b32 v15, {OOB}
    v_cndmask_b32 v14, v15, v14, vcc""")
    qpub(204, 78)
    a("s_sub_u32 s72, s2, 34\ns_cmp_lt_u32 s72, 3\ns_cbranch_scc0 L_q_1")
    qpub(206, 79)
    a("L_q_1:")
    stamp(15)
    a("s_cmp_lt_u32 s2, 40\ns_cbranch_scc1 L_wo")
    dn_loads()
    a("s_branch L_ffn")
    a(f"""L_wo:
    s_mul_i32 s72, s76, 3840
    s_add_u32 s72, s72, {OM}
    v_lshlrev_b32 v202, 3, v0
    v_add_u32 v203, s72, v202
    v_and_b32 v14, 15, v0
    v_cmp_gt_u32 vcc, 6, v14
    v_cndmask_b32 v205, 0, 1.0, vcc
    v_min_u32 v14, 5, v14
    v_mul_u32_u24 v14, 640, v14
    v_add_u32 v204, s72, v14
    s_lshl_b32 s72, s3, 9
    s_add_u32 s72, s72, {LO}
    v_add_u32 v202, s72, v202
    v_lshlrev_b32 v206, 6, v2
    v_add_u32 v206, s72, v206
    v_lshrrev_b32 v14, 2, v0
    v_and_b32 v15, 3, v0
    v_lshlrev_b32 v14, 4, v14
    v_cmp_eq_u32 vcc, 0, v15
    v_mul_u32_u24 v15, 320, v15
    v_add_u32 v207, v14, v15
    s_mul_i32 s72, s74, 2560
    s_lshl_b32 s73, s75, 8
    s_add_u32 s72, s72, s73
    s_add_u32 s72, s72, {YM}
    v_add_u32 v14, s72, v14
    v_mov_b32 v15, {OOB}
    v_cndmask_b32 v208, v15, v14, vcc""")
    if o["gate"]:
        a("""L_h1a:
        buffer_load_dword v210, v204, s[48:51], 0 offen offset:512 sc1
        s_waitcnt vmcnt(0)
        v_cmp_ne_u32 vcc, -1, v210
        s_cbranch_vccnz L_h1""")
        spin("L_h1a", SB)
    a("L_h1:")
    a("buffer_load_dwordx2 v[210:211], v204, s[48:51], 0 offen offset:512 sc1")
    for c in range(6): a(f"buffer_load_dwordx2 {v(212+2*c,2)}, v203, s[48:51], 0 offen offset:{640*c} sc1")
    a("""s_waitcnt vmcnt(0)
    v_max3_u32 v14, v210, v211, v212
    v_max3_u32 v15, v213, v214, v215
    v_max3_u32 v14, v14, v216, v217
    v_max3_u32 v15, v15, v218, v219
    v_max3_u32 v14, v14, v220, v221
    v_max3_u32 v15, v15, v222, v223
    v_max_u32 v14, v14, v15
    v_cmp_eq_u32 vcc, -1, v14
    s_cbranch_vccz L_h1ok""")
    spin("L_h1", SB)
    a("L_h1ok:")
    stamp(3)
    a("""v_max_f32_dpp v14, v210, v210 quad_perm:[1,0,3,2] row_mask:0xf bank_mask:0xf
    v_mul_f32 v211, v211, v205
    v_max_f32_dpp v14, v14, v14 quad_perm:[2,3,0,1] row_mask:0xf bank_mask:0xf
    v_max_f32_dpp v14, v14, v14 row_half_mirror row_mask:0xf bank_mask:0xf
    v_sub_f32 v210, v210, v14
    v_exp_f32 v210, v210
    v_mul_f32 v211, v210, v211
    v_mul_f32_dpp v224, v210, v212 row_newbcast:0 row_mask:0xf bank_mask:0xf
    v_mul_f32_dpp v225, v210, v213 row_newbcast:0 row_mask:0xf bank_mask:0xf
    v_add_f32_dpp v211, v211, v211 quad_perm:[1,0,3,2] row_mask:0xf bank_mask:0xf""")
    seq = []
    for c in range(1, 6):
        for e in range(2): seq.append(f"v_fmac_f32_dpp v{224+e}, v210, v{212+2*c+e} row_newbcast:{c} row_mask:0xf bank_mask:0xf")
    seq.insert(2, "v_add_f32_dpp v211, v211, v211 quad_perm:[2,3,0,1] row_mask:0xf bank_mask:0xf")
    seq.insert(5, "v_add_f32_dpp v211, v211, v211 row_half_mirror row_mask:0xf bank_mask:0xf")
    seq.insert(8, "v_rcp_f32 v211, v211")
    a("\n".join(seq))
    a("""v_mul_f32_dpp v224, v211, v224 row_newbcast:0 row_mask:0xf bank_mask:0xf
    v_mul_f32_dpp v225, v211, v225 row_newbcast:0 row_mask:0xf bank_mask:0xf
    v_cvt_pk_bf16_f32 v224, v224, v224
    v_cvt_pk_bf16_f32 v225, v225, v225
    ds_write_b64 v202, v[224:225]""")
    for k in range(4): a(f"ds_read_b128 {v(208+4+4*k,4)}, v206 offset:{16*k}")
    for t in range(16):
        if t % 4 == 0: a(f"s_waitcnt lgkmcnt({3 - t//4})")
        ab = 228 + 4 * (t % 3)
        for r in range(4): a(f"v_and_b32 v{ab+r}, v{212+t}, v{M8+r}")
        if t > 0: a(f"v_mfma_f32_16x16x32_bf16 v[252:255], {v(228+4*((t-1)%3),4)}, {v(WO+4*(t-1),4)}, {'0' if t==1 else 'v[252:255]'}")
    a(f"v_mfma_f32_16x16x32_bf16 v[252:255], {v(228,4)}, {v(WO+60,4)}, v[252:255]")
    a(f"""ds_write_b128 v{YW}, v[252:255]
    s_waitcnt lgkmcnt(0)
    s_barrier""")
    stamp(4)
    a("s_cmp_lg_u32 s3, 0\ns_cbranch_scc1 L_wo_done")
    for k in range(4): a(f"ds_read_b128 {v(212+4*k,4)}, v207 offset:{LY+1280*k}")
    a("""s_waitcnt lgkmcnt(2)
    v_pk_add_f32 v[212:213], v[212:213], v[216:217]
    v_pk_add_f32 v[214:215], v[214:215], v[218:219]
    s_waitcnt lgkmcnt(0)
    v_pk_add_f32 v[220:221], v[220:221], v[224:225]
    v_pk_add_f32 v[222:223], v[222:223], v[226:227]
    v_pk_add_f32 v[212:213], v[212:213], v[220:221]
    v_pk_add_f32 v[214:215], v[214:215], v[222:223]""")
    for dp in ("quad_perm:[1,0,3,2]", "quad_perm:[2,3,0,1]"):
        for r in range(212, 216): a(f"v_add_f32_dpp v{r}, v{r}, v{r} {dp} row_mask:0xf bank_mask:0xf")
    a("buffer_store_dwordx4 v[212:215], v208, s[48:51], 0 offen sc1\nL_wo_done:")
    stamp(5)
    a("""s_cmp_ge_u32 s2, 37
    s_cbranch_scc1 L_ffn
    s_cmp_ge_u32 s2, 20
    s_cbranch_scc1 L_aux_end
    s_cmp_lg_u32 s3, 7
    s_cbranch_scc1 L_aux_end""")
    srd(52, 22, 1280)
    a(f"""s_lshl_b32 s72, s2, 7
    v_mul_u32_u24 v14, 2560, v2
    v_lshl_add_u32 v14, v3, 4, v14
    v_add_u32 v14, s72, v14
    v_add_u32 v202, {YM}, v14
    v_mov_b32 v15, {OOB}
    v_cmp_gt_u32 vcc, 32, v0
    v_cndmask_b32 v202, v15, v202, vcc
    v_add_u32 v203, {DM}, v14
    v_add_u32 v204, {DM+61440}, v14
    v_cmp_gt_u32 vcc, 24, v0
    v_cndmask_b32 v204, v15, v204, vcc
    v_bfe_u32 v14, v0, 4, 1
    v_lshrrev_b32 v205, 5, v0
    v_lshl_add_u32 v14, v14, 1, v205
    v_lshl_add_u32 v14, v3, 2, v14
    v_lshlrev_b32 v14, 1, v14
    s_lshl_b32 s72, s2, 6
    v_add_u32 v14, s72, v14
    buffer_load_ushort v206, v14, s[28:31], 0 offen
    v_bfe_u32 v205, v0, 3, 1
    v_cmp_eq_u32 vcc, 0, v205
    v_cndmask_b32 v205, v15, v14, vcc
    s_mov_b32 s72, 20480
    s_mov_b32 s73, 40960
    L_ry:
    buffer_load_dwordx4 v[212:215], v202, s[48:51], 0 offen sc1
    s_waitcnt vmcnt(0)
    v_max3_u32 v14, v212, v213, v214
    v_max_u32 v14, v14, v215
    v_cmp_eq_u32 vcc, -1, v14
    s_cbranch_vccz L_ryok""")
    spin("L_ry", SB)
    def rs4(b):
        a(f"""v_permlane32_swap_b32 v{b}, v{b+1}
        v_permlane32_swap_b32 v{b+2}, v{b+3}
        v_add_f32 v{b}, v{b}, v{b+1}
        v_add_f32 v{b+2}, v{b+2}, v{b+3}
        v_permlane16_swap_b32 v{b}, v{b+2}
        v_add_f32 v{b}, v{b}, v{b+2}
        v_add_f32_dpp v{b}, v{b}, v{b} row_ror:8 row_mask:0xf bank_mask:0xf""")
    a("L_ryok:")
    rs4(212)
    a("""v_cvt_pk_bf16_f32 v212, v212, v212
    v_lshlrev_b32 v206, 16, v206
    v_and_b32 v212, s81, v212
    v_add_f32 v212, v212, v206
    v_cvt_pk_bf16_f32 v212, v212, v212
    v_and_b32 v206, s81, v212""")
    stamp(6)
    a("""L_rd:
    buffer_load_dwordx4 v[212:215], v203, s[48:51], 0 offen sc1
    buffer_load_dwordx4 v[216:219], v203, s[48:51], s72 offen sc1
    buffer_load_dwordx4 v[220:223], v203, s[48:51], s73 offen sc1
    buffer_load_dwordx4 v[224:227], v204, s[48:51], 0 offen sc1
    s_waitcnt vmcnt(0)""")
    a("v_max3_u32 v14, v212, v213, v214\nv_max3_u32 v15, v215, v216, v217")
    a("v_max3_u32 v14, v14, v218, v219\nv_max3_u32 v15, v15, v220, v221\nv_max3_u32 v14, v14, v222, v223\nv_max3_u32 v15, v15, v224, v225\nv_max3_u32 v14, v14, v226, v227\nv_max_u32 v14, v14, v15")
    a("v_cmp_eq_u32 vcc, -1, v14\ns_cbranch_vccz L_rdok")
    spin("L_rd", SB)
    a("""L_rdok:
    v_pk_add_f32 v[212:213], v[212:213], v[216:217]
    v_pk_add_f32 v[220:221], v[220:221], v[224:225]
    v_pk_add_f32 v[214:215], v[214:215], v[218:219]
    v_pk_add_f32 v[222:223], v[222:223], v[226:227]
    v_pk_add_f32 v[212:213], v[212:213], v[220:221]
    v_pk_add_f32 v[214:215], v[214:215], v[222:223]""")
    rs4(212)
    a("""v_cvt_pk_bf16_f32 v212, v212, v212
    v_and_b32 v212, s81, v212
    v_add_f32 v212, v212, v206
    v_cvt_pk_bf16_f32 v212, v212, v212
    buffer_store_short v212, v205, s[52:55], 0 offen""")
    stamp(7)
    a("s_branch L_aux_end")
    DW, DR, DS = 250, 251, 201
    a(f"""L_ffn:
    v_and_b32 v14, 15, v0
    v_lshrrev_b32 v15, 4, v0
    v_lshlrev_b32 v14, 5, v14
    v_lshl_add_u32 v14, v15, 4, v14
    s_mul_i32 s72, s3, 2688
    s_add_u32 s72, s72, {LD}
    v_add_u32 v14, s72, v14
    v_lshlrev_b32 v15, 4, v0
    v_add_u32 v15, {LDUMP}, v15
    v_cmp_gt_u32 vcc, 32, v0
    v_cndmask_b32 v{DW}, v15, v14, vcc
    v_lshrrev_b32 v14, 1, v0
    v_lshlrev_b32 v14, 4, v14
    s_lshl_b32 s72, s3, 9
    v_add_u32 v14, s72, v14
    v_and_b32 v15, 1, v0
    v_cmp_eq_u32 vcc, 0, v15
    v_mul_u32_u24 v15, 2688, v15
    v_add_u32 v{DR}, v14, v15
    s_mul_i32 s72, s77, 2560
    s_add_u32 s72, s72, {DM}
    v_add_u32 v14, s72, v14
    v_mov_b32 v15, {OOB}
    v_cndmask_b32 v{DS}, v15, v14, vcc
    s_waitcnt vmcnt(0)
    s_cmp_ge_u32 s3, 5
    s_cbranch_scc1 L_lng_bar
    v_lshlrev_b32 v14, 1, v13
    v_add_u32 v14, {YM}, v14
    s_mov_b32 s72, 5120
    L_h2:
    buffer_load_dwordx2 v[212:213], v14, s[48:51], 0 offen sc1
    buffer_load_dwordx2 v[214:215], v14, s[48:51], 0 offen offset:2560 sc1
    buffer_load_dwordx2 v[216:217], v14, s[48:51], s72 offen sc1
    buffer_load_dwordx2 v[218:219], v14, s[48:51], s72 offen offset:2560 sc1
    s_waitcnt vmcnt(0)
    v_max3_u32 v15, v212, v213, v214
    v_max3_u32 v202, v215, v216, v217
    v_max3_u32 v15, v15, v218, v219
    v_max_u32 v15, v15, v202
    v_cmp_eq_u32 vcc, -1, v15
    s_cbranch_vccz L_h2ok""")
    spin("L_h2", SB)
    a("L_h2ok:")
    stamp(6)
    a("""v_pk_add_f32 v[212:213], v[212:213], v[214:215]
    v_pk_add_f32 v[216:217], v[216:217], v[218:219]
    v_lshlrev_b32 v202, 16, v200
    v_pk_add_f32 v[212:213], v[212:213], v[216:217]
    v_and_b32 v203, s81, v200
    v_cvt_pk_bf16_f32 v212, v212, v213
    v_lshlrev_b32 v214, 16, v212
    v_and_b32 v215, s81, v212
    v_pk_add_f32 v[202:203], v[202:203], v[214:215]
    v_cvt_pk_bf16_f32 v212, v202, v203
    v_lshlrev_b32 v202, 16, v212
    v_and_b32 v203, s81, v212""")
    a(f"""    ds_write_b64 v{HW}, v[202:203]
    s_waitcnt lgkmcnt(0)
    L_lng_bar:
    s_barrier
    v_mov_b32 v14, 0
    ds_read_b128 v[204:207], v{HS}
    ds_read_b32 v214, v14
    ds_read_b128 v[208:211], v{HS} offset:16
    ds_read_b64 v[212:213], v{HS} offset:32
    ds_read_b128 v[216:219], v{HC}
    ds_read_b128 v[220:223], v{HC} offset:16
    ds_read_b64 v[224:225], v{HC} offset:32""")
    stamp(8)
    a("s_waitcnt lgkmcnt(3)")
    ln("s_waitcnt lgkmcnt(0)")
    stamp(9)
    def mf(t):
        ab = 228 + 4 * (t % 3)
        a(f"v_mfma_f32_16x16x32_bf16 v[204:207], {v(ab,4)}, {v(GU+8*t,4)}, {'0' if t==0 else 'v[204:207]'}")
        a(f"v_mfma_f32_16x16x32_bf16 v[208:211], {v(ab,4)}, {v(GU+8*t+4,4)}, {'0' if t==0 else 'v[208:211]'}")
    for t in range(10):
        ab = 228 + 4 * (t % 3)
        for r in range(4): a(f"v_and_b32 v{ab+r}, v{216+t}, v{M8+r}")
        if t > 0: mf(t - 1)
    mf(9)
    a(f"""ds_write_b128 v{PW}, v[204:207]
    ds_write_b128 v{PW}, v[208:211] offset:256
    s_waitcnt lgkmcnt(0)
    s_barrier""")
    stamp(10)
    psum()
    a(f"""
    v_cvt_pk_bf16_f32 v204, v204, v206
    v_lshlrev_b32 v205, 16, v204
    v_and_b32 v206, s81, v204
    v_mul_f32 v207, v205, v205
    v_fma_f32 v207, v207, v{CG2}, v{CG1}
    v_mul_f32 v207, v207, v205
    v_exp_f32 v207, v207
    v_add_f32 v207, 1.0, v207
    v_rcp_f32 v207, v207
    v_mul_f32 v207, v207, v205
    v_cvt_pk_bf16_f32 v207, v207, v207
    v_and_b32 v207, s81, v207
    v_mul_f32 v207, v207, v206
    v_cvt_pk_bf16_f32 v207, v207, v207""")
    for t in range(2):
        for r in range(4): a(f"v_and_b32_dpp v{228+4*t+r}, v207, v{M4+r} row_newbcast:{8*t} row_mask:0xf bank_mask:0xf")
    for t in range(2):
        for b in range(5): a(f"v_mfma_f32_16x16x32_bf16 {v(208+4*b,4)}, {v(228+4*t,4)}, {v(DN+20*t+4*b,4)}, {'0' if t==0 else v(208+4*b,4)}")
    for b in range(5): a(f"ds_write_b128 v{DW}, {v(208+4*b,4)} offset:{512*b}")
    a("s_waitcnt lgkmcnt(0)\ns_barrier")
    stamp(11)
    a("s_cmp_ge_u32 s3, 5\ns_cbranch_scc1 L_aux_end")
    for k in range(4): a(f"ds_read_b128 {v(212+4*k,4)}, v{DR} offset:{LD+5376*k}")
    a("""s_waitcnt lgkmcnt(2)
    v_pk_add_f32 v[212:213], v[212:213], v[216:217]
    v_pk_add_f32 v[214:215], v[214:215], v[218:219]
    s_waitcnt lgkmcnt(0)
    v_pk_add_f32 v[220:221], v[220:221], v[224:225]
    v_pk_add_f32 v[222:223], v[222:223], v[226:227]
    v_pk_add_f32 v[212:213], v[212:213], v[220:221]
    v_pk_add_f32 v[214:215], v[214:215], v[222:223]""")
    for r in range(212, 216): a(f"v_add_f32_dpp v{r}, v{r}, v{r} quad_perm:[1,0,3,2] row_mask:0xf bank_mask:0xf")
    a(f"buffer_store_dwordx4 v[212:215], v{DS}, s[48:51], 0 offen sc1")
    stamp(12)
    a("L_aux_end:")
    stamp_out()
    a("s_endpgm")
    head = open(f"cdna_kernels/{KN}.s.ref").read().split("; Override launch")[0] if o["hdr"] else ""
    return finish(o, head, a.text(), LDS_SIZE)
def kd(name, vg):
    return f""".p2align 6
.amdhsa_kernel {name}
  .amdhsa_next_free_vgpr {vg}
  .amdhsa_next_free_sgpr 102
  .amdhsa_accum_offset {vg}
  .amdhsa_group_segment_fixed_size 0
  .amdhsa_kernarg_size 96
  .amdhsa_user_sgpr_count 2
  .amdhsa_user_sgpr_kernarg_segment_ptr 1
  .amdhsa_system_sgpr_workgroup_id_x 1
.end_amdhsa_kernel
"""
def diag_kernel(k, w0, w1, K, op, nw=2048):
    self_ = op == "self"
    if self_: op = "max"
    init = "0" if op == "max" else "-1"
    return f""".globl diag_kernel
.p2align 8
.type diag_kernel,@function
diag_kernel:
s_memrealtime s[20:21]
s_cmp_lg_u32 s2, 0
s_cbranch_scc1 LD_end
s_load_dwordx2 s[4:5], s[0:1], 88
s_waitcnt lgkmcnt(0)
s_add_u32 s4, s4, {STAMP_OFF}
s_addc_u32 s5, s5, 0
s_mov_b32 s6, 0x100000
s_mov_b32 s7, 0x20000
v_mov_b32 v1, -1
v_mov_b32 v2, {init}
v_mov_b32 v8, {init}
v_mov_b32 v3, v0
s_mov_b32 s8, 0
s_mov_b32 s12, {w0}
s_mov_b32 s13, {w1}
LD_l:
v_lshlrev_b32 v4, 8, v3
buffer_load_dword v5, v4, s[4:7], 0 offen sc1
buffer_load_dword v6, v4, s[4:7], 0 offen offset:{4*k} sc1
s_waitcnt vmcnt(0)
v_min_u32 v1, v1, v5
v_cmp_le_u32 vcc, s12, v3
s_nop 4
v_cndmask_b32 v6, v8, v6, vcc
v_cmp_gt_u32 vcc, s13, v3
s_nop 4
v_cndmask_b32 v6, v8, v6, vcc
v_cmp_ne_u32 vcc, 0, v6
s_nop 4
v_cndmask_b32 v6, v8, v6, vcc
v_{op}_u32 v2, v2, v6
v_add_u32 v3, 64, v3
s_add_u32 s8, s8, 1
s_cmp_lt_u32 s8, {nw//64}
s_cbranch_scc1 LD_l
s_mov_b32 s8, 0
s_mov_b32 s9, -1
s_mov_b32 s10, {init}
LD_r:
s_nop 4
v_readlane_b32 s11, v1, s8
v_readlane_b32 s14, v2, s8
s_nop 4
s_min_u32 s9, s9, s11
s_{op}_u32 s10, s10, s14
s_add_u32 s8, s8, 1
s_cmp_lt_u32 s8, 64
s_cbranch_scc1 LD_r
{"s_mov_b32 s10, s20" if self_ else ""}
s_sub_u32 s10, s10, s9
s_min_u32 s10, s10, 20000
s_mul_i32 s10, s10, {K}
s_memrealtime s[16:17]
s_waitcnt lgkmcnt(0)
LD_s:
s_memrealtime s[18:19]
s_waitcnt lgkmcnt(0)
s_sub_u32 s18, s18, s16
s_cmp_lt_u32 s18, s10
s_cbranch_scc1 LD_s
LD_end:
s_endpgm
"""
def finish(o, head, text, lds, grid=256, blk=512, vg=256):
    if o["diag"]:
        L = f"; @launch kernel={KN}_kernel grid=({grid},1,1) block=({blk},1,1) lds={lds}\n; @launch kernel=diag_kernel grid=(1,1,1) block=(64,1,1) lds=0\n"
        text = text + diag_kernel(*o["diag"]); extra = kd("diag_kernel", 16)
    elif o.get("pre") or o.get("post"):
        L = f"; @launch kernel={KN}_kernel grid=({grid},1,1) block=({blk},1,1) lds={lds}\n"
        e = lambda n, g, b, l: f"; @launch kernel=empty_kernel grid=({g},1,1) block=({b},1,1) lds={l}\n" * n
        if o.get("pre"): L = e(*o["pre"]) + L
        if o.get("post"): L = L + e(*o["post"])
        text = text + ".globl empty_kernel\n.p2align 8\n.type empty_kernel,@function\nempty_kernel:\ns_endpgm\n"; extra = kd("empty_kernel", o.get("evg", 16))
    else:
        L = f"; @launch grid=({grid},1,1) block=({blk},1,1) lds={lds}\n"; extra = ""
    return head + L + f""".amdgcn_target "amdgcn-amd-amdhsa--gfx950"
.text
.globl {KN}_kernel
.p2align 8
.type {KN}_kernel,@function
""" + text + '.section .rodata,"a"\n' + kd(KN + "_kernel", vg) + extra
def _old(a, head):
    return head + f"""; @launch grid=(256,1,1) block=(512,1,1) lds={LDS_SIZE}
.amdgcn_target "amdgcn-amd-amdhsa--gfx950"
.text
.globl {KN}_kernel
.p2align 8
.type {KN}_kernel,@function
""" + a.text() + f""".section .rodata,"a"
.p2align 6
.amdhsa_kernel {KN}_kernel
  .amdhsa_next_free_vgpr 256
  .amdhsa_next_free_sgpr 102
  .amdhsa_accum_offset 256
  .amdhsa_group_segment_fixed_size 0
  .amdhsa_kernarg_size 96
  .amdhsa_user_sgpr_count 2
  .amdhsa_user_sgpr_kernarg_segment_ptr 1
  .amdhsa_system_sgpr_workgroup_id_x 1
.end_amdhsa_kernel
"""
if __name__ == "__main__":
    kw = {}
    out = f"cdna_kernels/{KN}.s"
    for x in sys.argv[1:]:
        k, val = x.split("=", 1)
        if k == "out": out = val
        else: kw[k] = eval(val)
    open(out, "w").write(gen(**kw))
```

```python
import sys; sys.path.insert(0, "exp")
import gen as G
KN = G.KN
def stream_kernel(pol, nld=32, waves=8, polv=None):
    polv = pol if polv is None else polv
    per_wg = waves * nld * 512
    a = []; e = a.append
    e(".globl stream_kernel\n.p2align 8\n.type stream_kernel,@function\nstream_kernel:")
    e("s_memrealtime s[20:21]\ns_cmp_ge_u32 s2, 256\ns_cbranch_scc1 LS_end")
    e("s_load_dwordx4 s[4:7], s[0:1], 8\ns_load_dwordx2 s[16:17], s[0:1], 88")
    e("v_lshrrev_b32 v1, 6, v0\nv_and_b32 v2, 63, v0\ns_nop 1\nv_readfirstlane_b32 s3, v1\nv_lshlrev_b32 v3, 4, v2")
    e("s_waitcnt lgkmcnt(0)")
    e("s_mov_b32 s8, s4\ns_mov_b32 s9, s5\ns_mov_b32 s10, 0x2000000\ns_mov_b32 s11, 0x20000")
    e("s_mov_b32 s12, s6\ns_mov_b32 s13, s7\ns_mov_b32 s14, 0x2000000\ns_mov_b32 s15, 0x20000")
    e(f"s_mul_i32 s18, s2, {per_wg}\ns_mul_i32 s19, s3, {nld*512}\ns_add_u32 s18, s18, s19\nv_add_u32 v3, s18, v3")
    for half, srd, p in ((0, "s[8:11]", pol), (1, "s[12:15]", polv)):
        for i in range(nld // 2):
            r = 8 + (half * (nld // 2) + i) * 4
            off = i * 1024; so = off // 4096 * 4096; io = off % 4096
            if io == 0: e(f"s_mov_b32 s19, {so}")
            e(f"buffer_load_dwordx4 v[{r}:{r+3}], v3, {srd}, s19 offen offset:{io} {p}")
    e("s_waitcnt vmcnt(0)\ns_memrealtime s[22:23]\ns_waitcnt lgkmcnt(0)")
    e(f"s_add_u32 s16, s16, {G.STAMP_OFF}\ns_addc_u32 s17, s17, 0\ns_mov_b32 s18, 0x100000\ns_mov_b32 s19, 0x20000")
    e(f"s_lshl_b32 s26, s2, 3\ns_add_u32 s26, s26, s3\ns_lshl_b32 s26, s26, 8")
    e("v_mov_b32 v4, s20\nv_mov_b32 v5, s22\nv_mov_b32 v1, s26\ns_mov_b64 exec, 1\nbuffer_store_dwordx2 v[4:5], v1, s[16:19], 0 offen")
    e("LS_end:\ns_endpgm")
    return "\n".join(a) + "\n"
def mk(out, pol, K, polv=None, op="max"):
    s = G.gen(kv="nt", diag=(1, 0, 2048, K, op))
    s = s.replace("; @launch kernel=seq", "; @launch kernel=stream_kernel grid=(256,1,1) block=(512,1,1) lds=0\n; @launch kernel=seq", 1)
    s = s.replace('.section .rodata,"a"\n', stream_kernel(pol, polv=polv) + '.section .rodata,"a"\n' + G.kd("stream_kernel", 256), 1)
    open(out, "w").write(s)
mk("d0.s", "nt", 0)
mk("d1.s", "nt", 10)
mk("d2.s", "", 10)
mk("d3.s", "sc1", 10)
mk("d4.s", "sc0 sc1 nt", 10)
mk("d5.s", "nt", 10, polv="")
```

```python
import sys, struct
sys.path.insert(0, "exp")
from asmlib import *
KN = "sequential_preLN__gqa_block_cached__glu_gated_geglu__decode"
def f2u(x): return "0x%08x" % struct.unpack("<I", struct.pack("<f", x))[0]
LOG2E = 1.4426950408889634
QM, OM, CAN, YM, DM, PG, MBX = 0, 98304, 221184, 221312, 231552, 300800, 311296
OOB = 0x80000000
STAMP_OFF = 128 << 20
LH, LP, LO, LY, LD, LDUMP, LDS_SIZE = 0, 3072, 11776, 15872, 20992, 42496, 46592
DEF = dict(kv="nt", wt="nt", kbar=False, stamps=False, gate=True, hdr=True, shots=[(0,40),(1,32),(2,24),(3,12)], prio=0, il=2, diag=None, one=False, gthr=1, dry=False, adry=False, thr=0, tail=8, stag=0, trig=None, xearly=False, nv=24, vpos=1, outp="")
def gen(**kw):
    o = dict(DEF); o.update(kw)
    a = A()
    KV = o["kv"]; WT = o["wt"]
    def stamp(k):
        if o["stamps"] is True or (o["stamps"] and k in o["stamps"]): a(f"s_memrealtime s[100:101]\ns_waitcnt lgkmcnt(0)\nv_writelane_b32 v1, s100, {k}")
    def stamp_out():
        if o["stamps"]:
            a(f"""s_add_u32 s96, s26, {STAMP_OFF}
            s_addc_u32 s97, s27, 0
            s_mov_b32 s98, 0x100000
            s_mov_b32 s99, 0x20000
            s_lshl_b32 s94, s2, 3
            s_add_u32 s94, s94, s3
            s_lshl_b32 s94, s94, 8
            s_mov_b64 exec, -1
            v_lshlrev_b32 v2, 2, v0
            buffer_store_dword v1, v2, s[96:99], s94 offen""")
    def srd(d, b, n, add=None):
        if add is None: a(f"s_mov_b32 s{d}, s{b}\ns_mov_b32 s{d+1}, s{b+1}")
        else: a(f"s_add_u32 s{d}, s{b}, {add}\ns_addc_u32 s{d+1}, s{b+1}, 0")
        a(f"s_mov_b32 s{d+2}, {n}\ns_mov_b32 s{d+3}, 0x20000")
    def spin(lbl, sb):
        a(f"s_sub_u32 s{sb}, s{sb}, 1\ns_cbranch_scc0 {lbl}\ns_mov_b32 s{sb}, 0")
    def nonce(N, T):
        a(f"""s_or_b32 s{N}, s{N}, 0x01010101
        s_add_u32 s{N}, s{N}, 1
        s_or_b32 s{N}, s{N}, 0x01010101
        s_and_b32 s{T}, s{N}, 0xff
        s_bfe_u32 s{T+1}, s{N}, 0x80008
        s_bfe_u32 s{T+2}, s{N}, 0x80010
        s_lshr_b32 s{T+3}, s{N}, 24""")
    def tag4(r, vm, T):
        for k in range(4): a(f"v_bfi_b32 v{r+k}, v{vm}, s{T+k}, v{r+k}")
    def chk(regs, refs, acc):
        for n, (r, f) in enumerate(zip(regs, refs)):
            d = acc[n % 2]
            a(f"v_msad_u8 v{d}, v{r}, {f}, {'0' if n < 2 else 'v%d' % d}")
        a(f"v_or_b32 v{acc[0]}, v{acc[0]}, v{acc[1]}")
    def masks(dst, andm, t0, t1):
        a(f"""v_and_b32 v{t0}, 1, v0
        v_lshlrev_b32 v{t0}, 4, v{t0}
        v_mov_b32 v{t1}, 0xffff
        v_lshlrev_b32 v{t0}, v{t0}, v{t1}
        v_and_b32 v{t1}, {andm}, v0
        v_lshrrev_b32 v{t1}, 1, v{t1}""")
        for r in range(4):
            a(f"v_cmp_eq_u32 vcc, {r}, v{t1}\nv_cndmask_b32 v{dst+r}, 0, v{t0}, vcc")
    a(f"{KN}_kernel:")
    if o["stamps"]: a("s_memrealtime s[100:101]")
    a("""s_cmp_ge_u32 s2, 256
    s_cbranch_scc1 L_end
    s_load_dwordx16 s[4:19], s[0:1], 0
    s_load_dwordx8 s[20:27], s[0:1], 64
    v_lshrrev_b32 v2, 6, v0
    v_and_b32 v0, 63, v0
    v_readfirstlane_b32 s3, v2
    s_cmp_lt_u32 s2, 64
    s_cbranch_scc1 L_aux""")
    for i in range(192): assert (i * 171) >> 10 == i // 6
    K0, V0, AQ, DQ, ACC, MK, S0 = 16, 112, 208, 224, 248, 4, 8
    LQ = 5632
    a(f"""s_sub_u32 s36, s2, 64
    s_mul_i32 s37, s36, 171
    s_lshr_b32 s37, s37, 10
    s_mul_i32 s38, s37, 6
    s_sub_u32 s38, s36, s38
    s_mul_i32 s39, s38, 43
    s_cmp_eq_u32 s38, 5
    s_cselect_b32 s40, 1, 0
    s_sub_u32 s39, s39, s40
    s_cmp_lt_u32 s38, 4
    s_cselect_b32 s40, 3, 2
    s_min_u32 s41, s3, s40
    s_mul_i32 s42, s3, 5
    s_add_u32 s39, s39, s41
    s_add_u32 s39, s39, s42
    s_cmp_lt_u32 s3, s40
    s_cselect_b32 s41, 0, 1
    s_cselect_b32 s43, 0, {OOB}
    s_cselect_b32 s44, 0, 0xff800000
    s_sub_u32 s39, s39, s41
    s_lshl_b32 s39, s39, 12
    s_lshl_b32 s42, s37, 20
    s_add_u32 s39, s39, s42
    v_bfe_u32 v2, v0, 2, 2
    v_lshrrev_b32 v3, 4, v0
    v_and_b32 v4, 3, v0
    v_lshlrev_b32 v2, 8, v2
    v_lshlrev_b32 v4, 4, v4
    v_lshl_add_u32 v2, v3, 6, v2
    v_add3_u32 v252, v2, v4, s39
    v_and_b32 v4, 15, v0
    v_lshlrev_b32 v3, 10, v3
    v_lshlrev_b32 v4, 4, v4
    v_add3_u32 v254, v3, v4, s39
    v_or_b32 v253, s43, v252
    v_or_b32 v255, s43, v254
    v_mov_b32 v2, 0
    v_mov_b32 v3, 0
    v_lshlrev_b32 v4, 3, v0
    ds_write_b64 v4, v[2:3] offset:{LQ}
    s_waitcnt lgkmcnt(0)
    s_barrier""")
    if o["stamps"]: a("v_mov_b32 v1, 0\nv_writelane_b32 v1, s100, 0")
    a(f"s_load_dword s84, s[26:27], {CAN}")
    srd(28, 6, 1 << 25); srd(32, 8, 1 << 25)
    if o["prio"]: a(f"s_cmp_lg_u32 s3, 0\ns_cbranch_scc1 L_noprio\ns_setprio {o['prio']}\nL_noprio:")
    for s_ in range(1, 6): a(f"s_mov_b32 s{15+s_}, {4096*s_}")
    NV = o["nv"]; TH = o["thr"]; SG = o["stag"]
    KL = [f"buffer_load_dwordx4 {v(K0+16*sl+4*t,4)}, {'v253' if sl==0 else 'v252'}, s[28:31], {'0' if sl==0 else 's%d'%(15+sl)} offen offset:{1024*t} {KV}" for sl in range(6) for t in range(4)]
    VL = [f"buffer_load_dwordx4 {v(V0+16*sl+4*t,4)}, {'v255' if sl==0 else 'v248'}, s[32:35], {'0' if sl==0 else 's%d'%(15+sl)} offen offset:{256*t} {KV}" for sl in range(6) for t in range(4)]
    assert NV >= 4
    a("v_mov_b32 v248, v254")
    srd(12, 26, MBX)
    def progress(n):
        if o["trig"] and n in o["trig"][1:]:
            a(f"s_cmp_lg_u32 s3, {o['trig'][0]}\ns_cbranch_scc1 L_notrig{n}")
            if o["trig"][1] != o["trig"][2]: a(f"s_cmp_{'ge' if n == o['trig'][1] else 'lt'}_u32 s36, 111\ns_cbranch_scc1 L_notrig{n}")
            a("s_waitcnt lgkmcnt(0)")
            a(f"""s_or_b32 s22, s84, 0x01010101
            s_add_u32 s22, s22, 1
            s_or_b32 s22, s22, 0x01010101
            s_mul_i32 s23, s36, 171
            s_lshr_b32 s23, s23, 9
            s_mul_i32 s24, s23, 3
            s_sub_u32 s24, s36, s24
            s_lshl_b32 s23, s23, 7
            s_lshl_b32 s24, s24, 2
            s_add_u32 s23, s23, s24
            s_add_u32 s23, s23, {PG}
            v_mov_b32 v2, s22
            v_mov_b32 v3, s23
            s_mov_b64 exec, 1
            buffer_store_dword v2, v3, s[12:15], 0 offen sc1
            s_mov_b64 exec, -1
            L_notrig{n}:""")
    for i_ in range(192): assert (i_ * 171) >> 9 == i_ // 3
    for n, x in enumerate(KL + VL[:NV]):
        a(x)
        if TH and TH <= n < 24 + NV - o["tail"]: a(f"s_waitcnt vmcnt({TH})")
        if n == 23 and o["kbar"]: a("s_barrier")
        progress(n + 1)
    if SG:
        a("s_cmp_lt_u32 s3, 4\ns_cbranch_scc1 L_stag0")
        for n, x in enumerate(VL[NV:NV+SG]):
            a(x)
            if TH: a(f"s_waitcnt vmcnt({TH + o['tail']})")
            progress(25 + NV + n)
        a("L_stag0:")
    stamp(1)
    a(f"""s_lshl_b32 s5, s36, 9
    s_add_u32 s10, s26, s5
    s_addc_u32 s11, s27, 0
    s_mov_b32 s4, 0x100000
    s_mov_b32 s5, s44
    s_mul_i32 s6, s36, 640
    s_add_u32 s6, s6, {OM}
    s_mul_i32 s7, s3, 544
    s_mov_b32 s8, {f2u(LOG2E)}
    s_mov_b32 s9, 0x3db504f3
    s_mov_b32 s21, 0xffff0000
    """)
    masks(MK, 15, 2, 3)
    a(f"""v_and_b32 v2, 15, v0
    v_lshrrev_b32 v3, 4, v0
    v_lshlrev_b32 v2, 5, v2
    v_lshl_add_u32 v2, v3, 4, v2
    v_add_u32 v2, s7, v2
    v_lshlrev_b32 v3, 4, v0
    v_add_u32 v3, 4352, v3
    v_cmp_gt_u32 vcc, 32, v0
    v_cndmask_b32 v252, v3, v2, vcc
    s_add_u32 s22, s7, 512
    v_mov_b32 v2, s22
    v_cmp_eq_u32 vcc, 0, v0
    v_cndmask_b32 v253, v3, v2, vcc
    s_add_u32 s22, s6, 512
    v_mov_b32 v2, s22
    v_mov_b32 v3, {OOB}
    v_cndmask_b32 v15, v3, v2, vcc
    v_and_b32 v2, 7, v0
    v_mul_u32_u24 v255, 544, v2
    v_cmp_eq_u32 vcc, 0, v2
    v_lshrrev_b32 v2, 3, v0
    v_lshlrev_b32 v2, 4, v2
    s_lshl_b32 s22, s3, 7
    v_add_u32 v2, s22, v2
    v_add_u32 v254, v255, v2
    v_add_u32 v2, s6, v2
    v_cndmask_b32 v14, v3, v2, vcc
    v_bfe_u32 v2, v0, 2, 2
    v_lshrrev_b32 v3, 4, v0
    v_and_b32 v8, 3, v0
    v_lshlrev_b32 v3, 6, v3
    v_lshl_add_u32 v3, v8, 4, v3
    v_mov_b32 v12, 256""")
    for t in range(4): a(f"v_cmp_eq_u32 vcc, {t}, v2\nv_cndmask_b32 v{8+t}, v12, v3, vcc")
    if o["one"]:
        a(f"""v_lshlrev_b32 v254, 3, v0
        v_and_b32 v2, 1, v0
        v_cmp_eq_u32 vcc, 0, v2
        v_add_u32 v2, s6, v254
        v_mov_b32 v3, {OOB}
        v_cndmask_b32 v14, v3, v2, vcc""")
    a("s_waitcnt lgkmcnt(0)"); nonce(84, 85)
    a("s_cmp_lg_u32 s3, 0\ns_cbranch_scc1 L_qwait")
    for h in range(2):
        a(f"""L_q{h}:
        s_load_dwordx16 s[36:51], s[10:11], {256*h} glc
        s_load_dwordx16 s[52:67], s[10:11], {256*h+64} glc
        s_load_dwordx16 s[68:83], s[10:11], {256*h+128} glc
        s_waitcnt lgkmcnt(0)
        s_xor_b32 s22, s39, s84""")
        for j_ in range(1, 11): a(f"s_xor_b32 s23, s{39+4*j_}, s84\ns_or_b32 s22, s22, s23")
        a(f"s_cbranch_scc0 L_q{h}ok")
        spin(f"L_q{h}", 4)
        a(f"L_q{h}ok:")
        if h == 0: stamp(2)
        for d in range(32): a(f"v_writelane_b32 v2, s{36 + 4*(d//3) + d%3}, {32*h+d}")
    a(f"""v_lshlrev_b32 v3, 2, v0
    v_mov_b32 v13, 1
    ds_write_b32 v3, v2 offset:{LQ}
    ds_write_b32 v12, v13 offset:{LQ+16}
    L_qwait:
    ds_read_b32 v13, v12 offset:{LQ+16}
    s_waitcnt lgkmcnt(0)
    v_cmp_eq_u32 vcc, 1, v13
    s_cbranch_vccnz L_qgo
    s_sleep 2""")
    spin("L_qwait", 4)
    a("L_qgo:")
    for t in range(4): a(f"ds_read_b128 {v(AQ+4*t,4)}, v{8+t} offset:{LQ}")
    a("s_waitcnt lgkmcnt(0)")
    stamp(3)
    for sl in range(6):
        a(f"s_waitcnt vmcnt({20+NV-4*sl})")
        for t in range(4):
            a(f"v_mfma_f32_16x16x32_bf16 {v(DQ+4*sl,4)}, {v(AQ+4*t,4)}, {v(K0+16*sl+4*t,4)}, {'0' if t==0 else v(DQ+4*sl,4)}")
    stamp(4)
    for r in range(4):
        for sl in range(6):
            qp = f"quad_perm:[{r},{r},{r},{r}] row_mask:0xf bank_mask:0xf"
            if r == 0: a(f"v_mov_b32_dpp v{S0+sl}, v{DQ+4*sl} {qp}")
            else: a(f"v_add_f32_dpp v{S0+sl}, v{DQ+4*sl+r}, v{S0+sl} {qp}")
    T = AQ
    for rnd in range(2):
        for p in range(3): a(f"v_cvt_pk_bf16_f32 v{T+p}, v{S0+2*p}, v{S0+2*p+1}")
        for p in range(3): a(f"v_lshlrev_b32 v{S0+2*p}, 16, v{T+p}\nv_and_b32 v{S0+2*p+1}, s21, v{T+p}")
        if rnd == 0:
            for sl in range(6): a(f"v_mul_f32 v{S0+sl}, s9, v{S0+sl}")
    M, L_, TT = T + 4, T + 5, T + 6
    a(f"""v_add_f32 v{S0}, s5, v{S0}
    v_max3_f32 v{M}, v{S0+1}, v{S0+2}, v{S0+3}
    v_max3_f32 v{TT}, v{S0+4}, v{S0+5}, v{S0}
    v_max_f32 v{M}, v{M}, v{TT}
    v_max_f32_dpp v{M}, v{M}, v{M} row_ror:4 row_mask:0xf bank_mask:0xf
    v_max_f32_dpp v{M}, v{M}, v{M} row_ror:8 row_mask:0xf bank_mask:0xf
    v_mov_b32 v{TT}, v{M}
    v_permlane16_swap_b32 v{M}, v{TT}
    v_max_f32 v{M}, v{M}, v{TT}
    v_mov_b32 v{TT}, v{M}
    v_permlane32_swap_b32 v{M}, v{TT}
    v_max_f32 v{M}, v{M}, v{TT}
    v_mul_f32 v{M}, s8, v{M}""")
    for sl in range(6): a(f"v_fma_f32 v{S0+sl}, v{S0+sl}, s8, -v{M}")
    for sl in range(6): a(f"v_exp_f32 v{S0+sl}, v{S0+sl}")
    PK = T + 8
    for sl in range(6): a(f"v_cvt_pk_bf16_f32 v{PK+sl}, v{S0+sl}, v{S0+sl}")
    for sl in range(6):
        for k in range(4):
            for r in range(4):
                a(f"v_and_b32_dpp v{K0+16*sl+4*k+r}, v{PK+sl}, v{MK+r} row_newbcast:{4*k} row_mask:0xf bank_mask:0xf")
    a(f"""v_add_f32 v{L_}, v{S0}, v{S0+1}
    v_add_f32 v{TT}, v{S0+2}, v{S0+3}
    v_add_f32 v{S0+4}, v{S0+4}, v{S0+5}
    v_add_f32 v{L_}, v{L_}, v{TT}
    v_add_f32 v{L_}, v{L_}, v{S0+4}
    v_add_f32_dpp v{L_}, v{L_}, v{L_} row_ror:4 row_mask:0xf bank_mask:0xf
    v_add_f32_dpp v{L_}, v{L_}, v{L_} row_ror:8 row_mask:0xf bank_mask:0xf
    v_mov_b32 v{TT}, v{L_}
    v_permlane16_swap_b32 v{L_}, v{TT}
    v_add_f32 v{L_}, v{L_}, v{TT}
    v_mov_b32 v{TT}, v{L_}
    v_permlane32_swap_b32 v{L_}, v{TT}
    v_add_f32 v{L_}, v{L_}, v{TT}
    ds_write_b64 v253, {v(M,2)}""")
    if SG:
        a("s_cmp_ge_u32 s3, 4\ns_cbranch_scc1 L_stag1")
        for x in VL[NV:NV+SG]: a(x)
        a("L_stag1:")
    for x in VL[NV+SG:]: a(x)
    stamp(5)
    for sl in range(6):
        for k in range(4):
            n = 23 - 4 * sl - k
            if k == 0 or sl == 5: a(f"s_waitcnt vmcnt({n - (3 if sl < 5 else 0)})")
            a(f"v_mfma_f32_16x16x32_bf16 {v(ACC,4)}, {v(K0+16*sl+4*k,4)}, {v(V0+16*sl+4*k,4)}, {'0' if sl==0 and k==0 else v(ACC,4)}")
    stamp(6)
    a(f"""ds_write_b128 v252, {v(ACC,4)}
    s_waitcnt lgkmcnt(0)""")
    if o["adry"]:
        a(f"""s_mov_b32 s14, 0
        s_cmp_lt_u32 s3, {1 if o["one"] else 4}
        s_cbranch_scc1 L_comb
        L_bar:
        s_mov_b32 s14, {MBX}""")
    a(f"""s_barrier
    """)
    if o["one"]:
        a("""s_cmp_lg_u32 s3, 0
        s_cbranch_scc1 L_att_end
        L_comb:
        ds_read_b64 v[16:17], v255 offset:512""")
        for k in range(8): a(f"ds_read_b64 {v(28+2*k,2)}, v254 offset:{544*k}")
        a("""v_mov_b32 v26, s84
        v_mov_b32 v27, s84
        v_mov_b32 v18, 0xff
        s_waitcnt lgkmcnt(8)
        v_max_f32_dpp v24, v16, v16 quad_perm:[1,0,3,2] row_mask:0xf bank_mask:0xf
        v_max_f32_dpp v24, v24, v24 quad_perm:[2,3,0,1] row_mask:0xf bank_mask:0xf
        v_max_f32_dpp v24, v24, v24 row_half_mirror row_mask:0xf bank_mask:0xf
        v_sub_f32 v16, v16, v24
        v_exp_f32 v16, v16
        s_waitcnt lgkmcnt(0)
        v_mul_f32 v25, v16, v17""")
        D = "row_mask:0xf bank_mask:0xf"
        for k in range(8):
            for e in range(2):
                dst = 20 + e + 2 * (k & 1)
                a(f"v_{'mul' if k < 2 else 'fmac'}_f32_dpp v{dst}, v16, v{28+2*k+e} row_newbcast:{k} {D}")
            if k in (1, 3, 5): a(f"v_add_f32_dpp v25, v25, v25 {['quad_perm:[1,0,3,2]', 'quad_perm:[2,3,0,1]', 'row_half_mirror'][k//2]} {D}")
        a(f"""v_pk_add_f32 v[20:21], v[20:21], v[22:23]
        v_mov_b32_dpp v22, v20 quad_perm:[1,0,3,2] {D}
        v_mov_b32_dpp v23, v21 quad_perm:[1,0,3,2] {D}""")
        tag4(20, 18, 85)
        a("""buffer_store_dwordx4 v[20:23], v14, s[12:15], 0 offen sc1
        buffer_store_dwordx4 v[24:27], v15, s[12:15], 0 offen sc1""")
    else:
      a(f"""    s_cmp_ge_u32 s3, 4
    s_cbranch_scc1 L_att_end
    L_comb:
    ds_read_b64 v[16:17], v255 offset:512
    ds_read_b128 v[20:23], v254
    v_mov_b32 v26, s84
    v_mov_b32 v27, s84
    v_mov_b32 v18, 0xff
    s_waitcnt lgkmcnt(1)
    v_max_f32_dpp v24, v16, v16 quad_perm:[1,0,3,2] row_mask:0xf bank_mask:0xf
    v_max_f32_dpp v24, v24, v24 quad_perm:[2,3,0,1] row_mask:0xf bank_mask:0xf
    v_max_f32_dpp v24, v24, v24 row_half_mirror row_mask:0xf bank_mask:0xf
    v_sub_f32 v16, v16, v24
    v_exp_f32 v16, v16
    s_waitcnt lgkmcnt(0)
    v_mul_f32 v25, v16, v17""")
      for r in range(4): a(f"v_mul_f32 v{20+r}, v16, v{20+r}")
      for dp in ("quad_perm:[1,0,3,2]", "quad_perm:[2,3,0,1]", "row_half_mirror"):
          for r in (20, 21, 22, 23, 25): a(f"v_add_f32_dpp v{r}, v{r}, v{r} {dp} row_mask:0xf bank_mask:0xf")
      tag4(20, 18, 85)
      a("""buffer_store_dwordx4 v[20:23], v14, s[12:15], 0 offen sc1
    s_cmp_lg_u32 s3, 0
    s_cbranch_scc1 L_comb_end
    buffer_store_dwordx4 v[24:27], v15, s[12:15], 0 offen sc1
    L_comb_end:""")
    if o["adry"]: a("s_cmp_eq_u32 s14, 0\ns_cbranch_scc1 L_bar")
    a("L_att_end:")
    stamp(7); stamp_out()
    a("L_end:\ns_endpgm")
    GU, WO, DN = 16, 96, 160
    M8, M4 = 4, 8
    SB = 80
    HW, HS, HC, PW, PR, YW = 240, 241, 242, 243, 244, 245
    C640, CG2 = 246, 249
    NS, TS, E0, VM = 93, 56, 247, 14
    g1 = -2 * LOG2E * 0.7978845608028654
    def gu_list():
        L = []
        for t in range(10):
            so = "0" if t == 0 else f"s{59+t}"
            L.append(f"buffer_load_dwordx4 {v(GU+8*t,4)}, v250, s[32:35], {so} offen {WT}")
            L.append(f"buffer_load_dwordx4 {v(GU+8*t+4,4)}, v250, s[36:39], {so} offen {WT}")
        return L
    def gu_setup():
        srd(32, 16, 2211840); srd(36, 18, 2211840)
        for t in range(1, 10): a(f"s_mov_b32 s{59+t}, {3456*t}")
        a("s_lshl_b32 s72, s77, 7\nv_mul_u32_u24 v250, 3456, v12\nv_lshl_add_u32 v250, v3, 4, v250\nv_add_u32 v250, s72, v250")
    def dn_loads():
        srd(44, 20, 2211840)
        a("""s_lshl_b32 s72, s77, 3
        s_add_u32 s72, s72, s3
        s_mul_i32 s72, s72, 10240
        v_lshrrev_b32 v14, 4, v0
        v_mul_u32_u24 v14, 2560, v14
        v_and_b32 v15, 15, v0
        v_lshl_add_u32 v14, v15, 4, v14
        v_add_u32 v14, s72, v14""")
        for t in range(2):
            for b in range(5): a(f"buffer_load_dwordx4 {v(DN+20*t+4*b,4)}, v14, s[44:47], 0 offen offset:{1280*t+256*b} {WT}")
    def wo_list():
        return [f"buffer_load_dwordx4 {v(WO+4*t,4)}, v251, s[40:43], {'0' if t < 4 else 's%d' % (68 + t//4)} offen offset:{1280*(t&3)} {WT}" for t in range(16)]
    def xw_loads():
        XW = 16
        a(f"""s_mul_i32 s72, s79, 163840
                s_mul_i32 s73, s3, 20480
                s_add_u32 s72, s72, s73
                s_lshl_b32 s73, s75, 7
                s_add_u32 s72, s72, s73
                v_mul_u32_u24 v14, 2560, v2
                v_lshl_add_u32 v14, v3, 4, v14
                v_add_u32 v14, s72, v14
                s_mov_b32 s72, 163840
                s_mov_b32 s73, 327680""")
        for e in range(3):
            for t in range(2): a(f"buffer_load_dwordx4 {v(XW+8*e+4*t,4)}, v14, s[40:43], {['0','s72','s73'][e]} offen offset:{1280*t} {WT}")
    def wq_loads(base, va):
        for t in range(10): a(f"buffer_load_dwordx4 {v(base+4*t,4)}, v{va}, s[52:55], {'0' if t == 0 else 's%d' % (83+t)} offen {WT}")
    def ln(wait_c):
        for p in range(5): a(f"v_pk_add_f32 {v(204+2*p,2)}, {v(204+2*p,2)}, v[214:215] op_sel_hi:[1,0] neg_lo:[0,1] neg_hi:[0,1]")
        a("""v_pk_mul_f32 v[14:15], v[204:205], v[204:205]
        v_pk_add_f32 v[204:205], v[204:205], v[206:207]
        v_pk_fma_f32 v[14:15], v[206:207], v[206:207], v[14:15]
        v_pk_add_f32 v[206:207], v[208:209], v[210:211]
        v_pk_fma_f32 v[14:15], v[208:209], v[208:209], v[14:15]
        v_pk_add_f32 v[204:205], v[204:205], v[212:213]
        v_pk_fma_f32 v[14:15], v[210:211], v[210:211], v[14:15]
        v_pk_add_f32 v[204:205], v[204:205], v[206:207]
        v_pk_fma_f32 v[14:15], v[212:213], v[212:213], v[14:15]
        v_add_f32 v204, v204, v205
        v_add_f32 v14, v14, v15""")
        for dp in ("row_ror:1 row_mask:0xf", "row_ror:2 row_mask:0xf", "row_ror:4 row_mask:0xf", "row_ror:8 row_mask:0xf", "row_bcast:15 row_mask:0xa", "row_bcast:31 row_mask:0xc"):
            a(f"v_add_f32_dpp v204, v204, v204 {dp} bank_mask:0xf\nv_add_f32_dpp v14, v14, v14 {dp} bank_mask:0xf")
        a(f"""v_readlane_b32 s72, v204, 63
        v_readlane_b32 s73, v14, 63
        v_mul_f32 v14, s72, v{C640}
        v_mul_f32 v15, s73, v{C640}
        v_add_f32 v214, v214, v14
        v_fma_f32 v15, -v14, v14, v15
        v_cvt_pk_bf16_f32 v14, v214, v15
        v_and_b32 v15, s81, v14
        v_lshlrev_b32 v214, 16, v14
        v_add_f32 v15, {f2u(1e-5)}, v15""")
        a(wait_c)
        pk = [f"v_pk_add_f32 {v(216+2*p,2)}, {v(216+2*p,2)}, v[214:215] op_sel_hi:[1,0] neg_lo:[0,1] neg_hi:[0,1]" for p in range(5)]
        cv = [f"v_cvt_pk_bf16_f32 v{204+p}, v{216+2*p}, v{217+2*p}" for p in range(5)]
        un = [f"v_lshlrev_b32 v{216+2*p}, 16, v{204+p}\nv_and_b32 v{217+2*p}, s81, v{204+p}" for p in range(5)]
        a("v_cvt_pk_bf16_f32 v15, v15, v15"); a(pk[0]); a("v_and_b32 v15, s81, v15"); a(pk[1]); a("v_sqrt_f32 v15, v15")
        a(pk[2]); a(pk[3]); a("v_cvt_pk_bf16_f32 v15, v15, v15"); a(pk[4]); a("v_and_b32 v15, s81, v15"); a(cv[0]); a("v_rcp_f32 v14, v15")
        for x in cv[1:] + un: a(x)
        for p in range(5): a(f"v_pk_mul_f32 {v(216+2*p,2)}, {v(216+2*p,2)}, v[14:15] op_sel_hi:[1,0]")
        for t in range(10): a(f"v_cvt_pk_bf16_f32 v{216+t}, v{216+t}, v{216+t}")
    def qgemv(base, acc, after, nxt):
        nxt = list(nxt); issued = 0
        for t in range(10):
            for r in range(4): a(f"v_and_b32 v{228+4*(t%2)+r}, v{216+t}, v{M8+r}")
            a(f"s_waitcnt vmcnt({9-t+after+issued})")
            a(f"v_mfma_f32_16x16x32_bf16 {v(acc,4)}, {v(228+4*(t%2),4)}, {v(base+4*t,4)}, {'0' if t==0 else v(acc,4)}")
            for k in range(o["il"]):
                if nxt: a(nxt.pop(0)); issued += 1
        return nxt
    def psum():
        a(f"""ds_read2st64_b32 v[204:205], v{PR} offset0:0 offset1:17
        ds_read2st64_b32 v[206:207], v{PR} offset0:1 offset1:18
        s_waitcnt lgkmcnt(1)
        v_add_f32 v204, v204, v205
        s_waitcnt lgkmcnt(0)
        v_add_f32 v206, v206, v207""")
        for dp in ("quad_perm:[1,0,3,2]", "quad_perm:[2,3,0,1]", "row_half_mirror"):
            a(f"v_add_f32_dpp v204, v204, v204 {dp} row_mask:0xf bank_mask:0xf\nv_add_f32_dpp v206, v206, v206 {dp} row_mask:0xf bank_mask:0xf")
    for i in range(28): assert (i * 37) >> 8 == i // 7
    for i in range(9): assert (i * 86) >> 8 == i // 3
    for col in range(0, 640, 2): assert (col * 52429) >> 19 == col // 10
    a("""L_aux:
    v_lshrrev_b32 v2, 3, v0
    v_and_b32 v3, 7, v0
    s_mul_i32 s72, s3, 80
    v_mul_u32_u24 v12, 10, v2
    v_add_u32 v12, s72, v12
    v_lshlrev_b32 v13, 2, v0
    s_lshl_b32 s72, s3, 8
    v_add_u32 v13, s72, v13
    s_and_b32 s78, s2, 7
    s_lshl_b32 s78, s78, 3
    s_lshr_b32 s72, s2, 3
    s_add_u32 s78, s78, s72
    s_lshl_b32 s72, s78, 7
    v_lshlrev_b32 v252, 13, v12
    v_lshl_add_u32 v252, v3, 4, v252
    v_add_u32 v252, s72, v252
    v_mul_u32_u24 v254, 20, v0
    v_lshlrev_b32 v255, 1, v12""")
    for t in range(1, 10): a(f"s_mov_b32 s{83+t}, {8192*t}")
    a("""s_mul_i32 s74, s2, 37
    s_lshr_b32 s74, s74, 8
    s_mul_i32 s75, s74, 7
    s_sub_u32 s75, s2, s75
    s_lshl_b32 s76, s74, 3
    s_sub_u32 s72, s2, 28
    s_mul_i32 s73, s72, 86
    s_lshr_b32 s73, s73, 8
    s_mul_i32 s79, s73, 3
    s_sub_u32 s72, s72, s79
    s_add_u32 s72, s72, 7
    s_mul_i32 s79, s73, 11
    s_cmp_ge_u32 s2, 28
    s_cselect_b32 s74, s73, s74
    s_cselect_b32 s75, s72, s75
    s_cselect_b32 s76, s79, s76
    s_add_u32 s79, s76, 8
    s_add_u32 s76, s76, s3
    s_mul_i32 s72, s76, 163840
    s_lshl_b32 s73, s75, 7
    s_add_u32 s72, s72, s73
    v_mul_u32_u24 v251, 20480, v2
    v_lshl_add_u32 v251, v3, 4, v251
    v_add_u32 v251, s72, v251
    s_mov_b32 s69, 5120
    s_mov_b32 s70, 10240
    s_mov_b32 s71, 15360
    s_sub_u32 s77, s2, 37
    s_waitcnt lgkmcnt(0)
    s_load_dword s93, s[26:27], %d""" % CAN)
    if o["stamps"]: a("v_mov_b32 v1, 0\nv_writelane_b32 v1, s100, 0")
    srd(28, 4, 1280); srd(52, 10, 5242880)
    a("""buffer_load_dwordx4 v[228:231], v254, s[28:31], 0 offen
    buffer_load_dword v232, v254, s[28:31], 0 offen offset:16
    buffer_load_dwordx4 v[236:239], v255, s[28:31], 0 offen
    buffer_load_dword v233, v255, s[28:31], 0 offen offset:16
    buffer_load_dword v200, v13, s[28:31], 0 offen""")
    wq_loads(DN, 252)
    srd(48, 26, MBX); srd(40, 12, 5242880)
    a(f"s_mov_b32 s{SB}, 0x40000")
    if o["xearly"]:
        a("s_sub_u32 s72, s2, 28\ns_cmp_lt_u32 s72, 9\ns_cbranch_scc0 L_consts\ns_barrier")
        for x in wo_list(): a(x)
        xw_loads()
        a("L_consts:")
    stamp(1)
    masks(M8, 7, 14, 15); masks(M4, 15, 14, 15)
    a(f"""s_mov_b32 s81, 0xffff0000
    v_mov_b32 v{C640}, {f2u(1/640)}
    v_mov_b32 v{CG2}, {f2u(g1*0.044715)}
    v_lshrrev_b32 v14, 1, v13
    s_mov_b32 s72, 52429
    v_mul_lo_u32 v15, v14, s72
    v_lshrrev_b32 v15, 19, v15
    v_lshlrev_b32 v15, 1, v15
    v_add_u32 v14, v14, v15
    v_lshlrev_b32 v{HW}, 2, v14
    v_mul_u32_u24 v{HS}, 48, v0
    s_lshl_b32 s72, s3, 3
    v_add_u32 v14, s72, v2
    v_mul_u32_u24 v{HC}, 48, v14
    v_lshlrev_b32 v14, 2, v14
    v_mul_u32_u24 v15, 544, v3
    v_add_u32 v{PR}, v14, v15
    v_add_u32 v{PR}, {LP}, v{PR}""")
    a(f"""v_lshrrev_b32 v14, 5, v0
    v_bfe_u32 v15, v0, 3, 1
    v_cmp_eq_u32 vcc, v14, v15
    s_lshl_b32 s72, s3, 1
    v_add_u32 v14, s72, v14
    v_bfe_u32 v15, v0, 4, 1
    v_lshlrev_b32 v15, 4, v15
    v_lshl_add_u32 v15, v3, 5, v15
    v_lshlrev_b32 v201, 4, v0
    v_add_u32 v201, {LDUMP}, v201
    v_mul_u32_u24 v202, 544, v14
    v_add_u32 v202, v202, v15
    v_add_u32 v202, {LP}, v202
    v_cndmask_b32 v{PW}, v201, v202, vcc
    v_mul_u32_u24 v202, 320, v14
    v_add_u32 v202, v202, v15
    v_add_u32 v202, {LY}, v202
    v_cndmask_b32 v{YW}, v201, v202, vcc
    """)
    if o["xearly"]: a("s_sub_u32 s72, s2, 28\ns_cmp_lt_u32 s72, 9\ns_cbranch_scc1 L_xx\ns_waitcnt vmcnt(11)\nL_xx:\ns_waitcnt vmcnt(33)")
    else: a("s_waitcnt vmcnt(11)")
    for p in range(5):
        src = 228 + p; srcc = 236 + p if p < 4 else 233
        a(f"v_lshlrev_b32 v{204+2*p}, 16, v{src}\nv_and_b32 v{205+2*p}, s81, v{src}\nv_lshlrev_b32 v{216+2*p}, 16, v{srcc}\nv_and_b32 v{217+2*p}, s81, v{srcc}")
    a("v_readfirstlane_b32 s72, v204\nv_mov_b32 v214, s72")
    ln("")
    stamp(13)
    if o["xearly"]:
        a("s_sub_u32 s72, s2, 28\ns_cmp_lt_u32 s72, 9\ns_cbranch_scc0 L_q_n")
        qgemv(DN, 204, 22, [])
        a("s_branch L_q_sum\nL_q_n:")
    qgemv(DN, 204, 0, [])
    a("L_q_sum:")
    stamp(18)
    a(f"""ds_write_b128 v{PW}, v[204:207]
    s_waitcnt lgkmcnt(0)""")
    nonce(NS, TS)
    a(f"""v_and_b32 v14, 1, v0
    v_cmp_eq_u32 vcc, 0, v14
    v_mov_b32 v14, s{TS}
    v_mov_b32 v15, s{TS+1}
    v_mov_b32 v{E0}, s{TS+2}
    v_mov_b32 v{E0+1}, s{TS+3}
    v_cndmask_b32 v{E0}, v{E0}, v14, vcc
    v_cndmask_b32 v{E0+1}, v{E0+1}, v15, vcc
    s_barrier
    s_cmp_lg_u32 s3, 0
    s_cbranch_scc1 L_q_1
    v_lshlrev_b32 v14, 2, v0""")
    stamp(14)
    for r in range(16): a(f"ds_read_b32 v{204+r}, v14 offset:{LP+544*r}")
    a(f"""v_and_b32 v14, 15, v0
    v_mul_u32_u24 v224, 24, v14
    v_add_u32 v225, 8, v224
    v_add_u32 v226, 16, v224
    v_cmp_gt_u32 vcc, 11, v14
    v_lshlrev_b32 v14, 4, v14
    v_lshrrev_b32 v15, 4, v0
    v_lshl_add_u32 v14, v15, 9, v14
    s_lshr_b32 s72, s78, 1
    s_mul_i32 s72, s72, 3072
    s_and_b32 s73, s78, 1
    s_lshl_b32 s73, s73, 8
    s_add_u32 s72, s72, s73
    v_mov_b32 v15, {OOB}
    v_cndmask_b32 v14, v15, v14, vcc
    v_cmp_gt_u32 vcc, 32, v0
    v_cndmask_b32 v15, v15, v14, vcc
    v_mov_b32 v223, s{NS}
    s_waitcnt lgkmcnt(0)""")
    for w in (4, 2, 1):
        for p in range(w): a(f"v_pk_add_f32 {v(204+2*p,2)}, {v(204+2*p,2)}, {v(204+2*p+2*w,2)}")
    a(f"""v_add_f32 v204, v204, v205
    v_mov_b32_dpp v205, v204 quad_perm:[1,0,3,2] row_mask:0xf bank_mask:0xf
    v_cvt_pk_bf16_f32 v204, v204, v205
    ds_bpermute_b32 v220, v224, v204
    ds_bpermute_b32 v221, v225, v204
    ds_bpermute_b32 v222, v226, v204
    s_waitcnt lgkmcnt(0)
    buffer_store_dwordx4 v[220:223], v14, s[48:51], s72 offen sc1
    buffer_store_dwordx4 v[220:223], v15, s[48:51], s72 offen offset:2048 sc1
    L_q_1:
    s_barrier""")
    stamp(15)
    if o["dry"]:
        a(f"""s_mov_b32 s82, 1
        s_mov_b32 s50, 0
        s_mov_b32 s{SB}, 0
        s_cmp_ge_u32 s2, 37
        s_cbranch_scc1 L_ffn
        s_branch L_wo
        L_real:
        s_mov_b32 s82, 0
        s_mov_b32 s50, {MBX}
        s_mov_b32 s{SB}, 0x40000""")
        stamp(17)
    if o["trig"]:
        if o["trig"][1] == 0: a("s_cmp_lt_u32 s2, 37\ns_cbranch_scc1 L_go")
        else: a("s_sub_u32 s72, s2, 28\ns_cmp_lt_u32 s72, 9\ns_cbranch_scc1 L_go")
        a(f"""s_cmp_lg_u32 s3, 0
        s_cbranch_scc1 L_go1
        s_lshl_b32 s72, s2, 7
        s_add_u32 s72, s72, {PG}
        L_tr:
        buffer_load_dwordx3 v[204:206], off, s[48:51], s72 sc1
        s_waitcnt vmcnt(0)
        v_cmp_eq_u32 vcc, s{NS}, v204
        v_cmp_eq_u32 s[60:61], s{NS}, v205
        v_cmp_eq_u32 s[62:63], s{NS}, v206
        s_or_b64 vcc, vcc, s[60:61]
        s_or_b64 vcc, vcc, s[62:63]
        s_cbranch_scc1 L_go1
        s_sleep 4""")
        spin("L_tr", SB)
        a("L_go1:\ns_barrier\nL_go:")
        stamp(16)
    a("s_cmp_ge_u32 s2, 37\ns_cbranch_scc1 L_ld_f")
    if o["xearly"]: a("s_cmp_ge_u32 s2, 28\ns_cbranch_scc1 L_wo")
    for x in wo_list(): a(x)
    if not o["xearly"]:
        a("s_cmp_lt_u32 s2, 28\ns_cbranch_scc1 L_wo")
        xw_loads()
    a(f"""L_wo:
    s_mul_i32 s72, s76, 3840
    s_add_u32 s72, s72, {OM}
    v_lshlrev_b32 v202, 3, v0
    v_add_u32 v203, s72, v202
    v_and_b32 v14, 15, v0
    v_cmp_gt_u32 vcc, 6, v14
    v_cndmask_b32 v205, 0, 1.0, vcc
    v_min_u32 v14, 5, v14
    v_mul_u32_u24 v14, 640, v14
    v_add_u32 v204, s72, v14
    s_lshl_b32 s72, s3, 9
    s_add_u32 s72, s72, {LO}
    v_add_u32 v202, s72, v202
    v_lshlrev_b32 v206, 6, v2
    v_add_u32 v206, s72, v206
    v_lshrrev_b32 v14, 2, v0
    v_and_b32 v15, 3, v0
    v_lshlrev_b32 v14, 4, v14
    v_cmp_eq_u32 vcc, 0, v15
    v_mul_u32_u24 v15, 320, v15
    v_add_u32 v207, v14, v15
    s_mul_i32 s72, s74, 2560
    s_lshl_b32 s73, s75, 8
    s_add_u32 s72, s72, s73
    s_add_u32 s72, s72, {YM}
    v_add_u32 v14, s72, v14
    v_mov_b32 v15, {OOB}
    v_cndmask_b32 v208, v15, v14, vcc""")
    XW, XO, XM, XA, XT, XOA, XMA, XE, XLW, XLR, XS = 16, 40, 46, 49, 50, 52, 53, 54, 55, 56, 58
    def wo_body(ex):
        t_ = "x" if ex else ""
        if ex:
            a(f"""v_lshrrev_b32 v14, 4, v0
            v_min_u32 v14, 2, v14
            v_add_u32 v14, s79, v14
            v_min_u32 v14, 31, v14
            v_mul_u32_u24 v14, 3840, v14
            v_add_u32 v14, {OM}, v14
            v_and_b32 v15, 15, v0
            v_lshl_add_u32 v{XOA}, v15, 2, v14
            s_lshl_b32 s72, s3, 6
            v_add_u32 v{XOA}, s72, v{XOA}
            v_min_u32 v15, 5, v15
            v_mul_u32_u24 v15, 640, v15
            v_add_u32 v{XMA}, v14, v15
            v_and_b32 v14, 3, v0
            v_lshlrev_b32 v14, 3, v14
            v_lshrrev_b32 v{XE}, v14, s{NS}
            v_and_b32 v{XE}, 0xff, v{XE}
            s_lshl_b32 s72, s3, 8
            s_add_u32 s72, s72, {LD}
            v_lshl_add_u32 v{XLW}, v0, 2, s72
            v_lshl_add_u32 v{XLR}, v2, 3, s72
            s_cmp_lg_u32 s74, 0
            s_cbranch_scc1 L_noz
            s_cmp_lg_u32 s3, 0
            s_cbranch_scc1 L_noz""")
            for k in range(4): a(f"v_mov_b32 v{212+k}, s{TS+k}")
            a("s_mov_b32 s72, 7680\nbuffer_store_dwordx4 v[212:215], v208, s[48:51], s72 offen sc1\nL_noz:")
        if o["gate"]:
            a(f"""L_h1a{t_}:
            buffer_load_dword v210, v204, s[48:51], 0 offen offset:520 sc1
            s_waitcnt vmcnt(0)
            v_cmp_eq_u32 vcc, s{NS}, v210
            s_and_b32 s72, vcc_lo, 63
            s_bcnt1_i32_b32 s72, s72
            s_cmp_ge_u32 s72, {o["gthr"]}
            s_cbranch_scc1 L_h1{t_}""")
            spin(f"L_h1a{t_}", SB)
        a(f"L_h1{t_}:")
        stamp(19)
        a("buffer_load_dwordx3 v[228:230], v204, s[48:51], 0 offen offset:512 sc1")
        if ex: a(f"buffer_load_dwordx3 {v(XM,3)}, v{XMA}, s[48:51], 0 offen offset:512 sc1")
        for c in range(6): a(f"buffer_load_dwordx2 {v(212+2*c,2)}, v203, s[48:51], 0 offen offset:{640*c} sc1")
        if ex:
            for c in range(6): a(f"buffer_load_dword v{XO+c}, v{XOA}, s[48:51], 0 offen offset:{640*c} sc1")
        a(f"s_waitcnt vmcnt(0)\nv_xor_b32 v230, s{NS}, v230")
        if ex: a(f"v_xor_b32 v{XM+2}, s{NS}, v{XM+2}")
        chk(list(range(212, 224)) + (list(range(XO, XO+6)) if ex else []), [f"v{E0}", f"v{E0+1}"] * 6 + [f"v{XE}"] * 6, (14, 15))
        a(f"v_or3_b32 v14, v14, v230, v{XM+2}" if ex else "v_or_b32 v14, v14, v230")
        a(f"v_cmp_ne_u32 vcc, 0, v14\ns_cbranch_vccz L_h1ok{t_}")
        spin(f"L_h1{t_}", SB)
        a(f"L_h1ok{t_}:")
        stamp(3)
        def comb(m, tmp, src, n, dst):
            l = m + 1; D = "row_mask:0xf bank_mask:0xf"
            q_ = [f"v_max_f32_dpp v{tmp}, v{m}, v{m} quad_perm:[1,0,3,2] {D}", f"v_mul_f32 v{l}, v{l}, v205",
                  f"v_max_f32_dpp v{tmp}, v{tmp}, v{tmp} quad_perm:[2,3,0,1] {D}", f"v_max_f32_dpp v{tmp}, v{tmp}, v{tmp} row_half_mirror {D}",
                  f"v_sub_f32 v{m}, v{m}, v{tmp}", f"v_exp_f32 v{m}, v{m}", f"v_mul_f32 v{l}, v{m}, v{l}"]
            q_ += [f"v_mul_f32_dpp v{dst+e}, v{m}, v{src+e} row_newbcast:0 {D}" for e in range(n)]
            q_ += [f"v_add_f32_dpp v{l}, v{l}, v{l} quad_perm:[1,0,3,2] {D}"]
            seq = [f"v_fmac_f32_dpp v{dst+e}, v{m}, v{src+n*c+e} row_newbcast:{c} {D}" for c in range(1, 6) for e in range(n)]
            seq.insert(n, f"v_add_f32_dpp v{l}, v{l}, v{l} quad_perm:[2,3,0,1] {D}")
            seq.insert(2*n+1, f"v_add_f32_dpp v{l}, v{l}, v{l} row_half_mirror {D}")
            seq.insert(3*n+2, f"v_rcp_f32 v{l}, v{l}")
            q_ += seq
            q_ += [f"v_mul_f32_dpp v{dst+e}, v{l}, v{dst+e} row_newbcast:0 {D}" for e in range(n)]
            q_ += [f"v_cvt_pk_bf16_f32 v{dst+e}, v{dst+e}, v{dst+e}" for e in range(n)]
            return q_
        A1 = comb(228, 14, 212, 2, 224); A2 = comb(XM, XT, XO, 1, XA) if ex else []
        k2 = 0
        for k1, x in enumerate(A1):
            a(x)
            while k2 < len(A2) and k2 * len(A1) <= k1 * len(A2): a(A2[k2]); k2 += 1
        for x in A2[k2:]: a(x)
        a("ds_write_b64 v202, v[224:225]")
        if ex: a(f"ds_write_b32 v{XLW}, v{XA}")
        for k in range(4): a(f"ds_read_b128 {v(212+4*k,4)}, v206 offset:{16*k}")
        if ex:
            for e in range(3): a(f"ds_read_b64 {v(XS+2*e,2)}, v{XLR} offset:{64*e}")
        tiles = [(212+t, WO+4*t) for t in range(16)] + ([(XS+t, XW+4*t) for t in range(6)] if ex else [])
        for t, (c_, w_) in enumerate(tiles):
            if t % 4 == 0 and t <= 16: a(f"s_waitcnt lgkmcnt({max(0, 3 - t//4 + (3 if ex and t < 16 else 0))})")
            ab = 228 + 4 * (t % 3)
            for r in range(4): a(f"v_and_b32 v{ab+r}, v{c_}, v{M8+r}")
            if t > 0: a(f"v_mfma_f32_16x16x32_bf16 v[252:255], {v(228+4*((t-1)%3),4)}, {v(tiles[t-1][1],4)}, {'0' if t==1 else 'v[252:255]'}")
        t = len(tiles) - 1
        a(f"v_mfma_f32_16x16x32_bf16 v[252:255], {v(228+4*(t%3),4)}, {v(tiles[t][1],4)}, v[252:255]")
    a("s_cmp_ge_u32 s2, 28\ns_cbranch_scc0 L_wo4")
    wo_body(True)
    a("s_branch L_wo_acc\nL_wo4:")
    wo_body(False)
    a("L_wo_acc:")
    a(f"""ds_write_b128 v{YW}, v[252:255]
    s_waitcnt lgkmcnt(0)
    s_barrier""")
    stamp(4)
    a("s_cmp_lg_u32 s3, 0\ns_cbranch_scc1 L_wo_done")
    for k in range(4): a(f"ds_read_b128 {v(212+4*k,4)}, v207 offset:{LY+1280*k}")
    a(f"v_mov_b32 v{VM}, 0xff")
    a("""s_waitcnt lgkmcnt(2)
    v_pk_add_f32 v[212:213], v[212:213], v[216:217]
    v_pk_add_f32 v[214:215], v[214:215], v[218:219]
    s_waitcnt lgkmcnt(0)
    v_pk_add_f32 v[220:221], v[220:221], v[224:225]
    v_pk_add_f32 v[222:223], v[222:223], v[226:227]
    v_pk_add_f32 v[212:213], v[212:213], v[220:221]
    v_pk_add_f32 v[214:215], v[214:215], v[222:223]""")
    for dp in ("quad_perm:[1,0,3,2]", "quad_perm:[2,3,0,1]"):
        for r in range(212, 216): a(f"v_add_f32_dpp v{r}, v{r}, v{r} {dp} row_mask:0xf bank_mask:0xf")
    tag4(212, VM, TS)
    a("buffer_store_dwordx4 v[212:215], v208, s[48:51], 0 offen sc1\nL_wo_done:")
    stamp(5)
    a("""s_cmp_ge_u32 s2, 20
    s_cbranch_scc1 L_aux_end
    s_cmp_lg_u32 s3, 7
    s_cbranch_scc1 L_aux_end""")
    srd(52, 22, 1280)
    if o["dry"]: a("s_cmp_eq_u32 s82, 1\ns_cselect_b32 s54, 0, s54")
    a(f"""s_lshl_b32 s72, s2, 7
    v_mul_u32_u24 v14, 2560, v2
    v_lshl_add_u32 v14, v3, 4, v14
    v_add_u32 v14, s72, v14
    v_add_u32 v202, {YM}, v14
    v_mov_b32 v15, {OOB}
    v_cmp_gt_u32 vcc, 32, v0
    v_cndmask_b32 v202, v15, v202, vcc
    v_add_u32 v203, {DM}, v14
    v_add_u32 v204, {DM+61440}, v14
    v_cmp_gt_u32 vcc, 24, v0
    v_cndmask_b32 v204, v15, v204, vcc
    v_bfe_u32 v14, v0, 4, 1
    v_lshrrev_b32 v205, 5, v0
    v_lshl_add_u32 v14, v14, 1, v205
    v_lshl_add_u32 v14, v3, 2, v14
    v_lshlrev_b32 v14, 1, v14
    s_lshl_b32 s72, s2, 6
    v_add_u32 v14, s72, v14
    buffer_load_ushort v206, v14, s[28:31], 0 offen
    v_bfe_u32 v205, v0, 3, 1
    v_cmp_eq_u32 vcc, 0, v205
    v_cndmask_b32 v205, v15, v14, vcc
    s_mov_b32 s72, 20480
    s_mov_b32 s73, 40960
    s_mov_b32 s60, 0xffffff
    s_mov_b32 s61, 0
    L_ry:
    buffer_load_dwordx4 v[212:215], v202, s[48:51], 0 offen sc1
    s_waitcnt vmcnt(0)""")
    TR = [f"s{TS+k}" for k in range(4)]
    chk(range(212, 216), TR, (14, 15))
    a("v_cmp_ne_u32 vcc, 0, v14\ns_cmp_eq_u32 vcc_lo, 0\ns_cbranch_scc1 L_ryok")
    spin("L_ry", SB)
    def rs4(b):
        a(f"""v_permlane32_swap_b32 v{b}, v{b+1}
        v_permlane32_swap_b32 v{b+2}, v{b+3}
        v_add_f32 v{b}, v{b}, v{b+1}
        v_add_f32 v{b+2}, v{b+2}, v{b+3}
        v_permlane16_swap_b32 v{b}, v{b+2}
        v_add_f32 v{b}, v{b}, v{b+2}
        v_add_f32_dpp v{b}, v{b}, v{b} row_ror:8 row_mask:0xf bank_mask:0xf""")
    a("L_ryok:")
    rs4(212)
    a("""v_cvt_pk_bf16_f32 v212, v212, v212
    v_lshlrev_b32 v206, 16, v206
    v_and_b32 v212, s81, v212
    v_add_f32 v212, v212, v206
    v_cvt_pk_bf16_f32 v212, v212, v212
    v_and_b32 v206, s81, v212""")
    stamp(6)
    a("""L_rd:
    buffer_load_dwordx4 v[212:215], v203, s[48:51], 0 offen sc1
    buffer_load_dwordx4 v[216:219], v203, s[48:51], s72 offen sc1
    buffer_load_dwordx4 v[220:223], v203, s[48:51], s73 offen sc1
    buffer_load_dwordx4 v[224:227], v204, s[48:51], 0 offen sc1
    s_waitcnt vmcnt(0)""")
    chk(range(224, 228), TR, (207, 208))
    chk(range(212, 224), TR * 3, (14, 15))
    a("v_cndmask_b32 v207, 0, v207, s[60:61]\nv_or_b32 v14, v14, v207\nv_cmp_ne_u32 vcc, 0, v14\ns_cbranch_vccz L_rdok")
    spin("L_rd", SB)
    a("""L_rdok:
    v_pk_add_f32 v[212:213], v[212:213], v[216:217]
    v_pk_add_f32 v[220:221], v[220:221], v[224:225]
    v_pk_add_f32 v[214:215], v[214:215], v[218:219]
    v_pk_add_f32 v[222:223], v[222:223], v[226:227]
    v_pk_add_f32 v[212:213], v[212:213], v[220:221]
    v_pk_add_f32 v[214:215], v[214:215], v[222:223]""")
    rs4(212)
    OUTP = o["outp"]
    a(f"""v_cvt_pk_bf16_f32 v212, v212, v212
    v_and_b32 v212, s81, v212
    v_add_f32 v212, v212, v206
    v_cvt_pk_bf16_f32 v212, v212, v212
    buffer_store_short v212, v205, s[52:55], 0 offen {OUTP}
    s_cmp_lg_u32 s2, 0
    s_cbranch_scc1 L_nocan
    v_mov_b32 v14, s93
    v_mov_b32 v15, {CAN}
    buffer_store_dword v14, v15, s[48:51], 0 offen sc1
    L_nocan:""")
    stamp(7)
    a("s_branch L_aux_end")
    DW, DR, DS = 250, 251, 201
    a("L_ld_f:")
    gu_setup()
    for x in gu_list(): a(x)
    dn_loads()
    a(f"""L_ffn:
    v_and_b32 v14, 15, v0
    v_lshrrev_b32 v15, 4, v0
    v_lshlrev_b32 v14, 5, v14
    v_lshl_add_u32 v14, v15, 4, v14
    s_mul_i32 s72, s3, 2688
    s_add_u32 s72, s72, {LD}
    v_add_u32 v14, s72, v14
    v_lshlrev_b32 v15, 4, v0
    v_add_u32 v15, {LDUMP}, v15
    v_cmp_gt_u32 vcc, 32, v0
    v_cndmask_b32 v{DW}, v15, v14, vcc
    v_lshrrev_b32 v14, 1, v0
    v_lshlrev_b32 v14, 4, v14
    s_lshl_b32 s72, s3, 9
    v_add_u32 v14, s72, v14
    v_and_b32 v15, 1, v0
    v_cmp_eq_u32 vcc, 0, v15
    v_mul_u32_u24 v15, 2688, v15
    v_add_u32 v{DR}, v14, v15
    s_mul_i32 s72, s77, 2560
    s_add_u32 s72, s72, {DM}
    v_add_u32 v14, s72, v14
    v_mov_b32 v15, {OOB}
    v_cndmask_b32 v{DS}, v15, v14, vcc
    s_waitcnt vmcnt(0)
    s_cmp_ge_u32 s3, 5
    s_cbranch_scc1 L_lng_bar
    v_lshlrev_b32 v14, 1, v13
    v_add_u32 v14, {YM}, v14
    s_mov_b32 s72, 5120
    L_h2:
    buffer_load_dwordx2 v[212:213], v14, s[48:51], 0 offen sc1
    buffer_load_dwordx2 v[214:215], v14, s[48:51], 0 offen offset:2560 sc1
    buffer_load_dwordx2 v[216:217], v14, s[48:51], s72 offen sc1
    buffer_load_dwordx2 v[218:219], v14, s[48:51], s72 offen offset:2560 sc1
    s_waitcnt vmcnt(0)""")
    chk(range(212, 220), [f"v{E0}", f"v{E0+1}"] * 4, (15, 202))
    a("v_cmp_ne_u32 vcc, 0, v15\ns_cbranch_vccz L_h2ok")
    spin("L_h2", SB)
    a("L_h2ok:")
    stamp(6)
    a("""v_pk_add_f32 v[212:213], v[212:213], v[214:215]
    v_pk_add_f32 v[216:217], v[216:217], v[218:219]
    v_lshlrev_b32 v202, 16, v200
    v_pk_add_f32 v[212:213], v[212:213], v[216:217]
    v_and_b32 v203, s81, v200
    v_cvt_pk_bf16_f32 v212, v212, v213
    v_lshlrev_b32 v214, 16, v212
    v_and_b32 v215, s81, v212
    v_pk_add_f32 v[202:203], v[202:203], v[214:215]
    v_cvt_pk_bf16_f32 v212, v202, v203
    v_lshlrev_b32 v202, 16, v212
    v_and_b32 v203, s81, v212""")
    a(f"""    ds_write_b64 v{HW}, v[202:203]
    s_waitcnt lgkmcnt(0)
    L_lng_bar:
    s_barrier
    v_mov_b32 v14, 0
    ds_read_b128 v[204:207], v{HS}
    ds_read_b32 v214, v14
    ds_read_b128 v[208:211], v{HS} offset:16
    ds_read_b64 v[212:213], v{HS} offset:32
    ds_read_b128 v[216:219], v{HC}
    ds_read_b128 v[220:223], v{HC} offset:16
    ds_read_b64 v[224:225], v{HC} offset:32""")
    stamp(8)
    a("s_waitcnt lgkmcnt(3)")
    ln("s_waitcnt lgkmcnt(0)")
    stamp(9)
    def mf(t):
        ab = 228 + 4 * (t % 3)
        a(f"v_mfma_f32_16x16x32_bf16 v[204:207], {v(ab,4)}, {v(GU+8*t,4)}, {'0' if t==0 else 'v[204:207]'}")
        a(f"v_mfma_f32_16x16x32_bf16 v[208:211], {v(ab,4)}, {v(GU+8*t+4,4)}, {'0' if t==0 else 'v[208:211]'}")
    for t in range(10):
        ab = 228 + 4 * (t % 3)
        for r in range(4): a(f"v_and_b32 v{ab+r}, v{216+t}, v{M8+r}")
        if t > 0: mf(t - 1)
    mf(9)
    a(f"""ds_write_b128 v{PW}, v[204:207]
    ds_write_b128 v{PW}, v[208:211] offset:256
    s_waitcnt lgkmcnt(0)
    s_barrier""")
    stamp(10)
    psum()
    a(f"""
    v_cvt_pk_bf16_f32 v204, v204, v206
    v_lshlrev_b32 v205, 16, v204
    v_and_b32 v206, s81, v204
    v_mul_f32 v207, v205, v205
    v_fmaak_f32 v207, v207, v{CG2}, {f2u(g1)}
    v_mul_f32 v207, v207, v205
    v_exp_f32 v207, v207
    v_add_f32 v207, 1.0, v207
    v_rcp_f32 v207, v207
    v_mul_f32 v207, v207, v205
    v_cvt_pk_bf16_f32 v207, v207, v207
    v_and_b32 v207, s81, v207
    v_mul_f32 v207, v207, v206
    v_cvt_pk_bf16_f32 v207, v207, v207""")
    for t in range(2):
        for r in range(4): a(f"v_and_b32_dpp v{228+4*t+r}, v207, v{M4+r} row_newbcast:{8*t} row_mask:0xf bank_mask:0xf")
    for t in range(2):
        for b in range(5): a(f"v_mfma_f32_16x16x32_bf16 {v(208+4*b,4)}, {v(228+4*t,4)}, {v(DN+20*t+4*b,4)}, {'0' if t==0 else v(208+4*b,4)}")
    for b in range(5): a(f"ds_write_b128 v{DW}, {v(208+4*b,4)} offset:{512*b}")
    a("s_waitcnt lgkmcnt(0)\ns_barrier")
    stamp(11)
    a("s_cmp_ge_u32 s3, 5\ns_cbranch_scc1 L_aux_end")
    for k in range(4): a(f"ds_read_b128 {v(212+4*k,4)}, v{DR} offset:{LD+5376*k}")
    a(f"v_mov_b32 v{VM}, 0xff")
    a("""s_waitcnt lgkmcnt(2)
    v_pk_add_f32 v[212:213], v[212:213], v[216:217]
    v_pk_add_f32 v[214:215], v[214:215], v[218:219]
    s_waitcnt lgkmcnt(0)
    v_pk_add_f32 v[220:221], v[220:221], v[224:225]
    v_pk_add_f32 v[222:223], v[222:223], v[226:227]
    v_pk_add_f32 v[212:213], v[212:213], v[220:221]
    v_pk_add_f32 v[214:215], v[214:215], v[222:223]""")
    for r in range(212, 216): a(f"v_add_f32_dpp v{r}, v{r}, v{r} quad_perm:[1,0,3,2] row_mask:0xf bank_mask:0xf")
    tag4(212, VM, TS)
    a(f"buffer_store_dwordx4 v[212:215], v{DS}, s[48:51], 0 offen sc1")
    stamp(12)
    a("L_aux_end:")
    if o["dry"]: a("s_cmp_eq_u32 s82, 1\ns_cbranch_scc1 L_real")
    stamp_out()
    a("s_endpgm")
    head = open(f"cdna_kernels/{KN}.s.ref").read().split("; Override launch")[0] if o["hdr"] else ""
    return finish(o, head, a.text(), LDS_SIZE)
def kd(name, vg):
    return f""".p2align 6
.amdhsa_kernel {name}
  .amdhsa_next_free_vgpr {vg}
  .amdhsa_next_free_sgpr 102
  .amdhsa_accum_offset {vg}
  .amdhsa_group_segment_fixed_size 0
  .amdhsa_kernarg_size 96
  .amdhsa_user_sgpr_count 2
  .amdhsa_user_sgpr_kernarg_segment_ptr 1
  .amdhsa_system_sgpr_workgroup_id_x 1
.end_amdhsa_kernel
"""
def diag_kernel(k, w0, w1, K, op, nw=2048):
    self_ = op == "self"
    if self_: op = "max"
    init = "0" if op == "max" else "-1"
    return f""".globl diag_kernel
.p2align 8
.type diag_kernel,@function
diag_kernel:
s_memrealtime s[20:21]
s_cmp_lg_u32 s2, 0
s_cbranch_scc1 LD_end
s_load_dwordx2 s[4:5], s[0:1], 88
s_waitcnt lgkmcnt(0)
s_add_u32 s4, s4, {STAMP_OFF}
s_addc_u32 s5, s5, 0
s_mov_b32 s6, 0x100000
s_mov_b32 s7, 0x20000
v_mov_b32 v1, -1
v_mov_b32 v2, {init}
v_mov_b32 v8, {init}
v_mov_b32 v3, v0
s_mov_b32 s8, 0
s_mov_b32 s12, {w0}
s_mov_b32 s13, {w1}
LD_l:
v_lshlrev_b32 v4, 8, v3
buffer_load_dword v5, v4, s[4:7], 0 offen sc1
buffer_load_dword v6, v4, s[4:7], 0 offen offset:{4*k} sc1
s_waitcnt vmcnt(0)
v_min_u32 v1, v1, v5
v_cmp_le_u32 vcc, s12, v3
s_nop 4
v_cndmask_b32 v6, v8, v6, vcc
v_cmp_gt_u32 vcc, s13, v3
s_nop 4
v_cndmask_b32 v6, v8, v6, vcc
v_cmp_ne_u32 vcc, 0, v6
s_nop 4
v_cndmask_b32 v6, v8, v6, vcc
v_{op}_u32 v2, v2, v6
v_add_u32 v3, 64, v3
s_add_u32 s8, s8, 1
s_cmp_lt_u32 s8, {nw//64}
s_cbranch_scc1 LD_l
s_mov_b32 s8, 0
s_mov_b32 s9, -1
s_mov_b32 s10, {init}
LD_r:
s_nop 4
v_readlane_b32 s11, v1, s8
v_readlane_b32 s14, v2, s8
s_nop 4
s_min_u32 s9, s9, s11
s_{op}_u32 s10, s10, s14
s_add_u32 s8, s8, 1
s_cmp_lt_u32 s8, 64
s_cbranch_scc1 LD_r
{"s_mov_b32 s10, s20" if self_ else ""}
s_sub_u32 s10, s10, s9
s_min_u32 s10, s10, 20000
s_mul_i32 s10, s10, {K}
s_memrealtime s[16:17]
s_waitcnt lgkmcnt(0)
LD_s:
s_memrealtime s[18:19]
s_waitcnt lgkmcnt(0)
s_sub_u32 s18, s18, s16
s_cmp_lt_u32 s18, s10
s_cbranch_scc1 LD_s
LD_end:
s_endpgm
"""
def finish(o, head, text, lds, grid=256, blk=512, vg=256):
    if o["diag"]:
        L = f"; @launch kernel={KN}_kernel grid=({grid},1,1) block=({blk},1,1) lds={lds}\n; @launch kernel=diag_kernel grid=(1,1,1) block=(64,1,1) lds=0\n"
        text = text + diag_kernel(*o["diag"]); extra = kd("diag_kernel", 16)
    elif o.get("pre") or o.get("post"):
        L = f"; @launch kernel={KN}_kernel grid=({grid},1,1) block=({blk},1,1) lds={lds}\n"
        e = lambda n, g, b, l: f"; @launch kernel=empty_kernel grid=({g},1,1) block=({b},1,1) lds={l}\n" * n
        if o.get("pre"): L = e(*o["pre"]) + L
        if o.get("post"): L = L + e(*o["post"])
        text = text + ".globl empty_kernel\n.p2align 8\n.type empty_kernel,@function\nempty_kernel:\ns_endpgm\n"; extra = kd("empty_kernel", o.get("evg", 16))
    else:
        L = f"; @launch grid=({grid},1,1) block=({blk},1,1) lds={lds}\n"; extra = ""
    return head + L + f""".amdgcn_target "amdgcn-amd-amdhsa--gfx950"
.text
.globl {KN}_kernel
.p2align 8
.type {KN}_kernel,@function
""" + text + '.section .rodata,"a"\n' + kd(KN + "_kernel", vg) + extra
def _old(a, head):
    return head + f"""; @launch grid=(256,1,1) block=(512,1,1) lds={LDS_SIZE}
.amdgcn_target "amdgcn-amd-amdhsa--gfx950"
.text
.globl {KN}_kernel
.p2align 8
.type {KN}_kernel,@function
""" + a.text() + f""".section .rodata,"a"
.p2align 6
.amdhsa_kernel {KN}_kernel
  .amdhsa_next_free_vgpr 256
  .amdhsa_next_free_sgpr 102
  .amdhsa_accum_offset 256
  .amdhsa_group_segment_fixed_size 0
  .amdhsa_kernarg_size 96
  .amdhsa_user_sgpr_count 2
  .amdhsa_user_sgpr_kernarg_segment_ptr 1
  .amdhsa_system_sgpr_workgroup_id_x 1
.end_amdhsa_kernel
"""
if __name__ == "__main__":
    kw = {}
    out = f"cdna_kernels/{KN}.s"
    for x in sys.argv[1:]:
        k, val = x.split("=", 1)
        if k == "out": out = val
        else: kw[k] = eval(val)
    open(out, "w").write(gen(**kw))
```

```python
import re
TRANS = ("v_exp_f32","v_log_f32","v_rcp_f32","v_rsq_f32","v_sqrt_f32","v_sin_f32","v_cos_f32")
def regs_of(op):
    op = op.strip()
    neg = op.lstrip("-|").rstrip("|")
    m = re.fullmatch(r"([vs])(\d+)", neg)
    if m: return [(m.group(1), int(m.group(2)))]
    m = re.fullmatch(r"([vs])\[(\d+):(\d+)\]", neg)
    if m: return [(m.group(1), i) for i in range(int(m.group(2)), int(m.group(3)) + 1)]
    if neg == "vcc": return [("s", "vcc")]
    if neg in ("vcc_lo", "vcc_hi"): return [("s", "vcc")]
    if neg in ("exec", "exec_lo", "exec_hi"): return [("s", "exec")]
    if neg == "m0": return [("s", "m0")]
    return []
class I:
    def __init__(s, text):
        s.text = text
        t = text.split(";")[0].strip()
        s.label = t[:-1] if t.endswith(":") else None
        s.mn = ""; s.defs = set(); s.uses = set(); s.kind = "none"; s.dpp = False; s.target = None
        s.dotab = set(); s.srcC = set(); s.srcAB = set(); s.wide_data = set(); s.lanesel = set()
        if s.label or not t or t.startswith("."): return
        p = t.split(None, 1); mn = p[0]; s.mn = mn
        rest = p[1] if len(p) > 1 else ""
        ops = [o.strip() for o in re.split(r",(?![^\[]*\])", rest)] if rest else []
        if ops:
            last = ops[-1].split()
            ops[-1] = last[0]; mods = " ".join(last[1:])
        else: mods = ""
        R = [regs_of(o) for o in ops]
        flat = lambda L: set(x for l in L for x in l)
        if mn.startswith("v_mfma") or mn.startswith("v_smfmac"):
            s.kind = "mfma"; s.defs = set(R[0]); s.srcAB = flat(R[1:3]); s.srcC = set(R[3]) if len(R) > 3 else set()
            if mn.startswith("v_smfmac"): s.srcAB |= s.srcC; s.srcC = set(R[0])
            s.uses = s.srcAB | s.srcC
        elif mn.startswith("v_"):
            s.kind = "valu"
            s.dpp = "_dpp" in mn or any(k in mods for k in ("quad_perm", "row_", "wave_"))
            if mn.startswith("v_permlane"):
                s.defs = flat(R[:2]); s.uses = flat(R[:2]); s.kind = "perm"
            elif mn.startswith("v_cmp"):
                s.defs = set(R[0]); s.uses = flat(R[1:])
            elif mn.startswith("v_readlane") or mn.startswith("v_readfirstlane"):
                s.defs = set(R[0]); s.uses = flat(R[1:]); s.kind = "rdlane"
                if len(R) > 2: s.lanesel = set(R[2])
            elif mn.startswith("v_writelane"):
                s.defs = set(R[0]); s.uses = flat(R); s.lanesel = set(R[2])
            elif mn == "v_nop": pass
            else:
                s.defs = set(R[0]); s.uses = flat(R[1:])
                if s.dpp or "fmac" in mn or "_mac_" in mn or "dot2c" in mn: s.uses |= s.defs
                if mn.startswith("v_cndmask") and len(ops) == 3: s.uses.add(("s", "vcc"))
                if "_co_" in mn: s.defs |= set(R[1])
                if mn.startswith("v_dot"): s.dotab = flat(R[1:3])
            s.trans = any(mn.startswith(x) for x in TRANS)
        elif mn.startswith("buffer_") or mn.startswith("global_"):
            s.kind = "vmem"
            if "load" in mn and " lds" not in " " + mods:
                s.defs = set(R[0]); s.uses = flat(R[1:])
            else:
                s.uses = flat(R)
                if "x4" in mn or "x3" in mn: s.wide_data = set(R[0]) if mn.startswith("buffer_") else set(R[1])
        elif mn.startswith("ds_"):
            s.kind = "ds"
            if "read" in mn or "permute" in mn or "rtn" in mn or "swizzle" in mn:
                s.defs = set(R[0]); s.uses = flat(R[1:])
            else: s.uses = flat(R)
        elif mn.startswith("s_"):
            s.kind = "salu"
            if mn.startswith("s_cbranch") or mn == "s_branch": s.target = ops[0]
            elif mn.startswith("s_cmp") or mn in ("s_waitcnt", "s_nop", "s_barrier", "s_endpgm", "s_sleep", "s_setprio"): s.uses = flat(R)
            else:
                if R: s.defs = set(R[0]); s.uses = flat(R[1:])
        else: raise ValueError("unknown instr " + text)
    def states(s):
        if s.mn == "s_nop": return int(s.text.split()[1]) + 1
        return 0 if s.kind == "none" else 1
def need(p, c):
    n = 0
    pv = p.kind in ("valu", "perm", "rdlane"); cv = c.kind in ("valu", "perm", "rdlane")
    if pv:
        vd = {r for r in p.defs if r[0] == "v"}; sd = {r for r in p.defs if r[0] == "s"}
        if vd & c.uses:
            if c.dpp or c.kind == "perm" or c.kind == "mfma": n = max(n, 2)
            if c.kind == "rdlane": n = max(n, 1)
            if getattr(p, "trans", False) and cv: n = max(n, 1)
        if sd & c.uses:
            if cv: n = max(n, 2)
            if sd & c.lanesel: n = max(n, 4)
            if c.kind == "vmem": n = max(n, 5)
    if p.mn.startswith("v_dot") and p.defs & (c.uses | c.defs):
        same = c.mn == p.mn and not (p.defs & c.dotab)
        if not same: n = max(n, 3)
    if p.kind == "mfma":
        if c.kind == "mfma":
            if p.defs & c.srcAB: n = max(n, 8)
            if p.defs & c.srcC and p.defs != c.srcC: n = max(n, 6)
            if p.defs & c.defs and not (p.defs & c.srcC): n = max(n, 8)
        elif c.kind in ("valu", "perm", "rdlane", "vmem", "ds"):
            if p.defs & (c.uses | c.defs): n = max(n, 8)
            if cv and p.srcC & c.defs: n = max(n, 3)
    if p.wide_data and p.wide_data & c.defs: n = max(n, 2)
    if p.kind == "salu" and ("s", "m0") in p.defs and c.kind == "vmem" and "lds" in c.text: n = max(n, 1)
    return n
def hazard_pass(lines):
    ins = [I(l) for l in lines]
    at_label = {}
    for it in range(4):
        out = []; hist = []
        changed = False
        def merge(a, b):
            d = {}
            for i, g in a + b: d[id(i)] = (i, min(g, d[id(i)][1])) if id(i) in d else (i, g)
            return list(d.values())
        dead = False
        for i in ins:
            if i.label:
                hist = merge([] if dead else hist, at_label.get(i.label, [])); dead = False
                out.append(i.text); continue
            if i.kind == "none": out.append(i.text); continue
            k = 0
            for p, age in hist: k = max(k, need(p, i) - age)
            if k > 0:
                out.append(f"s_nop {k-1}"); hist = [(p, a + k) for p, a in hist]
            out.append(i.text)
            st = i.states()
            hist = [(p, a + st) for p, a in hist if a + st < 12]
            hist.append((i, 0))
            if i.target:
                old = at_label.get(i.target, [])
                new = merge(old, hist)
                if sorted((id(a), b) for a, b in new) != sorted((id(a), b) for a, b in old): changed = True
                at_label[i.target] = new
            if i.mn in ("s_branch", "s_endpgm"): dead = True
        if not changed: break
    return out
class A:
    def __init__(s): s.L = []
    def __call__(s, txt):
        for l in txt.split("\n"):
            l = l.strip()
            if l: s.L.append(l)
    def text(s): return "\n".join(hazard_pass(s.L)) + "\n"
def v(a, n=1): return f"v{a}" if n == 1 else f"v[{a}:{a+n-1}]"
def sr(a, n=1): return f"s{a}" if n == 1 else f"s[{a}:{a+n-1}]"
```

```python
import sys, struct
sys.path.insert(0, "exp")
from asmlib import *
KN = "sequential_preLN__gqa_block_cached__glu_gated_geglu__decode"
def f2u(x): return "0x%08x" % struct.unpack("<I", struct.pack("<f", x))[0]
LOG2E = 1.4426950408889634
QM, CAN, DM, PG, OM, YM, MBX = 0, 98304, 98432, 167552, 178176, 1161216, 1206912
SOON = 1202176
ORS, YRS = 122880, 10240
OOB = 0x80000000
STAMP_OFF = 128 << 20
LH, LP, LO, LY, LD, LDUMP, LDS_SIZE = 0, 3072, 11776, 15872, 20992, 42496, 46592
DEF = dict(kv="nt", wt="nt", kbar=False, stamps=False, gate=True, hdr=True, shots=[(0,40),(1,32),(2,24),(3,12)], prio=0, il=2, diag=None, one=False, gthr=1, dry=False, adry=False, thr=0, tail=8, stag=0, trig=None, xearly=False, nv=24, vpos=1, outp="", lnf=False, p1=(1,0), p2=(1,0), p3=(1,0), skip=False, g2=0, r1=1, r2=1, mlf=False, al2=False, can=False)
def gen(**kw):
    o = dict(DEF); o.update(kw)
    a = A()
    KV = o["kv"]; WT = o["wt"]
    def stamp(k):
        if o["stamps"] is True or (o["stamps"] and k in o["stamps"]): a(f"s_memrealtime s[100:101]\ns_waitcnt lgkmcnt(0)\nv_writelane_b32 v1, s100, {k}")
    def stamp_out():
        if o["stamps"]:
            a(f"""s_add_u32 s96, s26, {STAMP_OFF}
            s_addc_u32 s97, s27, 0
            s_mov_b32 s98, 0x100000
            s_mov_b32 s99, 0x20000
            s_lshl_b32 s94, s2, 3
            s_add_u32 s94, s94, s3
            s_lshl_b32 s94, s94, 8
            s_mov_b64 exec, -1
            v_lshlrev_b32 v2, 2, v0
            buffer_store_dword v1, v2, s[96:99], s94 offen""")
    def srd(d, b, n, add=None):
        if add is None: a(f"s_mov_b32 s{d}, s{b}\ns_mov_b32 s{d+1}, s{b+1}")
        else: a(f"s_add_u32 s{d}, s{b}, {add}\ns_addc_u32 s{d+1}, s{b+1}, 0")
        a(f"s_mov_b32 s{d+2}, {n}\ns_mov_b32 s{d+3}, 0x20000")
    def spin(lbl, sb):
        a(f"s_sub_u32 s{sb}, s{sb}, 1\ns_cbranch_scc0 {lbl}\ns_mov_b32 s{sb}, 0")
    def poll(name, kd, n, issue, check, leave, sb):
        k, d = kd
        for i in range(k):
            if i == k - 1: a(f"L_{name}:")
            issue(i)
            if d and k > 1: a(f"s_sleep {d}")
        for i in range(k):
            a(f"s_waitcnt vmcnt({(k-1)*n})"); check(i)
            a(f"s_cbranch_vccz L_{name}ok{i}")
            if i < k - 1:
                issue(i)
                if d: a(f"s_sleep {d}")
        spin(f"L_{name}", sb)
        for i in reversed(range(k)):
            a(f"L_{name}ok{i}:"); leave(i)
            if i > 0: a(f"s_branch L_{name}j")
        a(f"L_{name}j:")
    def nonce(N, T):
        a(f"""s_or_b32 s{N}, s{N}, 0x01010101
        s_add_u32 s{N}, s{N}, 1
        s_or_b32 s{N}, s{N}, 0x01010101
        s_and_b32 s{T}, s{N}, 0xff
        s_bfe_u32 s{T+1}, s{N}, 0x80008
        s_bfe_u32 s{T+2}, s{N}, 0x80010
        s_lshr_b32 s{T+3}, s{N}, 24""")
    def tag4(r, vm, T):
        for k in range(4): a(f"v_bfi_b32 v{r+k}, v{vm}, s{T+k}, v{r+k}")
    def chk(regs, refs, acc):
        for n, (r, f) in enumerate(zip(regs, refs)):
            d = acc[n % 2]
            a(f"v_msad_u8 v{d}, v{r}, {f}, {'0' if n < 2 else 'v%d' % d}")
        a(f"v_or_b32 v{acc[0]}, v{acc[0]}, v{acc[1]}")
    def masks(dst, andm, t0, t1):
        a(f"""v_and_b32 v{t0}, 1, v0
        v_lshlrev_b32 v{t0}, 4, v{t0}
        v_mov_b32 v{t1}, 0xffff
        v_lshlrev_b32 v{t0}, v{t0}, v{t1}
        v_and_b32 v{t1}, {andm}, v0
        v_lshrrev_b32 v{t1}, 1, v{t1}""")
        for r in range(4):
            a(f"v_cmp_eq_u32 vcc, {r}, v{t1}\nv_cndmask_b32 v{dst+r}, 0, v{t0}, vcc")
    a(f"{KN}_kernel:")
    if o["stamps"]: a("s_memrealtime s[100:101]")
    a("""s_cmp_ge_u32 s2, 256
    s_cbranch_scc1 L_end
    s_load_dwordx16 s[4:19], s[0:1], 0
    s_load_dwordx8 s[20:27], s[0:1], 64
    v_lshrrev_b32 v2, 6, v0
    v_and_b32 v0, 63, v0
    v_readfirstlane_b32 s3, v2
    s_cmp_lt_u32 s2, 64
    s_cbranch_scc1 L_aux""")
    for i in range(192): assert (i * 171) >> 10 == i // 6
    K0, V0, AQ, DQ, ACC, MK, S0 = 16, 112, 208, 224, 248, 4, 8
    LQ = 5632
    a(f"""s_sub_u32 s36, s2, 64
    s_mul_i32 s37, s36, 171
    s_lshr_b32 s37, s37, 10
    s_mul_i32 s38, s37, 6
    s_sub_u32 s38, s36, s38
    s_mul_i32 s39, s38, 43
    s_cmp_eq_u32 s38, 5
    s_cselect_b32 s40, 1, 0
    s_sub_u32 s39, s39, s40
    s_cmp_lt_u32 s38, 4
    s_cselect_b32 s40, 3, 2
    s_min_u32 s41, s3, s40
    s_mul_i32 s42, s3, 5
    s_add_u32 s39, s39, s41
    s_add_u32 s39, s39, s42
    s_cmp_lt_u32 s3, s40
    s_cselect_b32 s41, 0, 1
    s_cselect_b32 s43, 0, {OOB}
    s_cselect_b32 s44, 0, 0xff800000
    s_sub_u32 s39, s39, s41
    s_lshl_b32 s39, s39, 12
    s_lshl_b32 s42, s37, 20
    s_add_u32 s39, s39, s42
    v_bfe_u32 v2, v0, 2, 2
    v_lshrrev_b32 v3, 4, v0
    v_and_b32 v4, 3, v0
    v_lshlrev_b32 v2, 8, v2
    v_lshlrev_b32 v4, 4, v4
    v_lshl_add_u32 v2, v3, 6, v2
    v_add3_u32 v252, v2, v4, s39
    v_and_b32 v4, 15, v0
    v_lshlrev_b32 v3, 10, v3
    v_lshlrev_b32 v4, 4, v4
    v_add3_u32 v254, v3, v4, s39
    v_or_b32 v253, s43, v252
    v_or_b32 v255, s43, v254
    v_mov_b32 v2, 0
    v_mov_b32 v3, 0
    v_lshlrev_b32 v4, 3, v0
    ds_write_b64 v4, v[2:3] offset:{LQ}
    s_waitcnt lgkmcnt(0)
    s_barrier""")
    if o["stamps"]: a("v_mov_b32 v1, 0\nv_writelane_b32 v1, s100, 0")
    a(f"s_load_dword s84, s[26:27], {CAN}")
    srd(28, 6, 1 << 25); srd(32, 8, 1 << 25)
    if o["prio"]: a(f"s_cmp_lg_u32 s3, 0\ns_cbranch_scc1 L_noprio\ns_setprio {o['prio']}\nL_noprio:")
    for s_ in range(1, 6): a(f"s_mov_b32 s{15+s_}, {4096*s_}")
    NV = o["nv"]; TH = o["thr"]; SG = o["stag"]
    KL = [f"buffer_load_dwordx4 {v(K0+16*sl+4*t,4)}, {'v253' if sl==0 else 'v252'}, s[28:31], {'0' if sl==0 else 's%d'%(15+sl)} offen offset:{1024*t} {KV}" for sl in range(6) for t in range(4)]
    VL = [f"buffer_load_dwordx4 {v(V0+16*sl+4*t,4)}, {'v255' if sl==0 else 'v248'}, s[32:35], {'0' if sl==0 else 's%d'%(15+sl)} offen offset:{256*t} {KV}" for sl in range(6) for t in range(4)]
    assert NV >= 4
    a("v_mov_b32 v248, v254")
    srd(12, 26, MBX)
    def progress(n):
        if o["trig"] and n in o["trig"][1:]:
            a(f"s_cmp_lg_u32 s3, {o['trig'][0]}\ns_cbranch_scc1 L_notrig{n}")
            if o["trig"][1] != o["trig"][2]: a(f"s_cmp_{'ge' if n == o['trig'][1] else 'lt'}_u32 s36, 111\ns_cbranch_scc1 L_notrig{n}")
            a("s_waitcnt lgkmcnt(0)")
            a(f"""s_or_b32 s22, s84, 0x01010101
            s_add_u32 s22, s22, 1
            s_or_b32 s22, s22, 0x01010101
            s_mul_i32 s23, s36, 171
            s_lshr_b32 s23, s23, 9
            s_mul_i32 s24, s23, 3
            s_sub_u32 s24, s36, s24
            s_lshl_b32 s23, s23, 7
            s_lshl_b32 s24, s24, 2
            s_add_u32 s23, s23, s24
            s_add_u32 s23, s23, {PG}
            v_mov_b32 v2, s22
            v_mov_b32 v3, s23
            s_mov_b64 exec, 1
            buffer_store_dword v2, v3, s[12:15], 0 offen sc1
            s_mov_b64 exec, -1
            L_notrig{n}:""")
    for i_ in range(192): assert (i_ * 171) >> 9 == i_ // 3
    for n, x in enumerate(KL + VL[:NV]):
        a(x)
        if TH and TH <= n < 24 + NV - o["tail"]: a(f"s_waitcnt vmcnt({TH})")
        if n == 23 and o["kbar"]: a("s_barrier")
        progress(n + 1)
    if SG:
        a("s_cmp_lt_u32 s3, 4\ns_cbranch_scc1 L_stag0")
        for n, x in enumerate(VL[NV:NV+SG]):
            a(x)
            if TH: a(f"s_waitcnt vmcnt({TH + o['tail']})")
            progress(25 + NV + n)
        a("L_stag0:")
    stamp(1)
    a(f"""s_lshl_b32 s5, s36, 9
    s_add_u32 s10, s26, s5
    s_addc_u32 s11, s27, 0
    s_mov_b32 s4, 0x100000
    s_mov_b32 s5, s44
    s_mul_i32 s6, s36, 640
    s_add_u32 s6, s6, {OM}
    s_mul_i32 s7, s3, 544
    s_mov_b32 s8, {f2u(LOG2E)}
    s_mov_b32 s9, 0x3db504f3
    s_mov_b32 s21, 0xffff0000
    """)
    masks(MK, 15, 2, 3)
    a(f"""v_and_b32 v2, 15, v0
    v_lshrrev_b32 v3, 4, v0
    v_lshlrev_b32 v2, 5, v2
    v_lshl_add_u32 v2, v3, 4, v2
    v_add_u32 v2, s7, v2
    v_lshlrev_b32 v3, 4, v0
    v_add_u32 v3, 4352, v3
    v_cmp_gt_u32 vcc, 32, v0
    v_cndmask_b32 v252, v3, v2, vcc
    s_add_u32 s22, s7, 512
    v_mov_b32 v2, s22
    v_cmp_eq_u32 vcc, 0, v0
    v_cndmask_b32 v253, v3, v2, vcc
    v_mov_b32 v3, {OOB}
    v_and_b32 v2, 7, v0
    v_mul_u32_u24 v255, 544, v2
    v_cmp_gt_u32 vcc, {o["r1"]}, v2
    v_mul_u32_u24 v12, {ORS}, v2
    v_add_u32 v12, s6, v12
    v_cndmask_b32 v12, v3, v12, vcc
    v_lshrrev_b32 v2, 3, v0
    v_lshlrev_b32 v2, 4, v2
    v_add_u32 v15, v12, v2
    v_add_u32 v15, 512, v15
    v_cmp_gt_u32 vcc, {64 if o["mlf"] else 8}, v0
    v_cndmask_b32 v15, v3, v15, vcc
    s_lshl_b32 s22, s3, 7
    v_add_u32 v2, s22, v2
    v_add_u32 v254, v255, v2
    v_add_u32 v14, v12, v2
    v_bfe_u32 v2, v0, 2, 2
    v_lshrrev_b32 v3, 4, v0
    v_and_b32 v8, 3, v0
    v_lshlrev_b32 v3, 6, v3
    v_lshl_add_u32 v3, v8, 4, v3
    v_mov_b32 v12, 256""")
    for t in range(4): a(f"v_cmp_eq_u32 vcc, {t}, v2\nv_cndmask_b32 v{8+t}, v12, v3, vcc")
    if o["one"]:
        a(f"""v_lshlrev_b32 v254, 3, v0
        v_and_b32 v2, 1, v0
        v_cmp_eq_u32 vcc, 0, v2
        v_add_u32 v2, s6, v254
        v_mov_b32 v3, {OOB}
        v_cndmask_b32 v14, v3, v2, vcc""")
    a("s_waitcnt lgkmcnt(0)"); nonce(84, 85)
    a("s_cmp_lg_u32 s3, 0\ns_cbranch_scc1 L_qwait")
    for h in range(2):
        a(f"""L_q{h}:
        s_load_dwordx16 s[36:51], s[10:11], {256*h} glc
        s_load_dwordx16 s[52:67], s[10:11], {256*h+64} glc
        s_load_dwordx16 s[68:83], s[10:11], {256*h+128} glc
        s_waitcnt lgkmcnt(0)
        s_xor_b32 s22, s39, s84""")
        for j_ in range(1, 11): a(f"s_xor_b32 s23, s{39+4*j_}, s84\ns_or_b32 s22, s22, s23")
        a(f"s_cbranch_scc0 L_q{h}ok")
        spin(f"L_q{h}", 4)
        a(f"L_q{h}ok:")
        if h == 0: stamp(2)
        for d in range(32): a(f"v_writelane_b32 v2, s{36 + 4*(d//3) + d%3}, {32*h+d}")
    a(f"""v_lshlrev_b32 v3, 2, v0
    v_mov_b32 v13, 1
    ds_write_b32 v3, v2 offset:{LQ}
    ds_write_b32 v12, v13 offset:{LQ+16}
    L_qwait:
    ds_read_b32 v13, v12 offset:{LQ+16}
    s_waitcnt lgkmcnt(0)
    v_cmp_eq_u32 vcc, 1, v13
    s_cbranch_vccnz L_qgo
    s_sleep 2""")
    spin("L_qwait", 4)
    a("L_qgo:")
    for t in range(4): a(f"ds_read_b128 {v(AQ+4*t,4)}, v{8+t} offset:{LQ}")
    a("s_waitcnt lgkmcnt(0)")
    stamp(3)
    for sl in range(6):
        a(f"s_waitcnt vmcnt({20+NV-4*sl})")
        for t in range(4):
            a(f"v_mfma_f32_16x16x32_bf16 {v(DQ+4*sl,4)}, {v(AQ+4*t,4)}, {v(K0+16*sl+4*t,4)}, {'0' if t==0 else v(DQ+4*sl,4)}")
    stamp(4)
    for r in range(4):
        for sl in range(6):
            qp = f"quad_perm:[{r},{r},{r},{r}] row_mask:0xf bank_mask:0xf"
            if r == 0: a(f"v_mov_b32_dpp v{S0+sl}, v{DQ+4*sl} {qp}")
            else: a(f"v_add_f32_dpp v{S0+sl}, v{DQ+4*sl+r}, v{S0+sl} {qp}")
    T = AQ
    for rnd in range(2):
        for p in range(3): a(f"v_cvt_pk_bf16_f32 v{T+p}, v{S0+2*p}, v{S0+2*p+1}")
        for p in range(3): a(f"v_lshlrev_b32 v{S0+2*p}, 16, v{T+p}\nv_and_b32 v{S0+2*p+1}, s21, v{T+p}")
        if rnd == 0:
            for sl in range(6): a(f"v_mul_f32 v{S0+sl}, s9, v{S0+sl}")
    M, L_, TT = T + 4, T + 5, T + 6
    a(f"""v_add_f32 v{S0}, s5, v{S0}
    v_max3_f32 v{M}, v{S0+1}, v{S0+2}, v{S0+3}
    v_max3_f32 v{TT}, v{S0+4}, v{S0+5}, v{S0}
    v_max_f32 v{M}, v{M}, v{TT}
    v_max_f32_dpp v{M}, v{M}, v{M} row_ror:4 row_mask:0xf bank_mask:0xf
    v_max_f32_dpp v{M}, v{M}, v{M} row_ror:8 row_mask:0xf bank_mask:0xf
    v_mov_b32 v{TT}, v{M}
    v_permlane16_swap_b32 v{M}, v{TT}
    v_max_f32 v{M}, v{M}, v{TT}
    v_mov_b32 v{TT}, v{M}
    v_permlane32_swap_b32 v{M}, v{TT}
    v_max_f32 v{M}, v{M}, v{TT}
    v_mul_f32 v{M}, s8, v{M}""")
    for sl in range(6): a(f"v_fma_f32 v{S0+sl}, v{S0+sl}, s8, -v{M}")
    for sl in range(6): a(f"v_exp_f32 v{S0+sl}, v{S0+sl}")
    PK = T + 8
    for sl in range(6): a(f"v_cvt_pk_bf16_f32 v{PK+sl}, v{S0+sl}, v{S0+sl}")
    for sl in range(6):
        for k in range(4):
            for r in range(4):
                a(f"v_and_b32_dpp v{K0+16*sl+4*k+r}, v{PK+sl}, v{MK+r} row_newbcast:{4*k} row_mask:0xf bank_mask:0xf")
    a(f"""v_add_f32 v{L_}, v{S0}, v{S0+1}
    v_add_f32 v{TT}, v{S0+2}, v{S0+3}
    v_add_f32 v{S0+4}, v{S0+4}, v{S0+5}
    v_add_f32 v{L_}, v{L_}, v{TT}
    v_add_f32 v{L_}, v{L_}, v{S0+4}
    v_add_f32_dpp v{L_}, v{L_}, v{L_} row_ror:4 row_mask:0xf bank_mask:0xf
    v_add_f32_dpp v{L_}, v{L_}, v{L_} row_ror:8 row_mask:0xf bank_mask:0xf
    v_mov_b32 v{TT}, v{L_}
    v_permlane16_swap_b32 v{L_}, v{TT}
    v_add_f32 v{L_}, v{L_}, v{TT}
    v_mov_b32 v{TT}, v{L_}
    v_permlane32_swap_b32 v{L_}, v{TT}
    v_add_f32 v{L_}, v{L_}, v{TT}
    ds_write_b64 v253, {v(M,2)}""")
    if SG:
        a("s_cmp_ge_u32 s3, 4\ns_cbranch_scc1 L_stag1")
        for x in VL[NV:NV+SG]: a(x)
        a("L_stag1:")
    for x in VL[NV+SG:]: a(x)
    stamp(5)
    for sl in range(6):
        for k in range(4):
            n = 23 - 4 * sl - k
            if k == 0 or sl == 5: a(f"s_waitcnt vmcnt({n - (3 if sl < 5 else 0)})")
            a(f"v_mfma_f32_16x16x32_bf16 {v(ACC,4)}, {v(K0+16*sl+4*k,4)}, {v(V0+16*sl+4*k,4)}, {'0' if sl==0 and k==0 else v(ACC,4)}")
    stamp(6)
    a(f"""ds_write_b128 v252, {v(ACC,4)}
    s_waitcnt lgkmcnt(0)""")
    if o["adry"]:
        a(f"""s_mov_b32 s14, 0
        s_cmp_lt_u32 s3, {1 if o["one"] else 4}
        s_cbranch_scc1 L_comb
        L_bar:
        s_mov_b32 s14, {MBX}""")
    a(f"""s_barrier
    """)
    if o["one"]:
        a("""s_cmp_lg_u32 s3, 0
        s_cbranch_scc1 L_att_end
        L_comb:
        ds_read_b64 v[16:17], v255 offset:512""")
        for k in range(8): a(f"ds_read_b64 {v(28+2*k,2)}, v254 offset:{544*k}")
        a("""v_mov_b32 v26, s84
        v_mov_b32 v27, s84
        v_mov_b32 v18, 0xff
        s_waitcnt lgkmcnt(8)
        v_max_f32_dpp v24, v16, v16 quad_perm:[1,0,3,2] row_mask:0xf bank_mask:0xf
        v_max_f32_dpp v24, v24, v24 quad_perm:[2,3,0,1] row_mask:0xf bank_mask:0xf
        v_max_f32_dpp v24, v24, v24 row_half_mirror row_mask:0xf bank_mask:0xf
        v_sub_f32 v16, v16, v24
        v_exp_f32 v16, v16
        s_waitcnt lgkmcnt(0)
        v_mul_f32 v25, v16, v17""")
        D = "row_mask:0xf bank_mask:0xf"
        for k in range(8):
            for e in range(2):
                dst = 20 + e + 2 * (k & 1)
                a(f"v_{'mul' if k < 2 else 'fmac'}_f32_dpp v{dst}, v16, v{28+2*k+e} row_newbcast:{k} {D}")
            if k in (1, 3, 5): a(f"v_add_f32_dpp v25, v25, v25 {['quad_perm:[1,0,3,2]', 'quad_perm:[2,3,0,1]', 'row_half_mirror'][k//2]} {D}")
        a(f"""v_pk_add_f32 v[20:21], v[20:21], v[22:23]
        v_mov_b32_dpp v22, v20 quad_perm:[1,0,3,2] {D}
        v_mov_b32_dpp v23, v21 quad_perm:[1,0,3,2] {D}""")
        tag4(20, 18, 85)
        a("""buffer_store_dwordx4 v[20:23], v14, s[12:15], 0 offen sc1
        buffer_store_dwordx4 v[24:27], v15, s[12:15], 0 offen sc1""")
    else:
      a(f"""    s_cmp_ge_u32 s3, 4
    s_cbranch_scc1 L_att_end
    L_comb:
    ds_read_b64 v[16:17], v255 offset:512
    ds_read_b128 v[20:23], v254
    v_mov_b32 v26, s84
    v_mov_b32 v27, s84
    v_mov_b32 v18, 0xff
    s_waitcnt lgkmcnt(1)
    v_max_f32_dpp v24, v16, v16 quad_perm:[1,0,3,2] row_mask:0xf bank_mask:0xf
    v_max_f32_dpp v24, v24, v24 quad_perm:[2,3,0,1] row_mask:0xf bank_mask:0xf
    v_max_f32_dpp v24, v24, v24 row_half_mirror row_mask:0xf bank_mask:0xf
    v_sub_f32 v16, v16, v24
    v_exp_f32 v16, v16
    s_waitcnt lgkmcnt(0)
    v_mul_f32 v25, v16, v17""")
      for r in range(4): a(f"v_mul_f32 v{20+r}, v16, v{20+r}")
      for dp in ("quad_perm:[1,0,3,2]", "quad_perm:[2,3,0,1]", "row_half_mirror"):
          for r in (20, 21, 22, 23, 25): a(f"v_add_f32_dpp v{r}, v{r}, v{r} {dp} row_mask:0xf bank_mask:0xf")
      tag4(20, 18, 85)
      a("""buffer_store_dwordx4 v[20:23], v14, s[12:15], 0 offen sc1
    s_cmp_lg_u32 s3, 0
    s_cbranch_scc1 L_comb_end
    buffer_store_dwordx4 v[24:27], v15, s[12:15], 0 offen sc1
    L_comb_end:""")
    if o["adry"]: a("s_cmp_eq_u32 s14, 0\ns_cbranch_scc1 L_bar")
    a("L_att_end:")
    stamp(7); stamp_out()
    a("L_end:\ns_endpgm")
    GU, WO, DN = 16, 96, 160
    M8, M4 = 4, 8
    SB = 80
    HW, HS, HC, PW, PR, YW = 240, 241, 242, 243, 244, 245
    C640, CG2 = 246, 249
    NS, TS, E0, VM = 93, 56, 247, 14
    g1 = -2 * LOG2E * 0.7978845608028654
    def gu_list():
        L = []
        for t in range(10):
            va = 250; k_ = t
            if o["al2"]: va, k_ = (110, t // 5) if t % 5 == 4 else (250, t - t // 5)
            so = "0" if k_ == 0 else f"s{59+k_}"
            L.append(f"buffer_load_dwordx4 {v(GU+8*t,4)}, v{va}, s[32:35], {so} offen {WT}")
            L.append(f"buffer_load_dwordx4 {v(GU+8*t+4,4)}, v{va}, s[36:39], {so} offen {WT}")
        return L
    def gu_setup():
        srd(32, 16, 2211840); srd(36, 18, 2211840)
        for t in range(1, 10): a(f"s_mov_b32 s{59+t}, {3456*t}")
        if o["al2"]:
            a("""s_lshl_b32 s72, s3, 3
            v_add_u32 v14, s72, v2
            v_mul_u32_u24 v250, 27648, v14
            v_mul_u32_u24 v110, 6912, v14
            s_lshl_b32 s72, s77, 7
            v_lshl_add_u32 v15, v3, 4, s72
            v_add_u32 v250, v250, v15
            v_add_u32 v110, v110, v15
            v_add_u32 v110, 1769472, v110
            v_lshrrev_b32 v14, 2, v0
            s_lshl_b32 s72, s3, 4
            v_add_u32 v111, s72, v14
            v_lshlrev_b32 v14, 3, v111
            v_lshlrev_b32 v15, 1, v111
            buffer_load_dwordx2 v[98:99], v14, s[28:31], 0 offen
            buffer_load_ushort v100, v15, s[28:31], 0 offen offset:1024""")
        else: a("s_lshl_b32 s72, s77, 7\nv_mul_u32_u24 v250, 3456, v12\nv_lshl_add_u32 v250, v3, 4, v250\nv_add_u32 v250, s72, v250")
    def dn_loads():
        srd(44, 20, 2211840)
        a("""s_lshl_b32 s72, s77, 3
        s_add_u32 s72, s72, s3
        s_mul_i32 s72, s72, 10240
        v_lshrrev_b32 v14, 4, v0
        v_mul_u32_u24 v14, 2560, v14
        v_and_b32 v15, 15, v0
        v_lshl_add_u32 v14, v15, 4, v14
        v_add_u32 v14, s72, v14""")
        for t in range(2):
            for b in range(5): a(f"buffer_load_dwordx4 {v(DN+20*t+4*b,4)}, v14, s[44:47], 0 offen offset:{1280*t+256*b} {WT}")
    def wo_list():
        return [f"buffer_load_dwordx4 {v(WO+4*t,4)}, v251, s[40:43], {'0' if t < 4 else 's%d' % (68 + t//4)} offen offset:{1280*(t&3)} {WT}" for t in range(16)]
    def xw_loads():
        XW = 16
        a(f"""s_mul_i32 s72, s79, 163840
                s_mul_i32 s73, s3, 20480
                s_add_u32 s72, s72, s73
                s_lshl_b32 s73, s75, 7
                s_add_u32 s72, s72, s73
                v_mul_u32_u24 v14, 2560, v2
                v_lshl_add_u32 v14, v3, 4, v14
                v_add_u32 v14, s72, v14
                s_mov_b32 s72, 163840
                s_mov_b32 s73, 327680""")
        for e in range(3):
            for t in range(2): a(f"buffer_load_dwordx4 {v(XW+8*e+4*t,4)}, v14, s[40:43], {['0','s72','s73'][e]} offen offset:{1280*t} {WT}")
    def wq_loads(base, va):
        for t in range(10): a(f"buffer_load_dwordx4 {v(base+4*t,4)}, v{va}, s[52:55], {'0' if t == 0 else 's%d' % (83+t)} offen {WT}")
    def ln(wait_c):
        for p in range(5): a(f"v_pk_add_f32 {v(204+2*p,2)}, {v(204+2*p,2)}, v[214:215] op_sel_hi:[1,0] neg_lo:[0,1] neg_hi:[0,1]")
        a("""v_pk_mul_f32 v[14:15], v[204:205], v[204:205]
        v_pk_add_f32 v[204:205], v[204:205], v[206:207]
        v_pk_fma_f32 v[14:15], v[206:207], v[206:207], v[14:15]
        v_pk_add_f32 v[206:207], v[208:209], v[210:211]
        v_pk_fma_f32 v[14:15], v[208:209], v[208:209], v[14:15]
        v_pk_add_f32 v[204:205], v[204:205], v[212:213]
        v_pk_fma_f32 v[14:15], v[210:211], v[210:211], v[14:15]
        v_pk_add_f32 v[204:205], v[204:205], v[206:207]
        v_pk_fma_f32 v[14:15], v[212:213], v[212:213], v[14:15]
        v_add_f32 v204, v204, v205
        v_add_f32 v14, v14, v15""")
        for dp in ("row_ror:1 row_mask:0xf", "row_ror:2 row_mask:0xf", "row_ror:4 row_mask:0xf", "row_ror:8 row_mask:0xf", "row_bcast:15 row_mask:0xa", "row_bcast:31 row_mask:0xc"):
            a(f"v_add_f32_dpp v204, v204, v204 {dp} bank_mask:0xf\nv_add_f32_dpp v14, v14, v14 {dp} bank_mask:0xf")
        a(f"""v_readlane_b32 s72, v204, 63
        v_readlane_b32 s73, v14, 63
        v_mul_f32 v14, s72, v{C640}
        v_mul_f32 v15, s73, v{C640}
        v_add_f32 v214, v214, v14
        v_fma_f32 v15, -v14, v14, v15
        v_cvt_pk_bf16_f32 v14, v214, v15
        v_and_b32 v15, s81, v14
        v_lshlrev_b32 v214, 16, v14
        v_add_f32 v15, {f2u(1e-5)}, v15""")
        a(wait_c)
        pk = [f"v_pk_add_f32 {v(216+2*p,2)}, {v(216+2*p,2)}, v[214:215] op_sel_hi:[1,0] neg_lo:[0,1] neg_hi:[0,1]" for p in range(5)]
        cv = [f"v_cvt_pk_bf16_f32 v{204+p}, v{216+2*p}, v{217+2*p}" for p in range(5)]
        un = [f"v_lshlrev_b32 v{216+2*p}, 16, v{204+p}\nv_and_b32 v{217+2*p}, s81, v{204+p}" for p in range(5)]
        a("v_cvt_pk_bf16_f32 v15, v15, v15"); a(pk[0]); a("v_and_b32 v15, s81, v15"); a(pk[1]); a("v_sqrt_f32 v15, v15")
        a(pk[2]); a(pk[3]); a("v_cvt_pk_bf16_f32 v15, v15, v15"); a(pk[4]); a("v_and_b32 v15, s81, v15"); a(cv[0]); a("v_rcp_f32 v14, v15")
        for x in cv[1:] + un: a(x)
        for p in range(5): a(f"v_pk_mul_f32 {v(216+2*p,2)}, {v(216+2*p,2)}, v[14:15] op_sel_hi:[1,0]")
        for t in range(10): a(f"v_cvt_pk_bf16_f32 v{216+t}, v{216+t}, v{216+t}")
    def qgemv(base, acc, after, nxt):
        nxt = list(nxt); issued = 0
        for t in range(10):
            for r in range(4): a(f"v_and_b32 v{228+4*(t%2)+r}, v{216+t}, v{M8+r}")
            a(f"s_waitcnt vmcnt({9-t+after+issued})")
            a(f"v_mfma_f32_16x16x32_bf16 {v(acc,4)}, {v(228+4*(t%2),4)}, {v(base+4*t,4)}, {'0' if t==0 else v(acc,4)}")
            for k in range(o["il"]):
                if nxt: a(nxt.pop(0)); issued += 1
        return nxt
    def psum():
        a(f"""ds_read2st64_b32 v[204:205], v{PR} offset0:0 offset1:17
        ds_read2st64_b32 v[206:207], v{PR} offset0:1 offset1:18
        s_waitcnt lgkmcnt(1)
        v_add_f32 v204, v204, v205
        s_waitcnt lgkmcnt(0)
        v_add_f32 v206, v206, v207""")
        for dp in ("quad_perm:[1,0,3,2]", "quad_perm:[2,3,0,1]", "row_half_mirror"):
            a(f"v_add_f32_dpp v204, v204, v204 {dp} row_mask:0xf bank_mask:0xf\nv_add_f32_dpp v206, v206, v206 {dp} row_mask:0xf bank_mask:0xf")
    for i in range(28): assert (i * 37) >> 8 == i // 7
    for i in range(9): assert (i * 86) >> 8 == i // 3
    for col in range(0, 640, 2): assert (col * 52429) >> 19 == col // 10
    a("""L_aux:
    v_lshrrev_b32 v2, 3, v0
    v_and_b32 v3, 7, v0
    s_mul_i32 s72, s3, 80
    v_mul_u32_u24 v12, 10, v2
    v_add_u32 v12, s72, v12
    v_lshlrev_b32 v13, 2, v0
    s_lshl_b32 s72, s3, 8
    v_add_u32 v13, s72, v13
    s_and_b32 s78, s2, 7
    s_lshl_b32 s78, s78, 3
    s_lshr_b32 s72, s2, 3
    s_add_u32 s78, s78, s72
    s_lshl_b32 s72, s78, 7
    v_lshlrev_b32 v252, 13, v12
    v_lshl_add_u32 v252, v3, 4, v252
    v_add_u32 v252, s72, v252
    v_mul_u32_u24 v254, 20, v0
    v_lshlrev_b32 v255, 1, v12""")
    for t in range(1, 10): a(f"s_mov_b32 s{83+t}, {8192*t}")
    a("""s_mul_i32 s74, s2, 37
    s_lshr_b32 s74, s74, 8
    s_mul_i32 s75, s74, 7
    s_sub_u32 s75, s2, s75
    s_lshl_b32 s76, s74, 3
    s_sub_u32 s72, s2, 28
    s_mul_i32 s73, s72, 86
    s_lshr_b32 s73, s73, 8
    s_mul_i32 s79, s73, 3
    s_sub_u32 s72, s72, s79
    s_add_u32 s72, s72, 7
    s_mul_i32 s79, s73, 11
    s_cmp_ge_u32 s2, 28
    s_cselect_b32 s74, s73, s74
    s_cselect_b32 s75, s72, s75
    s_cselect_b32 s76, s79, s76
    s_add_u32 s79, s76, 8
    s_add_u32 s76, s76, s3
    s_mul_i32 s72, s76, 163840
    s_lshl_b32 s73, s75, 7
    s_add_u32 s72, s72, s73
    v_mul_u32_u24 v251, 20480, v2
    v_lshl_add_u32 v251, v3, 4, v251
    v_add_u32 v251, s72, v251
    s_mov_b32 s69, 5120
    s_mov_b32 s70, 10240
    s_mov_b32 s71, 15360
    s_sub_u32 s77, s2, 37
    s_waitcnt lgkmcnt(0)
    s_load_dword s93, s[26:27], %d""" % CAN)
    if o["stamps"]: a("v_mov_b32 v1, 0\nv_writelane_b32 v1, s100, 0")
    srd(28, 4, 1280); srd(52, 10, 5242880)
    a("""buffer_load_dwordx4 v[228:231], v254, s[28:31], 0 offen
    buffer_load_dword v232, v254, s[28:31], 0 offen offset:16
    buffer_load_dwordx4 v[236:239], v255, s[28:31], 0 offen
    buffer_load_dword v233, v255, s[28:31], 0 offen offset:16
    buffer_load_dword v200, v13, s[28:31], 0 offen""")
    wq_loads(DN, 252)
    srd(48, 26, MBX); srd(40, 12, 5242880)
    a(f"s_mov_b32 s{SB}, 0x40000")
    if o["xearly"]:
        a("s_sub_u32 s72, s2, 28\ns_cmp_lt_u32 s72, 9\ns_cbranch_scc0 L_consts\ns_barrier")
        for x in wo_list(): a(x)
        xw_loads()
        a("L_consts:")
    stamp(1)
    masks(M8, 7, 14, 15); masks(M4, 15, 14, 15)
    a(f"""s_mov_b32 s81, 0xffff0000
    v_mov_b32 v{C640}, {f2u(1/640)}
    v_mov_b32 v{CG2}, {f2u(g1*0.044715)}
    v_lshrrev_b32 v14, 1, v13
    s_mov_b32 s72, 52429
    v_mul_lo_u32 v15, v14, s72
    v_lshrrev_b32 v15, 19, v15
    v_lshlrev_b32 v15, 1, v15
    v_add_u32 v14, v14, v15
    v_lshlrev_b32 v{HW}, 2, v14
    v_mul_u32_u24 v{HS}, 48, v0
    s_lshl_b32 s72, s3, 3
    v_add_u32 v14, s72, v2
    v_mul_u32_u24 v{HC}, 48, v14
    v_lshlrev_b32 v14, 2, v14
    v_mul_u32_u24 v15, 544, v3
    v_add_u32 v{PR}, v14, v15
    v_add_u32 v{PR}, {LP}, v{PR}""")
    a(f"""v_lshrrev_b32 v14, 5, v0
    v_bfe_u32 v15, v0, 3, 1
    v_cmp_eq_u32 vcc, v14, v15
    s_lshl_b32 s72, s3, 1
    v_add_u32 v14, s72, v14
    v_bfe_u32 v15, v0, 4, 1
    v_lshlrev_b32 v15, 4, v15
    v_lshl_add_u32 v15, v3, 5, v15
    v_lshlrev_b32 v201, 4, v0
    v_add_u32 v201, {LDUMP}, v201
    v_mul_u32_u24 v202, 544, v14
    v_add_u32 v202, v202, v15
    v_add_u32 v202, {LP}, v202
    v_cndmask_b32 v{PW}, v201, v202, vcc
    v_mul_u32_u24 v202, 320, v14
    v_add_u32 v202, v202, v15
    v_add_u32 v202, {LY}, v202
    v_cndmask_b32 v{YW}, v201, v202, vcc
    """)
    if o["xearly"]: a("s_sub_u32 s72, s2, 28\ns_cmp_lt_u32 s72, 9\ns_cbranch_scc1 L_xx\ns_waitcnt vmcnt(11)\nL_xx:\ns_waitcnt vmcnt(33)")
    else: a("s_waitcnt vmcnt(11)")
    for p in range(5):
        src = 228 + p; srcc = 236 + p if p < 4 else 233
        a(f"v_lshlrev_b32 v{204+2*p}, 16, v{src}\nv_and_b32 v{205+2*p}, s81, v{src}\nv_lshlrev_b32 v{216+2*p}, 16, v{srcc}\nv_and_b32 v{217+2*p}, s81, v{srcc}")
    if o["lnf"] and not o["al2"]:
        a("v_bfe_u32 v14, v0, 2, 1\nv_cmp_eq_u32 vcc, 1, v14")
        for e in range(5): a(f"v_cndmask_b32 v{96+e}, v{216+e}, v{221+e}, vcc")
    a("v_readfirstlane_b32 s72, v204\nv_mov_b32 v214, s72")
    ln("")
    stamp(13)
    if o["xearly"]:
        a("s_sub_u32 s72, s2, 28\ns_cmp_lt_u32 s72, 9\ns_cbranch_scc0 L_q_n")
        qgemv(DN, 204, 22, [])
        a("s_branch L_q_sum\nL_q_n:")
    qgemv(DN, 204, 0, [])
    a("L_q_sum:")
    stamp(18)
    a(f"""ds_write_b128 v{PW}, v[204:207]
    s_waitcnt lgkmcnt(0)""")
    nonce(NS, TS)
    a(f"""v_and_b32 v14, 1, v0
    v_cmp_eq_u32 vcc, 0, v14
    v_mov_b32 v14, s{TS}
    v_mov_b32 v15, s{TS+1}
    v_mov_b32 v{E0}, s{TS+2}
    v_mov_b32 v{E0+1}, s{TS+3}
    v_cndmask_b32 v{E0}, v{E0}, v14, vcc
    v_cndmask_b32 v{E0+1}, v{E0+1}, v15, vcc
    s_barrier
    s_cmp_lg_u32 s3, 0
    s_cbranch_scc1 L_q_1
    v_lshlrev_b32 v14, 2, v0""")
    stamp(14)
    for r in range(16): a(f"ds_read_b32 v{204+r}, v14 offset:{LP+544*r}")
    a(f"""v_and_b32 v14, 15, v0
    v_mul_u32_u24 v224, 24, v14
    v_add_u32 v225, 8, v224
    v_add_u32 v226, 16, v224
    v_cmp_gt_u32 vcc, 11, v14
    v_lshlrev_b32 v14, 4, v14
    v_lshrrev_b32 v15, 4, v0
    v_lshl_add_u32 v14, v15, 9, v14
    s_lshr_b32 s72, s78, 1
    s_mul_i32 s72, s72, 3072
    s_and_b32 s73, s78, 1
    s_lshl_b32 s73, s73, 8
    s_add_u32 s72, s72, s73
    v_mov_b32 v15, {OOB}
    v_cndmask_b32 v14, v15, v14, vcc
    v_cmp_gt_u32 vcc, 32, v0
    v_cndmask_b32 v15, v15, v14, vcc
    v_mov_b32 v223, s{NS}
    s_waitcnt lgkmcnt(0)""")
    for w in (4, 2, 1):
        for p in range(w): a(f"v_pk_add_f32 {v(204+2*p,2)}, {v(204+2*p,2)}, {v(204+2*p+2*w,2)}")
    a(f"""v_add_f32 v204, v204, v205
    v_mov_b32_dpp v205, v204 quad_perm:[1,0,3,2] row_mask:0xf bank_mask:0xf
    v_cvt_pk_bf16_f32 v204, v204, v205
    ds_bpermute_b32 v220, v224, v204
    ds_bpermute_b32 v221, v225, v204
    ds_bpermute_b32 v222, v226, v204
    s_waitcnt lgkmcnt(0)
    buffer_store_dwordx4 v[220:223], v14, s[48:51], s72 offen sc1
    buffer_store_dwordx4 v[220:223], v15, s[48:51], s72 offen offset:2048 sc1
    L_q_1:
    s_barrier""")
    stamp(15)
    if o["dry"]:
        a(f"""s_mov_b32 s82, 1
        s_mov_b32 s50, 0
        s_mov_b32 s{SB}, 0
        s_cmp_ge_u32 s2, 37
        s_cbranch_scc1 L_ffn
        s_branch L_wo
        L_real:
        s_mov_b32 s82, 0
        s_mov_b32 s50, {MBX}
        s_mov_b32 s{SB}, 0x40000""")
        stamp(17)
    if o["trig"]:
        if o["trig"][1] == 0: a("s_cmp_lt_u32 s2, 37\ns_cbranch_scc1 L_go")
        else: a("s_sub_u32 s72, s2, 28\ns_cmp_lt_u32 s72, 9\ns_cbranch_scc1 L_go")
        a(f"""s_cmp_lg_u32 s3, 0
        s_cbranch_scc1 L_go1
        s_lshl_b32 s72, s2, 7
        s_add_u32 s72, s72, {PG}
        L_tr:
        buffer_load_dwordx3 v[204:206], off, s[48:51], s72 sc1
        s_waitcnt vmcnt(0)
        v_cmp_eq_u32 vcc, s{NS}, v204
        v_cmp_eq_u32 s[60:61], s{NS}, v205
        v_cmp_eq_u32 s[62:63], s{NS}, v206
        s_or_b64 vcc, vcc, s[60:61]
        s_or_b64 vcc, vcc, s[62:63]
        s_cbranch_scc1 L_go1
        s_sleep 4""")
        spin("L_tr", SB)
        a("L_go1:\ns_barrier\nL_go:")
        stamp(16)
    a("s_cmp_ge_u32 s2, 37\ns_cbranch_scc1 L_ld_f")
    if o["xearly"]: a("s_cmp_ge_u32 s2, 28\ns_cbranch_scc1 L_wo")
    for x in wo_list(): a(x)
    if not o["xearly"]:
        a("s_cmp_lt_u32 s2, 28\ns_cbranch_scc1 L_wo")
        xw_loads()
    a(f"""L_wo:
    s_mul_i32 s83, s75, {o["r1"] * 6554}
    s_lshr_b32 s83, s83, 16
    s_mul_i32 s83, s83, {ORS}
    s_add_u32 s83, s83, {OM}
    s_mul_i32 s72, s76, 3840
    s_add_u32 s72, s72, s83
    v_lshlrev_b32 v202, 3, v0
    v_add_u32 v203, s72, v202
    v_and_b32 v14, 15, v0
    v_cmp_gt_u32 vcc, 6, v14
    v_cndmask_b32 v205, 0, 1.0, vcc
    v_min_u32 v14, 5, v14
    v_mul_u32_u24 v14, 640, v14
    v_add_u32 v204, s72, v14
    s_lshl_b32 s72, s3, 9
    s_add_u32 s72, s72, {LO}
    v_add_u32 v202, s72, v202
    v_lshlrev_b32 v206, 6, v2
    v_add_u32 v206, s72, v206
    v_lshrrev_b32 v14, 2, v0
    v_and_b32 v15, 3, v0
    v_lshlrev_b32 v14, 4, v14
    v_cmp_gt_u32 vcc, {o["r2"]}, v15
    v_mul_u32_u24 v208, {YRS}, v15
    v_mul_u32_u24 v15, 320, v15
    v_add_u32 v207, v14, v15
    v_add_u32 v14, v14, v208
    s_mul_i32 s72, s74, 2560
    s_lshl_b32 s73, s75, 8
    s_add_u32 s72, s72, s73
    s_add_u32 s72, s72, {YM}
    v_add_u32 v14, s72, v14
    v_mov_b32 v15, {OOB}
    v_cndmask_b32 v208, v15, v14, vcc""")
    if o["g2"]: a(f"""s_lshl_b32 s72, s2, 7
        s_add_u32 s72, s72, {SOON}
        v_mov_b32 v94, s{NS}
        v_lshl_add_u32 v95, v0, 2, s72
        v_cmp_gt_u32 vcc, 32, v0
        v_cndmask_b32 v95, v15, v95, vcc""")
    XW, XO, XM, XA, XT, XOA, XMA, XE, XLW, XLR, XS = 16, 40, 46, 49, 50, 52, 53, 54, 55, 56, 58
    def wo_body(ex):
        t_ = "x" if ex else ""
        if ex:
            a(f"""v_lshrrev_b32 v14, 4, v0
            v_min_u32 v14, 2, v14
            v_add_u32 v14, s79, v14
            v_min_u32 v14, 31, v14
            v_mul_u32_u24 v14, 3840, v14
            v_add_u32 v14, s83, v14
            v_and_b32 v15, 15, v0
            v_lshl_add_u32 v{XOA}, v15, 2, v14
            s_lshl_b32 s72, s3, 6
            v_add_u32 v{XOA}, s72, v{XOA}
            v_min_u32 v15, 5, v15
            v_mul_u32_u24 v15, 640, v15
            v_add_u32 v{XMA}, v14, v15
            v_and_b32 v14, 3, v0
            v_lshlrev_b32 v14, 3, v14
            v_lshrrev_b32 v{XE}, v14, s{NS}
            v_and_b32 v{XE}, 0xff, v{XE}
            s_lshl_b32 s72, s3, 8
            s_add_u32 s72, s72, {LD}
            v_lshl_add_u32 v{XLW}, v0, 2, s72
            v_lshl_add_u32 v{XLR}, v2, 3, s72
            s_cmp_lg_u32 s74, 0
            s_cbranch_scc1 L_noz
            s_cmp_lg_u32 s3, 0
            s_cbranch_scc1 L_noz""")
            for k in range(4): a(f"v_mov_b32 v{212+k}, s{TS+k}")
            a("s_mov_b32 s72, 7680\nbuffer_store_dwordx4 v[212:215], v208, s[48:51], s72 offen sc1\nL_noz:")
        if o["gate"]:
            a(f"""L_h1a{t_}:
            buffer_load_dword v210, v204, s[48:51], 0 offen offset:520 sc1
            s_waitcnt vmcnt(0)
            v_cmp_eq_u32 vcc, s{NS}, v210
            s_and_b32 s72, vcc_lo, 63
            s_bcnt1_i32_b32 s72, s72
            s_cmp_ge_u32 s72, {o["gthr"]}
            s_cbranch_scc1 L_h1{t_}""")
            spin(f"L_h1a{t_}", SB)
        a(f"L_h1{t_}:")
        SETS = [(160, 172, 40, 46), (64, 76, 80, 86), (176, 188, 192, 90)]
        def h1_issue(i):
            ob, mb, xo, xm = SETS[i]
            if i == 0: stamp(19)
            a(f"buffer_load_dwordx3 {v(mb,3)}, v204, s[48:51], 0 offen offset:512 sc1")
            if ex: a(f"buffer_load_dwordx3 {v(xm,3)}, v{XMA}, s[48:51], 0 offen offset:512 sc1")
            for c in range(6): a(f"buffer_load_dwordx2 {v(ob+2*c,2)}, v203, s[48:51], 0 offen offset:{640*c} sc1")
            if ex:
                for c in range(6): a(f"buffer_load_dword v{xo+c}, v{XOA}, s[48:51], 0 offen offset:{640*c} sc1")
        def h1_check(i):
            ob, mb, xo, xm = SETS[i]
            a(f"v_xor_b32 v{mb+2}, s{NS}, v{mb+2}")
            if ex: a(f"v_xor_b32 v{xm+2}, s{NS}, v{xm+2}")
            chk(list(range(ob, ob+12)) + (list(range(xo, xo+6)) if ex else []), [f"v{E0}", f"v{E0+1}"] * 6 + [f"v{XE}"] * 6, (14, 15))
            a(f"v_or3_b32 v14, v14, v{mb+2}, v{xm+2}" if ex else f"v_or_b32 v14, v14, v{mb+2}")
            a("v_cmp_ne_u32 vcc, 0, v14")
        def comb(m, tmp, src, n, dst):
            m0, l0 = m, m + 1; m = tmp; l = tmp + 1; D = "row_mask:0xf bank_mask:0xf"
            q_ = [f"v_max_f32_dpp v{tmp}, v{m0}, v{m0} quad_perm:[1,0,3,2] {D}", f"v_mul_f32 v{l}, v{l0}, v205",
                  f"v_max_f32_dpp v{tmp}, v{tmp}, v{tmp} quad_perm:[2,3,0,1] {D}", f"v_max_f32_dpp v{tmp}, v{tmp}, v{tmp} row_half_mirror {D}",
                  f"v_sub_f32 v{m}, v{m0}, v{tmp}", f"v_exp_f32 v{m}, v{m}", f"v_mul_f32 v{l}, v{m}, v{l}"]
            q_ += [f"v_mul_f32_dpp v{dst+e}, v{m}, v{src+e} row_newbcast:0 {D}" for e in range(n)]
            q_ += [f"v_add_f32_dpp v{l}, v{l}, v{l} quad_perm:[1,0,3,2] {D}"]
            seq = [f"v_fmac_f32_dpp v{dst+e}, v{m}, v{src+n*c+e} row_newbcast:{c} {D}" for c in range(1, 6) for e in range(n)]
            seq.insert(n, f"v_add_f32_dpp v{l}, v{l}, v{l} quad_perm:[2,3,0,1] {D}")
            seq.insert(2*n+1, f"v_add_f32_dpp v{l}, v{l}, v{l} row_half_mirror {D}")
            seq.insert(3*n+2, f"v_rcp_f32 v{l}, v{l}")
            q_ += seq
            q_ += [f"v_mul_f32_dpp v{dst+e}, v{l}, v{dst+e} row_newbcast:0 {D}" for e in range(n)]
            q_ += [f"v_cvt_pk_bf16_f32 v{dst+e}, v{dst+e}, v{dst+e}" for e in range(n)]
            return q_
        def h1_leave(i):
            ob, mb, xo, xm = SETS[i]
            stamp(3)
            A1 = comb(mb, 14, ob, 2, 224); A2 = comb(xm, XT, xo, 1, XA) if ex else []
            k2 = 0
            for k1, x in enumerate(A1):
                a(x)
                while k2 < len(A2) and k2 * len(A1) <= k1 * len(A2): a(A2[k2]); k2 += 1
            for x in A2[k2:]: a(x)
        if o["skip"]:
            ob, mb, xo, xm = SETS[0]; AC = 64
            k_, d_ = o["p1"]
            L_ = [(AC+12, f"buffer_load_dwordx3 {v(mb,3)}, v204, s[48:51], 0 offen offset:512 sc1")]
            if ex: L_ += [(AC+13, f"buffer_load_dwordx3 {v(xm,3)}, v{XMA}, s[48:51], 0 offen offset:512 sc1")]
            L_ += [(AC+c, f"buffer_load_dwordx2 {v(ob+2*c,2)}, v203, s[48:51], 0 offen offset:{640*c} sc1") for c in range(6)]
            if ex: L_ += [(AC+6+c, f"buffer_load_dword v{xo+c}, v{XOA}, s[48:51], 0 offen offset:{640*c} sc1") for c in range(6)]
            h1_issue(0)
            a("s_waitcnt vmcnt(0)")
            a(f"L_h1s{t_}:\nv_xor_b32 v{AC+12}, s{NS}, v{mb+2}")
            if ex: a(f"v_xor_b32 v{AC+13}, s{NS}, v{xm+2}")
            for c in range(6): a(f"v_msad_u8 v{AC+c}, v{ob+2*c}, v{E0}, 0")
            if ex:
                for c in range(6): a(f"v_msad_u8 v{AC+6+c}, v{xo+c}, v{XE}, 0")
            for c in range(6): a(f"v_msad_u8 v{AC+c}, v{ob+2*c+1}, v{E0+1}, v{AC+c}")
            if ex: a(f"""v_or3_b32 v15, v{AC+6}, v{AC+7}, v{AC+8}
                v_or3_b32 v14, v{AC+9}, v{AC+10}, v{AC+11}
                v_or3_b32 v15, v15, v{AC+12}, v{AC+13}
                v_or3_b32 v14, v14, v{AC}, v{AC+1}
                v_or3_b32 v15, v15, v{AC+2}, v{AC+3}
                v_or3_b32 v14, v14, v{AC+4}, v{AC+5}
                v_or_b32 v14, v14, v15""")
            else: a(f"""v_or3_b32 v14, v{AC+12}, v{AC}, v{AC+1}
                v_or3_b32 v15, v{AC+2}, v{AC+3}, v{AC+4}
                v_or3_b32 v14, v14, v15, v{AC+5}""")
            a(f"v_cmp_ne_u32 vcc, 0, v14\ns_cbranch_vccz L_h1ok{t_}")
            stamp(19)
            if k_ == 1:
                for n, (r, ld) in enumerate(L_): a(f"v_cmp_ne_u32 vcc, 0, v{r}\ns_cbranch_vccz L_h1k{t_}{n}\n{ld}\nL_h1k{t_}{n}:")
                a("s_waitcnt vmcnt(0)")
            else:
                MS = [60, 62, 64, 66, 84, 86, 88, 90, 4, 6, 8, 10, 14, 16]
                for n, (r, ld) in enumerate(L_): a(f"v_cmp_ne_u32 s[{MS[n]}:{MS[n]+1}], 0, v{r}")
                for n, (r, ld) in enumerate(L_): a(f"s_cmp_lg_u64 s[{MS[n]}:{MS[n]+1}], 0\ns_cselect_b64 exec, -1, 0\n{ld}")
                a("s_mov_b64 exec, -1")
                if d_: a(f"s_sleep {d_}")
                a(f"s_waitcnt vmcnt({(k_-1)*len(L_)})")
            spin(f"L_h1s{t_}", SB)
            a(f"L_h1ok{t_}:")
            if o["g2"]:
                a(f"""s_cmp_lg_u32 s3, 0
                s_cbranch_scc1 L_nsoon{t_}
                buffer_store_dword v94, v95, s[48:51], 0 offen sc1
                L_nsoon{t_}:""")
            h1_leave(0)
        else: poll(f"h1p{t_}", o["p1"], 14 if ex else 7, h1_issue, h1_check, h1_leave, SB)
        a("ds_write_b64 v202, v[224:225]")
        if ex: a(f"ds_write_b32 v{XLW}, v{XA}")
        for k in range(4): a(f"ds_read_b128 {v(212+4*k,4)}, v206 offset:{16*k}")
        if ex:
            for e in range(3): a(f"ds_read_b64 {v(XS+2*e,2)}, v{XLR} offset:{64*e}")
        tiles = [(212+t, WO+4*t) for t in range(16)] + ([(XS+t, XW+4*t) for t in range(6)] if ex else [])
        for t, (c_, w_) in enumerate(tiles):
            if t % 4 == 0 and t <= 16: a(f"s_waitcnt lgkmcnt({max(0, 3 - t//4 + (3 if ex and t < 16 else 0))})")
            ab = 228 + 4 * (t % 3)
            for r in range(4): a(f"v_and_b32 v{ab+r}, v{c_}, v{M8+r}")
            if t > 0: a(f"v_mfma_f32_16x16x32_bf16 v[252:255], {v(228+4*((t-1)%3),4)}, {v(tiles[t-1][1],4)}, {'0' if t==1 else 'v[252:255]'}")
        t = len(tiles) - 1
        a(f"v_mfma_f32_16x16x32_bf16 v[252:255], {v(228+4*(t%3),4)}, {v(tiles[t][1],4)}, v[252:255]")
    a("s_cmp_ge_u32 s2, 28\ns_cbranch_scc0 L_wo4")
    wo_body(True)
    a("s_branch L_wo_acc\nL_wo4:")
    wo_body(False)
    a("L_wo_acc:")
    a(f"""ds_write_b128 v{YW}, v[252:255]
    s_waitcnt lgkmcnt(0)
    s_barrier""")
    stamp(4)
    a("s_cmp_lg_u32 s3, 0\ns_cbranch_scc1 L_wo_done")
    for k in range(4): a(f"ds_read_b128 {v(212+4*k,4)}, v207 offset:{LY+1280*k}")
    a(f"v_mov_b32 v{VM}, 0xff")
    a("""s_waitcnt lgkmcnt(2)
    v_pk_add_f32 v[212:213], v[212:213], v[216:217]
    v_pk_add_f32 v[214:215], v[214:215], v[218:219]
    s_waitcnt lgkmcnt(0)
    v_pk_add_f32 v[220:221], v[220:221], v[224:225]
    v_pk_add_f32 v[222:223], v[222:223], v[226:227]
    v_pk_add_f32 v[212:213], v[212:213], v[220:221]
    v_pk_add_f32 v[214:215], v[214:215], v[222:223]""")
    for dp in ("quad_perm:[1,0,3,2]", "quad_perm:[2,3,0,1]"):
        for r in range(212, 216): a(f"v_add_f32_dpp v{r}, v{r}, v{r} {dp} row_mask:0xf bank_mask:0xf")
    tag4(212, VM, TS)
    a("buffer_store_dwordx4 v[212:215], v208, s[48:51], 0 offen sc1\nL_wo_done:")
    stamp(5)
    a("""s_cmp_ge_u32 s2, 20
    s_cbranch_scc1 L_aux_end
    s_cmp_lg_u32 s3, 7
    s_cbranch_scc1 L_aux_end""")
    srd(52, 22, 1280)
    if o["dry"]: a("s_cmp_eq_u32 s82, 1\ns_cselect_b32 s54, 0, s54")
    a(f"""s_lshl_b32 s72, s2, 7
    v_mul_u32_u24 v14, 2560, v2
    v_lshl_add_u32 v14, v3, 4, v14
    v_add_u32 v14, s72, v14
    s_and_b32 s73, s2, {o['r2']-1}
    s_mul_i32 s73, s73, {YRS}
    s_add_u32 s73, s73, {YM}
    v_add_u32 v202, s73, v14
    v_mov_b32 v15, {OOB}
    v_cmp_gt_u32 vcc, 32, v0
    v_cndmask_b32 v202, v15, v202, vcc
    v_add_u32 v203, {DM}, v14
    v_add_u32 v204, {DM+61440}, v14
    v_cmp_gt_u32 vcc, 24, v0
    v_cndmask_b32 v204, v15, v204, vcc
    v_bfe_u32 v14, v0, 4, 1
    v_lshrrev_b32 v205, 5, v0
    v_lshl_add_u32 v14, v14, 1, v205
    v_lshl_add_u32 v14, v3, 2, v14
    v_lshlrev_b32 v14, 1, v14
    s_lshl_b32 s72, s2, 6
    v_add_u32 v14, s72, v14
    buffer_load_ushort v206, v14, s[28:31], 0 offen
    v_bfe_u32 v205, v0, 3, 1
    v_cmp_eq_u32 vcc, 0, v205
    v_cndmask_b32 v205, v15, v14, vcc
    s_mov_b32 s72, 20480
    s_mov_b32 s73, 40960
    s_mov_b32 s60, 0xffffff
    s_mov_b32 s61, 0
    L_ry:
    buffer_load_dwordx4 v[212:215], v202, s[48:51], 0 offen sc1
    s_waitcnt vmcnt(0)""")
    TR = [f"s{TS+k}" for k in range(4)]
    chk(range(212, 216), TR, (14, 15))
    a("v_cmp_ne_u32 vcc, 0, v14\ns_cmp_eq_u32 vcc_lo, 0\ns_cbranch_scc1 L_ryok")
    spin("L_ry", SB)
    def rs4(b):
        a(f"""v_permlane32_swap_b32 v{b}, v{b+1}
        v_permlane32_swap_b32 v{b+2}, v{b+3}
        v_add_f32 v{b}, v{b}, v{b+1}
        v_add_f32 v{b+2}, v{b+2}, v{b+3}
        v_permlane16_swap_b32 v{b}, v{b+2}
        v_add_f32 v{b}, v{b}, v{b+2}
        v_add_f32_dpp v{b}, v{b}, v{b} row_ror:8 row_mask:0xf bank_mask:0xf""")
    def canary():
        a(f"""s_cmp_lg_u32 s2, 0
        s_cbranch_scc1 L_nocan
        v_mov_b32 v14, s93
        v_lshlrev_b32 v15, 2, v0
        v_add_u32 v15, {CAN}, v15
        {'s_mov_b32 exec_hi, 0' if o["can"] else 's_mov_b64 exec, 1'}
        buffer_store_dword v14, v15, s[48:51], 0 offen sc1
        s_mov_b64 exec, -1
        L_nocan:""")
    a("L_ryok:")
    if o["can"]: canary()
    rs4(212)
    a("""v_cvt_pk_bf16_f32 v212, v212, v212
    v_lshlrev_b32 v206, 16, v206
    v_and_b32 v212, s81, v212
    v_add_f32 v212, v212, v206
    v_cvt_pk_bf16_f32 v212, v212, v212
    v_and_b32 v206, s81, v212""")
    stamp(6)
    def h3_issue(i):
        b = 96 + 16*i
        a(f"""buffer_load_dwordx4 {v(b,4)}, v203, s[48:51], 0 offen sc1
        buffer_load_dwordx4 {v(b+4,4)}, v203, s[48:51], s72 offen sc1
        buffer_load_dwordx4 {v(b+8,4)}, v203, s[48:51], s73 offen sc1
        buffer_load_dwordx4 {v(b+12,4)}, v204, s[48:51], 0 offen sc1""")
    def h3_check(i):
        b = 96 + 16*i
        chk(range(b+12, b+16), TR, (207, 208))
        chk(range(b, b+12), TR * 3, (14, 15))
        a("v_cndmask_b32 v207, 0, v207, s[60:61]\nv_or_b32 v14, v14, v207\nv_cmp_ne_u32 vcc, 0, v14")
    def h3_leave(i):
        b = 96 + 16*i
        a(f"""v_pk_add_f32 v[212:213], {v(b,2)}, {v(b+4,2)}
        v_pk_add_f32 v[220:221], {v(b+8,2)}, {v(b+12,2)}
        v_pk_add_f32 v[214:215], {v(b+2,2)}, {v(b+6,2)}
        v_pk_add_f32 v[222:223], {v(b+10,2)}, {v(b+14,2)}""")
    poll("rd", o["p3"], 4, h3_issue, h3_check, h3_leave, SB)
    a("""v_pk_add_f32 v[212:213], v[212:213], v[220:221]
    v_pk_add_f32 v[214:215], v[214:215], v[222:223]""")
    rs4(212)
    OUTP = o["outp"]
    a(f"""v_cvt_pk_bf16_f32 v212, v212, v212
    v_and_b32 v212, s81, v212
    v_add_f32 v212, v212, v206
    v_cvt_pk_bf16_f32 v212, v212, v212
    buffer_store_short v212, v205, s[52:55], 0 offen {OUTP}
""")
    if not o["can"]: canary()
    stamp(7)
    a("s_branch L_aux_end")
    DW, DR, DS = 250, 251, 201
    a("L_ld_f:")
    gu_setup()
    for x in gu_list(): a(x)
    dn_loads()
    a(f"""L_ffn:
    v_and_b32 v14, 15, v0
    v_lshrrev_b32 v15, 4, v0
    v_lshlrev_b32 v14, 5, v14
    v_lshl_add_u32 v14, v15, 4, v14
    s_mul_i32 s72, s3, 2688
    s_add_u32 s72, s72, {LD}
    v_add_u32 v14, s72, v14
    v_lshlrev_b32 v15, 4, v0
    v_add_u32 v15, {LDUMP}, v15
    v_cmp_gt_u32 vcc, 32, v0
    v_cndmask_b32 v{DW}, v15, v14, vcc
    v_lshrrev_b32 v14, 1, v0
    v_lshlrev_b32 v14, 4, v14
    s_lshl_b32 s72, s3, 9
    v_add_u32 v14, s72, v14
    v_and_b32 v15, 1, v0
    v_cmp_eq_u32 vcc, 0, v15
    v_mul_u32_u24 v15, 2688, v15
    v_add_u32 v{DR}, v14, v15
    s_mul_i32 s72, s77, 2560
    s_add_u32 s72, s72, {DM}
    v_add_u32 v14, s72, v14
    v_mov_b32 v15, {OOB}
    v_cndmask_b32 v{DS}, v15, v14, vcc
    """)
    def mf(t):
        ab = 228 + 4 * (t % 3)
        a(f"v_mfma_f32_16x16x32_bf16 v[204:207], {v(ab,4)}, {v(GU+8*t,4)}, {'0' if t==0 else 'v[204:207]'}")
        a(f"v_mfma_f32_16x16x32_bf16 v[208:211], {v(ab,4)}, {v(GU+8*t+4,4)}, {'0' if t==0 else 'v[208:211]'}")
    if o["lnf"]:
        X5, ER, SG, SU, YA, STW, STR, HD = 96, 101, 105, 106, 107, 108, 109, 220
        D = "row_mask:0xf bank_mask:0xf"
        a(f"""s_mov_b32 s82, 0x3f803f80
        v_lshrrev_b32 v14, 2, v0""")
        for e in range(4): a(f"v_add_u32 v15, {e}, v14\nv_and_b32 v15, 3, v15\nv_lshlrev_b32 v15, 3, v15\nv_bfe_u32 v{ER+e}, s{NS}, v15, 8")
        a(f"""s_and_b32 s72, s2, {o['r2']-1}
        s_mul_i32 s72, s72, {YRS}
        s_add_u32 s72, s72, {YM}
        v_and_b32 v15, 3, v0
        v_mul_u32_u24 v15, 2560, v15
        v_add_u32 v15, s72, v15""")
        if o["al2"]: a(f"v_lshl_add_u32 v{YA}, v111, 4, v15\nv_lshl_add_u32 v111, v111, 2, v15")
        else: a(f"""v_and_b32 v14, 1, v14
        v_mul_u32_u24 v14, 20, v14
        v_lshl_add_u32 v14, v12, 2, v14
        v_add_u32 v{YA}, v14, v15""")
        a(f"""
        v_lshlrev_b32 v{STR}, 3, v3
        s_lshl_b32 s72, s3, 3
        v_mov_b32 v14, s72
        v_lshlrev_b32 v15, 4, v0
        v_add_u32 v15, {LDUMP}, v15
        v_cmp_eq_u32 vcc, 63, v0
        v_cndmask_b32 v{STW}, v15, v14, vcc""")
        for r in range(4): a(f"v_and_b32 v{228+r}, s82, v{M8+r}")
        a("s_waitcnt vmcnt(10)")
        if o["al2"]: a("v_lshlrev_b32 v96, 16, v98\nv_and_b32 v97, s81, v98\nv_lshlrev_b32 v98, 16, v99\nv_and_b32 v99, s81, v99\nv_lshlrev_b32 v100, 16, v100")
        for t in range(10):
            a(f"v_mfma_f32_16x16x32_bf16 v[204:207], v[228:231], {v(GU+8*t,4)}, {'0' if t==0 else 'v[204:207]'}")
            a(f"v_mfma_f32_16x16x32_bf16 v[208:211], v[228:231], {v(GU+8*t+4,4)}, {'0' if t==0 else 'v[208:211]'}")
        a(f"""ds_write_b128 v{PW}, v[204:207]
        ds_write_b128 v{PW}, v[208:211] offset:256
        s_waitcnt lgkmcnt(0)
        s_barrier""")
        psum()
        a(f"v_mov_b32 v{SG}, v204\nv_mov_b32 v{SU}, v206")
        if o["g2"]:
            a(f"""s_cmp_lg_u32 s3, 0
            s_cbranch_scc1 L_g2ok
            v_min_u32 v14, 36, v0
            v_lshlrev_b32 v14, 7, v14
            v_add_u32 v14, {SOON}, v14
            L_g2:
            buffer_load_dword v15, v14, s[48:51], 0 offen sc1
            s_waitcnt vmcnt(0)
            v_cmp_eq_u32 vcc, s{NS}, v15
            s_and_b32 vcc_hi, vcc_hi, 31
            s_bcnt1_i32_b64 s72, vcc
            s_cmp_ge_u32 s72, {o["g2"]}
            s_cbranch_scc1 L_g2ok""")
            spin("L_g2", SB)
            a("L_g2ok:")
        a("s_barrier")
        def h2_issue(i):
            b = 112 + 6*i
            a(f"buffer_load_dwordx4 {v(b,4)}, v{YA}, s[48:51], 0 offen sc1")
            if o["al2"]: a(f"buffer_load_dword v{b+4}, v111, s[48:51], 0 offen offset:2048 sc1")
            else: a(f"buffer_load_dword v{b+4}, v{YA}, s[48:51], 0 offen offset:16 sc1")
        def h2_check(i):
            b = 112 + 6*i
            chk(range(b, b+5), TR + [f"v{ER}"] if o["al2"] else [f"v{ER+(e&3)}" for e in range(5)], (14, 15))
            a("v_cmp_ne_u32 vcc, 0, v14")
        def h2_leave(i):
            b = 112 + 6*i
            stamp(6)
            for e in range(5): a(f"v_add_f32_dpp v{212+e}, v{b+e}, v{b+e} quad_perm:[1,0,3,2] {D}")
        poll("h2", o["p2"], 2, h2_issue, h2_check, h2_leave, SB)
        for e in range(5): a(f"v_add_f32_dpp v{212+e}, v{212+e}, v{212+e} quad_perm:[2,3,0,1] {D}")
        a(f"""v_cvt_pk_bf16_f32 v218, v212, v213
        v_cvt_pk_bf16_f32 v219, v214, v215
        v_cvt_pk_bf16_f32 v216, v216, v216
        v_lshlrev_b32 v212, 16, v218
        v_and_b32 v213, s81, v218
        v_lshlrev_b32 v214, 16, v219
        v_and_b32 v215, s81, v219
        v_and_b32 v216, s81, v216""")
        for e in range(5): a(f"v_add_f32 v{212+e}, v{212+e}, v{X5+e}")
        for e in range(5): a(f"v_cvt_pk_bf16_f32 v{HD+e}, v{212+e}, v{212+e}")
        stamp(9)
        st = []
        for e in range(5): st += [f"v_dot2_f32_bf16 v226, v{HD+e}, s82, {'0' if e == 0 else 'v226'}", f"v_dot2_f32_bf16 v227, v{HD+e}, v{HD+e}, {'0' if e == 0 else 'v227'}"]
        for dp in ("row_half_mirror row_mask:0xf", "row_mirror row_mask:0xf", "row_bcast:15 row_mask:0xa", "row_bcast:31 row_mask:0xc"):
            st += [f"v_add_f32_dpp v226, v226, v226 {dp} bank_mask:0xf", f"v_add_f32_dpp v227, v227, v227 {dp} bank_mask:0xf"]
        st += [f"ds_write_b64 v{STW}, v[226:227]"]
        for t in range(10):
            ab = 228 + 4 * (t % 3)
            for r in range(4):
                if (r < 2) == (t < 5): a(f"v_and_b32 v{ab+r}, v{HD+t%5}, v{M8+r}")
                else: a(f"v_and_b32_dpp v{ab+r}, v{HD+t%5}, v{M8+r} row_half_mirror {D}")
            if t > 0:
                mf(t - 1)
                for _ in range(2):
                    if st: a(st.pop(0))
        mf(9)
        for x in st: a(x)
        a(f"""ds_write_b128 v{PW}, v[204:207]
        ds_write_b128 v{PW}, v[208:211] offset:256
        s_waitcnt lgkmcnt(0)
        s_barrier""")
        stamp(10)
        a(f"""ds_read_b64 v[212:213], v{STR}
        ds_read2st64_b32 v[204:205], v{PR} offset0:0 offset1:17
        ds_read2st64_b32 v[206:207], v{PR} offset0:1 offset1:18
        s_waitcnt lgkmcnt(2)""")
        DP = ("quad_perm:[1,0,3,2]", "quad_perm:[2,3,0,1]", "row_half_mirror")
        for dp in DP: a(f"v_add_f32_dpp v212, v212, v212 {dp} {D}\nv_add_f32_dpp v213, v213, v213 {dp} {D}")
        a(f"""v_mul_f32 v212, {f2u(1/1280)}, v212
        v_mul_f32 v213, {f2u(1/1280)}, v213
        s_waitcnt lgkmcnt(0)
        v_fma_f32 v213, -v212, v212, v213
        v_add_f32 v204, v204, v205
        v_max_f32 v213, 0, v213
        v_add_f32 v206, v206, v207
        v_cvt_pk_bf16_f32 v212, v212, v213
        v_add_f32_dpp v204, v204, v204 {DP[0]} {D}
        v_and_b32 v213, s81, v212
        v_add_f32_dpp v206, v206, v206 {DP[0]} {D}
        v_add_f32 v213, {f2u(1e-5)}, v213
        v_add_f32_dpp v204, v204, v204 {DP[1]} {D}
        v_cvt_pk_bf16_f32 v213, v213, v213
        v_add_f32_dpp v206, v206, v206 {DP[1]} {D}
        v_and_b32 v213, s81, v213
        v_add_f32_dpp v204, v204, v204 {DP[2]} {D}
        v_sqrt_f32 v213, v213
        v_add_f32_dpp v206, v206, v206 {DP[2]} {D}
        v_lshlrev_b32 v212, 16, v212
        v_cvt_pk_bf16_f32 v213, v213, v213
        v_fma_f32 v204, -v212, v{SG}, v204
        v_and_b32 v213, s81, v213
        v_fma_f32 v206, -v212, v{SU}, v206
        v_rcp_f32 v213, v213
        v_mul_f32 v204, v204, v213
        v_mul_f32 v206, v206, v213""")
    else:
        a(f"""s_waitcnt vmcnt(0)
        s_cmp_ge_u32 s3, 5
        s_cbranch_scc1 L_lng_bar
        v_lshlrev_b32 v14, 1, v13
        s_and_b32 s72, s2, {o['r2']-1}
        s_mul_i32 s72, s72, {YRS}
        s_add_u32 s72, s72, {YM}
        v_add_u32 v14, s72, v14
        s_mov_b32 s72, 5120
        L_h2:
        buffer_load_dwordx2 v[212:213], v14, s[48:51], 0 offen sc1
        buffer_load_dwordx2 v[214:215], v14, s[48:51], 0 offen offset:2560 sc1
        buffer_load_dwordx2 v[216:217], v14, s[48:51], s72 offen sc1
        buffer_load_dwordx2 v[218:219], v14, s[48:51], s72 offen offset:2560 sc1
        s_waitcnt vmcnt(0)""")
        chk(range(212, 220), [f"v{E0}", f"v{E0+1}"] * 4, (15, 202))
        a("v_cmp_ne_u32 vcc, 0, v15\ns_cbranch_vccz L_h2ok")
        spin("L_h2", SB)
        a("L_h2ok:")
        stamp(6)
        a("""v_pk_add_f32 v[212:213], v[212:213], v[214:215]
        v_pk_add_f32 v[216:217], v[216:217], v[218:219]
        v_lshlrev_b32 v202, 16, v200
        v_pk_add_f32 v[212:213], v[212:213], v[216:217]
        v_and_b32 v203, s81, v200
        v_cvt_pk_bf16_f32 v212, v212, v213
        v_lshlrev_b32 v214, 16, v212
        v_and_b32 v215, s81, v212
        v_pk_add_f32 v[202:203], v[202:203], v[214:215]
        v_cvt_pk_bf16_f32 v212, v202, v203
        v_lshlrev_b32 v202, 16, v212
        v_and_b32 v203, s81, v212""")
        a(f"""    ds_write_b64 v{HW}, v[202:203]
        s_waitcnt lgkmcnt(0)
        L_lng_bar:
        s_barrier
        v_mov_b32 v14, 0
        ds_read_b128 v[204:207], v{HS}
        ds_read_b32 v214, v14
        ds_read_b128 v[208:211], v{HS} offset:16
        ds_read_b64 v[212:213], v{HS} offset:32
        ds_read_b128 v[216:219], v{HC}
        ds_read_b128 v[220:223], v{HC} offset:16
        ds_read_b64 v[224:225], v{HC} offset:32""")
        stamp(8)
        a("s_waitcnt lgkmcnt(3)")
        ln("s_waitcnt lgkmcnt(0)")
        stamp(9)
        def mf(t):
            ab = 228 + 4 * (t % 3)
            a(f"v_mfma_f32_16x16x32_bf16 v[204:207], {v(ab,4)}, {v(GU+8*t,4)}, {'0' if t==0 else 'v[204:207]'}")
            a(f"v_mfma_f32_16x16x32_bf16 v[208:211], {v(ab,4)}, {v(GU+8*t+4,4)}, {'0' if t==0 else 'v[208:211]'}")
        for t in range(10):
            ab = 228 + 4 * (t % 3)
            for r in range(4): a(f"v_and_b32 v{ab+r}, v{216+t}, v{M8+r}")
            if t > 0: mf(t - 1)
        mf(9)
        a(f"""ds_write_b128 v{PW}, v[204:207]
        ds_write_b128 v{PW}, v[208:211] offset:256
        s_waitcnt lgkmcnt(0)
        s_barrier""")
        stamp(10)
        psum()
    a(f"""
    v_cvt_pk_bf16_f32 v204, v204, v206
    v_lshlrev_b32 v205, 16, v204
    v_and_b32 v206, s81, v204
    v_mul_f32 v207, v205, v205
    v_fmaak_f32 v207, v207, v{CG2}, {f2u(g1)}
    v_mul_f32 v207, v207, v205
    v_exp_f32 v207, v207
    v_add_f32 v207, 1.0, v207
    v_rcp_f32 v207, v207
    v_mul_f32 v207, v207, v205
    v_cvt_pk_bf16_f32 v207, v207, v207
    v_and_b32 v207, s81, v207
    v_mul_f32 v207, v207, v206
    v_cvt_pk_bf16_f32 v207, v207, v207""")
    for t in range(2):
        for r in range(4): a(f"v_and_b32_dpp v{228+4*t+r}, v207, v{M4+r} row_newbcast:{8*t} row_mask:0xf bank_mask:0xf")
    for t in range(2):
        for b in range(5): a(f"v_mfma_f32_16x16x32_bf16 {v(208+4*b,4)}, {v(228+4*t,4)}, {v(DN+20*t+4*b,4)}, {'0' if t==0 else v(208+4*b,4)}")
    for b in range(5): a(f"ds_write_b128 v{DW}, {v(208+4*b,4)} offset:{512*b}")
    a("s_waitcnt lgkmcnt(0)\ns_barrier")
    stamp(11)
    a("s_cmp_ge_u32 s3, 5\ns_cbranch_scc1 L_aux_end")
    for k in range(4): a(f"ds_read_b128 {v(212+4*k,4)}, v{DR} offset:{LD+5376*k}")
    a(f"v_mov_b32 v{VM}, 0xff")
    a("""s_waitcnt lgkmcnt(2)
    v_pk_add_f32 v[212:213], v[212:213], v[216:217]
    v_pk_add_f32 v[214:215], v[214:215], v[218:219]
    s_waitcnt lgkmcnt(0)
    v_pk_add_f32 v[220:221], v[220:221], v[224:225]
    v_pk_add_f32 v[222:223], v[222:223], v[226:227]
    v_pk_add_f32 v[212:213], v[212:213], v[220:221]
    v_pk_add_f32 v[214:215], v[214:215], v[222:223]""")
    for r in range(212, 216): a(f"v_add_f32_dpp v{r}, v{r}, v{r} quad_perm:[1,0,3,2] row_mask:0xf bank_mask:0xf")
    tag4(212, VM, TS)
    a(f"buffer_store_dwordx4 v[212:215], v{DS}, s[48:51], 0 offen sc1")
    stamp(12)
    a("L_aux_end:")
    if o["dry"]: a("s_cmp_eq_u32 s82, 1\ns_cbranch_scc1 L_real")
    stamp_out()
    a("s_endpgm")
    head = open(f"cdna_kernels/{KN}.s.ref").read().split("; Override launch")[0] if o["hdr"] else ""
    return finish(o, head, a.text(), LDS_SIZE)
def kd(name, vg):
    return f""".p2align 6
.amdhsa_kernel {name}
  .amdhsa_next_free_vgpr {vg}
  .amdhsa_next_free_sgpr 102
  .amdhsa_accum_offset {vg}
  .amdhsa_group_segment_fixed_size 0
  .amdhsa_kernarg_size 96
  .amdhsa_user_sgpr_count 2
  .amdhsa_user_sgpr_kernarg_segment_ptr 1
  .amdhsa_system_sgpr_workgroup_id_x 1
.end_amdhsa_kernel
"""
def diag_kernel(k, w0, w1, K, op, nw=2048):
    self_ = op == "self"
    if self_: op = "max"
    init = "0" if op == "max" else "-1"
    return f""".globl diag_kernel
.p2align 8
.type diag_kernel,@function
diag_kernel:
s_memrealtime s[20:21]
s_cmp_lg_u32 s2, 0
s_cbranch_scc1 LD_end
s_load_dwordx2 s[4:5], s[0:1], 88
s_waitcnt lgkmcnt(0)
s_add_u32 s4, s4, {STAMP_OFF}
s_addc_u32 s5, s5, 0
s_mov_b32 s6, 0x100000
s_mov_b32 s7, 0x20000
v_mov_b32 v1, -1
v_mov_b32 v2, {init}
v_mov_b32 v8, {init}
v_mov_b32 v3, v0
s_mov_b32 s8, 0
s_mov_b32 s12, {w0}
s_mov_b32 s13, {w1}
LD_l:
v_lshlrev_b32 v4, 8, v3
buffer_load_dword v5, v4, s[4:7], 0 offen sc1
buffer_load_dword v6, v4, s[4:7], 0 offen offset:{4*k} sc1
s_waitcnt vmcnt(0)
v_min_u32 v1, v1, v5
v_cmp_le_u32 vcc, s12, v3
s_nop 4
v_cndmask_b32 v6, v8, v6, vcc
v_cmp_gt_u32 vcc, s13, v3
s_nop 4
v_cndmask_b32 v6, v8, v6, vcc
v_cmp_ne_u32 vcc, 0, v6
s_nop 4
v_cndmask_b32 v6, v8, v6, vcc
v_{op}_u32 v2, v2, v6
v_add_u32 v3, 64, v3
s_add_u32 s8, s8, 1
s_cmp_lt_u32 s8, {nw//64}
s_cbranch_scc1 LD_l
s_mov_b32 s8, 0
s_mov_b32 s9, -1
s_mov_b32 s10, {init}
LD_r:
s_nop 4
v_readlane_b32 s11, v1, s8
v_readlane_b32 s14, v2, s8
s_nop 4
s_min_u32 s9, s9, s11
s_{op}_u32 s10, s10, s14
s_add_u32 s8, s8, 1
s_cmp_lt_u32 s8, 64
s_cbranch_scc1 LD_r
{"s_mov_b32 s10, s20" if self_ else ""}
s_sub_u32 s10, s10, s9
s_min_u32 s10, s10, 20000
s_mul_i32 s10, s10, {K}
s_memrealtime s[16:17]
s_waitcnt lgkmcnt(0)
LD_s:
s_memrealtime s[18:19]
s_waitcnt lgkmcnt(0)
s_sub_u32 s18, s18, s16
s_cmp_lt_u32 s18, s10
s_cbranch_scc1 LD_s
LD_end:
s_endpgm
"""
def finish(o, head, text, lds, grid=256, blk=512, vg=256):
    if o["diag"]:
        L = f"; @launch kernel={KN}_kernel grid=({grid},1,1) block=({blk},1,1) lds={lds}\n; @launch kernel=diag_kernel grid=(1,1,1) block=(64,1,1) lds=0\n"
        text = text + diag_kernel(*o["diag"]); extra = kd("diag_kernel", 16)
    elif o.get("pre") or o.get("post"):
        L = f"; @launch kernel={KN}_kernel grid=({grid},1,1) block=({blk},1,1) lds={lds}\n"
        e = lambda n, g, b, l: f"; @launch kernel=empty_kernel grid=({g},1,1) block=({b},1,1) lds={l}\n" * n
        if o.get("pre"): L = e(*o["pre"]) + L
        if o.get("post"): L = L + e(*o["post"])
        text = text + ".globl empty_kernel\n.p2align 8\n.type empty_kernel,@function\nempty_kernel:\ns_endpgm\n"; extra = kd("empty_kernel", o.get("evg", 16))
    else:
        L = f"; @launch grid=({grid},1,1) block=({blk},1,1) lds={lds}\n"; extra = ""
    return head + L + f""".amdgcn_target "amdgcn-amd-amdhsa--gfx950"
.text
.globl {KN}_kernel
.p2align 8
.type {KN}_kernel,@function
""" + text + '.section .rodata,"a"\n' + kd(KN + "_kernel", vg) + extra
def _old(a, head):
    return head + f"""; @launch grid=(256,1,1) block=(512,1,1) lds={LDS_SIZE}
.amdgcn_target "amdgcn-amd-amdhsa--gfx950"
.text
.globl {KN}_kernel
.p2align 8
.type {KN}_kernel,@function
""" + a.text() + f""".section .rodata,"a"
.p2align 6
.amdhsa_kernel {KN}_kernel
  .amdhsa_next_free_vgpr 256
  .amdhsa_next_free_sgpr 102
  .amdhsa_accum_offset 256
  .amdhsa_group_segment_fixed_size 0
  .amdhsa_kernarg_size 96
  .amdhsa_user_sgpr_count 2
  .amdhsa_user_sgpr_kernarg_segment_ptr 1
  .amdhsa_system_sgpr_workgroup_id_x 1
.end_amdhsa_kernel
"""
if __name__ == "__main__":
    kw = {}
    out = f"cdna_kernels/{KN}.s"
    for x in sys.argv[1:]:
        k, val = x.split("=", 1)
        if k == "out": out = val
        else: kw[k] = eval(val)
    open(out, "w").write(gen(**kw))
```

```python
import sys, struct
sys.path.insert(0, "exp")
from asmlib import *
KN = "sequential_preLN__gqa_block_cached__glu_gated_geglu__decode"
def f2u(x): return "0x%08x" % struct.unpack("<I", struct.pack("<f", x))[0]
LOG2E = 1.4426950408889634
QM, CAN, DM, PG, OM, YM, MBX = 0, 98304, 98432, 167552, 178176, 1161216, 1206912
SOON = 1202176
ORS, YRS = 122880, 10240
OOB = 0x80000000
STAMP_OFF = 128 << 20
LH, LP, LO, LY, LD, LDUMP, LDS_SIZE = 0, 3072, 11776, 15872, 20992, 42496, 46592
DEF = dict(kv="nt", wt="nt", kbar=False, stamps=False, gate=True, hdr=True, shots=[(0,40),(1,32),(2,24),(3,12)], prio=0, il=2, diag=None, one=False, gthr=1, dry=False, adry=False, thr=0, tail=8, stag=0, trig=None, xearly=False, nv=24, vpos=1, outp="", lnf=False, p1=(1,0), p2=(1,0), p3=(1,0), skip=False, g2=0, r1=1, r2=1, mlf=False, al2=False, can=False, xtrig=False)
def gen(**kw):
    o = dict(DEF); o.update(kw)
    a = A()
    KV = o["kv"]; WT = o["wt"]
    def stamp(k):
        if o["stamps"] is True or (o["stamps"] and k in o["stamps"]): a(f"s_memrealtime s[100:101]\ns_waitcnt lgkmcnt(0)\nv_writelane_b32 v1, s100, {k}")
    def stamp_out():
        if o["stamps"]:
            a(f"""s_add_u32 s96, s26, {STAMP_OFF}
            s_addc_u32 s97, s27, 0
            s_mov_b32 s98, 0x100000
            s_mov_b32 s99, 0x20000
            s_lshl_b32 s94, s2, 3
            s_add_u32 s94, s94, s3
            s_lshl_b32 s94, s94, 8
            s_mov_b64 exec, -1
            v_lshlrev_b32 v2, 2, v0
            buffer_store_dword v1, v2, s[96:99], s94 offen""")
    def srd(d, b, n, add=None):
        if add is None: a(f"s_mov_b32 s{d}, s{b}\ns_mov_b32 s{d+1}, s{b+1}")
        else: a(f"s_add_u32 s{d}, s{b}, {add}\ns_addc_u32 s{d+1}, s{b+1}, 0")
        a(f"s_mov_b32 s{d+2}, {n}\ns_mov_b32 s{d+3}, 0x20000")
    def spin(lbl, sb):
        a(f"s_sub_u32 s{sb}, s{sb}, 1\ns_cbranch_scc0 {lbl}\ns_mov_b32 s{sb}, 0")
    def poll(name, kd, n, issue, check, leave, sb):
        k, d = kd
        for i in range(k):
            if i == k - 1: a(f"L_{name}:")
            issue(i)
            if d and k > 1: a(f"s_sleep {d}")
        for i in range(k):
            a(f"s_waitcnt vmcnt({(k-1)*n})"); check(i)
            a(f"s_cbranch_vccz L_{name}ok{i}")
            if i < k - 1:
                issue(i)
                if d: a(f"s_sleep {d}")
        spin(f"L_{name}", sb)
        for i in reversed(range(k)):
            a(f"L_{name}ok{i}:"); leave(i)
            if i > 0: a(f"s_branch L_{name}j")
        a(f"L_{name}j:")
    def nonce(N, T):
        a(f"""s_or_b32 s{N}, s{N}, 0x01010101
        s_add_u32 s{N}, s{N}, 1
        s_or_b32 s{N}, s{N}, 0x01010101
        s_and_b32 s{T}, s{N}, 0xff
        s_bfe_u32 s{T+1}, s{N}, 0x80008
        s_bfe_u32 s{T+2}, s{N}, 0x80010
        s_lshr_b32 s{T+3}, s{N}, 24""")
    def tag4(r, vm, T):
        for k in range(4): a(f"v_bfi_b32 v{r+k}, v{vm}, s{T+k}, v{r+k}")
    def chk(regs, refs, acc):
        for n, (r, f) in enumerate(zip(regs, refs)):
            d = acc[n % 2]
            a(f"v_msad_u8 v{d}, v{r}, {f}, {'0' if n < 2 else 'v%d' % d}")
        a(f"v_or_b32 v{acc[0]}, v{acc[0]}, v{acc[1]}")
    def masks(dst, andm, t0, t1):
        a(f"""v_and_b32 v{t0}, 1, v0
        v_lshlrev_b32 v{t0}, 4, v{t0}
        v_mov_b32 v{t1}, 0xffff
        v_lshlrev_b32 v{t0}, v{t0}, v{t1}
        v_and_b32 v{t1}, {andm}, v0
        v_lshrrev_b32 v{t1}, 1, v{t1}""")
        for r in range(4):
            a(f"v_cmp_eq_u32 vcc, {r}, v{t1}\nv_cndmask_b32 v{dst+r}, 0, v{t0}, vcc")
    a(f"{KN}_kernel:")
    if o["stamps"]: a("s_memrealtime s[100:101]")
    a("""s_cmp_ge_u32 s2, 256
    s_cbranch_scc1 L_end
    s_load_dwordx16 s[4:19], s[0:1], 0
    s_load_dwordx8 s[20:27], s[0:1], 64
    v_lshrrev_b32 v2, 6, v0
    v_and_b32 v0, 63, v0
    v_readfirstlane_b32 s3, v2
    s_cmp_lt_u32 s2, 64
    s_cbranch_scc1 L_aux""")
    for i in range(192): assert (i * 171) >> 10 == i // 6
    K0, V0, AQ, DQ, ACC, MK, S0 = 16, 112, 208, 224, 248, 4, 8
    LQ = 5632
    a(f"""s_sub_u32 s36, s2, 64
    s_mul_i32 s37, s36, 171
    s_lshr_b32 s37, s37, 10
    s_mul_i32 s38, s37, 6
    s_sub_u32 s38, s36, s38
    s_mul_i32 s39, s38, 43
    s_cmp_eq_u32 s38, 5
    s_cselect_b32 s40, 1, 0
    s_sub_u32 s39, s39, s40
    s_cmp_lt_u32 s38, 4
    s_cselect_b32 s40, 3, 2
    s_min_u32 s41, s3, s40
    s_mul_i32 s42, s3, 5
    s_add_u32 s39, s39, s41
    s_add_u32 s39, s39, s42
    s_cmp_lt_u32 s3, s40
    s_cselect_b32 s41, 0, 1
    s_cselect_b32 s43, 0, {OOB}
    s_cselect_b32 s44, 0, 0xff800000
    s_sub_u32 s39, s39, s41
    s_lshl_b32 s39, s39, 12
    s_lshl_b32 s42, s37, 20
    s_add_u32 s39, s39, s42
    v_bfe_u32 v2, v0, 2, 2
    v_lshrrev_b32 v3, 4, v0
    v_and_b32 v4, 3, v0
    v_lshlrev_b32 v2, 8, v2
    v_lshlrev_b32 v4, 4, v4
    v_lshl_add_u32 v2, v3, 6, v2
    v_add3_u32 v252, v2, v4, s39
    v_and_b32 v4, 15, v0
    v_lshlrev_b32 v3, 10, v3
    v_lshlrev_b32 v4, 4, v4
    v_add3_u32 v254, v3, v4, s39
    v_or_b32 v253, s43, v252
    v_or_b32 v255, s43, v254
    v_mov_b32 v2, 0
    v_mov_b32 v3, 0
    v_lshlrev_b32 v4, 3, v0
    ds_write_b64 v4, v[2:3] offset:{LQ}
    s_waitcnt lgkmcnt(0)
    s_barrier""")
    if o["stamps"]: a("v_mov_b32 v1, 0\nv_writelane_b32 v1, s100, 0")
    a(f"s_load_dword s84, s[26:27], {CAN}")
    srd(28, 6, 1 << 25); srd(32, 8, 1 << 25)
    if o["prio"]: a(f"s_cmp_lg_u32 s3, 0\ns_cbranch_scc1 L_noprio\ns_setprio {o['prio']}\nL_noprio:")
    for s_ in range(1, 6): a(f"s_mov_b32 s{15+s_}, {4096*s_}")
    NV = o["nv"]; TH = o["thr"]; SG = o["stag"]
    KL = [f"buffer_load_dwordx4 {v(K0+16*sl+4*t,4)}, {'v253' if sl==0 else 'v252'}, s[28:31], {'0' if sl==0 else 's%d'%(15+sl)} offen offset:{1024*t} {KV}" for sl in range(6) for t in range(4)]
    VL = [f"buffer_load_dwordx4 {v(V0+16*sl+4*t,4)}, {'v255' if sl==0 else 'v248'}, s[32:35], {'0' if sl==0 else 's%d'%(15+sl)} offen offset:{256*t} {KV}" for sl in range(6) for t in range(4)]
    assert NV >= 4
    a("v_mov_b32 v248, v254")
    srd(12, 26, MBX)
    def progress(n):
        if o["trig"] and n in o["trig"][1:]:
            a(f"s_cmp_lg_u32 s3, {o['trig'][0]}\ns_cbranch_scc1 L_notrig{n}")
            if o["trig"][1] != o["trig"][2]: a(f"s_cmp_{'ge' if n == o['trig'][1] else 'lt'}_u32 s2, 175\ns_cbranch_scc1 L_notrig{n}")
            if n < 100: a("s_waitcnt lgkmcnt(0)\ns_or_b32 s22, s84, 0x01010101\ns_add_u32 s22, s22, 1\ns_or_b32 s22, s22, 0x01010101")
            else: a("s_mov_b32 s22, s84")
            a(f"""s_sub_u32 s24, s2, 64
            s_mul_i32 s23, s24, 171
            s_lshr_b32 s23, s23, 9
            s_mul_i32 s25, s23, 3
            s_sub_u32 s24, s24, s25
            s_lshl_b32 s23, s23, 7
            s_lshl_b32 s24, s24, 2
            s_add_u32 s23, s23, s24
            s_add_u32 s23, s23, {PG}
            v_mov_b32 v2, s22
            v_mov_b32 v3, s23
            s_mov_b64 exec, 1
            buffer_store_dword v2, v3, s[12:15], 0 offen sc1
            s_mov_b64 exec, -1
            L_notrig{n}:""")
    for i_ in range(192): assert (i_ * 171) >> 9 == i_ // 3
    for n, x in enumerate(KL + VL[:NV]):
        a(x)
        if TH and TH <= n < 24 + NV - o["tail"]: a(f"s_waitcnt vmcnt({TH})")
        if n == 23 and o["kbar"]: a("s_barrier")
        progress(n + 1)
    if SG:
        a("s_cmp_lt_u32 s3, 4\ns_cbranch_scc1 L_stag0")
        for n, x in enumerate(VL[NV:NV+SG]):
            a(x)
            if TH: a(f"s_waitcnt vmcnt({TH + o['tail']})")
            progress(25 + NV + n)
        a("L_stag0:")
    stamp(1)
    a(f"""s_lshl_b32 s5, s36, 9
    s_add_u32 s10, s26, s5
    s_addc_u32 s11, s27, 0
    s_mov_b32 s4, 0x100000
    s_mov_b32 s5, s44
    s_mul_i32 s6, s36, 640
    s_add_u32 s6, s6, {OM}
    s_mul_i32 s7, s3, 544
    s_mov_b32 s8, {f2u(LOG2E)}
    s_mov_b32 s9, 0x3db504f3
    s_mov_b32 s21, 0xffff0000
    """)
    masks(MK, 15, 2, 3)
    a(f"""v_and_b32 v2, 15, v0
    v_lshrrev_b32 v3, 4, v0
    v_lshlrev_b32 v2, 5, v2
    v_lshl_add_u32 v2, v3, 4, v2
    v_add_u32 v2, s7, v2
    v_lshlrev_b32 v3, 4, v0
    v_add_u32 v3, 4352, v3
    v_cmp_gt_u32 vcc, 32, v0
    v_cndmask_b32 v252, v3, v2, vcc
    s_add_u32 s22, s7, 512
    v_mov_b32 v2, s22
    v_cmp_eq_u32 vcc, 0, v0
    v_cndmask_b32 v253, v3, v2, vcc
    v_mov_b32 v3, {OOB}
    v_and_b32 v2, 7, v0
    v_mul_u32_u24 v255, 544, v2
    v_cmp_gt_u32 vcc, {o["r1"]}, v2
    v_mul_u32_u24 v12, {ORS}, v2
    v_add_u32 v12, s6, v12
    v_cndmask_b32 v12, v3, v12, vcc
    v_lshrrev_b32 v2, 3, v0
    v_lshlrev_b32 v2, 4, v2
    v_add_u32 v15, v12, v2
    v_add_u32 v15, 512, v15
    v_cmp_gt_u32 vcc, {64 if o["mlf"] else 8}, v0
    v_cndmask_b32 v15, v3, v15, vcc
    s_lshl_b32 s22, s3, 7
    v_add_u32 v2, s22, v2
    v_add_u32 v254, v255, v2
    v_add_u32 v14, v12, v2
    v_bfe_u32 v2, v0, 2, 2
    v_lshrrev_b32 v3, 4, v0
    v_and_b32 v8, 3, v0
    v_lshlrev_b32 v3, 6, v3
    v_lshl_add_u32 v3, v8, 4, v3
    v_mov_b32 v12, 256""")
    for t in range(4): a(f"v_cmp_eq_u32 vcc, {t}, v2\nv_cndmask_b32 v{8+t}, v12, v3, vcc")
    if o["one"]:
        a(f"""v_lshlrev_b32 v254, 3, v0
        v_and_b32 v2, 1, v0
        v_cmp_eq_u32 vcc, 0, v2
        v_add_u32 v2, s6, v254
        v_mov_b32 v3, {OOB}
        v_cndmask_b32 v14, v3, v2, vcc""")
    a("s_waitcnt lgkmcnt(0)"); nonce(84, 85)
    a("s_cmp_lg_u32 s3, 0\ns_cbranch_scc1 L_qwait")
    for h in range(2):
        a(f"""L_q{h}:
        s_load_dwordx16 s[36:51], s[10:11], {256*h} glc
        s_load_dwordx16 s[52:67], s[10:11], {256*h+64} glc
        s_load_dwordx16 s[68:83], s[10:11], {256*h+128} glc
        s_waitcnt lgkmcnt(0)
        s_xor_b32 s22, s39, s84""")
        for j_ in range(1, 11): a(f"s_xor_b32 s23, s{39+4*j_}, s84\ns_or_b32 s22, s22, s23")
        a(f"s_cbranch_scc0 L_q{h}ok")
        spin(f"L_q{h}", 4)
        a(f"L_q{h}ok:")
        if h == 0: stamp(2)
        for d in range(32): a(f"v_writelane_b32 v2, s{36 + 4*(d//3) + d%3}, {32*h+d}")
    a(f"""v_lshlrev_b32 v3, 2, v0
    v_mov_b32 v13, 1
    ds_write_b32 v3, v2 offset:{LQ}
    ds_write_b32 v12, v13 offset:{LQ+16}
    L_qwait:
    ds_read_b32 v13, v12 offset:{LQ+16}
    s_waitcnt lgkmcnt(0)
    v_cmp_eq_u32 vcc, 1, v13
    s_cbranch_vccnz L_qgo
    s_sleep 2""")
    spin("L_qwait", 4)
    a("L_qgo:")
    for t in range(4): a(f"ds_read_b128 {v(AQ+4*t,4)}, v{8+t} offset:{LQ}")
    a("s_waitcnt lgkmcnt(0)")
    stamp(3)
    for sl in range(6):
        a(f"s_waitcnt vmcnt({20+NV-4*sl})")
        for t in range(4):
            a(f"v_mfma_f32_16x16x32_bf16 {v(DQ+4*sl,4)}, {v(AQ+4*t,4)}, {v(K0+16*sl+4*t,4)}, {'0' if t==0 else v(DQ+4*sl,4)}")
    stamp(4); progress(100)
    for r in range(4):
        for sl in range(6):
            qp = f"quad_perm:[{r},{r},{r},{r}] row_mask:0xf bank_mask:0xf"
            if r == 0: a(f"v_mov_b32_dpp v{S0+sl}, v{DQ+4*sl} {qp}")
            else: a(f"v_add_f32_dpp v{S0+sl}, v{DQ+4*sl+r}, v{S0+sl} {qp}")
    T = AQ
    for rnd in range(2):
        for p in range(3): a(f"v_cvt_pk_bf16_f32 v{T+p}, v{S0+2*p}, v{S0+2*p+1}")
        for p in range(3): a(f"v_lshlrev_b32 v{S0+2*p}, 16, v{T+p}\nv_and_b32 v{S0+2*p+1}, s21, v{T+p}")
        if rnd == 0:
            for sl in range(6): a(f"v_mul_f32 v{S0+sl}, s9, v{S0+sl}")
    M, L_, TT = T + 4, T + 5, T + 6
    a(f"""v_add_f32 v{S0}, s5, v{S0}
    v_max3_f32 v{M}, v{S0+1}, v{S0+2}, v{S0+3}
    v_max3_f32 v{TT}, v{S0+4}, v{S0+5}, v{S0}
    v_max_f32 v{M}, v{M}, v{TT}
    v_max_f32_dpp v{M}, v{M}, v{M} row_ror:4 row_mask:0xf bank_mask:0xf
    v_max_f32_dpp v{M}, v{M}, v{M} row_ror:8 row_mask:0xf bank_mask:0xf
    v_mov_b32 v{TT}, v{M}
    v_permlane16_swap_b32 v{M}, v{TT}
    v_max_f32 v{M}, v{M}, v{TT}
    v_mov_b32 v{TT}, v{M}
    v_permlane32_swap_b32 v{M}, v{TT}
    v_max_f32 v{M}, v{M}, v{TT}
    v_mul_f32 v{M}, s8, v{M}""")
    for sl in range(6): a(f"v_fma_f32 v{S0+sl}, v{S0+sl}, s8, -v{M}")
    for sl in range(6): a(f"v_exp_f32 v{S0+sl}, v{S0+sl}")
    PK = T + 8
    for sl in range(6): a(f"v_cvt_pk_bf16_f32 v{PK+sl}, v{S0+sl}, v{S0+sl}")
    for sl in range(6):
        for k in range(4):
            for r in range(4):
                a(f"v_and_b32_dpp v{K0+16*sl+4*k+r}, v{PK+sl}, v{MK+r} row_newbcast:{4*k} row_mask:0xf bank_mask:0xf")
    a(f"""v_add_f32 v{L_}, v{S0}, v{S0+1}
    v_add_f32 v{TT}, v{S0+2}, v{S0+3}
    v_add_f32 v{S0+4}, v{S0+4}, v{S0+5}
    v_add_f32 v{L_}, v{L_}, v{TT}
    v_add_f32 v{L_}, v{L_}, v{S0+4}
    v_add_f32_dpp v{L_}, v{L_}, v{L_} row_ror:4 row_mask:0xf bank_mask:0xf
    v_add_f32_dpp v{L_}, v{L_}, v{L_} row_ror:8 row_mask:0xf bank_mask:0xf
    v_mov_b32 v{TT}, v{L_}
    v_permlane16_swap_b32 v{L_}, v{TT}
    v_add_f32 v{L_}, v{L_}, v{TT}
    v_mov_b32 v{TT}, v{L_}
    v_permlane32_swap_b32 v{L_}, v{TT}
    v_add_f32 v{L_}, v{L_}, v{TT}
    ds_write_b64 v253, {v(M,2)}""")
    if SG:
        a("s_cmp_ge_u32 s3, 4\ns_cbranch_scc1 L_stag1")
        for x in VL[NV:NV+SG]: a(x)
        a("L_stag1:")
    for x in VL[NV+SG:]: a(x)
    stamp(5)
    for sl in range(6):
        for k in range(4):
            n = 23 - 4 * sl - k
            if k == 0 or sl == 5: a(f"s_waitcnt vmcnt({n - (3 if sl < 5 else 0)})")
            if k == 0: progress(101 + sl)
            a(f"v_mfma_f32_16x16x32_bf16 {v(ACC,4)}, {v(K0+16*sl+4*k,4)}, {v(V0+16*sl+4*k,4)}, {'0' if sl==0 and k==0 else v(ACC,4)}")
    stamp(6)
    a(f"""ds_write_b128 v252, {v(ACC,4)}
    s_waitcnt lgkmcnt(0)""")
    if o["adry"]:
        a(f"""s_mov_b32 s14, 0
        s_cmp_lt_u32 s3, {1 if o["one"] else 4}
        s_cbranch_scc1 L_comb
        L_bar:
        s_mov_b32 s14, {MBX}""")
    a(f"""s_barrier
    """)
    if o["one"]:
        a("""s_cmp_lg_u32 s3, 0
        s_cbranch_scc1 L_att_end
        L_comb:
        ds_read_b64 v[16:17], v255 offset:512""")
        for k in range(8): a(f"ds_read_b64 {v(28+2*k,2)}, v254 offset:{544*k}")
        a("""v_mov_b32 v26, s84
        v_mov_b32 v27, s84
        v_mov_b32 v18, 0xff
        s_waitcnt lgkmcnt(8)
        v_max_f32_dpp v24, v16, v16 quad_perm:[1,0,3,2] row_mask:0xf bank_mask:0xf
        v_max_f32_dpp v24, v24, v24 quad_perm:[2,3,0,1] row_mask:0xf bank_mask:0xf
        v_max_f32_dpp v24, v24, v24 row_half_mirror row_mask:0xf bank_mask:0xf
        v_sub_f32 v16, v16, v24
        v_exp_f32 v16, v16
        s_waitcnt lgkmcnt(0)
        v_mul_f32 v25, v16, v17""")
        D = "row_mask:0xf bank_mask:0xf"
        for k in range(8):
            for e in range(2):
                dst = 20 + e + 2 * (k & 1)
                a(f"v_{'mul' if k < 2 else 'fmac'}_f32_dpp v{dst}, v16, v{28+2*k+e} row_newbcast:{k} {D}")
            if k in (1, 3, 5): a(f"v_add_f32_dpp v25, v25, v25 {['quad_perm:[1,0,3,2]', 'quad_perm:[2,3,0,1]', 'row_half_mirror'][k//2]} {D}")
        a(f"""v_pk_add_f32 v[20:21], v[20:21], v[22:23]
        v_mov_b32_dpp v22, v20 quad_perm:[1,0,3,2] {D}
        v_mov_b32_dpp v23, v21 quad_perm:[1,0,3,2] {D}""")
        tag4(20, 18, 85)
        a("""buffer_store_dwordx4 v[20:23], v14, s[12:15], 0 offen sc1
        buffer_store_dwordx4 v[24:27], v15, s[12:15], 0 offen sc1""")
    else:
      a(f"""    s_cmp_ge_u32 s3, 4
    s_cbranch_scc1 L_att_end
    L_comb:
    ds_read_b64 v[16:17], v255 offset:512
    ds_read_b128 v[20:23], v254
    v_mov_b32 v26, s84
    v_mov_b32 v27, s84
    v_mov_b32 v18, 0xff
    s_waitcnt lgkmcnt(1)
    v_max_f32_dpp v24, v16, v16 quad_perm:[1,0,3,2] row_mask:0xf bank_mask:0xf
    v_max_f32_dpp v24, v24, v24 quad_perm:[2,3,0,1] row_mask:0xf bank_mask:0xf
    v_max_f32_dpp v24, v24, v24 row_half_mirror row_mask:0xf bank_mask:0xf
    v_sub_f32 v16, v16, v24
    v_exp_f32 v16, v16
    s_waitcnt lgkmcnt(0)
    v_mul_f32 v25, v16, v17""")
      for r in range(4): a(f"v_mul_f32 v{20+r}, v16, v{20+r}")
      for dp in ("quad_perm:[1,0,3,2]", "quad_perm:[2,3,0,1]", "row_half_mirror"):
          for r in (20, 21, 22, 23, 25): a(f"v_add_f32_dpp v{r}, v{r}, v{r} {dp} row_mask:0xf bank_mask:0xf")
      tag4(20, 18, 85)
      a("""buffer_store_dwordx4 v[20:23], v14, s[12:15], 0 offen sc1
    s_cmp_lg_u32 s3, 0
    s_cbranch_scc1 L_comb_end
    buffer_store_dwordx4 v[24:27], v15, s[12:15], 0 offen sc1
    L_comb_end:""")
    if o["adry"]: a("s_cmp_eq_u32 s14, 0\ns_cbranch_scc1 L_bar")
    a("L_att_end:")
    stamp(7); stamp_out()
    a("L_end:\ns_endpgm")
    GU, WO, DN = 16, 96, 160
    M8, M4 = 4, 8
    SB = 80
    HW, HS, HC, PW, PR, YW = 240, 241, 242, 243, 244, 245
    C640, CG2 = 246, 249
    NS, TS, E0, VM = 93, 56, 247, 14
    g1 = -2 * LOG2E * 0.7978845608028654
    def gu_list():
        L = []
        for t in range(10):
            va = 250; k_ = t
            if o["al2"]: va, k_ = (110, t // 5) if t % 5 == 4 else (250, t - t // 5)
            so = "0" if k_ == 0 else f"s{59+k_}"
            L.append(f"buffer_load_dwordx4 {v(GU+8*t,4)}, v{va}, s[32:35], {so} offen {WT}")
            L.append(f"buffer_load_dwordx4 {v(GU+8*t+4,4)}, v{va}, s[36:39], {so} offen {WT}")
        return L
    def gu_setup():
        srd(32, 16, 2211840); srd(36, 18, 2211840)
        for t in range(1, 10): a(f"s_mov_b32 s{59+t}, {3456*t}")
        if o["al2"]:
            a("""s_lshl_b32 s72, s3, 3
            v_add_u32 v14, s72, v2
            v_mul_u32_u24 v250, 27648, v14
            v_mul_u32_u24 v110, 6912, v14
            s_lshl_b32 s72, s77, 7
            v_lshl_add_u32 v15, v3, 4, s72
            v_add_u32 v250, v250, v15
            v_add_u32 v110, v110, v15
            v_add_u32 v110, 1769472, v110
            v_lshrrev_b32 v14, 2, v0
            s_lshl_b32 s72, s3, 4
            v_add_u32 v111, s72, v14
            v_lshlrev_b32 v14, 3, v111
            v_lshlrev_b32 v15, 1, v111
            buffer_load_dwordx2 v[98:99], v14, s[28:31], 0 offen
            buffer_load_ushort v100, v15, s[28:31], 0 offen offset:1024""")
        else: a("s_lshl_b32 s72, s77, 7\nv_mul_u32_u24 v250, 3456, v12\nv_lshl_add_u32 v250, v3, 4, v250\nv_add_u32 v250, s72, v250")
    def dn_loads():
        srd(44, 20, 2211840)
        a("""s_lshl_b32 s72, s77, 3
        s_add_u32 s72, s72, s3
        s_mul_i32 s72, s72, 10240
        v_lshrrev_b32 v14, 4, v0
        v_mul_u32_u24 v14, 2560, v14
        v_and_b32 v15, 15, v0
        v_lshl_add_u32 v14, v15, 4, v14
        v_add_u32 v14, s72, v14""")
        for t in range(2):
            for b in range(5): a(f"buffer_load_dwordx4 {v(DN+20*t+4*b,4)}, v14, s[44:47], 0 offen offset:{1280*t+256*b} {WT}")
    def wo_list():
        return [f"buffer_load_dwordx4 {v(WO+4*t,4)}, v251, s[40:43], {'0' if t < 4 else 's%d' % (68 + t//4)} offen offset:{1280*(t&3)} {WT}" for t in range(16)]
    def xw_loads():
        XW = 16
        a(f"""s_mul_i32 s72, s79, 163840
                s_mul_i32 s73, s3, 20480
                s_add_u32 s72, s72, s73
                s_lshl_b32 s73, s75, 7
                s_add_u32 s72, s72, s73
                v_mul_u32_u24 v14, 2560, v2
                v_lshl_add_u32 v14, v3, 4, v14
                v_add_u32 v14, s72, v14
                s_mov_b32 s72, 163840
                s_mov_b32 s73, 327680""")
        for e in range(3):
            for t in range(2): a(f"buffer_load_dwordx4 {v(XW+8*e+4*t,4)}, v14, s[40:43], {['0','s72','s73'][e]} offen offset:{1280*t} {WT}")
    def wq_loads(base, va):
        for t in range(10): a(f"buffer_load_dwordx4 {v(base+4*t,4)}, v{va}, s[52:55], {'0' if t == 0 else 's%d' % (83+t)} offen {WT}")
    def ln(wait_c):
        for p in range(5): a(f"v_pk_add_f32 {v(204+2*p,2)}, {v(204+2*p,2)}, v[214:215] op_sel_hi:[1,0] neg_lo:[0,1] neg_hi:[0,1]")
        a("""v_pk_mul_f32 v[14:15], v[204:205], v[204:205]
        v_pk_add_f32 v[204:205], v[204:205], v[206:207]
        v_pk_fma_f32 v[14:15], v[206:207], v[206:207], v[14:15]
        v_pk_add_f32 v[206:207], v[208:209], v[210:211]
        v_pk_fma_f32 v[14:15], v[208:209], v[208:209], v[14:15]
        v_pk_add_f32 v[204:205], v[204:205], v[212:213]
        v_pk_fma_f32 v[14:15], v[210:211], v[210:211], v[14:15]
        v_pk_add_f32 v[204:205], v[204:205], v[206:207]
        v_pk_fma_f32 v[14:15], v[212:213], v[212:213], v[14:15]
        v_add_f32 v204, v204, v205
        v_add_f32 v14, v14, v15""")
        for dp in ("row_ror:1 row_mask:0xf", "row_ror:2 row_mask:0xf", "row_ror:4 row_mask:0xf", "row_ror:8 row_mask:0xf", "row_bcast:15 row_mask:0xa", "row_bcast:31 row_mask:0xc"):
            a(f"v_add_f32_dpp v204, v204, v204 {dp} bank_mask:0xf\nv_add_f32_dpp v14, v14, v14 {dp} bank_mask:0xf")
        a(f"""v_readlane_b32 s72, v204, 63
        v_readlane_b32 s73, v14, 63
        v_mul_f32 v14, s72, v{C640}
        v_mul_f32 v15, s73, v{C640}
        v_add_f32 v214, v214, v14
        v_fma_f32 v15, -v14, v14, v15
        v_cvt_pk_bf16_f32 v14, v214, v15
        v_and_b32 v15, s81, v14
        v_lshlrev_b32 v214, 16, v14
        v_add_f32 v15, {f2u(1e-5)}, v15""")
        a(wait_c)
        pk = [f"v_pk_add_f32 {v(216+2*p,2)}, {v(216+2*p,2)}, v[214:215] op_sel_hi:[1,0] neg_lo:[0,1] neg_hi:[0,1]" for p in range(5)]
        cv = [f"v_cvt_pk_bf16_f32 v{204+p}, v{216+2*p}, v{217+2*p}" for p in range(5)]
        un = [f"v_lshlrev_b32 v{216+2*p}, 16, v{204+p}\nv_and_b32 v{217+2*p}, s81, v{204+p}" for p in range(5)]
        a("v_cvt_pk_bf16_f32 v15, v15, v15"); a(pk[0]); a("v_and_b32 v15, s81, v15"); a(pk[1]); a("v_sqrt_f32 v15, v15")
        a(pk[2]); a(pk[3]); a("v_cvt_pk_bf16_f32 v15, v15, v15"); a(pk[4]); a("v_and_b32 v15, s81, v15"); a(cv[0]); a("v_rcp_f32 v14, v15")
        for x in cv[1:] + un: a(x)
        for p in range(5): a(f"v_pk_mul_f32 {v(216+2*p,2)}, {v(216+2*p,2)}, v[14:15] op_sel_hi:[1,0]")
        for t in range(10): a(f"v_cvt_pk_bf16_f32 v{216+t}, v{216+t}, v{216+t}")
    def qgemv(base, acc, after, nxt):
        nxt = list(nxt); issued = 0
        for t in range(10):
            for r in range(4): a(f"v_and_b32 v{228+4*(t%2)+r}, v{216+t}, v{M8+r}")
            a(f"s_waitcnt vmcnt({9-t+after+issued})")
            a(f"v_mfma_f32_16x16x32_bf16 {v(acc,4)}, {v(228+4*(t%2),4)}, {v(base+4*t,4)}, {'0' if t==0 else v(acc,4)}")
            for k in range(o["il"]):
                if nxt: a(nxt.pop(0)); issued += 1
        return nxt
    def psum():
        a(f"""ds_read2st64_b32 v[204:205], v{PR} offset0:0 offset1:17
        ds_read2st64_b32 v[206:207], v{PR} offset0:1 offset1:18
        s_waitcnt lgkmcnt(1)
        v_add_f32 v204, v204, v205
        s_waitcnt lgkmcnt(0)
        v_add_f32 v206, v206, v207""")
        for dp in ("quad_perm:[1,0,3,2]", "quad_perm:[2,3,0,1]", "row_half_mirror"):
            a(f"v_add_f32_dpp v204, v204, v204 {dp} row_mask:0xf bank_mask:0xf\nv_add_f32_dpp v206, v206, v206 {dp} row_mask:0xf bank_mask:0xf")
    for i in range(28): assert (i * 37) >> 8 == i // 7
    for i in range(9): assert (i * 86) >> 8 == i // 3
    for col in range(0, 640, 2): assert (col * 52429) >> 19 == col // 10
    a("""L_aux:
    v_lshrrev_b32 v2, 3, v0
    v_and_b32 v3, 7, v0
    s_mul_i32 s72, s3, 80
    v_mul_u32_u24 v12, 10, v2
    v_add_u32 v12, s72, v12
    v_lshlrev_b32 v13, 2, v0
    s_lshl_b32 s72, s3, 8
    v_add_u32 v13, s72, v13
    s_and_b32 s78, s2, 7
    s_lshl_b32 s78, s78, 3
    s_lshr_b32 s72, s2, 3
    s_add_u32 s78, s78, s72
    s_lshl_b32 s72, s78, 7
    v_lshlrev_b32 v252, 13, v12
    v_lshl_add_u32 v252, v3, 4, v252
    v_add_u32 v252, s72, v252
    v_mul_u32_u24 v254, 20, v0
    v_lshlrev_b32 v255, 1, v12""")
    for t in range(1, 10): a(f"s_mov_b32 s{83+t}, {8192*t}")
    a("""s_mul_i32 s74, s2, 37
    s_lshr_b32 s74, s74, 8
    s_mul_i32 s75, s74, 7
    s_sub_u32 s75, s2, s75
    s_lshl_b32 s76, s74, 3
    s_sub_u32 s72, s2, 28
    s_mul_i32 s73, s72, 86
    s_lshr_b32 s73, s73, 8
    s_mul_i32 s79, s73, 3
    s_sub_u32 s72, s72, s79
    s_add_u32 s72, s72, 7
    s_mul_i32 s79, s73, 11
    s_cmp_ge_u32 s2, 28
    s_cselect_b32 s74, s73, s74
    s_cselect_b32 s75, s72, s75
    s_cselect_b32 s76, s79, s76
    s_add_u32 s79, s76, 8
    s_add_u32 s76, s76, s3
    s_mul_i32 s72, s76, 163840
    s_lshl_b32 s73, s75, 7
    s_add_u32 s72, s72, s73
    v_mul_u32_u24 v251, 20480, v2
    v_lshl_add_u32 v251, v3, 4, v251
    v_add_u32 v251, s72, v251
    s_mov_b32 s69, 5120
    s_mov_b32 s70, 10240
    s_mov_b32 s71, 15360
    s_sub_u32 s77, s2, 37
    s_waitcnt lgkmcnt(0)
    s_load_dword s93, s[26:27], %d""" % CAN)
    if o["stamps"]: a("v_mov_b32 v1, 0\nv_writelane_b32 v1, s100, 0")
    srd(28, 4, 1280); srd(52, 10, 5242880)
    a("""buffer_load_dwordx4 v[228:231], v254, s[28:31], 0 offen
    buffer_load_dword v232, v254, s[28:31], 0 offen offset:16
    buffer_load_dwordx4 v[236:239], v255, s[28:31], 0 offen
    buffer_load_dword v233, v255, s[28:31], 0 offen offset:16
    buffer_load_dword v200, v13, s[28:31], 0 offen""")
    wq_loads(DN, 252)
    srd(48, 26, MBX); srd(40, 12, 5242880)
    a(f"s_mov_b32 s{SB}, 0x40000")
    if o["xearly"]:
        a("s_sub_u32 s72, s2, 28\ns_cmp_lt_u32 s72, 9\ns_cbranch_scc0 L_consts\ns_barrier")
        for x in wo_list(): a(x)
        xw_loads()
        a("L_consts:")
    stamp(1)
    masks(M8, 7, 14, 15); masks(M4, 15, 14, 15)
    a(f"""s_mov_b32 s81, 0xffff0000
    v_mov_b32 v{C640}, {f2u(1/640)}
    v_mov_b32 v{CG2}, {f2u(g1*0.044715)}
    v_lshrrev_b32 v14, 1, v13
    s_mov_b32 s72, 52429
    v_mul_lo_u32 v15, v14, s72
    v_lshrrev_b32 v15, 19, v15
    v_lshlrev_b32 v15, 1, v15
    v_add_u32 v14, v14, v15
    v_lshlrev_b32 v{HW}, 2, v14
    v_mul_u32_u24 v{HS}, 48, v0
    s_lshl_b32 s72, s3, 3
    v_add_u32 v14, s72, v2
    v_mul_u32_u24 v{HC}, 48, v14
    v_lshlrev_b32 v14, 2, v14
    v_mul_u32_u24 v15, 544, v3
    v_add_u32 v{PR}, v14, v15
    v_add_u32 v{PR}, {LP}, v{PR}""")
    a(f"""v_lshrrev_b32 v14, 5, v0
    v_bfe_u32 v15, v0, 3, 1
    v_cmp_eq_u32 vcc, v14, v15
    s_lshl_b32 s72, s3, 1
    v_add_u32 v14, s72, v14
    v_bfe_u32 v15, v0, 4, 1
    v_lshlrev_b32 v15, 4, v15
    v_lshl_add_u32 v15, v3, 5, v15
    v_lshlrev_b32 v201, 4, v0
    v_add_u32 v201, {LDUMP}, v201
    v_mul_u32_u24 v202, 544, v14
    v_add_u32 v202, v202, v15
    v_add_u32 v202, {LP}, v202
    v_cndmask_b32 v{PW}, v201, v202, vcc
    v_mul_u32_u24 v202, 320, v14
    v_add_u32 v202, v202, v15
    v_add_u32 v202, {LY}, v202
    v_cndmask_b32 v{YW}, v201, v202, vcc
    """)
    if o["xearly"]: a("s_sub_u32 s72, s2, 28\ns_cmp_lt_u32 s72, 9\ns_cbranch_scc1 L_xx\ns_waitcnt vmcnt(11)\nL_xx:\ns_waitcnt vmcnt(33)")
    else: a("s_waitcnt vmcnt(11)")
    for p in range(5):
        src = 228 + p; srcc = 236 + p if p < 4 else 233
        a(f"v_lshlrev_b32 v{204+2*p}, 16, v{src}\nv_and_b32 v{205+2*p}, s81, v{src}\nv_lshlrev_b32 v{216+2*p}, 16, v{srcc}\nv_and_b32 v{217+2*p}, s81, v{srcc}")
    if o["lnf"] and not o["al2"]:
        a("v_bfe_u32 v14, v0, 2, 1\nv_cmp_eq_u32 vcc, 1, v14")
        for e in range(5): a(f"v_cndmask_b32 v{96+e}, v{216+e}, v{221+e}, vcc")
    a("v_readfirstlane_b32 s72, v204\nv_mov_b32 v214, s72")
    ln("")
    stamp(13)
    if o["xearly"]:
        a("s_sub_u32 s72, s2, 28\ns_cmp_lt_u32 s72, 9\ns_cbranch_scc0 L_q_n")
        qgemv(DN, 204, 22, [])
        a("s_branch L_q_sum\nL_q_n:")
    qgemv(DN, 204, 0, [])
    a("L_q_sum:")
    stamp(18)
    a(f"""ds_write_b128 v{PW}, v[204:207]
    s_waitcnt lgkmcnt(0)""")
    nonce(NS, TS)
    a(f"""v_and_b32 v14, 1, v0
    v_cmp_eq_u32 vcc, 0, v14
    v_mov_b32 v14, s{TS}
    v_mov_b32 v15, s{TS+1}
    v_mov_b32 v{E0}, s{TS+2}
    v_mov_b32 v{E0+1}, s{TS+3}
    v_cndmask_b32 v{E0}, v{E0}, v14, vcc
    v_cndmask_b32 v{E0+1}, v{E0+1}, v15, vcc
    s_barrier
    s_cmp_lg_u32 s3, 0
    s_cbranch_scc1 L_q_1
    v_lshlrev_b32 v14, 2, v0""")
    stamp(14)
    for r in range(16): a(f"ds_read_b32 v{204+r}, v14 offset:{LP+544*r}")
    a(f"""v_and_b32 v14, 15, v0
    v_mul_u32_u24 v224, 24, v14
    v_add_u32 v225, 8, v224
    v_add_u32 v226, 16, v224
    v_cmp_gt_u32 vcc, 11, v14
    v_lshlrev_b32 v14, 4, v14
    v_lshrrev_b32 v15, 4, v0
    v_lshl_add_u32 v14, v15, 9, v14
    s_lshr_b32 s72, s78, 1
    s_mul_i32 s72, s72, 3072
    s_and_b32 s73, s78, 1
    s_lshl_b32 s73, s73, 8
    s_add_u32 s72, s72, s73
    v_mov_b32 v15, {OOB}
    v_cndmask_b32 v14, v15, v14, vcc
    v_cmp_gt_u32 vcc, 32, v0
    v_cndmask_b32 v15, v15, v14, vcc
    v_mov_b32 v223, s{NS}
    s_waitcnt lgkmcnt(0)""")
    for w in (4, 2, 1):
        for p in range(w): a(f"v_pk_add_f32 {v(204+2*p,2)}, {v(204+2*p,2)}, {v(204+2*p+2*w,2)}")
    a(f"""v_add_f32 v204, v204, v205
    v_mov_b32_dpp v205, v204 quad_perm:[1,0,3,2] row_mask:0xf bank_mask:0xf
    v_cvt_pk_bf16_f32 v204, v204, v205
    ds_bpermute_b32 v220, v224, v204
    ds_bpermute_b32 v221, v225, v204
    ds_bpermute_b32 v222, v226, v204
    s_waitcnt lgkmcnt(0)
    buffer_store_dwordx4 v[220:223], v14, s[48:51], s72 offen sc1
    buffer_store_dwordx4 v[220:223], v15, s[48:51], s72 offen offset:2048 sc1
    L_q_1:
    s_barrier""")
    stamp(15)
    if o["dry"]:
        a(f"""s_mov_b32 s82, 1
        s_mov_b32 s50, 0
        s_mov_b32 s{SB}, 0
        s_cmp_ge_u32 s2, 37
        s_cbranch_scc1 L_ffn
        s_branch L_wo
        L_real:
        s_mov_b32 s82, 0
        s_mov_b32 s50, {MBX}
        s_mov_b32 s{SB}, 0x40000""")
        stamp(17)
    if o["trig"]:
        if o["trig"][1] == 0: a("s_cmp_lt_u32 s2, 37\ns_cbranch_scc1 L_go")
        elif not o["xtrig"]: a("s_sub_u32 s72, s2, 28\ns_cmp_lt_u32 s72, 9\ns_cbranch_scc1 L_go")
        a(f"""s_cmp_lg_u32 s3, 0
        s_cbranch_scc1 L_go1
        s_lshl_b32 s72, s2, 7
        s_add_u32 s72, s72, {PG}
        L_tr:
        buffer_load_dwordx3 v[204:206], off, s[48:51], s72 sc1
        s_waitcnt vmcnt(0)
        v_cmp_eq_u32 vcc, s{NS}, v204
        v_cmp_eq_u32 s[60:61], s{NS}, v205
        v_cmp_eq_u32 s[62:63], s{NS}, v206
        s_or_b64 vcc, vcc, s[60:61]
        s_or_b64 vcc, vcc, s[62:63]
        s_cbranch_scc1 L_go1
        s_sleep 4""")
        spin("L_tr", SB)
        a("L_go1:\ns_barrier\nL_go:")
        stamp(16)
    a("s_cmp_ge_u32 s2, 37\ns_cbranch_scc1 L_ld_f")
    if o["xearly"]: a("s_cmp_ge_u32 s2, 28\ns_cbranch_scc1 L_wo")
    for x in wo_list(): a(x)
    if not o["xearly"]:
        a("s_cmp_lt_u32 s2, 28\ns_cbranch_scc1 L_wo")
        xw_loads()
    a(f"""L_wo:
    s_mul_i32 s83, s75, {o["r1"] * 6554}
    s_lshr_b32 s83, s83, 16
    s_mul_i32 s83, s83, {ORS}
    s_add_u32 s83, s83, {OM}
    s_mul_i32 s72, s76, 3840
    s_add_u32 s72, s72, s83
    v_lshlrev_b32 v202, 3, v0
    v_add_u32 v203, s72, v202
    v_and_b32 v14, 15, v0
    v_cmp_gt_u32 vcc, 6, v14
    v_cndmask_b32 v205, 0, 1.0, vcc
    v_min_u32 v14, 5, v14
    v_mul_u32_u24 v14, 640, v14
    v_add_u32 v204, s72, v14
    s_lshl_b32 s72, s3, 9
    s_add_u32 s72, s72, {LO}
    v_add_u32 v202, s72, v202
    v_lshlrev_b32 v206, 6, v2
    v_add_u32 v206, s72, v206
    v_lshrrev_b32 v14, 2, v0
    v_and_b32 v15, 3, v0
    v_lshlrev_b32 v14, 4, v14
    v_cmp_gt_u32 vcc, {o["r2"]}, v15
    v_mul_u32_u24 v208, {YRS}, v15
    v_mul_u32_u24 v15, 320, v15
    v_add_u32 v207, v14, v15
    v_add_u32 v14, v14, v208
    s_mul_i32 s72, s74, 2560
    s_lshl_b32 s73, s75, 8
    s_add_u32 s72, s72, s73
    s_add_u32 s72, s72, {YM}
    v_add_u32 v14, s72, v14
    v_mov_b32 v15, {OOB}
    v_cndmask_b32 v208, v15, v14, vcc""")
    if o["g2"]: a(f"""s_lshl_b32 s72, s2, 7
        s_add_u32 s72, s72, {SOON}
        v_mov_b32 v94, s{NS}
        v_lshl_add_u32 v95, v0, 2, s72
        v_cmp_gt_u32 vcc, 32, v0
        v_cndmask_b32 v95, v15, v95, vcc""")
    XW, XO, XM, XA, XT, XOA, XMA, XE, XLW, XLR, XS = 16, 40, 46, 49, 50, 52, 53, 54, 55, 56, 58
    def wo_body(ex):
        t_ = "x" if ex else ""
        if ex:
            a(f"""v_lshrrev_b32 v14, 4, v0
            v_min_u32 v14, 2, v14
            v_add_u32 v14, s79, v14
            v_min_u32 v14, 31, v14
            v_mul_u32_u24 v14, 3840, v14
            v_add_u32 v14, s83, v14
            v_and_b32 v15, 15, v0
            v_lshl_add_u32 v{XOA}, v15, 2, v14
            s_lshl_b32 s72, s3, 6
            v_add_u32 v{XOA}, s72, v{XOA}
            v_min_u32 v15, 5, v15
            v_mul_u32_u24 v15, 640, v15
            v_add_u32 v{XMA}, v14, v15
            v_and_b32 v14, 3, v0
            v_lshlrev_b32 v14, 3, v14
            v_lshrrev_b32 v{XE}, v14, s{NS}
            v_and_b32 v{XE}, 0xff, v{XE}
            s_lshl_b32 s72, s3, 8
            s_add_u32 s72, s72, {LD}
            v_lshl_add_u32 v{XLW}, v0, 2, s72
            v_lshl_add_u32 v{XLR}, v2, 3, s72
            s_cmp_lg_u32 s74, 0
            s_cbranch_scc1 L_noz
            s_cmp_lg_u32 s3, 0
            s_cbranch_scc1 L_noz""")
            for k in range(4): a(f"v_mov_b32 v{212+k}, s{TS+k}")
            a("s_mov_b32 s72, 7680\nbuffer_store_dwordx4 v[212:215], v208, s[48:51], s72 offen sc1\nL_noz:")
        if o["gate"]:
            a(f"""L_h1a{t_}:
            buffer_load_dword v210, v204, s[48:51], 0 offen offset:520 sc1
            s_waitcnt vmcnt(0)
            v_cmp_eq_u32 vcc, s{NS}, v210
            s_and_b32 s72, vcc_lo, 63
            s_bcnt1_i32_b32 s72, s72
            s_cmp_ge_u32 s72, {o["gthr"]}
            s_cbranch_scc1 L_h1{t_}""")
            spin(f"L_h1a{t_}", SB)
        a(f"L_h1{t_}:")
        SETS = [(160, 172, 40, 46), (64, 76, 80, 86), (176, 188, 192, 90)]
        def h1_issue(i):
            ob, mb, xo, xm = SETS[i]
            if i == 0: stamp(19)
            a(f"buffer_load_dwordx3 {v(mb,3)}, v204, s[48:51], 0 offen offset:512 sc1")
            if ex: a(f"buffer_load_dwordx3 {v(xm,3)}, v{XMA}, s[48:51], 0 offen offset:512 sc1")
            for c in range(6): a(f"buffer_load_dwordx2 {v(ob+2*c,2)}, v203, s[48:51], 0 offen offset:{640*c} sc1")
            if ex:
                for c in range(6): a(f"buffer_load_dword v{xo+c}, v{XOA}, s[48:51], 0 offen offset:{640*c} sc1")
        def h1_check(i):
            ob, mb, xo, xm = SETS[i]
            a(f"v_xor_b32 v{mb+2}, s{NS}, v{mb+2}")
            if ex: a(f"v_xor_b32 v{xm+2}, s{NS}, v{xm+2}")
            chk(list(range(ob, ob+12)) + (list(range(xo, xo+6)) if ex else []), [f"v{E0}", f"v{E0+1}"] * 6 + [f"v{XE}"] * 6, (14, 15))
            a(f"v_or3_b32 v14, v14, v{mb+2}, v{xm+2}" if ex else f"v_or_b32 v14, v14, v{mb+2}")
            a("v_cmp_ne_u32 vcc, 0, v14")
        def comb(m, tmp, src, n, dst):
            m0, l0 = m, m + 1; m = tmp; l = tmp + 1; D = "row_mask:0xf bank_mask:0xf"
            q_ = [f"v_max_f32_dpp v{tmp}, v{m0}, v{m0} quad_perm:[1,0,3,2] {D}", f"v_mul_f32 v{l}, v{l0}, v205",
                  f"v_max_f32_dpp v{tmp}, v{tmp}, v{tmp} quad_perm:[2,3,0,1] {D}", f"v_max_f32_dpp v{tmp}, v{tmp}, v{tmp} row_half_mirror {D}",
                  f"v_sub_f32 v{m}, v{m0}, v{tmp}", f"v_exp_f32 v{m}, v{m}", f"v_mul_f32 v{l}, v{m}, v{l}"]
            q_ += [f"v_mul_f32_dpp v{dst+e}, v{m}, v{src+e} row_newbcast:0 {D}" for e in range(n)]
            q_ += [f"v_add_f32_dpp v{l}, v{l}, v{l} quad_perm:[1,0,3,2] {D}"]
            seq = [f"v_fmac_f32_dpp v{dst+e}, v{m}, v{src+n*c+e} row_newbcast:{c} {D}" for c in range(1, 6) for e in range(n)]
            seq.insert(n, f"v_add_f32_dpp v{l}, v{l}, v{l} quad_perm:[2,3,0,1] {D}")
            seq.insert(2*n+1, f"v_add_f32_dpp v{l}, v{l}, v{l} row_half_mirror {D}")
            seq.insert(3*n+2, f"v_rcp_f32 v{l}, v{l}")
            q_ += seq
            q_ += [f"v_mul_f32_dpp v{dst+e}, v{l}, v{dst+e} row_newbcast:0 {D}" for e in range(n)]
            q_ += [f"v_cvt_pk_bf16_f32 v{dst+e}, v{dst+e}, v{dst+e}" for e in range(n)]
            return q_
        def h1_leave(i):
            ob, mb, xo, xm = SETS[i]
            stamp(3)
            A1 = comb(mb, 14, ob, 2, 224); A2 = comb(xm, XT, xo, 1, XA) if ex else []
            k2 = 0
            for k1, x in enumerate(A1):
                a(x)
                while k2 < len(A2) and k2 * len(A1) <= k1 * len(A2): a(A2[k2]); k2 += 1
            for x in A2[k2:]: a(x)
        if o["skip"]:
            ob, mb, xo, xm = SETS[0]; AC = 64
            k_, d_ = o["p1"]
            L_ = [(AC+12, f"buffer_load_dwordx3 {v(mb,3)}, v204, s[48:51], 0 offen offset:512 sc1")]
            if ex: L_ += [(AC+13, f"buffer_load_dwordx3 {v(xm,3)}, v{XMA}, s[48:51], 0 offen offset:512 sc1")]
            L_ += [(AC+c, f"buffer_load_dwordx2 {v(ob+2*c,2)}, v203, s[48:51], 0 offen offset:{640*c} sc1") for c in range(6)]
            if ex: L_ += [(AC+6+c, f"buffer_load_dword v{xo+c}, v{XOA}, s[48:51], 0 offen offset:{640*c} sc1") for c in range(6)]
            h1_issue(0)
            a("s_waitcnt vmcnt(0)")
            a(f"L_h1s{t_}:\nv_xor_b32 v{AC+12}, s{NS}, v{mb+2}")
            if ex: a(f"v_xor_b32 v{AC+13}, s{NS}, v{xm+2}")
            for c in range(6): a(f"v_msad_u8 v{AC+c}, v{ob+2*c}, v{E0}, 0")
            if ex:
                for c in range(6): a(f"v_msad_u8 v{AC+6+c}, v{xo+c}, v{XE}, 0")
            for c in range(6): a(f"v_msad_u8 v{AC+c}, v{ob+2*c+1}, v{E0+1}, v{AC+c}")
            if ex: a(f"""v_or3_b32 v15, v{AC+6}, v{AC+7}, v{AC+8}
                v_or3_b32 v14, v{AC+9}, v{AC+10}, v{AC+11}
                v_or3_b32 v15, v15, v{AC+12}, v{AC+13}
                v_or3_b32 v14, v14, v{AC}, v{AC+1}
                v_or3_b32 v15, v15, v{AC+2}, v{AC+3}
                v_or3_b32 v14, v14, v{AC+4}, v{AC+5}
                v_or_b32 v14, v14, v15""")
            else: a(f"""v_or3_b32 v14, v{AC+12}, v{AC}, v{AC+1}
                v_or3_b32 v15, v{AC+2}, v{AC+3}, v{AC+4}
                v_or3_b32 v14, v14, v15, v{AC+5}""")
            a(f"v_cmp_ne_u32 vcc, 0, v14\ns_cbranch_vccz L_h1ok{t_}")
            stamp(19)
            if k_ == 1:
                for n, (r, ld) in enumerate(L_): a(f"v_cmp_ne_u32 vcc, 0, v{r}\ns_cbranch_vccz L_h1k{t_}{n}\n{ld}\nL_h1k{t_}{n}:")
                a("s_waitcnt vmcnt(0)")
            else:
                MS = [60, 62, 64, 66, 84, 86, 88, 90, 4, 6, 8, 10, 14, 16]
                for n, (r, ld) in enumerate(L_): a(f"v_cmp_ne_u32 s[{MS[n]}:{MS[n]+1}], 0, v{r}")
                for n, (r, ld) in enumerate(L_): a(f"s_cmp_lg_u64 s[{MS[n]}:{MS[n]+1}], 0\ns_cselect_b64 exec, -1, 0\n{ld}")
                a("s_mov_b64 exec, -1")
                if d_: a(f"s_sleep {d_}")
                a(f"s_waitcnt vmcnt({(k_-1)*len(L_)})")
            spin(f"L_h1s{t_}", SB)
            a(f"L_h1ok{t_}:")
            if o["g2"]:
                a(f"""s_cmp_lg_u32 s3, 0
                s_cbranch_scc1 L_nsoon{t_}
                buffer_store_dword v94, v95, s[48:51], 0 offen sc1
                L_nsoon{t_}:""")
            h1_leave(0)
        else: poll(f"h1p{t_}", o["p1"], 14 if ex else 7, h1_issue, h1_check, h1_leave, SB)
        a("ds_write_b64 v202, v[224:225]")
        if ex: a(f"ds_write_b32 v{XLW}, v{XA}")
        for k in range(4): a(f"ds_read_b128 {v(212+4*k,4)}, v206 offset:{16*k}")
        if ex:
            for e in range(3): a(f"ds_read_b64 {v(XS+2*e,2)}, v{XLR} offset:{64*e}")
        tiles = [(212+t, WO+4*t) for t in range(16)] + ([(XS+t, XW+4*t) for t in range(6)] if ex else [])
        for t, (c_, w_) in enumerate(tiles):
            if t % 4 == 0 and t <= 16: a(f"s_waitcnt lgkmcnt({max(0, 3 - t//4 + (3 if ex and t < 16 else 0))})")
            ab = 228 + 4 * (t % 3)
            for r in range(4): a(f"v_and_b32 v{ab+r}, v{c_}, v{M8+r}")
            if t > 0: a(f"v_mfma_f32_16x16x32_bf16 v[252:255], {v(228+4*((t-1)%3),4)}, {v(tiles[t-1][1],4)}, {'0' if t==1 else 'v[252:255]'}")
        t = len(tiles) - 1
        a(f"v_mfma_f32_16x16x32_bf16 v[252:255], {v(228+4*(t%3),4)}, {v(tiles[t][1],4)}, v[252:255]")
    a("s_cmp_ge_u32 s2, 28\ns_cbranch_scc0 L_wo4")
    wo_body(True)
    a("s_branch L_wo_acc\nL_wo4:")
    wo_body(False)
    a("L_wo_acc:")
    a(f"""ds_write_b128 v{YW}, v[252:255]
    s_waitcnt lgkmcnt(0)
    s_barrier""")
    stamp(4)
    a("s_cmp_lg_u32 s3, 0\ns_cbranch_scc1 L_wo_done")
    for k in range(4): a(f"ds_read_b128 {v(212+4*k,4)}, v207 offset:{LY+1280*k}")
    a(f"v_mov_b32 v{VM}, 0xff")
    a("""s_waitcnt lgkmcnt(2)
    v_pk_add_f32 v[212:213], v[212:213], v[216:217]
    v_pk_add_f32 v[214:215], v[214:215], v[218:219]
    s_waitcnt lgkmcnt(0)
    v_pk_add_f32 v[220:221], v[220:221], v[224:225]
    v_pk_add_f32 v[222:223], v[222:223], v[226:227]
    v_pk_add_f32 v[212:213], v[212:213], v[220:221]
    v_pk_add_f32 v[214:215], v[214:215], v[222:223]""")
    for dp in ("quad_perm:[1,0,3,2]", "quad_perm:[2,3,0,1]"):
        for r in range(212, 216): a(f"v_add_f32_dpp v{r}, v{r}, v{r} {dp} row_mask:0xf bank_mask:0xf")
    tag4(212, VM, TS)
    a("buffer_store_dwordx4 v[212:215], v208, s[48:51], 0 offen sc1\nL_wo_done:")
    stamp(5)
    a("""s_cmp_ge_u32 s2, 20
    s_cbranch_scc1 L_aux_end
    s_cmp_lg_u32 s3, 7
    s_cbranch_scc1 L_aux_end""")
    srd(52, 22, 1280)
    if o["dry"]: a("s_cmp_eq_u32 s82, 1\ns_cselect_b32 s54, 0, s54")
    a(f"""s_lshl_b32 s72, s2, 7
    v_mul_u32_u24 v14, 2560, v2
    v_lshl_add_u32 v14, v3, 4, v14
    v_add_u32 v14, s72, v14
    s_and_b32 s73, s2, {o['r2']-1}
    s_mul_i32 s73, s73, {YRS}
    s_add_u32 s73, s73, {YM}
    v_add_u32 v202, s73, v14
    v_mov_b32 v15, {OOB}
    v_cmp_gt_u32 vcc, 32, v0
    v_cndmask_b32 v202, v15, v202, vcc
    v_add_u32 v203, {DM}, v14
    v_add_u32 v204, {DM+61440}, v14
    v_cmp_gt_u32 vcc, 24, v0
    v_cndmask_b32 v204, v15, v204, vcc
    v_bfe_u32 v14, v0, 4, 1
    v_lshrrev_b32 v205, 5, v0
    v_lshl_add_u32 v14, v14, 1, v205
    v_lshl_add_u32 v14, v3, 2, v14
    v_lshlrev_b32 v14, 1, v14
    s_lshl_b32 s72, s2, 6
    v_add_u32 v14, s72, v14
    buffer_load_ushort v206, v14, s[28:31], 0 offen
    v_bfe_u32 v205, v0, 3, 1
    v_cmp_eq_u32 vcc, 0, v205
    v_cndmask_b32 v205, v15, v14, vcc
    s_mov_b32 s72, 20480
    s_mov_b32 s73, 40960
    s_mov_b32 s60, 0xffffff
    s_mov_b32 s61, 0
    L_ry:
    buffer_load_dwordx4 v[212:215], v202, s[48:51], 0 offen sc1
    s_waitcnt vmcnt(0)""")
    TR = [f"s{TS+k}" for k in range(4)]
    chk(range(212, 216), TR, (14, 15))
    a("v_cmp_ne_u32 vcc, 0, v14\ns_cmp_eq_u32 vcc_lo, 0\ns_cbranch_scc1 L_ryok")
    spin("L_ry", SB)
    def rs4(b):
        a(f"""v_permlane32_swap_b32 v{b}, v{b+1}
        v_permlane32_swap_b32 v{b+2}, v{b+3}
        v_add_f32 v{b}, v{b}, v{b+1}
        v_add_f32 v{b+2}, v{b+2}, v{b+3}
        v_permlane16_swap_b32 v{b}, v{b+2}
        v_add_f32 v{b}, v{b}, v{b+2}
        v_add_f32_dpp v{b}, v{b}, v{b} row_ror:8 row_mask:0xf bank_mask:0xf""")
    def canary():
        a(f"""s_cmp_lg_u32 s2, 0
        s_cbranch_scc1 L_nocan
        v_mov_b32 v14, s93
        v_lshlrev_b32 v15, 2, v0
        v_add_u32 v15, {CAN}, v15
        {'s_mov_b32 exec_hi, 0' if o["can"] else 's_mov_b64 exec, 1'}
        buffer_store_dword v14, v15, s[48:51], 0 offen sc1
        s_mov_b64 exec, -1
        L_nocan:""")
    a("L_ryok:")
    if o["can"]: canary()
    rs4(212)
    a("""v_cvt_pk_bf16_f32 v212, v212, v212
    v_lshlrev_b32 v206, 16, v206
    v_and_b32 v212, s81, v212
    v_add_f32 v212, v212, v206
    v_cvt_pk_bf16_f32 v212, v212, v212
    v_and_b32 v206, s81, v212""")
    stamp(6)
    def h3_issue(i):
        b = 96 + 16*i
        a(f"""buffer_load_dwordx4 {v(b,4)}, v203, s[48:51], 0 offen sc1
        buffer_load_dwordx4 {v(b+4,4)}, v203, s[48:51], s72 offen sc1
        buffer_load_dwordx4 {v(b+8,4)}, v203, s[48:51], s73 offen sc1
        buffer_load_dwordx4 {v(b+12,4)}, v204, s[48:51], 0 offen sc1""")
    def h3_check(i):
        b = 96 + 16*i
        chk(range(b+12, b+16), TR, (207, 208))
        chk(range(b, b+12), TR * 3, (14, 15))
        a("v_cndmask_b32 v207, 0, v207, s[60:61]\nv_or_b32 v14, v14, v207\nv_cmp_ne_u32 vcc, 0, v14")
    def h3_leave(i):
        b = 96 + 16*i
        a(f"""v_pk_add_f32 v[212:213], {v(b,2)}, {v(b+4,2)}
        v_pk_add_f32 v[220:221], {v(b+8,2)}, {v(b+12,2)}
        v_pk_add_f32 v[214:215], {v(b+2,2)}, {v(b+6,2)}
        v_pk_add_f32 v[222:223], {v(b+10,2)}, {v(b+14,2)}""")
    poll("rd", o["p3"], 4, h3_issue, h3_check, h3_leave, SB)
    a("""v_pk_add_f32 v[212:213], v[212:213], v[220:221]
    v_pk_add_f32 v[214:215], v[214:215], v[222:223]""")
    rs4(212)
    OUTP = o["outp"]
    a(f"""v_cvt_pk_bf16_f32 v212, v212, v212
    v_and_b32 v212, s81, v212
    v_add_f32 v212, v212, v206
    v_cvt_pk_bf16_f32 v212, v212, v212
    buffer_store_short v212, v205, s[52:55], 0 offen {OUTP}
""")
    if not o["can"]: canary()
    stamp(7)
    a("s_branch L_aux_end")
    DW, DR, DS = 250, 251, 201
    a("L_ld_f:")
    gu_setup()
    for x in gu_list(): a(x)
    dn_loads()
    a(f"""L_ffn:
    v_and_b32 v14, 15, v0
    v_lshrrev_b32 v15, 4, v0
    v_lshlrev_b32 v14, 5, v14
    v_lshl_add_u32 v14, v15, 4, v14
    s_mul_i32 s72, s3, 2688
    s_add_u32 s72, s72, {LD}
    v_add_u32 v14, s72, v14
    v_lshlrev_b32 v15, 4, v0
    v_add_u32 v15, {LDUMP}, v15
    v_cmp_gt_u32 vcc, 32, v0
    v_cndmask_b32 v{DW}, v15, v14, vcc
    v_lshrrev_b32 v14, 1, v0
    v_lshlrev_b32 v14, 4, v14
    s_lshl_b32 s72, s3, 9
    v_add_u32 v14, s72, v14
    v_and_b32 v15, 1, v0
    v_cmp_eq_u32 vcc, 0, v15
    v_mul_u32_u24 v15, 2688, v15
    v_add_u32 v{DR}, v14, v15
    s_mul_i32 s72, s77, 2560
    s_add_u32 s72, s72, {DM}
    v_add_u32 v14, s72, v14
    v_mov_b32 v15, {OOB}
    v_cndmask_b32 v{DS}, v15, v14, vcc
    """)
    def mf(t):
        ab = 228 + 4 * (t % 3)
        a(f"v_mfma_f32_16x16x32_bf16 v[204:207], {v(ab,4)}, {v(GU+8*t,4)}, {'0' if t==0 else 'v[204:207]'}")
        a(f"v_mfma_f32_16x16x32_bf16 v[208:211], {v(ab,4)}, {v(GU+8*t+4,4)}, {'0' if t==0 else 'v[208:211]'}")
    if o["lnf"]:
        X5, ER, SG, SU, YA, STW, STR, HD = 96, 101, 105, 106, 107, 108, 109, 220
        D = "row_mask:0xf bank_mask:0xf"
        a(f"""s_mov_b32 s82, 0x3f803f80
        v_lshrrev_b32 v14, 2, v0""")
        for e in range(4): a(f"v_add_u32 v15, {e}, v14\nv_and_b32 v15, 3, v15\nv_lshlrev_b32 v15, 3, v15\nv_bfe_u32 v{ER+e}, s{NS}, v15, 8")
        a(f"""s_and_b32 s72, s2, {o['r2']-1}
        s_mul_i32 s72, s72, {YRS}
        s_add_u32 s72, s72, {YM}
        v_and_b32 v15, 3, v0
        v_mul_u32_u24 v15, 2560, v15
        v_add_u32 v15, s72, v15""")
        if o["al2"]: a(f"v_lshl_add_u32 v{YA}, v111, 4, v15\nv_lshl_add_u32 v111, v111, 2, v15")
        else: a(f"""v_and_b32 v14, 1, v14
        v_mul_u32_u24 v14, 20, v14
        v_lshl_add_u32 v14, v12, 2, v14
        v_add_u32 v{YA}, v14, v15""")
        a(f"""
        v_lshlrev_b32 v{STR}, 3, v3
        s_lshl_b32 s72, s3, 3
        v_mov_b32 v14, s72
        v_lshlrev_b32 v15, 4, v0
        v_add_u32 v15, {LDUMP}, v15
        v_cmp_eq_u32 vcc, 63, v0
        v_cndmask_b32 v{STW}, v15, v14, vcc""")
        for r in range(4): a(f"v_and_b32 v{228+r}, s82, v{M8+r}")
        a("s_waitcnt vmcnt(10)")
        if o["al2"]: a("v_lshlrev_b32 v96, 16, v98\nv_and_b32 v97, s81, v98\nv_lshlrev_b32 v98, 16, v99\nv_and_b32 v99, s81, v99\nv_lshlrev_b32 v100, 16, v100")
        for t in range(10):
            a(f"v_mfma_f32_16x16x32_bf16 v[204:207], v[228:231], {v(GU+8*t,4)}, {'0' if t==0 else 'v[204:207]'}")
            a(f"v_mfma_f32_16x16x32_bf16 v[208:211], v[228:231], {v(GU+8*t+4,4)}, {'0' if t==0 else 'v[208:211]'}")
        a(f"""ds_write_b128 v{PW}, v[204:207]
        ds_write_b128 v{PW}, v[208:211] offset:256
        s_waitcnt lgkmcnt(0)
        s_barrier""")
        psum()
        a(f"v_mov_b32 v{SG}, v204\nv_mov_b32 v{SU}, v206")
        if o["g2"]:
            a(f"""s_cmp_lg_u32 s3, 0
            s_cbranch_scc1 L_g2ok
            v_min_u32 v14, 36, v0
            v_lshlrev_b32 v14, 7, v14
            v_add_u32 v14, {SOON}, v14
            L_g2:
            buffer_load_dword v15, v14, s[48:51], 0 offen sc1
            s_waitcnt vmcnt(0)
            v_cmp_eq_u32 vcc, s{NS}, v15
            s_and_b32 vcc_hi, vcc_hi, 31
            s_bcnt1_i32_b64 s72, vcc
            s_cmp_ge_u32 s72, {o["g2"]}
            s_cbranch_scc1 L_g2ok""")
            spin("L_g2", SB)
            a("L_g2ok:")
        a("s_barrier")
        def h2_issue(i):
            b = 112 + 6*i
            a(f"buffer_load_dwordx4 {v(b,4)}, v{YA}, s[48:51], 0 offen sc1")
            if o["al2"]: a(f"buffer_load_dword v{b+4}, v111, s[48:51], 0 offen offset:2048 sc1")
            else: a(f"buffer_load_dword v{b+4}, v{YA}, s[48:51], 0 offen offset:16 sc1")
        def h2_check(i):
            b = 112 + 6*i
            chk(range(b, b+5), TR + [f"v{ER}"] if o["al2"] else [f"v{ER+(e&3)}" for e in range(5)], (14, 15))
            a("v_cmp_ne_u32 vcc, 0, v14")
        def h2_leave(i):
            b = 112 + 6*i
            stamp(6)
            for e in range(5): a(f"v_add_f32_dpp v{212+e}, v{b+e}, v{b+e} quad_perm:[1,0,3,2] {D}")
        poll("h2", o["p2"], 2, h2_issue, h2_check, h2_leave, SB)
        for e in range(5): a(f"v_add_f32_dpp v{212+e}, v{212+e}, v{212+e} quad_perm:[2,3,0,1] {D}")
        a(f"""v_cvt_pk_bf16_f32 v218, v212, v213
        v_cvt_pk_bf16_f32 v219, v214, v215
        v_cvt_pk_bf16_f32 v216, v216, v216
        v_lshlrev_b32 v212, 16, v218
        v_and_b32 v213, s81, v218
        v_lshlrev_b32 v214, 16, v219
        v_and_b32 v215, s81, v219
        v_and_b32 v216, s81, v216""")
        for e in range(5): a(f"v_add_f32 v{212+e}, v{212+e}, v{X5+e}")
        for e in range(5): a(f"v_cvt_pk_bf16_f32 v{HD+e}, v{212+e}, v{212+e}")
        stamp(9)
        st = []
        for e in range(5): st += [f"v_dot2_f32_bf16 v226, v{HD+e}, s82, {'0' if e == 0 else 'v226'}", f"v_dot2_f32_bf16 v227, v{HD+e}, v{HD+e}, {'0' if e == 0 else 'v227'}"]
        for dp in ("row_half_mirror row_mask:0xf", "row_mirror row_mask:0xf", "row_bcast:15 row_mask:0xa", "row_bcast:31 row_mask:0xc"):
            st += [f"v_add_f32_dpp v226, v226, v226 {dp} bank_mask:0xf", f"v_add_f32_dpp v227, v227, v227 {dp} bank_mask:0xf"]
        st += [f"ds_write_b64 v{STW}, v[226:227]"]
        for t in range(10):
            ab = 228 + 4 * (t % 3)
            for r in range(4):
                if (r < 2) == (t < 5): a(f"v_and_b32 v{ab+r}, v{HD+t%5}, v{M8+r}")
                else: a(f"v_and_b32_dpp v{ab+r}, v{HD+t%5}, v{M8+r} row_half_mirror {D}")
            if t > 0:
                mf(t - 1)
                for _ in range(2):
                    if st: a(st.pop(0))
        mf(9)
        for x in st: a(x)
        a(f"""ds_write_b128 v{PW}, v[204:207]
        ds_write_b128 v{PW}, v[208:211] offset:256
        s_waitcnt lgkmcnt(0)
        s_barrier""")
        stamp(10)
        a(f"""ds_read_b64 v[212:213], v{STR}
        ds_read2st64_b32 v[204:205], v{PR} offset0:0 offset1:17
        ds_read2st64_b32 v[206:207], v{PR} offset0:1 offset1:18
        s_waitcnt lgkmcnt(2)""")
        DP = ("quad_perm:[1,0,3,2]", "quad_perm:[2,3,0,1]", "row_half_mirror")
        for dp in DP: a(f"v_add_f32_dpp v212, v212, v212 {dp} {D}\nv_add_f32_dpp v213, v213, v213 {dp} {D}")
        a(f"""v_mul_f32 v212, {f2u(1/1280)}, v212
        v_mul_f32 v213, {f2u(1/1280)}, v213
        s_waitcnt lgkmcnt(0)
        v_fma_f32 v213, -v212, v212, v213
        v_add_f32 v204, v204, v205
        v_max_f32 v213, 0, v213
        v_add_f32 v206, v206, v207
        v_cvt_pk_bf16_f32 v212, v212, v213
        v_add_f32_dpp v204, v204, v204 {DP[0]} {D}
        v_and_b32 v213, s81, v212
        v_add_f32_dpp v206, v206, v206 {DP[0]} {D}
        v_add_f32 v213, {f2u(1e-5)}, v213
        v_add_f32_dpp v204, v204, v204 {DP[1]} {D}
        v_cvt_pk_bf16_f32 v213, v213, v213
        v_add_f32_dpp v206, v206, v206 {DP[1]} {D}
        v_and_b32 v213, s81, v213
        v_add_f32_dpp v204, v204, v204 {DP[2]} {D}
        v_sqrt_f32 v213, v213
        v_add_f32_dpp v206, v206, v206 {DP[2]} {D}
        v_lshlrev_b32 v212, 16, v212
        v_cvt_pk_bf16_f32 v213, v213, v213
        v_fma_f32 v204, -v212, v{SG}, v204
        v_and_b32 v213, s81, v213
        v_fma_f32 v206, -v212, v{SU}, v206
        v_rcp_f32 v213, v213
        v_mul_f32 v204, v204, v213
        v_mul_f32 v206, v206, v213""")
    else:
        a(f"""s_waitcnt vmcnt(0)
        s_cmp_ge_u32 s3, 5
        s_cbranch_scc1 L_lng_bar
        v_lshlrev_b32 v14, 1, v13
        s_and_b32 s72, s2, {o['r2']-1}
        s_mul_i32 s72, s72, {YRS}
        s_add_u32 s72, s72, {YM}
        v_add_u32 v14, s72, v14
        s_mov_b32 s72, 5120
        L_h2:
        buffer_load_dwordx2 v[212:213], v14, s[48:51], 0 offen sc1
        buffer_load_dwordx2 v[214:215], v14, s[48:51], 0 offen offset:2560 sc1
        buffer_load_dwordx2 v[216:217], v14, s[48:51], s72 offen sc1
        buffer_load_dwordx2 v[218:219], v14, s[48:51], s72 offen offset:2560 sc1
        s_waitcnt vmcnt(0)""")
        chk(range(212, 220), [f"v{E0}", f"v{E0+1}"] * 4, (15, 202))
        a("v_cmp_ne_u32 vcc, 0, v15\ns_cbranch_vccz L_h2ok")
        spin("L_h2", SB)
        a("L_h2ok:")
        stamp(6)
        a("""v_pk_add_f32 v[212:213], v[212:213], v[214:215]
        v_pk_add_f32 v[216:217], v[216:217], v[218:219]
        v_lshlrev_b32 v202, 16, v200
        v_pk_add_f32 v[212:213], v[212:213], v[216:217]
        v_and_b32 v203, s81, v200
        v_cvt_pk_bf16_f32 v212, v212, v213
        v_lshlrev_b32 v214, 16, v212
        v_and_b32 v215, s81, v212
        v_pk_add_f32 v[202:203], v[202:203], v[214:215]
        v_cvt_pk_bf16_f32 v212, v202, v203
        v_lshlrev_b32 v202, 16, v212
        v_and_b32 v203, s81, v212""")
        a(f"""    ds_write_b64 v{HW}, v[202:203]
        s_waitcnt lgkmcnt(0)
        L_lng_bar:
        s_barrier
        v_mov_b32 v14, 0
        ds_read_b128 v[204:207], v{HS}
        ds_read_b32 v214, v14
        ds_read_b128 v[208:211], v{HS} offset:16
        ds_read_b64 v[212:213], v{HS} offset:32
        ds_read_b128 v[216:219], v{HC}
        ds_read_b128 v[220:223], v{HC} offset:16
        ds_read_b64 v[224:225], v{HC} offset:32""")
        stamp(8)
        a("s_waitcnt lgkmcnt(3)")
        ln("s_waitcnt lgkmcnt(0)")
        stamp(9)
        def mf(t):
            ab = 228 + 4 * (t % 3)
            a(f"v_mfma_f32_16x16x32_bf16 v[204:207], {v(ab,4)}, {v(GU+8*t,4)}, {'0' if t==0 else 'v[204:207]'}")
            a(f"v_mfma_f32_16x16x32_bf16 v[208:211], {v(ab,4)}, {v(GU+8*t+4,4)}, {'0' if t==0 else 'v[208:211]'}")
        for t in range(10):
            ab = 228 + 4 * (t % 3)
            for r in range(4): a(f"v_and_b32 v{ab+r}, v{216+t}, v{M8+r}")
            if t > 0: mf(t - 1)
        mf(9)
        a(f"""ds_write_b128 v{PW}, v[204:207]
        ds_write_b128 v{PW}, v[208:211] offset:256
        s_waitcnt lgkmcnt(0)
        s_barrier""")
        stamp(10)
        psum()
    a(f"""
    v_cvt_pk_bf16_f32 v204, v204, v206
    v_lshlrev_b32 v205, 16, v204
    v_and_b32 v206, s81, v204
    v_mul_f32 v207, v205, v205
    v_fmaak_f32 v207, v207, v{CG2}, {f2u(g1)}
    v_mul_f32 v207, v207, v205
    v_exp_f32 v207, v207
    v_add_f32 v207, 1.0, v207
    v_rcp_f32 v207, v207
    v_mul_f32 v207, v207, v205
    v_cvt_pk_bf16_f32 v207, v207, v207
    v_and_b32 v207, s81, v207
    v_mul_f32 v207, v207, v206
    v_cvt_pk_bf16_f32 v207, v207, v207""")
    for t in range(2):
        for r in range(4): a(f"v_and_b32_dpp v{228+4*t+r}, v207, v{M4+r} row_newbcast:{8*t} row_mask:0xf bank_mask:0xf")
    for t in range(2):
        for b in range(5): a(f"v_mfma_f32_16x16x32_bf16 {v(208+4*b,4)}, {v(228+4*t,4)}, {v(DN+20*t+4*b,4)}, {'0' if t==0 else v(208+4*b,4)}")
    for b in range(5): a(f"ds_write_b128 v{DW}, {v(208+4*b,4)} offset:{512*b}")
    a("s_waitcnt lgkmcnt(0)\ns_barrier")
    stamp(11)
    a("s_cmp_ge_u32 s3, 5\ns_cbranch_scc1 L_aux_end")
    for k in range(4): a(f"ds_read_b128 {v(212+4*k,4)}, v{DR} offset:{LD+5376*k}")
    a(f"v_mov_b32 v{VM}, 0xff")
    a("""s_waitcnt lgkmcnt(2)
    v_pk_add_f32 v[212:213], v[212:213], v[216:217]
    v_pk_add_f32 v[214:215], v[214:215], v[218:219]
    s_waitcnt lgkmcnt(0)
    v_pk_add_f32 v[220:221], v[220:221], v[224:225]
    v_pk_add_f32 v[222:223], v[222:223], v[226:227]
    v_pk_add_f32 v[212:213], v[212:213], v[220:221]
    v_pk_add_f32 v[214:215], v[214:215], v[222:223]""")
    for r in range(212, 216): a(f"v_add_f32_dpp v{r}, v{r}, v{r} quad_perm:[1,0,3,2] row_mask:0xf bank_mask:0xf")
    tag4(212, VM, TS)
    a(f"buffer_store_dwordx4 v[212:215], v{DS}, s[48:51], 0 offen sc1")
    stamp(12)
    a("L_aux_end:")
    if o["dry"]: a("s_cmp_eq_u32 s82, 1\ns_cbranch_scc1 L_real")
    stamp_out()
    a("s_endpgm")
    head = open(f"cdna_kernels/{KN}.s.ref").read().split("; Override launch")[0] if o["hdr"] else ""
    return finish(o, head, a.text(), LDS_SIZE)
def kd(name, vg):
    return f""".p2align 6
.amdhsa_kernel {name}
  .amdhsa_next_free_vgpr {vg}
  .amdhsa_next_free_sgpr 102
  .amdhsa_accum_offset {vg}
  .amdhsa_group_segment_fixed_size 0
  .amdhsa_kernarg_size 96
  .amdhsa_user_sgpr_count 2
  .amdhsa_user_sgpr_kernarg_segment_ptr 1
  .amdhsa_system_sgpr_workgroup_id_x 1
.end_amdhsa_kernel
"""
def diag_kernel(k, w0, w1, K, op, nw=2048):
    self_ = op == "self"
    if self_: op = "max"
    init = "0" if op == "max" else "-1"
    return f""".globl diag_kernel
.p2align 8
.type diag_kernel,@function
diag_kernel:
s_memrealtime s[20:21]
s_cmp_lg_u32 s2, 0
s_cbranch_scc1 LD_end
s_load_dwordx2 s[4:5], s[0:1], 88
s_waitcnt lgkmcnt(0)
s_add_u32 s4, s4, {STAMP_OFF}
s_addc_u32 s5, s5, 0
s_mov_b32 s6, 0x100000
s_mov_b32 s7, 0x20000
v_mov_b32 v1, -1
v_mov_b32 v2, {init}
v_mov_b32 v8, {init}
v_mov_b32 v3, v0
s_mov_b32 s8, 0
s_mov_b32 s12, {w0}
s_mov_b32 s13, {w1}
LD_l:
v_lshlrev_b32 v4, 8, v3
buffer_load_dword v5, v4, s[4:7], 0 offen sc1
buffer_load_dword v6, v4, s[4:7], 0 offen offset:{4*k} sc1
s_waitcnt vmcnt(0)
v_min_u32 v1, v1, v5
v_cmp_le_u32 vcc, s12, v3
s_nop 4
v_cndmask_b32 v6, v8, v6, vcc
v_cmp_gt_u32 vcc, s13, v3
s_nop 4
v_cndmask_b32 v6, v8, v6, vcc
v_cmp_ne_u32 vcc, 0, v6
s_nop 4
v_cndmask_b32 v6, v8, v6, vcc
v_{op}_u32 v2, v2, v6
v_add_u32 v3, 64, v3
s_add_u32 s8, s8, 1
s_cmp_lt_u32 s8, {nw//64}
s_cbranch_scc1 LD_l
s_mov_b32 s8, 0
s_mov_b32 s9, -1
s_mov_b32 s10, {init}
LD_r:
s_nop 4
v_readlane_b32 s11, v1, s8
v_readlane_b32 s14, v2, s8
s_nop 4
s_min_u32 s9, s9, s11
s_{op}_u32 s10, s10, s14
s_add_u32 s8, s8, 1
s_cmp_lt_u32 s8, 64
s_cbranch_scc1 LD_r
{"s_mov_b32 s10, s20" if self_ else ""}
s_sub_u32 s10, s10, s9
s_min_u32 s10, s10, 20000
s_mul_i32 s10, s10, {K}
s_memrealtime s[16:17]
s_waitcnt lgkmcnt(0)
LD_s:
s_memrealtime s[18:19]
s_waitcnt lgkmcnt(0)
s_sub_u32 s18, s18, s16
s_cmp_lt_u32 s18, s10
s_cbranch_scc1 LD_s
LD_end:
s_endpgm
"""
def finish(o, head, text, lds, grid=256, blk=512, vg=256):
    if o["diag"]:
        L = f"; @launch kernel={KN}_kernel grid=({grid},1,1) block=({blk},1,1) lds={lds}\n; @launch kernel=diag_kernel grid=(1,1,1) block=(64,1,1) lds=0\n"
        text = text + diag_kernel(*o["diag"]); extra = kd("diag_kernel", 16)
    elif o.get("pre") or o.get("post"):
        L = f"; @launch kernel={KN}_kernel grid=({grid},1,1) block=({blk},1,1) lds={lds}\n"
        e = lambda n, g, b, l: f"; @launch kernel=empty_kernel grid=({g},1,1) block=({b},1,1) lds={l}\n" * n
        if o.get("pre"): L = e(*o["pre"]) + L
        if o.get("post"): L = L + e(*o["post"])
        text = text + ".globl empty_kernel\n.p2align 8\n.type empty_kernel,@function\nempty_kernel:\ns_endpgm\n"; extra = kd("empty_kernel", o.get("evg", 16))
    else:
        L = f"; @launch grid=({grid},1,1) block=({blk},1,1) lds={lds}\n"; extra = ""
    return head + L + f""".amdgcn_target "amdgcn-amd-amdhsa--gfx950"
.text
.globl {KN}_kernel
.p2align 8
.type {KN}_kernel,@function
""" + text + '.section .rodata,"a"\n' + kd(KN + "_kernel", vg) + extra
def _old(a, head):
    return head + f"""; @launch grid=(256,1,1) block=(512,1,1) lds={LDS_SIZE}
.amdgcn_target "amdgcn-amd-amdhsa--gfx950"
.text
.globl {KN}_kernel
.p2align 8
.type {KN}_kernel,@function
""" + a.text() + f""".section .rodata,"a"
.p2align 6
.amdhsa_kernel {KN}_kernel
  .amdhsa_next_free_vgpr 256
  .amdhsa_next_free_sgpr 102
  .amdhsa_accum_offset 256
  .amdhsa_group_segment_fixed_size 0
  .amdhsa_kernarg_size 96
  .amdhsa_user_sgpr_count 2
  .amdhsa_user_sgpr_kernarg_segment_ptr 1
  .amdhsa_system_sgpr_workgroup_id_x 1
.end_amdhsa_kernel
"""
if __name__ == "__main__":
    kw = {}
    out = f"cdna_kernels/{KN}.s"
    for x in sys.argv[1:]:
        k, val = x.split("=", 1)
        if k == "out": out = val
        else: kw[k] = eval(val)
    open(out, "w").write(gen(**kw))
```

```python
import sys, struct
sys.path.insert(0, "exp")
from asmlib import *
KN = "sequential_preLN__gqa_block_cached__glu_gated_geglu__decode"
def f2u(x): return "0x%08x" % struct.unpack("<I", struct.pack("<f", x))[0]
LOG2E = 1.4426950408889634
QM, CAN, DM, PG, OM, YM, MBX = 0, 98304, 98432, 167552, 178176, 1161216, 1211008
SOON, CNT = 1202176, 1206912
ORS, YRS = 122880, 10240
OOB = 0x80000000
STAMP_OFF = 128 << 20
LH, LP, LO, LY, LD, LDUMP, LDS_SIZE = 0, 3072, 11776, 15872, 20992, 42496, 46592
DEF = dict(kv="nt", wt="nt", kbar=False, stamps=False, gate=True, hdr=True, shots=[(0,40),(1,32),(2,24),(3,12)], prio=0, il=2, diag=None, one=False, gthr=1, dry=False, adry=False, thr=0, tail=8, stag=0, trig=None, xearly=False, nv=24, vpos=1, outp="", lnf=False, p1=(1,0), p2=(1,0), p3=(1,0), skip=False, g2=0, r1=1, r2=1, mlf=False, al2=False, can=False, xtrig=False, dyn=0, d2=0, pos=1, pf=None, thr5=0, tw=1)
def gen(**kw):
    o = dict(DEF); o.update(kw)
    a = A()
    KV = o["kv"]; WT = o["wt"]
    def stamp(k):
        if o["stamps"] is True or (o["stamps"] and k in o["stamps"]): a(f"s_memrealtime s[100:101]\ns_waitcnt lgkmcnt(0)\nv_writelane_b32 v1, s100, {k}")
    def stamp_out():
        if o["stamps"]:
            a(f"""s_add_u32 s96, s26, {STAMP_OFF}
            s_addc_u32 s97, s27, 0
            s_mov_b32 s98, 0x100000
            s_mov_b32 s99, 0x20000
            s_lshl_b32 s94, s2, 3
            s_add_u32 s94, s94, s3
            s_lshl_b32 s94, s94, 8
            s_mov_b64 exec, -1
            v_lshlrev_b32 v2, 2, v0
            buffer_store_dword v1, v2, s[96:99], s94 offen""")
    def srd(d, b, n, add=None):
        if add is None: a(f"s_mov_b32 s{d}, s{b}\ns_mov_b32 s{d+1}, s{b+1}")
        else: a(f"s_add_u32 s{d}, s{b}, {add}\ns_addc_u32 s{d+1}, s{b+1}, 0")
        a(f"s_mov_b32 s{d+2}, {n}\ns_mov_b32 s{d+3}, 0x20000")
    def spin(lbl, sb):
        a(f"s_sub_u32 s{sb}, s{sb}, 1\ns_cbranch_scc0 {lbl}\ns_mov_b32 s{sb}, 0")
    def poll(name, kd, n, issue, check, leave, sb):
        k, d = kd
        for i in range(k):
            if i == k - 1: a(f"L_{name}:")
            issue(i)
            if d and k > 1: a(f"s_sleep {d}")
        for i in range(k):
            a(f"s_waitcnt vmcnt({(k-1)*n})"); check(i)
            a(f"s_cbranch_vccz L_{name}ok{i}")
            if i < k - 1:
                issue(i)
                if d: a(f"s_sleep {d}")
        spin(f"L_{name}", sb)
        for i in reversed(range(k)):
            a(f"L_{name}ok{i}:"); leave(i)
            if i > 0: a(f"s_branch L_{name}j")
        a(f"L_{name}j:")
    def nonce(N, T):
        a(f"""s_or_b32 s{N}, s{N}, 0x01010101
        s_add_u32 s{N}, s{N}, 1
        s_or_b32 s{N}, s{N}, 0x01010101
        s_and_b32 s{T}, s{N}, 0xff
        s_bfe_u32 s{T+1}, s{N}, 0x80008
        s_bfe_u32 s{T+2}, s{N}, 0x80010
        s_lshr_b32 s{T+3}, s{N}, 24""")
    def tag4(r, vm, T):
        for k in range(4): a(f"v_bfi_b32 v{r+k}, v{vm}, s{T+k}, v{r+k}")
    def chk(regs, refs, acc):
        for n, (r, f) in enumerate(zip(regs, refs)):
            d = acc[n % 2]
            a(f"v_msad_u8 v{d}, v{r}, {f}, {'0' if n < 2 else 'v%d' % d}")
        a(f"v_or_b32 v{acc[0]}, v{acc[0]}, v{acc[1]}")
    def masks(dst, andm, t0, t1):
        a(f"""v_and_b32 v{t0}, 1, v0
        v_lshlrev_b32 v{t0}, 4, v{t0}
        v_mov_b32 v{t1}, 0xffff
        v_lshlrev_b32 v{t0}, v{t0}, v{t1}
        v_and_b32 v{t1}, {andm}, v0
        v_lshrrev_b32 v{t1}, 1, v{t1}""")
        for r in range(4):
            a(f"v_cmp_eq_u32 vcc, {r}, v{t1}\nv_cndmask_b32 v{dst+r}, 0, v{t0}, vcc")
    a(f"{KN}_kernel:")
    if o["stamps"]: a("s_memrealtime s[100:101]")
    a("""s_cmp_ge_u32 s2, 256
    s_cbranch_scc1 L_end
    s_load_dwordx16 s[4:19], s[0:1], 0
    s_load_dwordx8 s[20:27], s[0:1], 64
    v_lshrrev_b32 v2, 6, v0
    v_and_b32 v0, 63, v0
    v_readfirstlane_b32 s3, v2
    s_cmp_lt_u32 s2, 64
    s_cbranch_scc1 L_aux""")
    for i in range(192): assert (i * 171) >> 10 == i // 6
    K0, V0, AQ, DQ, ACC, MK, S0 = 16, 112, 208, 224, 248, 4, 8
    D2 = o["d2"]; DY = o["dyn"] or D2
    if DY: tile0 = """s_mul_i32 s39, s38, 40
    s_mul_i32 s42, s3, 5
    s_add_u32 s39, s39, s42
    s_sub_u32 s89, 240, s39
    s_lshl_b32 s90, s37, 7
    s_add_u32 s90, s90, %d""" % CNT
    else: tile0 = f"""    s_mul_i32 s39, s38, 43
    s_cmp_eq_u32 s38, 5
    s_cselect_b32 s40, 1, 0
    s_sub_u32 s39, s39, s40
    s_cmp_lt_u32 s38, 4
    s_cselect_b32 s40, 3, 2
    s_min_u32 s41, s3, s40
    s_mul_i32 s42, s3, 5
    s_add_u32 s39, s39, s41
    s_add_u32 s39, s39, s42
    s_cmp_lt_u32 s3, s40
    s_cselect_b32 s41, 0, 1
    s_cselect_b32 s43, 0, {OOB}
    s_cselect_b32 s44, 0, 0xff800000
    s_sub_u32 s39, s39, s41"""
    LQ = 5632
    a(f"""s_sub_u32 s36, s2, 64
    s_mul_i32 s37, s36, 171
    s_lshr_b32 s37, s37, 10
    s_mul_i32 s38, s37, 6
    s_sub_u32 s38, s36, s38
    {tile0}
    s_lshl_b32 s39, s39, 12
    s_lshl_b32 s42, s37, 20
    s_add_u32 s39, s39, s42
    v_bfe_u32 v2, v0, 2, 2
    v_lshrrev_b32 v3, 4, v0
    v_and_b32 v4, 3, v0
    v_lshlrev_b32 v2, 8, v2
    v_lshlrev_b32 v4, 4, v4
    v_lshl_add_u32 v2, v3, 6, v2
    v_add3_u32 v252, v2, v4, s39
    v_and_b32 v4, 15, v0
    v_lshlrev_b32 v3, 10, v3
    v_lshlrev_b32 v4, 4, v4
    v_add3_u32 v254, v3, v4, s39
    {"" if DY else "v_or_b32 v253, s43, v252"}
    {"" if DY else "v_or_b32 v255, s43, v254"}
    v_mov_b32 v2, 0
    v_mov_b32 v3, 0
    v_lshlrev_b32 v4, 3, v0
    ds_write_b64 v4, v[2:3] offset:{LQ}
    s_waitcnt lgkmcnt(0)
    s_barrier""")
    if o["stamps"]: a("v_mov_b32 v1, 0\nv_writelane_b32 v1, s100, 0")
    a(f"s_load_dword s84, s[26:27], {CAN}")
    srd(28, 6, 1 << 25); srd(32, 8, 1 << 25)
    if o["prio"]: a(f"s_cmp_lg_u32 s3, 0\ns_cbranch_scc1 L_noprio\ns_setprio {o['prio']}\nL_noprio:")
    for s_ in range(1, 6): a(f"s_mov_b32 s{15+s_}, {4096*(s_-1 if DY else s_)}")
    NV = o["nv"]; TH = o["thr"]; SG = o["stag"]
    KL = [f"buffer_load_dwordx4 {v(K0+16*sl+4*t,4)}, {'v253' if sl==0 else 'v252'}, s[28:31], {'0' if sl==0 else 's%d'%(15+sl)} offen offset:{1024*t} {KV}" for sl in range(6) for t in range(4)]
    VL = [f"buffer_load_dwordx4 {v(V0+16*sl+4*t,4)}, {'v255' if sl==0 else 'v254' if D2 else 'v248'}, s[32:35], {'0' if sl==0 else 's%d'%(15+sl)} offen offset:{256*t} {KV}" for sl in range(6) for t in range(4)]
    assert NV >= 4
    a("v_mov_b32 v248, v254")
    srd(12, 26, MBX)
    def progress(n, done=False):
        if o["trig"] and n in o["trig"][1:]:
            a(f"s_cmp_lg_u32 s3, {o['trig'][0]}\ns_cbranch_scc1 L_notrig{n}")
            if o["trig"][1] != o["trig"][2]: a(f"s_cmp_{'ge' if n == o['trig'][1] else 'lt'}_u32 s2, 175\ns_cbranch_scc1 L_notrig{n}")
            if n < 100 and not done: a("s_waitcnt lgkmcnt(0)\ns_or_b32 s22, s84, 0x01010101\ns_add_u32 s22, s22, 1\ns_or_b32 s22, s22, 0x01010101")
            else: a("s_mov_b32 s22, s84")
            a(f"""s_sub_u32 s24, s2, 64
            s_mul_i32 s23, s24, 171
            s_lshr_b32 s23, s23, 9
            s_mul_i32 s25, s23, 3
            s_sub_u32 s24, s24, s25
            s_cmp_ge_u32 s23, 37
            s_cselect_b32 s25, 37, 0
            s_sub_u32 s23, s23, s25
            s_cmp_eq_u32 s25, 0
            s_cselect_b32 s91, {37 // o["tw"]}, {27 // o["tw"]}
            v_mov_b32 v2, s23
            v_mad_u32_u24 v2, v0, s91, v2
            s_cselect_b32 s91, 37, 27
            v_subrev_u32 v3, s91, v2
            v_min_u32 v2, v2, v3
            v_add_u32 v2, s25, v2
            v_lshlrev_b32 v2, 7, v2
            v_mad_u32_u24 v3, v0, 12, v2
            s_lshl_b32 s24, s24, 2
            s_add_u32 s24, s24, {PG}
            v_add_u32 v3, s24, v3
            v_mov_b32 v2, s22
            s_mov_b64 exec, {(1 << o["tw"]) - 1}
            buffer_store_dword v2, v3, s[12:15], 0 offen sc1
            s_mov_b64 exec, -1
            L_notrig{n}:""")
    for i_ in range(192): assert (i_ * 171) >> 9 == i_ // 3
    def set_s():
        a(f"""s_lshl_b32 s5, s36, 9
        s_add_u32 s10, s26, s5
        s_addc_u32 s11, s27, 0
        s_mov_b32 s4, 0x100000
        {"" if DY else "s_mov_b32 s5, s44"}
        s_mul_i32 s6, s36, 640
        s_add_u32 s6, s6, {OM}
        s_mul_i32 s7, s3, 544
        s_mov_b32 s8, {f2u(LOG2E)}
        s_mov_b32 s9, 0x3db504f3
        s_mov_b32 s21, 0xffff0000
        """)
    def set_late():
        if not D2: masks(MK, 15, 2, 3)
        a(f"""v_and_b32 v2, 15, v0
        v_lshrrev_b32 v3, 4, v0
        v_lshlrev_b32 v2, 5, v2
        v_lshl_add_u32 v2, v3, 4, v2
        v_add_u32 v2, s7, v2
        v_lshlrev_b32 v3, 4, v0
        v_add_u32 v3, 4352, v3
        v_cmp_gt_u32 vcc, 32, v0
        v_cndmask_b32 v252, v3, v2, vcc
        s_add_u32 s22, s7, 512
        v_mov_b32 v2, s22
        v_cmp_eq_u32 vcc, 0, v0
        v_cndmask_b32 v253, v3, v2, vcc
        v_mov_b32 v3, {OOB}
        v_and_b32 v2, 7, v0
        v_mul_u32_u24 v255, 544, v2
        v_cmp_gt_u32 vcc, {o["r1"]}, v2
        v_mul_u32_u24 v14, {ORS}, v2
        v_add_u32 v14, s6, v14
        v_cndmask_b32 v14, v3, v14, vcc
        v_lshrrev_b32 v2, 3, v0
        v_lshlrev_b32 v2, 4, v2
        v_add_u32 v15, v14, v2
        v_add_u32 v15, 512, v15
        v_cmp_gt_u32 vcc, {64 if o["mlf"] else 8}, v0
        v_cndmask_b32 v15, v3, v15, vcc
        s_lshl_b32 s22, s3, 7
        v_add_u32 v2, s22, v2
        v_add_u32 v254, v255, v2
        v_add_u32 v14, v14, v2
        """)
        if o["one"]:
            a(f"""v_lshlrev_b32 v254, 3, v0
            v_and_b32 v2, 1, v0
            v_cmp_eq_u32 vcc, 0, v2
            v_add_u32 v2, s6, v254
            v_mov_b32 v3, {OOB}
            v_cndmask_b32 v14, v3, v2, vcc""")
    def set_q():
        a(f"""
        v_bfe_u32 v2, v0, 2, 2
        v_lshrrev_b32 v3, 4, v0
        v_and_b32 v8, 3, v0
        v_lshlrev_b32 v3, 6, v3
        v_lshl_add_u32 v3, v8, 4, v3
        v_mov_b32 v12, 256""")
        for t in range(4): a(f"v_cmp_eq_u32 vcc, {t}, v2\nv_cndmask_b32 v{8+t}, v12, v3, vcc")
        a("s_waitcnt lgkmcnt(0)"); nonce(84, 85)
    def q_wait():
        a("s_cmp_lg_u32 s3, 0\ns_cbranch_scc1 L_qwait")
        for h in range(2):
            a(f"""L_q{h}:
            s_load_dwordx16 s[36:51], s[10:11], {256*h} glc
            s_load_dwordx16 s[52:67], s[10:11], {256*h+64} glc
            s_load_dwordx16 s[68:83], s[10:11], {256*h+128} glc
            s_waitcnt lgkmcnt(0)
            s_xor_b32 s22, s39, s84""")
            for j_ in range(1, 11): a(f"s_xor_b32 s23, s{39+4*j_}, s84\ns_or_b32 s22, s22, s23")
            a(f"s_cbranch_scc0 L_q{h}ok")
            spin(f"L_q{h}", 4)
            a(f"L_q{h}ok:")
            if h == 0: stamp(2)
            for d in range(32): a(f"v_writelane_b32 v2, s{36 + 4*(d//3) + d%3}, {32*h+d}")
        a(f"""v_lshlrev_b32 v3, 2, v0
        v_mov_b32 v13, 1
        ds_write_b32 v3, v2 offset:{LQ}
        ds_write_b32 v12, v13 offset:{LQ+16}
        L_qwait:
        ds_read_b32 v13, v12 offset:{LQ+16}
        s_waitcnt lgkmcnt(0)
        v_cmp_eq_u32 vcc, 1, v13
        s_cbranch_vccnz L_qgo
        s_sleep 2""")
        spin("L_qwait", 4)
        a("L_qgo:")
        for t in range(4): a(f"ds_read_b128 {v(AQ+4*t,4)}, v{8+t} offset:{LQ}")
        a("s_waitcnt lgkmcnt(0)")
    if not DY:
        def issue(th, real, sfx):
            for n, x in enumerate(KL + VL[:NV]):
                a(x)
                if th and th <= n < 24 + NV - o["tail"] and (real or not (n < 4 or 24 <= n < 28)): a(f"s_waitcnt vmcnt({th})")
                if n == 23 and o["kbar"]: a("s_barrier")
                if not sfx: progress(n + 1)
        if o["thr5"]:
            assert o["trig"] is None or o["trig"][0] >= 3
            a("s_cmp_eq_u32 s43, 0\ns_cbranch_scc1 L_iss6")
            issue(o["thr5"], False, "")
            a("s_branch L_issd\nL_iss6:")
            issue(TH, True, "6")
            a("L_issd:")
        else: issue(TH, True, "")
        if SG:
            a("s_cmp_lt_u32 s3, 4\ns_cbranch_scc1 L_stag0")
            for n, x in enumerate(VL[NV:NV+SG]):
                a(x)
                if TH: a(f"s_waitcnt vmcnt({TH + o['tail']})")
                progress(25 + NV + n)
            a("L_stag0:")
        stamp(1); set_s(); set_late(); set_q(); q_wait()
    elif D2:
        def claim_use():
            a(f"""s_waitcnt vmcnt({36 - D2})
            v_readfirstlane_b32 s22, v15
            s_bitcmp1_b32 s22, 0
            s_cbranch_scc1 L_claimed
            s_waitcnt vmcnt(0)
            v_readfirstlane_b32 s22, v15
            L_claimed:
            s_lshr_b32 s22, s22, 1
            s_add_u32 s23, s22, s89
            s_lshl_b32 s23, s23, 12
            s_cmp_lt_u32 s22, 16
            s_cselect_b32 s23, s23, {OOB}
            s_cselect_b32 s5, 0, 1
            v_add_u32 v253, s23, v252
            v_add_u32 v255, s23, v254""")
            for x in KL[:4] + VL[20:] + VL[:4]: a(x)
            stamp(8)
            set_late()
        for n, x in enumerate(KL[4:] + VL[4:20]):
            if n == D2:
                a("s_waitcnt lgkmcnt(0)\ns_cmp_eq_u32 s95, s84\ns_cbranch_scc1 L_cok\nL_cw:\ns_load_dword s95, s[92:93], 4 glc\ns_waitcnt lgkmcnt(0)\ns_cmp_eq_u32 s95, s84\ns_cbranch_scc1 L_cok")
                spin("L_cw", 4)
                a("""L_cok:
                v_mov_b32 v15, 2
                v_mov_b32 v14, s90
                s_mov_b64 exec, 1
                buffer_atomic_add v15, v14, s[12:15], 0 offen sc0 sc1
                s_mov_b64 exec, -1""")
            if n == D2 - 6: a("s_load_dword s95, s[92:93], 4 glc")
            a(x)
            if n == 4:
                set_s(); set_q(); masks(MK, 15, 2, 3)
                a(f"""s_add_u32 s92, s26, s90
                s_addc_u32 s93, s27, 0
                s_or_b32 s22, s38, s3
                s_cmp_lg_u32 s22, 0
                s_cbranch_scc1 L_noinit
                v_mov_b32 v14, s84
                v_cmp_gt_u32 vcc, 1, v0
                v_cndmask_b32 v14, v14, 1, vcc
                v_lshl_add_u32 v15, v0, 2, s90
                s_mov_b32 exec_hi, 0
                buffer_store_dword v14, v15, s[12:15], 0 offen sc1
                s_mov_b64 exec, -1
                L_noinit:""")
            if TH and TH <= n < 36 - o["tail"]: a(f"s_waitcnt vmcnt({TH})")
            progress(n + 1, n >= 4)
        stamp(1)
        if o["pos"] == 0: claim_use()
        q_wait()
    else:
        order = KL[4:] + VL[4:20] + KL[:4] + VL[20:] + VL[:4]
        for n, x in enumerate(order):
            if n == DY:
                stamp(1); q_wait()
                a("""v_mov_b32 v13, 2
                v_mov_b32 v12, s90
                s_mov_b64 exec, 1
                buffer_atomic_add v13, v12, s[12:15], 0 offen sc0 sc1
                s_mov_b64 exec, -1""")
            if n == 36:
                a(f"""s_waitcnt vmcnt({36 - DY})
                v_readfirstlane_b32 s22, v13
                s_bitcmp1_b32 s22, 0
                s_cbranch_scc1 L_claimed
                s_waitcnt vmcnt(0)
                v_readfirstlane_b32 s22, v13
                L_claimed:
                s_lshr_b32 s22, s22, 1
                s_add_u32 s23, s22, s89
                s_lshl_b32 s23, s23, 12
                s_cmp_lt_u32 s22, 16
                s_cselect_b32 s23, s23, {OOB}
                s_cselect_b32 s5, 0, 0xff800000
                v_add_u32 v253, s23, v252
                v_add_u32 v255, s23, v248""")
                stamp(8)
            a(x)
            if n == 4: set_s(); set_q()
            if TH and TH <= n < 48 - o["tail"]: a(f"s_waitcnt vmcnt({TH})")
            progress(n + 1, n >= 4)
        set_late()
    def att_d2():
        D = "row_mask:0xf bank_mask:0xf"
        Y = 12 if o["pos"] == 0 else 0
        SL = [1, 2, 3, 4, 5]
        stamp(3)
        for sl in SL:
            a(f"s_waitcnt vmcnt({16 + Y + 4*(5-sl)})")
            for t in range(4):
                a(f"v_mfma_f32_16x16x32_bf16 {v(DQ+4*sl,4)}, {v(AQ+4*t,4)}, {v(K0+16*sl+4*t,4)}, {'0' if t==0 else v(DQ+4*sl,4)}")
        stamp(4); progress(100)
        def extract(L):
            for r in range(4):
                for sl in L:
                    qp = f"quad_perm:[{r},{r},{r},{r}] {D}"
                    if r == 0: a(f"v_mov_b32_dpp v{S0+sl}, v{DQ+4*sl} {qp}")
                    else: a(f"v_add_f32_dpp v{S0+sl}, v{DQ+4*sl+r}, v{S0+sl} {qp}")
        def red(op, R, TT):
            a(f"""v_{op}_f32_dpp v{R}, v{R}, v{R} row_ror:4 {D}
            v_{op}_f32_dpp v{R}, v{R}, v{R} row_ror:8 {D}
            v_mov_b32 v{TT}, v{R}
            v_permlane16_swap_b32 v{R}, v{TT}
            v_{op}_f32 v{R}, v{R}, v{TT}
            v_mov_b32 v{TT}, v{R}
            v_permlane32_swap_b32 v{R}, v{TT}
            v_{op}_f32 v{R}, v{R}, v{TT}""")
        extract(SL)
        T = DQ + 4; M, L_, TT, PK, F, A0 = T + 4, T + 5, T + 6, T + 8, T + 7, T + 8
        for rnd in range(2):
            a(f"v_cvt_pk_bf16_f32 v{T}, v{S0+1}, v{S0+1}")
            for p in (1, 2): a(f"v_cvt_pk_bf16_f32 v{T+p}, v{S0+2*p}, v{S0+2*p+1}")
            a(f"v_and_b32 v{S0+1}, s21, v{T}")
            for p in (1, 2): a(f"v_lshlrev_b32 v{S0+2*p}, 16, v{T+p}\nv_and_b32 v{S0+2*p+1}, s21, v{T+p}")
            if rnd == 0:
                for sl in SL: a(f"v_mul_f32 v{S0+sl}, s9, v{S0+sl}")
        a(f"v_max3_f32 v{M}, v{S0+1}, v{S0+2}, v{S0+3}\nv_max3_f32 v{M}, v{S0+4}, v{S0+5}, v{M}")
        red("max", M, TT)
        a(f"v_mul_f32 v{M}, s8, v{M}")
        for sl in SL: a(f"v_fma_f32 v{S0+sl}, v{S0+sl}, s8, -v{M}")
        for sl in SL: a(f"v_exp_f32 v{S0+sl}, v{S0+sl}")
        for sl in SL: a(f"v_cvt_pk_bf16_f32 v{PK+sl}, v{S0+sl}, v{S0+sl}")
        def pbuild(sl, src):
            for k in range(4):
                for r in range(4): a(f"v_and_b32_dpp v{K0+16*sl+4*k+r}, v{src}, v{MK+r} row_newbcast:{4*k} {D}")
        if o["pos"] == 2: claim_use()
        for sl in SL: pbuild(sl, PK+sl)
        a(f"""v_add_f32 v{L_}, v{S0+1}, v{S0+2}
        v_add_f32 v{TT}, v{S0+3}, v{S0+4}
        v_add_f32 v{L_}, v{L_}, v{S0+5}
        v_add_f32 v{L_}, v{L_}, v{TT}""")
        red("add", L_, TT)
        if o["pos"] == 1: claim_use()
        stamp(5)
        for sl in SL[:4]:
            a(f"s_waitcnt vmcnt({12 + 4*(4-sl)})"); progress(100 + sl)
            for k in range(4): a(f"v_mfma_f32_16x16x32_bf16 {v(ACC,4)}, {v(K0+16*sl+4*k,4)}, {v(V0+16*sl+4*k,4)}, {'0' if sl==1 and k==0 else v(ACC,4)}")
        def pv5():
            for k in range(4): a(f"s_waitcnt vmcnt({7-k})\nv_mfma_f32_16x16x32_bf16 {v(ACC,4)}, {v(K0+80+4*k,4)}, {v(V0+80+4*k,4)}, {v(ACC,4)}")
        a("s_cmp_eq_u32 s5, 0\ns_cbranch_scc1 L_won")
        pv5()
        a("s_branch L_pvdone\nL_won:\ns_waitcnt vmcnt(8)")
        for t in range(4): a(f"v_mfma_f32_16x16x32_bf16 {v(DQ,4)}, {v(AQ+4*t,4)}, {v(K0+4*t,4)}, {'0' if t==0 else v(DQ,4)}")
        extract([0])
        a(f"""v_cvt_pk_bf16_f32 v{S0}, v{S0}, v{S0}
        v_and_b32 v{S0}, s21, v{S0}
        v_mul_f32 v{S0}, s9, v{S0}
        v_cvt_pk_bf16_f32 v{S0}, v{S0}, v{S0}
        v_and_b32 v{S0}, s21, v{S0}
        v_mov_b32 v{S0+1}, v{S0}""")
        red("max", S0+1, TT)
        a(f"""v_mul_f32 v{S0+1}, s8, v{S0+1}
        v_max_f32 v{S0+1}, v{S0+1}, v{M}
        v_fma_f32 v{S0}, v{S0}, s8, -v{S0+1}
        v_sub_f32 v{F}, v{M}, v{S0+1}
        v_exp_f32 v{S0}, v{S0}
        v_exp_f32 v{F}, v{F}
        v_mov_b32 v{M}, v{S0+1}
        v_cvt_pk_bf16_f32 v{S0+2}, v{S0}, v{S0}""")
        pbuild(0, S0+2)
        pv5()
        red("add", S0, TT)
        a(f"v_fma_f32 v{L_}, v{L_}, v{F}, v{S0}")
        for k in range(4): a(f"s_waitcnt vmcnt({3-k})\nv_mfma_f32_16x16x32_bf16 {v(A0,4)}, {v(K0+4*k,4)}, {v(V0+4*k,4)}, {'0' if k==0 else v(A0,4)}")
        for r in range(4): a(f"v_fma_f32 v{ACC+r}, v{ACC+r}, v{F}, v{A0+r}")
        a(f"L_pvdone:\nds_write_b64 v253, {v(M,2)}")
    if D2: att_d2()
    else:
        stamp(3)
        for sl in ([1, 2, 3, 4, 5, 0] if DY else range(6)):
            if not DY: a(f"s_waitcnt vmcnt({20+NV-4*sl})")
            elif sl < 2: a(f"s_waitcnt vmcnt({28 if sl else 8})")
            for t in range(4):
                a(f"v_mfma_f32_16x16x32_bf16 {v(DQ+4*sl,4)}, {v(AQ+4*t,4)}, {v(K0+16*sl+4*t,4)}, {'0' if t==0 else v(DQ+4*sl,4)}")
        stamp(4); progress(100)
        for r in range(4):
            for sl in range(6):
                qp = f"quad_perm:[{r},{r},{r},{r}] row_mask:0xf bank_mask:0xf"
                if r == 0: a(f"v_mov_b32_dpp v{S0+sl}, v{DQ+4*sl} {qp}")
                else: a(f"v_add_f32_dpp v{S0+sl}, v{DQ+4*sl+r}, v{S0+sl} {qp}")
        T = AQ
        for rnd in range(2):
            for p in range(3): a(f"v_cvt_pk_bf16_f32 v{T+p}, v{S0+2*p}, v{S0+2*p+1}")
            for p in range(3): a(f"v_lshlrev_b32 v{S0+2*p}, 16, v{T+p}\nv_and_b32 v{S0+2*p+1}, s21, v{T+p}")
            if rnd == 0:
                for sl in range(6): a(f"v_mul_f32 v{S0+sl}, s9, v{S0+sl}")
        M, L_, TT = T + 4, T + 5, T + 6
        a(f"""v_add_f32 v{S0}, s5, v{S0}
        v_max3_f32 v{M}, v{S0+1}, v{S0+2}, v{S0+3}
        v_max3_f32 v{TT}, v{S0+4}, v{S0+5}, v{S0}
        v_max_f32 v{M}, v{M}, v{TT}
        v_max_f32_dpp v{M}, v{M}, v{M} row_ror:4 row_mask:0xf bank_mask:0xf
        v_max_f32_dpp v{M}, v{M}, v{M} row_ror:8 row_mask:0xf bank_mask:0xf
        v_mov_b32 v{TT}, v{M}
        v_permlane16_swap_b32 v{M}, v{TT}
        v_max_f32 v{M}, v{M}, v{TT}
        v_mov_b32 v{TT}, v{M}
        v_permlane32_swap_b32 v{M}, v{TT}
        v_max_f32 v{M}, v{M}, v{TT}
        v_mul_f32 v{M}, s8, v{M}""")
        for sl in range(6): a(f"v_fma_f32 v{S0+sl}, v{S0+sl}, s8, -v{M}")
        for sl in range(6): a(f"v_exp_f32 v{S0+sl}, v{S0+sl}")
        PK = T + 8
        for sl in range(6): a(f"v_cvt_pk_bf16_f32 v{PK+sl}, v{S0+sl}, v{S0+sl}")
        for sl in range(6):
            for k in range(4):
                for r in range(4):
                    a(f"v_and_b32_dpp v{K0+16*sl+4*k+r}, v{PK+sl}, v{MK+r} row_newbcast:{4*k} row_mask:0xf bank_mask:0xf")
        a(f"""v_add_f32 v{L_}, v{S0}, v{S0+1}
        v_add_f32 v{TT}, v{S0+2}, v{S0+3}
        v_add_f32 v{S0+4}, v{S0+4}, v{S0+5}
        v_add_f32 v{L_}, v{L_}, v{TT}
        v_add_f32 v{L_}, v{L_}, v{S0+4}
        v_add_f32_dpp v{L_}, v{L_}, v{L_} row_ror:4 row_mask:0xf bank_mask:0xf
        v_add_f32_dpp v{L_}, v{L_}, v{L_} row_ror:8 row_mask:0xf bank_mask:0xf
        v_mov_b32 v{TT}, v{L_}
        v_permlane16_swap_b32 v{L_}, v{TT}
        v_add_f32 v{L_}, v{L_}, v{TT}
        v_mov_b32 v{TT}, v{L_}
        v_permlane32_swap_b32 v{L_}, v{TT}
        v_add_f32 v{L_}, v{L_}, v{TT}
        ds_write_b64 v253, {v(M,2)}""")
        if SG:
            a("s_cmp_ge_u32 s3, 4\ns_cbranch_scc1 L_stag1")
            for x in VL[NV:NV+SG]: a(x)
            a("L_stag1:")
        if not DY:
            for x in VL[NV+SG:]: a(x)
        stamp(5)
        for i_, sl in enumerate([1, 2, 3, 4, 5, 0] if DY else range(6)):
            for k in range(4):
                n = 23 - 4 * i_ - k
                if DY:
                    if i_ >= 4: a(f"s_waitcnt vmcnt({n})")
                elif k == 0 or sl == 5: a(f"s_waitcnt vmcnt({n - (3 if sl < 5 else 0)})")
                if k == 0: progress(101 + i_)
                a(f"v_mfma_f32_16x16x32_bf16 {v(ACC,4)}, {v(K0+16*sl+4*k,4)}, {v(V0+16*sl+4*k,4)}, {'0' if i_==0 and k==0 else v(ACC,4)}")
    stamp(6)
    a(f"""ds_write_b128 v252, {v(ACC,4)}
    s_waitcnt lgkmcnt(0)""")
    if o["adry"]:
        a(f"""s_mov_b32 s14, 0
        s_cmp_lt_u32 s3, {1 if o["one"] else 4}
        s_cbranch_scc1 L_comb
        L_bar:
        s_mov_b32 s14, {MBX}""")
    a(f"""s_barrier
    """)
    if o["one"]:
        a("""s_cmp_lg_u32 s3, 0
        s_cbranch_scc1 L_att_end
        L_comb:
        ds_read_b64 v[16:17], v255 offset:512""")
        for k in range(8): a(f"ds_read_b64 {v(28+2*k,2)}, v254 offset:{544*k}")
        a("""v_mov_b32 v26, s84
        v_mov_b32 v27, s84
        v_mov_b32 v18, 0xff
        s_waitcnt lgkmcnt(8)
        v_max_f32_dpp v24, v16, v16 quad_perm:[1,0,3,2] row_mask:0xf bank_mask:0xf
        v_max_f32_dpp v24, v24, v24 quad_perm:[2,3,0,1] row_mask:0xf bank_mask:0xf
        v_max_f32_dpp v24, v24, v24 row_half_mirror row_mask:0xf bank_mask:0xf
        v_sub_f32 v16, v16, v24
        v_exp_f32 v16, v16
        s_waitcnt lgkmcnt(0)
        v_mul_f32 v25, v16, v17""")
        D = "row_mask:0xf bank_mask:0xf"
        for k in range(8):
            for e in range(2):
                dst = 20 + e + 2 * (k & 1)
                a(f"v_{'mul' if k < 2 else 'fmac'}_f32_dpp v{dst}, v16, v{28+2*k+e} row_newbcast:{k} {D}")
            if k in (1, 3, 5): a(f"v_add_f32_dpp v25, v25, v25 {['quad_perm:[1,0,3,2]', 'quad_perm:[2,3,0,1]', 'row_half_mirror'][k//2]} {D}")
        a(f"""v_pk_add_f32 v[20:21], v[20:21], v[22:23]
        v_mov_b32_dpp v22, v20 quad_perm:[1,0,3,2] {D}
        v_mov_b32_dpp v23, v21 quad_perm:[1,0,3,2] {D}""")
        tag4(20, 18, 85)
        a("""buffer_store_dwordx4 v[20:23], v14, s[12:15], 0 offen sc1
        buffer_store_dwordx4 v[24:27], v15, s[12:15], 0 offen sc1""")
    else:
      a(f"""    s_cmp_ge_u32 s3, 4
    s_cbranch_scc1 L_att_end
    L_comb:
    ds_read_b64 v[16:17], v255 offset:512
    ds_read_b128 v[20:23], v254
    v_mov_b32 v26, s84
    v_mov_b32 v27, s84
    v_mov_b32 v18, 0xff
    s_waitcnt lgkmcnt(1)
    v_max_f32_dpp v24, v16, v16 quad_perm:[1,0,3,2] row_mask:0xf bank_mask:0xf
    v_max_f32_dpp v24, v24, v24 quad_perm:[2,3,0,1] row_mask:0xf bank_mask:0xf
    v_max_f32_dpp v24, v24, v24 row_half_mirror row_mask:0xf bank_mask:0xf
    v_sub_f32 v16, v16, v24
    v_exp_f32 v16, v16
    s_waitcnt lgkmcnt(0)
    v_mul_f32 v25, v16, v17""")
      for r in range(4): a(f"v_mul_f32 v{20+r}, v16, v{20+r}")
      for dp in ("quad_perm:[1,0,3,2]", "quad_perm:[2,3,0,1]", "row_half_mirror"):
          for r in (20, 21, 22, 23, 25): a(f"v_add_f32_dpp v{r}, v{r}, v{r} {dp} row_mask:0xf bank_mask:0xf")
      tag4(20, 18, 85)
      a("""buffer_store_dwordx4 v[20:23], v14, s[12:15], 0 offen sc1
    s_cmp_lg_u32 s3, 0
    s_cbranch_scc1 L_comb_end
    buffer_store_dwordx4 v[24:27], v15, s[12:15], 0 offen sc1
    L_comb_end:""")
    if o["adry"]: a("s_cmp_eq_u32 s14, 0\ns_cbranch_scc1 L_bar")
    a("L_att_end:")
    stamp(7)
    if o["pf"] is not None:
        for k_ in range(192): assert (k_ * 171) >> 13 == k_ // 48
        a(f"""s_load_dwordx4 s[36:39], s[0:1], 48
        s_load_dwordx2 s[40:41], s[0:1], 64
        s_sub_u32 s22, s2, 64
        s_and_b32 s23, s22, 0xf8
        s_add_u32 s23, s23, s3
        s_mul_i32 s24, s23, 171
        s_lshr_b32 s24, s24, 13
        s_mul_i32 s25, s24, 48
        s_sub_u32 s23, s23, s25
        s_add_u32 s22, s22, 3
        s_and_b32 s22, s22, 7
        s_lshl_b32 s24, s24, 3
        s_add_u32 s22, s22, s24
        s_barrier
        s_cmp_ge_u32 s22, 27
        s_cbranch_scc1 L_pf_end
        s_mov_b32 s46, 2211840
        s_mov_b32 s47, 0x20000
        s_cmp_ge_u32 s23, 32
        s_cbranch_scc1 L_pf_dn
        s_and_b32 s24, s23, 15
        s_mul_i32 s24, s24, {40*3456}
        s_lshl_b32 s22, s22, 7
        s_add_u32 s24, s24, s22
        v_lshrrev_b32 v2, 3, v0
        v_and_b32 v3, 7, v0
        v_mul_u32_u24 v2, 3456, v2
        v_lshl_add_u32 v2, v3, 4, v2
        s_mov_b32 s25, {8*3456}
        s_cmp_lt_u32 s23, 16
        s_waitcnt lgkmcnt(0)
        s_cselect_b32 s44, s36, s38
        s_cselect_b32 s45, s37, s39
        s_branch L_pf_go
        L_pf_dn:
        s_sub_u32 s24, s23, 32
        s_mul_i32 s24, s24, 5120
        s_mul_i32 s22, s22, 81920
        s_add_u32 s24, s24, s22
        v_lshlrev_b32 v2, 4, v0
        s_mov_b32 s25, 1024
        s_waitcnt lgkmcnt(0)
        s_mov_b32 s44, s40
        s_mov_b32 s45, s41
        L_pf_go:""")
        for k_ in range(5): a(f"buffer_load_dwordx4 {v(32+4*k_,4)}, v2, s[44:47], s24 offen {o['pf']}\ns_add_u32 s24, s24, s25")
        a("s_waitcnt vmcnt(0)\nL_pf_end:")
    stamp_out()
    a("L_end:\ns_endpgm")
    GU, WO, DN = 16, 96, 160
    M8, M4 = 4, 8
    SB = 80
    HW, HS, HC, PW, PR, YW = 240, 241, 242, 243, 244, 245
    C640, CG2 = 246, 249
    NS, TS, E0, VM = 93, 56, 247, 14
    g1 = -2 * LOG2E * 0.7978845608028654
    def gu_list():
        L = []
        for t in range(10):
            va = 250; k_ = t
            if o["al2"]: va, k_ = (110, t // 5) if t % 5 == 4 else (250, t - t // 5)
            so = "0" if k_ == 0 else f"s{59+k_}"
            L.append(f"buffer_load_dwordx4 {v(GU+8*t,4)}, v{va}, s[32:35], {so} offen {WT}")
            L.append(f"buffer_load_dwordx4 {v(GU+8*t+4,4)}, v{va}, s[36:39], {so} offen {WT}")
        return L
    def gu_setup():
        srd(32, 16, 2211840); srd(36, 18, 2211840)
        for t in range(1, 10): a(f"s_mov_b32 s{59+t}, {3456*t}")
        if o["al2"]:
            a("""s_lshl_b32 s72, s3, 3
            v_add_u32 v14, s72, v2
            v_mul_u32_u24 v250, 27648, v14
            v_mul_u32_u24 v110, 6912, v14
            s_lshl_b32 s72, s77, 7
            v_lshl_add_u32 v15, v3, 4, s72
            v_add_u32 v250, v250, v15
            v_add_u32 v110, v110, v15
            v_add_u32 v110, 1769472, v110
            v_lshrrev_b32 v14, 2, v0
            s_lshl_b32 s72, s3, 4
            v_add_u32 v111, s72, v14
            v_lshlrev_b32 v14, 3, v111
            v_lshlrev_b32 v15, 1, v111
            buffer_load_dwordx2 v[98:99], v14, s[28:31], 0 offen
            buffer_load_ushort v100, v15, s[28:31], 0 offen offset:1024""")
        else: a("s_lshl_b32 s72, s77, 7\nv_mul_u32_u24 v250, 3456, v12\nv_lshl_add_u32 v250, v3, 4, v250\nv_add_u32 v250, s72, v250")
    def dn_loads():
        srd(44, 20, 2211840)
        a("""s_lshl_b32 s72, s77, 3
        s_add_u32 s72, s72, s3
        s_mul_i32 s72, s72, 10240
        v_lshrrev_b32 v14, 4, v0
        v_mul_u32_u24 v14, 2560, v14
        v_and_b32 v15, 15, v0
        v_lshl_add_u32 v14, v15, 4, v14
        v_add_u32 v14, s72, v14""")
        for t in range(2):
            for b in range(5): a(f"buffer_load_dwordx4 {v(DN+20*t+4*b,4)}, v14, s[44:47], 0 offen offset:{1280*t+256*b} {WT}")
    def wo_list():
        return [f"buffer_load_dwordx4 {v(WO+4*t,4)}, v251, s[40:43], {'0' if t < 4 else 's%d' % (68 + t//4)} offen offset:{1280*(t&3)} {WT}" for t in range(16)]
    def xw_loads():
        XW = 16
        a(f"""s_mul_i32 s72, s79, 163840
                s_mul_i32 s73, s3, 20480
                s_add_u32 s72, s72, s73
                s_lshl_b32 s73, s75, 7
                s_add_u32 s72, s72, s73
                v_mul_u32_u24 v14, 2560, v2
                v_lshl_add_u32 v14, v3, 4, v14
                v_add_u32 v14, s72, v14
                s_mov_b32 s72, 163840
                s_mov_b32 s73, 327680""")
        for e in range(3):
            for t in range(2): a(f"buffer_load_dwordx4 {v(XW+8*e+4*t,4)}, v14, s[40:43], {['0','s72','s73'][e]} offen offset:{1280*t} {WT}")
    def wq_loads(base, va):
        for t in range(10): a(f"buffer_load_dwordx4 {v(base+4*t,4)}, v{va}, s[52:55], {'0' if t == 0 else 's%d' % (83+t)} offen {WT}")
    def ln(wait_c):
        for p in range(5): a(f"v_pk_add_f32 {v(204+2*p,2)}, {v(204+2*p,2)}, v[214:215] op_sel_hi:[1,0] neg_lo:[0,1] neg_hi:[0,1]")
        a("""v_pk_mul_f32 v[14:15], v[204:205], v[204:205]
        v_pk_add_f32 v[204:205], v[204:205], v[206:207]
        v_pk_fma_f32 v[14:15], v[206:207], v[206:207], v[14:15]
        v_pk_add_f32 v[206:207], v[208:209], v[210:211]
        v_pk_fma_f32 v[14:15], v[208:209], v[208:209], v[14:15]
        v_pk_add_f32 v[204:205], v[204:205], v[212:213]
        v_pk_fma_f32 v[14:15], v[210:211], v[210:211], v[14:15]
        v_pk_add_f32 v[204:205], v[204:205], v[206:207]
        v_pk_fma_f32 v[14:15], v[212:213], v[212:213], v[14:15]
        v_add_f32 v204, v204, v205
        v_add_f32 v14, v14, v15""")
        for dp in ("row_ror:1 row_mask:0xf", "row_ror:2 row_mask:0xf", "row_ror:4 row_mask:0xf", "row_ror:8 row_mask:0xf", "row_bcast:15 row_mask:0xa", "row_bcast:31 row_mask:0xc"):
            a(f"v_add_f32_dpp v204, v204, v204 {dp} bank_mask:0xf\nv_add_f32_dpp v14, v14, v14 {dp} bank_mask:0xf")
        a(f"""v_readlane_b32 s72, v204, 63
        v_readlane_b32 s73, v14, 63
        v_mul_f32 v14, s72, v{C640}
        v_mul_f32 v15, s73, v{C640}
        v_add_f32 v214, v214, v14
        v_fma_f32 v15, -v14, v14, v15
        v_cvt_pk_bf16_f32 v14, v214, v15
        v_and_b32 v15, s81, v14
        v_lshlrev_b32 v214, 16, v14
        v_add_f32 v15, {f2u(1e-5)}, v15""")
        a(wait_c)
        pk = [f"v_pk_add_f32 {v(216+2*p,2)}, {v(216+2*p,2)}, v[214:215] op_sel_hi:[1,0] neg_lo:[0,1] neg_hi:[0,1]" for p in range(5)]
        cv = [f"v_cvt_pk_bf16_f32 v{204+p}, v{216+2*p}, v{217+2*p}" for p in range(5)]
        un = [f"v_lshlrev_b32 v{216+2*p}, 16, v{204+p}\nv_and_b32 v{217+2*p}, s81, v{204+p}" for p in range(5)]
        a("v_cvt_pk_bf16_f32 v15, v15, v15"); a(pk[0]); a("v_and_b32 v15, s81, v15"); a(pk[1]); a("v_sqrt_f32 v15, v15")
        a(pk[2]); a(pk[3]); a("v_cvt_pk_bf16_f32 v15, v15, v15"); a(pk[4]); a("v_and_b32 v15, s81, v15"); a(cv[0]); a("v_rcp_f32 v14, v15")
        for x in cv[1:] + un: a(x)
        for p in range(5): a(f"v_pk_mul_f32 {v(216+2*p,2)}, {v(216+2*p,2)}, v[14:15] op_sel_hi:[1,0]")
        for t in range(10): a(f"v_cvt_pk_bf16_f32 v{216+t}, v{216+t}, v{216+t}")
    def qgemv(base, acc, after, nxt):
        nxt = list(nxt); issued = 0
        for t in range(10):
            for r in range(4): a(f"v_and_b32 v{228+4*(t%2)+r}, v{216+t}, v{M8+r}")
            a(f"s_waitcnt vmcnt({9-t+after+issued})")
            a(f"v_mfma_f32_16x16x32_bf16 {v(acc,4)}, {v(228+4*(t%2),4)}, {v(base+4*t,4)}, {'0' if t==0 else v(acc,4)}")
            for k in range(o["il"]):
                if nxt: a(nxt.pop(0)); issued += 1
        return nxt
    def psum():
        a(f"""ds_read2st64_b32 v[204:205], v{PR} offset0:0 offset1:17
        ds_read2st64_b32 v[206:207], v{PR} offset0:1 offset1:18
        s_waitcnt lgkmcnt(1)
        v_add_f32 v204, v204, v205
        s_waitcnt lgkmcnt(0)
        v_add_f32 v206, v206, v207""")
        for dp in ("quad_perm:[1,0,3,2]", "quad_perm:[2,3,0,1]", "row_half_mirror"):
            a(f"v_add_f32_dpp v204, v204, v204 {dp} row_mask:0xf bank_mask:0xf\nv_add_f32_dpp v206, v206, v206 {dp} row_mask:0xf bank_mask:0xf")
    for i in range(28): assert (i * 37) >> 8 == i // 7
    for i in range(9): assert (i * 86) >> 8 == i // 3
    for col in range(0, 640, 2): assert (col * 52429) >> 19 == col // 10
    a("""L_aux:
    v_lshrrev_b32 v2, 3, v0
    v_and_b32 v3, 7, v0
    s_mul_i32 s72, s3, 80
    v_mul_u32_u24 v12, 10, v2
    v_add_u32 v12, s72, v12
    v_lshlrev_b32 v13, 2, v0
    s_lshl_b32 s72, s3, 8
    v_add_u32 v13, s72, v13
    s_and_b32 s78, s2, 7
    s_lshl_b32 s78, s78, 3
    s_lshr_b32 s72, s2, 3
    s_add_u32 s78, s78, s72
    s_lshl_b32 s72, s78, 7
    v_lshlrev_b32 v252, 13, v12
    v_lshl_add_u32 v252, v3, 4, v252
    v_add_u32 v252, s72, v252
    v_mul_u32_u24 v254, 20, v0
    v_lshlrev_b32 v255, 1, v12""")
    for t in range(1, 10): a(f"s_mov_b32 s{83+t}, {8192*t}")
    a("""s_mul_i32 s74, s2, 37
    s_lshr_b32 s74, s74, 8
    s_mul_i32 s75, s74, 7
    s_sub_u32 s75, s2, s75
    s_lshl_b32 s76, s74, 3
    s_sub_u32 s72, s2, 28
    s_mul_i32 s73, s72, 86
    s_lshr_b32 s73, s73, 8
    s_mul_i32 s79, s73, 3
    s_sub_u32 s72, s72, s79
    s_add_u32 s72, s72, 7
    s_mul_i32 s79, s73, 11
    s_cmp_ge_u32 s2, 28
    s_cselect_b32 s74, s73, s74
    s_cselect_b32 s75, s72, s75
    s_cselect_b32 s76, s79, s76
    s_add_u32 s79, s76, 8
    s_add_u32 s76, s76, s3
    s_mul_i32 s72, s76, 163840
    s_lshl_b32 s73, s75, 7
    s_add_u32 s72, s72, s73
    v_mul_u32_u24 v251, 20480, v2
    v_lshl_add_u32 v251, v3, 4, v251
    v_add_u32 v251, s72, v251
    s_mov_b32 s69, 5120
    s_mov_b32 s70, 10240
    s_mov_b32 s71, 15360
    s_sub_u32 s77, s2, 37
    s_waitcnt lgkmcnt(0)
    s_load_dword s93, s[26:27], %d""" % CAN)
    if o["stamps"]: a("v_mov_b32 v1, 0\nv_writelane_b32 v1, s100, 0")
    srd(28, 4, 1280); srd(52, 10, 5242880)
    if o["dyn"]:
        srd(48, 26, MBX)
        a(f"""s_lshr_b32 s72, s78, 1
        s_lshl_b32 s72, s72, 7
        s_add_u32 s72, s72, {CNT}
        s_and_b32 s73, s78, 1
        s_or_b32 s73, s73, s3
        s_cmp_eq_u32 s73, 0
        s_cbranch_scc0 L_nocnt
        v_mov_b32 v14, 1
        v_lshl_add_u32 v15, v0, 2, s72
        s_mov_b32 exec_hi, 0
        buffer_store_dword v14, v15, s[48:51], 0 offen sc1
        s_mov_b64 exec, -1
        L_nocnt:""")
    a("""buffer_load_dwordx4 v[228:231], v254, s[28:31], 0 offen
    buffer_load_dword v232, v254, s[28:31], 0 offen offset:16
    buffer_load_dwordx4 v[236:239], v255, s[28:31], 0 offen
    buffer_load_dword v233, v255, s[28:31], 0 offen offset:16
    buffer_load_dword v200, v13, s[28:31], 0 offen""")
    wq_loads(DN, 252)
    srd(48, 26, MBX); srd(40, 12, 5242880)
    a(f"s_mov_b32 s{SB}, 0x40000")
    if o["xearly"]:
        a("s_sub_u32 s72, s2, 28\ns_cmp_lt_u32 s72, 9\ns_cbranch_scc0 L_consts\ns_barrier")
        for x in wo_list(): a(x)
        xw_loads()
        a("L_consts:")
    stamp(1)
    masks(M8, 7, 14, 15); masks(M4, 15, 14, 15)
    a(f"""s_mov_b32 s81, 0xffff0000
    v_mov_b32 v{C640}, {f2u(1/640)}
    v_mov_b32 v{CG2}, {f2u(g1*0.044715)}
    v_lshrrev_b32 v14, 1, v13
    s_mov_b32 s72, 52429
    v_mul_lo_u32 v15, v14, s72
    v_lshrrev_b32 v15, 19, v15
    v_lshlrev_b32 v15, 1, v15
    v_add_u32 v14, v14, v15
    v_lshlrev_b32 v{HW}, 2, v14
    v_mul_u32_u24 v{HS}, 48, v0
    s_lshl_b32 s72, s3, 3
    v_add_u32 v14, s72, v2
    v_mul_u32_u24 v{HC}, 48, v14
    v_lshlrev_b32 v14, 2, v14
    v_mul_u32_u24 v15, 544, v3
    v_add_u32 v{PR}, v14, v15
    v_add_u32 v{PR}, {LP}, v{PR}""")
    a(f"""v_lshrrev_b32 v14, 5, v0
    v_bfe_u32 v15, v0, 3, 1
    v_cmp_eq_u32 vcc, v14, v15
    s_lshl_b32 s72, s3, 1
    v_add_u32 v14, s72, v14
    v_bfe_u32 v15, v0, 4, 1
    v_lshlrev_b32 v15, 4, v15
    v_lshl_add_u32 v15, v3, 5, v15
    v_lshlrev_b32 v201, 4, v0
    v_add_u32 v201, {LDUMP}, v201
    v_mul_u32_u24 v202, 544, v14
    v_add_u32 v202, v202, v15
    v_add_u32 v202, {LP}, v202
    v_cndmask_b32 v{PW}, v201, v202, vcc
    v_mul_u32_u24 v202, 320, v14
    v_add_u32 v202, v202, v15
    v_add_u32 v202, {LY}, v202
    v_cndmask_b32 v{YW}, v201, v202, vcc
    """)
    if o["xearly"]: a("s_sub_u32 s72, s2, 28\ns_cmp_lt_u32 s72, 9\ns_cbranch_scc1 L_xx\ns_waitcnt vmcnt(11)\nL_xx:\ns_waitcnt vmcnt(33)")
    else: a("s_waitcnt vmcnt(11)")
    for p in range(5):
        src = 228 + p; srcc = 236 + p if p < 4 else 233
        a(f"v_lshlrev_b32 v{204+2*p}, 16, v{src}\nv_and_b32 v{205+2*p}, s81, v{src}\nv_lshlrev_b32 v{216+2*p}, 16, v{srcc}\nv_and_b32 v{217+2*p}, s81, v{srcc}")
    if o["lnf"] and not o["al2"]:
        a("v_bfe_u32 v14, v0, 2, 1\nv_cmp_eq_u32 vcc, 1, v14")
        for e in range(5): a(f"v_cndmask_b32 v{96+e}, v{216+e}, v{221+e}, vcc")
    a("v_readfirstlane_b32 s72, v204\nv_mov_b32 v214, s72")
    ln("")
    stamp(13)
    if o["xearly"]:
        a("s_sub_u32 s72, s2, 28\ns_cmp_lt_u32 s72, 9\ns_cbranch_scc0 L_q_n")
        qgemv(DN, 204, 22, [])
        a("s_branch L_q_sum\nL_q_n:")
    qgemv(DN, 204, 0, [])
    a("L_q_sum:")
    stamp(18)
    a(f"""ds_write_b128 v{PW}, v[204:207]
    s_waitcnt lgkmcnt(0)""")
    nonce(NS, TS)
    a(f"""v_and_b32 v14, 1, v0
    v_cmp_eq_u32 vcc, 0, v14
    v_mov_b32 v14, s{TS}
    v_mov_b32 v15, s{TS+1}
    v_mov_b32 v{E0}, s{TS+2}
    v_mov_b32 v{E0+1}, s{TS+3}
    v_cndmask_b32 v{E0}, v{E0}, v14, vcc
    v_cndmask_b32 v{E0+1}, v{E0+1}, v15, vcc
    s_barrier
    s_cmp_lg_u32 s3, 0
    s_cbranch_scc1 L_q_1
    v_lshlrev_b32 v14, 2, v0""")
    stamp(14)
    for r in range(16): a(f"ds_read_b32 v{204+r}, v14 offset:{LP+544*r}")
    a(f"""v_and_b32 v14, 15, v0
    v_mul_u32_u24 v224, 24, v14
    v_add_u32 v225, 8, v224
    v_add_u32 v226, 16, v224
    v_cmp_gt_u32 vcc, 11, v14
    v_lshlrev_b32 v14, 4, v14
    v_lshrrev_b32 v15, 4, v0
    v_lshl_add_u32 v14, v15, 9, v14
    s_lshr_b32 s72, s78, 1
    s_mul_i32 s72, s72, 3072
    s_and_b32 s73, s78, 1
    s_lshl_b32 s73, s73, 8
    s_add_u32 s72, s72, s73
    v_mov_b32 v15, {OOB}
    v_cndmask_b32 v14, v15, v14, vcc
    v_cmp_gt_u32 vcc, 32, v0
    v_cndmask_b32 v15, v15, v14, vcc
    v_mov_b32 v223, s{NS}
    s_waitcnt lgkmcnt(0)""")
    for w in (4, 2, 1):
        for p in range(w): a(f"v_pk_add_f32 {v(204+2*p,2)}, {v(204+2*p,2)}, {v(204+2*p+2*w,2)}")
    a(f"""v_add_f32 v204, v204, v205
    v_mov_b32_dpp v205, v204 quad_perm:[1,0,3,2] row_mask:0xf bank_mask:0xf
    v_cvt_pk_bf16_f32 v204, v204, v205
    ds_bpermute_b32 v220, v224, v204
    ds_bpermute_b32 v221, v225, v204
    ds_bpermute_b32 v222, v226, v204
    s_waitcnt lgkmcnt(0)
    buffer_store_dwordx4 v[220:223], v14, s[48:51], s72 offen sc1
    buffer_store_dwordx4 v[220:223], v15, s[48:51], s72 offen offset:2048 sc1
    L_q_1:
    s_barrier""")
    stamp(15)
    if o["dry"]:
        a(f"""s_mov_b32 s82, 1
        s_mov_b32 s50, 0
        s_mov_b32 s{SB}, 0
        s_cmp_ge_u32 s2, 37
        s_cbranch_scc1 L_ffn
        s_branch L_wo
        L_real:
        s_mov_b32 s82, 0
        s_mov_b32 s50, {MBX}
        s_mov_b32 s{SB}, 0x40000""")
        stamp(17)
    if o["trig"]:
        if o["trig"][1] == 0: a("s_cmp_lt_u32 s2, 37\ns_cbranch_scc1 L_go")
        elif not o["xtrig"]: a("s_sub_u32 s72, s2, 28\ns_cmp_lt_u32 s72, 9\ns_cbranch_scc1 L_go")
        a(f"""s_cmp_lg_u32 s3, 0
        s_cbranch_scc1 L_go1
        s_lshl_b32 s72, s2, 7
        s_add_u32 s72, s72, {PG}
        v_min_u32 v205, {3 * o["tw"] - 1}, v0
        v_lshlrev_b32 v205, 2, v205
        L_tr:
        buffer_load_dword v204, v205, s[48:51], s72 offen sc1
        s_waitcnt vmcnt(0)
        v_cmp_eq_u32 vcc, s{NS}, v204
        s_cbranch_vccnz L_go1
        s_sleep 4""")
        spin("L_tr", SB)
        a("L_go1:\ns_barrier\nL_go:")
        stamp(16)
    a("s_cmp_ge_u32 s2, 37\ns_cbranch_scc1 L_ld_f")
    if o["xearly"]: a("s_cmp_ge_u32 s2, 28\ns_cbranch_scc1 L_wo")
    for x in wo_list(): a(x)
    if not o["xearly"]:
        a("s_cmp_lt_u32 s2, 28\ns_cbranch_scc1 L_wo")
        xw_loads()
    a(f"""L_wo:
    s_mul_i32 s83, s75, {o["r1"] * 6554}
    s_lshr_b32 s83, s83, 16
    s_mul_i32 s83, s83, {ORS}
    s_add_u32 s83, s83, {OM}
    s_mul_i32 s72, s76, 3840
    s_add_u32 s72, s72, s83
    v_lshlrev_b32 v202, 3, v0
    v_add_u32 v203, s72, v202
    v_and_b32 v14, 15, v0
    v_cmp_gt_u32 vcc, 6, v14
    v_cndmask_b32 v205, 0, 1.0, vcc
    v_min_u32 v14, 5, v14
    v_mul_u32_u24 v14, 640, v14
    v_add_u32 v204, s72, v14
    s_lshl_b32 s72, s3, 9
    s_add_u32 s72, s72, {LO}
    v_add_u32 v202, s72, v202
    v_lshlrev_b32 v206, 6, v2
    v_add_u32 v206, s72, v206
    v_lshrrev_b32 v14, 2, v0
    v_and_b32 v15, 3, v0
    v_lshlrev_b32 v14, 4, v14
    v_cmp_gt_u32 vcc, {o["r2"]}, v15
    v_mul_u32_u24 v208, {YRS}, v15
    v_mul_u32_u24 v15, 320, v15
    v_add_u32 v207, v14, v15
    v_add_u32 v14, v14, v208
    s_mul_i32 s72, s74, 2560
    s_lshl_b32 s73, s75, 8
    s_add_u32 s72, s72, s73
    s_add_u32 s72, s72, {YM}
    v_add_u32 v14, s72, v14
    v_mov_b32 v15, {OOB}
    v_cndmask_b32 v208, v15, v14, vcc""")
    if o["g2"]: a(f"""s_lshl_b32 s72, s2, 7
        s_add_u32 s72, s72, {SOON}
        v_mov_b32 v94, s{NS}
        v_lshl_add_u32 v95, v0, 2, s72
        v_cmp_gt_u32 vcc, 32, v0
        v_cndmask_b32 v95, v15, v95, vcc""")
    XW, XO, XM, XA, XT, XOA, XMA, XE, XLW, XLR, XS = 16, 40, 46, 49, 50, 52, 53, 54, 55, 56, 58
    def wo_body(ex):
        t_ = "x" if ex else ""
        if ex:
            a(f"""v_lshrrev_b32 v14, 4, v0
            v_min_u32 v14, 2, v14
            v_add_u32 v14, s79, v14
            v_min_u32 v14, 31, v14
            v_mul_u32_u24 v14, 3840, v14
            v_add_u32 v14, s83, v14
            v_and_b32 v15, 15, v0
            v_lshl_add_u32 v{XOA}, v15, 2, v14
            s_lshl_b32 s72, s3, 6
            v_add_u32 v{XOA}, s72, v{XOA}
            v_min_u32 v15, 5, v15
            v_mul_u32_u24 v15, 640, v15
            v_add_u32 v{XMA}, v14, v15
            v_and_b32 v14, 3, v0
            v_lshlrev_b32 v14, 3, v14
            v_lshrrev_b32 v{XE}, v14, s{NS}
            v_and_b32 v{XE}, 0xff, v{XE}
            s_lshl_b32 s72, s3, 8
            s_add_u32 s72, s72, {LD}
            v_lshl_add_u32 v{XLW}, v0, 2, s72
            v_lshl_add_u32 v{XLR}, v2, 3, s72
            s_cmp_lg_u32 s74, 0
            s_cbranch_scc1 L_noz
            s_cmp_lg_u32 s3, 0
            s_cbranch_scc1 L_noz""")
            for k in range(4): a(f"v_mov_b32 v{212+k}, s{TS+k}")
            a("s_mov_b32 s72, 7680\nbuffer_store_dwordx4 v[212:215], v208, s[48:51], s72 offen sc1\nL_noz:")
        if o["gate"]:
            a(f"""L_h1a{t_}:
            buffer_load_dword v210, v204, s[48:51], 0 offen offset:520 sc1
            s_waitcnt vmcnt(0)
            v_cmp_eq_u32 vcc, s{NS}, v210
            s_and_b32 s72, vcc_lo, 63
            s_bcnt1_i32_b32 s72, s72
            s_cmp_ge_u32 s72, {o["gthr"]}
            s_cbranch_scc1 L_h1{t_}""")
            spin(f"L_h1a{t_}", SB)
        a(f"L_h1{t_}:")
        SETS = [(160, 172, 40, 46), (64, 76, 80, 86), (176, 188, 192, 90)]
        def h1_issue(i):
            ob, mb, xo, xm = SETS[i]
            if i == 0: stamp(19)
            a(f"buffer_load_dwordx3 {v(mb,3)}, v204, s[48:51], 0 offen offset:512 sc1")
            if ex: a(f"buffer_load_dwordx3 {v(xm,3)}, v{XMA}, s[48:51], 0 offen offset:512 sc1")
            for c in range(6): a(f"buffer_load_dwordx2 {v(ob+2*c,2)}, v203, s[48:51], 0 offen offset:{640*c} sc1")
            if ex:
                for c in range(6): a(f"buffer_load_dword v{xo+c}, v{XOA}, s[48:51], 0 offen offset:{640*c} sc1")
        def h1_check(i):
            ob, mb, xo, xm = SETS[i]
            a(f"v_xor_b32 v{mb+2}, s{NS}, v{mb+2}")
            if ex: a(f"v_xor_b32 v{xm+2}, s{NS}, v{xm+2}")
            chk(list(range(ob, ob+12)) + (list(range(xo, xo+6)) if ex else []), [f"v{E0}", f"v{E0+1}"] * 6 + [f"v{XE}"] * 6, (14, 15))
            a(f"v_or3_b32 v14, v14, v{mb+2}, v{xm+2}" if ex else f"v_or_b32 v14, v14, v{mb+2}")
            a("v_cmp_ne_u32 vcc, 0, v14")
        def comb(m, tmp, src, n, dst):
            m0, l0 = m, m + 1; m = tmp; l = tmp + 1; D = "row_mask:0xf bank_mask:0xf"
            q_ = [f"v_max_f32_dpp v{tmp}, v{m0}, v{m0} quad_perm:[1,0,3,2] {D}", f"v_mul_f32 v{l}, v{l0}, v205",
                  f"v_max_f32_dpp v{tmp}, v{tmp}, v{tmp} quad_perm:[2,3,0,1] {D}", f"v_max_f32_dpp v{tmp}, v{tmp}, v{tmp} row_half_mirror {D}",
                  f"v_sub_f32 v{m}, v{m0}, v{tmp}", f"v_exp_f32 v{m}, v{m}", f"v_mul_f32 v{l}, v{m}, v{l}"]
            q_ += [f"v_mul_f32_dpp v{dst+e}, v{m}, v{src+e} row_newbcast:0 {D}" for e in range(n)]
            q_ += [f"v_add_f32_dpp v{l}, v{l}, v{l} quad_perm:[1,0,3,2] {D}"]
            seq = [f"v_fmac_f32_dpp v{dst+e}, v{m}, v{src+n*c+e} row_newbcast:{c} {D}" for c in range(1, 6) for e in range(n)]
            seq.insert(n, f"v_add_f32_dpp v{l}, v{l}, v{l} quad_perm:[2,3,0,1] {D}")
            seq.insert(2*n+1, f"v_add_f32_dpp v{l}, v{l}, v{l} row_half_mirror {D}")
            seq.insert(3*n+2, f"v_rcp_f32 v{l}, v{l}")
            q_ += seq
            q_ += [f"v_mul_f32_dpp v{dst+e}, v{l}, v{dst+e} row_newbcast:0 {D}" for e in range(n)]
            q_ += [f"v_cvt_pk_bf16_f32 v{dst+e}, v{dst+e}, v{dst+e}" for e in range(n)]
            return q_
        def h1_leave(i):
            ob, mb, xo, xm = SETS[i]
            stamp(3)
            A1 = comb(mb, 14, ob, 2, 224); A2 = comb(xm, XT, xo, 1, XA) if ex else []
            k2 = 0
            for k1, x in enumerate(A1):
                a(x)
                while k2 < len(A2) and k2 * len(A1) <= k1 * len(A2): a(A2[k2]); k2 += 1
            for x in A2[k2:]: a(x)
        if o["skip"]:
            ob, mb, xo, xm = SETS[0]; AC = 64
            k_, d_ = o["p1"]
            L_ = [(AC+12, f"buffer_load_dwordx3 {v(mb,3)}, v204, s[48:51], 0 offen offset:512 sc1")]
            if ex: L_ += [(AC+13, f"buffer_load_dwordx3 {v(xm,3)}, v{XMA}, s[48:51], 0 offen offset:512 sc1")]
            L_ += [(AC+c, f"buffer_load_dwordx2 {v(ob+2*c,2)}, v203, s[48:51], 0 offen offset:{640*c} sc1") for c in range(6)]
            if ex: L_ += [(AC+6+c, f"buffer_load_dword v{xo+c}, v{XOA}, s[48:51], 0 offen offset:{640*c} sc1") for c in range(6)]
            h1_issue(0)
            a("s_waitcnt vmcnt(0)")
            a(f"L_h1s{t_}:\nv_xor_b32 v{AC+12}, s{NS}, v{mb+2}")
            if ex: a(f"v_xor_b32 v{AC+13}, s{NS}, v{xm+2}")
            for c in range(6): a(f"v_msad_u8 v{AC+c}, v{ob+2*c}, v{E0}, 0")
            if ex:
                for c in range(6): a(f"v_msad_u8 v{AC+6+c}, v{xo+c}, v{XE}, 0")
            for c in range(6): a(f"v_msad_u8 v{AC+c}, v{ob+2*c+1}, v{E0+1}, v{AC+c}")
            if ex: a(f"""v_or3_b32 v15, v{AC+6}, v{AC+7}, v{AC+8}
                v_or3_b32 v14, v{AC+9}, v{AC+10}, v{AC+11}
                v_or3_b32 v15, v15, v{AC+12}, v{AC+13}
                v_or3_b32 v14, v14, v{AC}, v{AC+1}
                v_or3_b32 v15, v15, v{AC+2}, v{AC+3}
                v_or3_b32 v14, v14, v{AC+4}, v{AC+5}
                v_or_b32 v14, v14, v15""")
            else: a(f"""v_or3_b32 v14, v{AC+12}, v{AC}, v{AC+1}
                v_or3_b32 v15, v{AC+2}, v{AC+3}, v{AC+4}
                v_or3_b32 v14, v14, v15, v{AC+5}""")
            a(f"v_cmp_ne_u32 vcc, 0, v14\ns_cbranch_vccz L_h1ok{t_}")
            stamp(19)
            if k_ == 1:
                for n, (r, ld) in enumerate(L_): a(f"v_cmp_ne_u32 vcc, 0, v{r}\ns_cbranch_vccz L_h1k{t_}{n}\n{ld}\nL_h1k{t_}{n}:")
                a("s_waitcnt vmcnt(0)")
            else:
                MS = [60, 62, 64, 66, 84, 86, 88, 90, 4, 6, 8, 10, 14, 16]
                for n, (r, ld) in enumerate(L_): a(f"v_cmp_ne_u32 s[{MS[n]}:{MS[n]+1}], 0, v{r}")
                for n, (r, ld) in enumerate(L_): a(f"s_cmp_lg_u64 s[{MS[n]}:{MS[n]+1}], 0\ns_cselect_b64 exec, -1, 0\n{ld}")
                a("s_mov_b64 exec, -1")
                if d_: a(f"s_sleep {d_}")
                a(f"s_waitcnt vmcnt({(k_-1)*len(L_)})")
            spin(f"L_h1s{t_}", SB)
            a(f"L_h1ok{t_}:")
            if o["g2"]:
                a(f"""s_cmp_lg_u32 s3, 0
                s_cbranch_scc1 L_nsoon{t_}
                buffer_store_dword v94, v95, s[48:51], 0 offen sc1
                L_nsoon{t_}:""")
            h1_leave(0)
        else: poll(f"h1p{t_}", o["p1"], 14 if ex else 7, h1_issue, h1_check, h1_leave, SB)
        a("ds_write_b64 v202, v[224:225]")
        if ex: a(f"ds_write_b32 v{XLW}, v{XA}")
        for k in range(4): a(f"ds_read_b128 {v(212+4*k,4)}, v206 offset:{16*k}")
        if ex:
            for e in range(3): a(f"ds_read_b64 {v(XS+2*e,2)}, v{XLR} offset:{64*e}")
        tiles = [(212+t, WO+4*t) for t in range(16)] + ([(XS+t, XW+4*t) for t in range(6)] if ex else [])
        for t, (c_, w_) in enumerate(tiles):
            if t % 4 == 0 and t <= 16: a(f"s_waitcnt lgkmcnt({max(0, 3 - t//4 + (3 if ex and t < 16 else 0))})")
            ab = 228 + 4 * (t % 3)
            for r in range(4): a(f"v_and_b32 v{ab+r}, v{c_}, v{M8+r}")
            if t > 0: a(f"v_mfma_f32_16x16x32_bf16 v[252:255], {v(228+4*((t-1)%3),4)}, {v(tiles[t-1][1],4)}, {'0' if t==1 else 'v[252:255]'}")
        t = len(tiles) - 1
        a(f"v_mfma_f32_16x16x32_bf16 v[252:255], {v(228+4*(t%3),4)}, {v(tiles[t][1],4)}, v[252:255]")
    a("s_cmp_ge_u32 s2, 28\ns_cbranch_scc0 L_wo4")
    wo_body(True)
    a("s_branch L_wo_acc\nL_wo4:")
    wo_body(False)
    a("L_wo_acc:")
    a(f"""ds_write_b128 v{YW}, v[252:255]
    s_waitcnt lgkmcnt(0)
    s_barrier""")
    stamp(4)
    a("s_cmp_lg_u32 s3, 0\ns_cbranch_scc1 L_wo_done")
    for k in range(4): a(f"ds_read_b128 {v(212+4*k,4)}, v207 offset:{LY+1280*k}")
    a(f"v_mov_b32 v{VM}, 0xff")
    a("""s_waitcnt lgkmcnt(2)
    v_pk_add_f32 v[212:213], v[212:213], v[216:217]
    v_pk_add_f32 v[214:215], v[214:215], v[218:219]
    s_waitcnt lgkmcnt(0)
    v_pk_add_f32 v[220:221], v[220:221], v[224:225]
    v_pk_add_f32 v[222:223], v[222:223], v[226:227]
    v_pk_add_f32 v[212:213], v[212:213], v[220:221]
    v_pk_add_f32 v[214:215], v[214:215], v[222:223]""")
    for dp in ("quad_perm:[1,0,3,2]", "quad_perm:[2,3,0,1]"):
        for r in range(212, 216): a(f"v_add_f32_dpp v{r}, v{r}, v{r} {dp} row_mask:0xf bank_mask:0xf")
    tag4(212, VM, TS)
    a("buffer_store_dwordx4 v[212:215], v208, s[48:51], 0 offen sc1\nL_wo_done:")
    stamp(5)
    a("""s_cmp_ge_u32 s2, 20
    s_cbranch_scc1 L_aux_end
    s_cmp_lg_u32 s3, 7
    s_cbranch_scc1 L_aux_end""")
    srd(52, 22, 1280)
    if o["dry"]: a("s_cmp_eq_u32 s82, 1\ns_cselect_b32 s54, 0, s54")
    a(f"""s_lshl_b32 s72, s2, 7
    v_mul_u32_u24 v14, 2560, v2
    v_lshl_add_u32 v14, v3, 4, v14
    v_add_u32 v14, s72, v14
    s_and_b32 s73, s2, {o['r2']-1}
    s_mul_i32 s73, s73, {YRS}
    s_add_u32 s73, s73, {YM}
    v_add_u32 v202, s73, v14
    v_mov_b32 v15, {OOB}
    v_cmp_gt_u32 vcc, 32, v0
    v_cndmask_b32 v202, v15, v202, vcc
    v_add_u32 v203, {DM}, v14
    v_add_u32 v204, {DM+61440}, v14
    v_cmp_gt_u32 vcc, 24, v0
    v_cndmask_b32 v204, v15, v204, vcc
    v_bfe_u32 v14, v0, 4, 1
    v_lshrrev_b32 v205, 5, v0
    v_lshl_add_u32 v14, v14, 1, v205
    v_lshl_add_u32 v14, v3, 2, v14
    v_lshlrev_b32 v14, 1, v14
    s_lshl_b32 s72, s2, 6
    v_add_u32 v14, s72, v14
    buffer_load_ushort v206, v14, s[28:31], 0 offen
    v_bfe_u32 v205, v0, 3, 1
    v_cmp_eq_u32 vcc, 0, v205
    v_cndmask_b32 v205, v15, v14, vcc
    s_mov_b32 s72, 20480
    s_mov_b32 s73, 40960
    s_mov_b32 s60, 0xffffff
    s_mov_b32 s61, 0
    L_ry:
    buffer_load_dwordx4 v[212:215], v202, s[48:51], 0 offen sc1
    s_waitcnt vmcnt(0)""")
    TR = [f"s{TS+k}" for k in range(4)]
    chk(range(212, 216), TR, (14, 15))
    a("v_cmp_ne_u32 vcc, 0, v14\ns_cmp_eq_u32 vcc_lo, 0\ns_cbranch_scc1 L_ryok")
    spin("L_ry", SB)
    def rs4(b):
        a(f"""v_permlane32_swap_b32 v{b}, v{b+1}
        v_permlane32_swap_b32 v{b+2}, v{b+3}
        v_add_f32 v{b}, v{b}, v{b+1}
        v_add_f32 v{b+2}, v{b+2}, v{b+3}
        v_permlane16_swap_b32 v{b}, v{b+2}
        v_add_f32 v{b}, v{b}, v{b+2}
        v_add_f32_dpp v{b}, v{b}, v{b} row_ror:8 row_mask:0xf bank_mask:0xf""")
    def canary():
        a(f"""s_cmp_lg_u32 s2, 0
        s_cbranch_scc1 L_nocan
        v_mov_b32 v14, s93
        v_lshlrev_b32 v15, 2, v0
        v_add_u32 v15, {CAN}, v15
        {'s_mov_b32 exec_hi, 0' if o["can"] else 's_mov_b64 exec, 1'}
        buffer_store_dword v14, v15, s[48:51], 0 offen sc1
        s_mov_b64 exec, -1
        L_nocan:""")
    a("L_ryok:")
    if o["can"]: canary()
    rs4(212)
    a("""v_cvt_pk_bf16_f32 v212, v212, v212
    v_lshlrev_b32 v206, 16, v206
    v_and_b32 v212, s81, v212
    v_add_f32 v212, v212, v206
    v_cvt_pk_bf16_f32 v212, v212, v212
    v_and_b32 v206, s81, v212""")
    stamp(6)
    def h3_issue(i):
        b = 96 + 16*i
        a(f"""buffer_load_dwordx4 {v(b,4)}, v203, s[48:51], 0 offen sc1
        buffer_load_dwordx4 {v(b+4,4)}, v203, s[48:51], s72 offen sc1
        buffer_load_dwordx4 {v(b+8,4)}, v203, s[48:51], s73 offen sc1
        buffer_load_dwordx4 {v(b+12,4)}, v204, s[48:51], 0 offen sc1""")
    def h3_check(i):
        b = 96 + 16*i
        chk(range(b+12, b+16), TR, (207, 208))
        chk(range(b, b+12), TR * 3, (14, 15))
        a("v_cndmask_b32 v207, 0, v207, s[60:61]\nv_or_b32 v14, v14, v207\nv_cmp_ne_u32 vcc, 0, v14")
    def h3_leave(i):
        b = 96 + 16*i
        a(f"""v_pk_add_f32 v[212:213], {v(b,2)}, {v(b+4,2)}
        v_pk_add_f32 v[220:221], {v(b+8,2)}, {v(b+12,2)}
        v_pk_add_f32 v[214:215], {v(b+2,2)}, {v(b+6,2)}
        v_pk_add_f32 v[222:223], {v(b+10,2)}, {v(b+14,2)}""")
    poll("rd", o["p3"], 4, h3_issue, h3_check, h3_leave, SB)
    a("""v_pk_add_f32 v[212:213], v[212:213], v[220:221]
    v_pk_add_f32 v[214:215], v[214:215], v[222:223]""")
    rs4(212)
    OUTP = o["outp"]
    a(f"""v_cvt_pk_bf16_f32 v212, v212, v212
    v_and_b32 v212, s81, v212
    v_add_f32 v212, v212, v206
    v_cvt_pk_bf16_f32 v212, v212, v212
    buffer_store_short v212, v205, s[52:55], 0 offen {OUTP}
""")
    if not o["can"]: canary()
    stamp(7)
    a("s_branch L_aux_end")
    DW, DR, DS = 250, 251, 201
    a("L_ld_f:")
    gu_setup()
    for x in gu_list(): a(x)
    dn_loads()
    a(f"""L_ffn:
    v_and_b32 v14, 15, v0
    v_lshrrev_b32 v15, 4, v0
    v_lshlrev_b32 v14, 5, v14
    v_lshl_add_u32 v14, v15, 4, v14
    s_mul_i32 s72, s3, 2688
    s_add_u32 s72, s72, {LD}
    v_add_u32 v14, s72, v14
    v_lshlrev_b32 v15, 4, v0
    v_add_u32 v15, {LDUMP}, v15
    v_cmp_gt_u32 vcc, 32, v0
    v_cndmask_b32 v{DW}, v15, v14, vcc
    v_lshrrev_b32 v14, 1, v0
    v_lshlrev_b32 v14, 4, v14
    s_lshl_b32 s72, s3, 9
    v_add_u32 v14, s72, v14
    v_and_b32 v15, 1, v0
    v_cmp_eq_u32 vcc, 0, v15
    v_mul_u32_u24 v15, 2688, v15
    v_add_u32 v{DR}, v14, v15
    s_mul_i32 s72, s77, 2560
    s_add_u32 s72, s72, {DM}
    v_add_u32 v14, s72, v14
    v_mov_b32 v15, {OOB}
    v_cndmask_b32 v{DS}, v15, v14, vcc
    """)
    def mf(t):
        ab = 228 + 4 * (t % 3)
        a(f"v_mfma_f32_16x16x32_bf16 v[204:207], {v(ab,4)}, {v(GU+8*t,4)}, {'0' if t==0 else 'v[204:207]'}")
        a(f"v_mfma_f32_16x16x32_bf16 v[208:211], {v(ab,4)}, {v(GU+8*t+4,4)}, {'0' if t==0 else 'v[208:211]'}")
    if o["lnf"]:
        X5, ER, SG, SU, YA, STW, STR, HD = 96, 101, 105, 106, 107, 108, 109, 220
        D = "row_mask:0xf bank_mask:0xf"
        a(f"""s_mov_b32 s82, 0x3f803f80
        v_lshrrev_b32 v14, 2, v0""")
        for e in range(4): a(f"v_add_u32 v15, {e}, v14\nv_and_b32 v15, 3, v15\nv_lshlrev_b32 v15, 3, v15\nv_bfe_u32 v{ER+e}, s{NS}, v15, 8")
        a(f"""s_and_b32 s72, s2, {o['r2']-1}
        s_mul_i32 s72, s72, {YRS}
        s_add_u32 s72, s72, {YM}
        v_and_b32 v15, 3, v0
        v_mul_u32_u24 v15, 2560, v15
        v_add_u32 v15, s72, v15""")
        if o["al2"]: a(f"v_lshl_add_u32 v{YA}, v111, 4, v15\nv_lshl_add_u32 v111, v111, 2, v15")
        else: a(f"""v_and_b32 v14, 1, v14
        v_mul_u32_u24 v14, 20, v14
        v_lshl_add_u32 v14, v12, 2, v14
        v_add_u32 v{YA}, v14, v15""")
        a(f"""
        v_lshlrev_b32 v{STR}, 3, v3
        s_lshl_b32 s72, s3, 3
        v_mov_b32 v14, s72
        v_lshlrev_b32 v15, 4, v0
        v_add_u32 v15, {LDUMP}, v15
        v_cmp_eq_u32 vcc, 63, v0
        v_cndmask_b32 v{STW}, v15, v14, vcc""")
        for r in range(4): a(f"v_and_b32 v{228+r}, s82, v{M8+r}")
        a("s_waitcnt vmcnt(10)")
        if o["al2"]: a("v_lshlrev_b32 v96, 16, v98\nv_and_b32 v97, s81, v98\nv_lshlrev_b32 v98, 16, v99\nv_and_b32 v99, s81, v99\nv_lshlrev_b32 v100, 16, v100")
        for t in range(10):
            a(f"v_mfma_f32_16x16x32_bf16 v[204:207], v[228:231], {v(GU+8*t,4)}, {'0' if t==0 else 'v[204:207]'}")
            a(f"v_mfma_f32_16x16x32_bf16 v[208:211], v[228:231], {v(GU+8*t+4,4)}, {'0' if t==0 else 'v[208:211]'}")
        a(f"""ds_write_b128 v{PW}, v[204:207]
        ds_write_b128 v{PW}, v[208:211] offset:256
        s_waitcnt lgkmcnt(0)
        s_barrier""")
        psum()
        a(f"v_mov_b32 v{SG}, v204\nv_mov_b32 v{SU}, v206")
        if o["g2"]:
            a(f"""s_cmp_lg_u32 s3, 0
            s_cbranch_scc1 L_g2ok
            v_min_u32 v14, 36, v0
            v_lshlrev_b32 v14, 7, v14
            v_add_u32 v14, {SOON}, v14
            L_g2:
            buffer_load_dword v15, v14, s[48:51], 0 offen sc1
            s_waitcnt vmcnt(0)
            v_cmp_eq_u32 vcc, s{NS}, v15
            s_and_b32 vcc_hi, vcc_hi, 31
            s_bcnt1_i32_b64 s72, vcc
            s_cmp_ge_u32 s72, {o["g2"]}
            s_cbranch_scc1 L_g2ok""")
            spin("L_g2", SB)
            a("L_g2ok:")
        a("s_barrier")
        def h2_issue(i):
            b = 112 + 6*i
            a(f"buffer_load_dwordx4 {v(b,4)}, v{YA}, s[48:51], 0 offen sc1")
            if o["al2"]: a(f"buffer_load_dword v{b+4}, v111, s[48:51], 0 offen offset:2048 sc1")
            else: a(f"buffer_load_dword v{b+4}, v{YA}, s[48:51], 0 offen offset:16 sc1")
        def h2_check(i):
            b = 112 + 6*i
            chk(range(b, b+5), TR + [f"v{ER}"] if o["al2"] else [f"v{ER+(e&3)}" for e in range(5)], (14, 15))
            a("v_cmp_ne_u32 vcc, 0, v14")
        def h2_leave(i):
            b = 112 + 6*i
            stamp(6)
            for e in range(5): a(f"v_add_f32_dpp v{212+e}, v{b+e}, v{b+e} quad_perm:[1,0,3,2] {D}")
        poll("h2", o["p2"], 2, h2_issue, h2_check, h2_leave, SB)
        for e in range(5): a(f"v_add_f32_dpp v{212+e}, v{212+e}, v{212+e} quad_perm:[2,3,0,1] {D}")
        a(f"""v_cvt_pk_bf16_f32 v218, v212, v213
        v_cvt_pk_bf16_f32 v219, v214, v215
        v_cvt_pk_bf16_f32 v216, v216, v216
        v_lshlrev_b32 v212, 16, v218
        v_and_b32 v213, s81, v218
        v_lshlrev_b32 v214, 16, v219
        v_and_b32 v215, s81, v219
        v_and_b32 v216, s81, v216""")
        for e in range(5): a(f"v_add_f32 v{212+e}, v{212+e}, v{X5+e}")
        for e in range(5): a(f"v_cvt_pk_bf16_f32 v{HD+e}, v{212+e}, v{212+e}")
        stamp(9)
        st = []
        for e in range(5): st += [f"v_dot2_f32_bf16 v226, v{HD+e}, s82, {'0' if e == 0 else 'v226'}", f"v_dot2_f32_bf16 v227, v{HD+e}, v{HD+e}, {'0' if e == 0 else 'v227'}"]
        for dp in ("row_half_mirror row_mask:0xf", "row_mirror row_mask:0xf", "row_bcast:15 row_mask:0xa", "row_bcast:31 row_mask:0xc"):
            st += [f"v_add_f32_dpp v226, v226, v226 {dp} bank_mask:0xf", f"v_add_f32_dpp v227, v227, v227 {dp} bank_mask:0xf"]
        st += [f"ds_write_b64 v{STW}, v[226:227]"]
        for t in range(10):
            ab = 228 + 4 * (t % 3)
            for r in range(4):
                if (r < 2) == (t < 5): a(f"v_and_b32 v{ab+r}, v{HD+t%5}, v{M8+r}")
                else: a(f"v_and_b32_dpp v{ab+r}, v{HD+t%5}, v{M8+r} row_half_mirror {D}")
            if t > 0:
                mf(t - 1)
                for _ in range(2):
                    if st: a(st.pop(0))
        mf(9)
        for x in st: a(x)
        a(f"""ds_write_b128 v{PW}, v[204:207]
        ds_write_b128 v{PW}, v[208:211] offset:256
        s_waitcnt lgkmcnt(0)
        s_barrier""")
        stamp(10)
        a(f"""ds_read_b64 v[212:213], v{STR}
        ds_read2st64_b32 v[204:205], v{PR} offset0:0 offset1:17
        ds_read2st64_b32 v[206:207], v{PR} offset0:1 offset1:18
        s_waitcnt lgkmcnt(2)""")
        DP = ("quad_perm:[1,0,3,2]", "quad_perm:[2,3,0,1]", "row_half_mirror")
        for dp in DP: a(f"v_add_f32_dpp v212, v212, v212 {dp} {D}\nv_add_f32_dpp v213, v213, v213 {dp} {D}")
        a(f"""v_mul_f32 v212, {f2u(1/1280)}, v212
        v_mul_f32 v213, {f2u(1/1280)}, v213
        s_waitcnt lgkmcnt(0)
        v_fma_f32 v213, -v212, v212, v213
        v_add_f32 v204, v204, v205
        v_max_f32 v213, 0, v213
        v_add_f32 v206, v206, v207
        v_cvt_pk_bf16_f32 v212, v212, v213
        v_add_f32_dpp v204, v204, v204 {DP[0]} {D}
        v_and_b32 v213, s81, v212
        v_add_f32_dpp v206, v206, v206 {DP[0]} {D}
        v_add_f32 v213, {f2u(1e-5)}, v213
        v_add_f32_dpp v204, v204, v204 {DP[1]} {D}
        v_cvt_pk_bf16_f32 v213, v213, v213
        v_add_f32_dpp v206, v206, v206 {DP[1]} {D}
        v_and_b32 v213, s81, v213
        v_add_f32_dpp v204, v204, v204 {DP[2]} {D}
        v_sqrt_f32 v213, v213
        v_add_f32_dpp v206, v206, v206 {DP[2]} {D}
        v_lshlrev_b32 v212, 16, v212
        v_cvt_pk_bf16_f32 v213, v213, v213
        v_fma_f32 v204, -v212, v{SG}, v204
        v_and_b32 v213, s81, v213
        v_fma_f32 v206, -v212, v{SU}, v206
        v_rcp_f32 v213, v213
        v_mul_f32 v204, v204, v213
        v_mul_f32 v206, v206, v213""")
    else:
        a(f"""s_waitcnt vmcnt(0)
        s_cmp_ge_u32 s3, 5
        s_cbranch_scc1 L_lng_bar
        v_lshlrev_b32 v14, 1, v13
        s_and_b32 s72, s2, {o['r2']-1}
        s_mul_i32 s72, s72, {YRS}
        s_add_u32 s72, s72, {YM}
        v_add_u32 v14, s72, v14
        s_mov_b32 s72, 5120
        L_h2:
        buffer_load_dwordx2 v[212:213], v14, s[48:51], 0 offen sc1
        buffer_load_dwordx2 v[214:215], v14, s[48:51], 0 offen offset:2560 sc1
        buffer_load_dwordx2 v[216:217], v14, s[48:51], s72 offen sc1
        buffer_load_dwordx2 v[218:219], v14, s[48:51], s72 offen offset:2560 sc1
        s_waitcnt vmcnt(0)""")
        chk(range(212, 220), [f"v{E0}", f"v{E0+1}"] * 4, (15, 202))
        a("v_cmp_ne_u32 vcc, 0, v15\ns_cbranch_vccz L_h2ok")
        spin("L_h2", SB)
        a("L_h2ok:")
        stamp(6)
        a("""v_pk_add_f32 v[212:213], v[212:213], v[214:215]
        v_pk_add_f32 v[216:217], v[216:217], v[218:219]
        v_lshlrev_b32 v202, 16, v200
        v_pk_add_f32 v[212:213], v[212:213], v[216:217]
        v_and_b32 v203, s81, v200
        v_cvt_pk_bf16_f32 v212, v212, v213
        v_lshlrev_b32 v214, 16, v212
        v_and_b32 v215, s81, v212
        v_pk_add_f32 v[202:203], v[202:203], v[214:215]
        v_cvt_pk_bf16_f32 v212, v202, v203
        v_lshlrev_b32 v202, 16, v212
        v_and_b32 v203, s81, v212""")
        a(f"""    ds_write_b64 v{HW}, v[202:203]
        s_waitcnt lgkmcnt(0)
        L_lng_bar:
        s_barrier
        v_mov_b32 v14, 0
        ds_read_b128 v[204:207], v{HS}
        ds_read_b32 v214, v14
        ds_read_b128 v[208:211], v{HS} offset:16
        ds_read_b64 v[212:213], v{HS} offset:32
        ds_read_b128 v[216:219], v{HC}
        ds_read_b128 v[220:223], v{HC} offset:16
        ds_read_b64 v[224:225], v{HC} offset:32""")
        stamp(8)
        a("s_waitcnt lgkmcnt(3)")
        ln("s_waitcnt lgkmcnt(0)")
        stamp(9)
        def mf(t):
            ab = 228 + 4 * (t % 3)
            a(f"v_mfma_f32_16x16x32_bf16 v[204:207], {v(ab,4)}, {v(GU+8*t,4)}, {'0' if t==0 else 'v[204:207]'}")
            a(f"v_mfma_f32_16x16x32_bf16 v[208:211], {v(ab,4)}, {v(GU+8*t+4,4)}, {'0' if t==0 else 'v[208:211]'}")
        for t in range(10):
            ab = 228 + 4 * (t % 3)
            for r in range(4): a(f"v_and_b32 v{ab+r}, v{216+t}, v{M8+r}")
            if t > 0: mf(t - 1)
        mf(9)
        a(f"""ds_write_b128 v{PW}, v[204:207]
        ds_write_b128 v{PW}, v[208:211] offset:256
        s_waitcnt lgkmcnt(0)
        s_barrier""")
        stamp(10)
        psum()
    a(f"""
    v_cvt_pk_bf16_f32 v204, v204, v206
    v_lshlrev_b32 v205, 16, v204
    v_and_b32 v206, s81, v204
    v_mul_f32 v207, v205, v205
    v_fmaak_f32 v207, v207, v{CG2}, {f2u(g1)}
    v_mul_f32 v207, v207, v205
    v_exp_f32 v207, v207
    v_add_f32 v207, 1.0, v207
    v_rcp_f32 v207, v207
    v_mul_f32 v207, v207, v205
    v_cvt_pk_bf16_f32 v207, v207, v207
    v_and_b32 v207, s81, v207
    v_mul_f32 v207, v207, v206
    v_cvt_pk_bf16_f32 v207, v207, v207""")
    for t in range(2):
        for r in range(4): a(f"v_and_b32_dpp v{228+4*t+r}, v207, v{M4+r} row_newbcast:{8*t} row_mask:0xf bank_mask:0xf")
    for t in range(2):
        for b in range(5): a(f"v_mfma_f32_16x16x32_bf16 {v(208+4*b,4)}, {v(228+4*t,4)}, {v(DN+20*t+4*b,4)}, {'0' if t==0 else v(208+4*b,4)}")
    for b in range(5): a(f"ds_write_b128 v{DW}, {v(208+4*b,4)} offset:{512*b}")
    a("s_waitcnt lgkmcnt(0)\ns_barrier")
    stamp(11)
    a("s_cmp_ge_u32 s3, 5\ns_cbranch_scc1 L_aux_end")
    for k in range(4): a(f"ds_read_b128 {v(212+4*k,4)}, v{DR} offset:{LD+5376*k}")
    a(f"v_mov_b32 v{VM}, 0xff")
    a("""s_waitcnt lgkmcnt(2)
    v_pk_add_f32 v[212:213], v[212:213], v[216:217]
    v_pk_add_f32 v[214:215], v[214:215], v[218:219]
    s_waitcnt lgkmcnt(0)
    v_pk_add_f32 v[220:221], v[220:221], v[224:225]
    v_pk_add_f32 v[222:223], v[222:223], v[226:227]
    v_pk_add_f32 v[212:213], v[212:213], v[220:221]
    v_pk_add_f32 v[214:215], v[214:215], v[222:223]""")
    for r in range(212, 216): a(f"v_add_f32_dpp v{r}, v{r}, v{r} quad_perm:[1,0,3,2] row_mask:0xf bank_mask:0xf")
    tag4(212, VM, TS)
    a(f"buffer_store_dwordx4 v[212:215], v{DS}, s[48:51], 0 offen sc1")
    stamp(12)
    a("L_aux_end:")
    if o["dry"]: a("s_cmp_eq_u32 s82, 1\ns_cbranch_scc1 L_real")
    stamp_out()
    a("s_endpgm")
    head = open(f"cdna_kernels/{KN}.s.ref").read().split("; Override launch")[0] if o["hdr"] else ""
    return finish(o, head, a.text(), LDS_SIZE)
def kd(name, vg):
    return f""".p2align 6
.amdhsa_kernel {name}
  .amdhsa_next_free_vgpr {vg}
  .amdhsa_next_free_sgpr 102
  .amdhsa_accum_offset {vg}
  .amdhsa_group_segment_fixed_size 0
  .amdhsa_kernarg_size 96
  .amdhsa_user_sgpr_count 2
  .amdhsa_user_sgpr_kernarg_segment_ptr 1
  .amdhsa_system_sgpr_workgroup_id_x 1
.end_amdhsa_kernel
"""
def diag_kernel(k, w0, w1, K, op, nw=2048):
    self_ = op == "self"
    if self_: op = "max"
    init = "0" if op == "max" else "-1"
    return f""".globl diag_kernel
.p2align 8
.type diag_kernel,@function
diag_kernel:
s_memrealtime s[20:21]
s_cmp_lg_u32 s2, 0
s_cbranch_scc1 LD_end
s_load_dwordx2 s[4:5], s[0:1], 88
s_waitcnt lgkmcnt(0)
s_add_u32 s4, s4, {STAMP_OFF}
s_addc_u32 s5, s5, 0
s_mov_b32 s6, 0x100000
s_mov_b32 s7, 0x20000
v_mov_b32 v1, -1
v_mov_b32 v2, {init}
v_mov_b32 v8, {init}
v_mov_b32 v3, v0
s_mov_b32 s8, 0
s_mov_b32 s12, {w0}
s_mov_b32 s13, {w1}
LD_l:
v_lshlrev_b32 v4, 8, v3
buffer_load_dword v5, v4, s[4:7], 0 offen sc1
buffer_load_dword v6, v4, s[4:7], 0 offen offset:{4*k} sc1
s_waitcnt vmcnt(0)
v_min_u32 v1, v1, v5
v_cmp_le_u32 vcc, s12, v3
s_nop 4
v_cndmask_b32 v6, v8, v6, vcc
v_cmp_gt_u32 vcc, s13, v3
s_nop 4
v_cndmask_b32 v6, v8, v6, vcc
v_cmp_ne_u32 vcc, 0, v6
s_nop 4
v_cndmask_b32 v6, v8, v6, vcc
v_{op}_u32 v2, v2, v6
v_add_u32 v3, 64, v3
s_add_u32 s8, s8, 1
s_cmp_lt_u32 s8, {nw//64}
s_cbranch_scc1 LD_l
s_mov_b32 s8, 0
s_mov_b32 s9, -1
s_mov_b32 s10, {init}
LD_r:
s_nop 4
v_readlane_b32 s11, v1, s8
v_readlane_b32 s14, v2, s8
s_nop 4
s_min_u32 s9, s9, s11
s_{op}_u32 s10, s10, s14
s_add_u32 s8, s8, 1
s_cmp_lt_u32 s8, 64
s_cbranch_scc1 LD_r
{"s_mov_b32 s10, s20" if self_ else ""}
s_sub_u32 s10, s10, s9
s_min_u32 s10, s10, 20000
s_mul_i32 s10, s10, {K}
s_memrealtime s[16:17]
s_waitcnt lgkmcnt(0)
LD_s:
s_memrealtime s[18:19]
s_waitcnt lgkmcnt(0)
s_sub_u32 s18, s18, s16
s_cmp_lt_u32 s18, s10
s_cbranch_scc1 LD_s
LD_end:
s_endpgm
"""
def finish(o, head, text, lds, grid=256, blk=512, vg=256):
    if o["diag"]:
        L = f"; @launch kernel={KN}_kernel grid=({grid},1,1) block=({blk},1,1) lds={lds}\n; @launch kernel=diag_kernel grid=(1,1,1) block=(64,1,1) lds=0\n"
        text = text + diag_kernel(*o["diag"]); extra = kd("diag_kernel", 16)
    elif o.get("pre") or o.get("post"):
        L = f"; @launch kernel={KN}_kernel grid=({grid},1,1) block=({blk},1,1) lds={lds}\n"
        e = lambda n, g, b, l: f"; @launch kernel=empty_kernel grid=({g},1,1) block=({b},1,1) lds={l}\n" * n
        if o.get("pre"): L = e(*o["pre"]) + L
        if o.get("post"): L = L + e(*o["post"])
        text = text + ".globl empty_kernel\n.p2align 8\n.type empty_kernel,@function\nempty_kernel:\ns_endpgm\n"; extra = kd("empty_kernel", o.get("evg", 16))
    else:
        L = f"; @launch grid=({grid},1,1) block=({blk},1,1) lds={lds}\n"; extra = ""
    return head + L + f""".amdgcn_target "amdgcn-amd-amdhsa--gfx950"
.text
.globl {KN}_kernel
.p2align 8
.type {KN}_kernel,@function
""" + text + '.section .rodata,"a"\n' + kd(KN + "_kernel", vg) + extra
def _old(a, head):
    return head + f"""; @launch grid=(256,1,1) block=(512,1,1) lds={LDS_SIZE}
.amdgcn_target "amdgcn-amd-amdhsa--gfx950"
.text
.globl {KN}_kernel
.p2align 8
.type {KN}_kernel,@function
""" + a.text() + f""".section .rodata,"a"
.p2align 6
.amdhsa_kernel {KN}_kernel
  .amdhsa_next_free_vgpr 256
  .amdhsa_next_free_sgpr 102
  .amdhsa_accum_offset 256
  .amdhsa_group_segment_fixed_size 0
  .amdhsa_kernarg_size 96
  .amdhsa_user_sgpr_count 2
  .amdhsa_user_sgpr_kernarg_segment_ptr 1
  .amdhsa_system_sgpr_workgroup_id_x 1
.end_amdhsa_kernel
"""
if __name__ == "__main__":
    kw = {}
    out = f"cdna_kernels/{KN}.s"
    for x in sys.argv[1:]:
        k, val = x.split("=", 1)
        if k == "out": out = val
        else: kw[k] = eval(val)
    open(out, "w").write(gen(**kw))
```

```python
import sys, struct
sys.path.insert(0, "exp")
from asmlib import *
KN = "sequential_preLN__gqa_block_cached__glu_gated_geglu__decode"
def f2u(x): return "0x%08x" % struct.unpack("<I", struct.pack("<f", x))[0]
LOG2E = 1.4426950408889634
QM, CAN, DM, PG, OM, YM, MBX = 0, 98304, 98432, 167552, 178176, 1161216, 1211008
SOON, CNT = 1202176, 1206912
ORS, YRS = 122880, 10240
OOB = 0x80000000
STAMP_OFF = 128 << 20
LH, LP, LO, LY, LD, LDUMP, LDS_SIZE = 0, 3072, 11776, 15872, 20992, 42496, 46592
DEF = dict(kv="nt", wt="nt", kbar=False, stamps=False, gate=True, hdr=True, shots=[(0,40),(1,32),(2,24),(3,12)], prio=0, il=2, diag=None, one=False, gthr=1, dry=False, adry=False, thr=0, tail=8, stag=0, trig=None, xearly=False, nv=24, vpos=1, outp="", lnf=False, p1=(1,0), p2=(1,0), p3=(1,0), skip=False, g2=0, r1=1, r2=1, mlf=False, al2=False, can=False, xtrig=False, dyn=0, d2=0, pos=1, pf=None, thr5=0, tw=1, x2=False, xm=False, sm=False)
def gen(**kw):
    o = dict(DEF); o.update(kw)
    a = A()
    KV = o["kv"]; WT = o["wt"]
    def stamp(k):
        if o["stamps"] is True or (o["stamps"] and k in o["stamps"]): a(f"s_memrealtime s[100:101]\ns_waitcnt lgkmcnt(0)\nv_writelane_b32 v1, s100, {k}")
    def stamp_out():
        if o["stamps"]:
            a(f"""s_add_u32 s96, s26, {STAMP_OFF}
            s_addc_u32 s97, s27, 0
            s_mov_b32 s98, 0x100000
            s_mov_b32 s99, 0x20000
            s_lshl_b32 s94, s2, 3
            s_add_u32 s94, s94, s3
            s_lshl_b32 s94, s94, 8
            s_mov_b64 exec, -1
            v_lshlrev_b32 v2, 2, v0
            buffer_store_dword v1, v2, s[96:99], s94 offen""")
    def srd(d, b, n, add=None):
        if add is None: a(f"s_mov_b32 s{d}, s{b}\ns_mov_b32 s{d+1}, s{b+1}")
        else: a(f"s_add_u32 s{d}, s{b}, {add}\ns_addc_u32 s{d+1}, s{b+1}, 0")
        a(f"s_mov_b32 s{d+2}, {n}\ns_mov_b32 s{d+3}, 0x20000")
    def spin(lbl, sb):
        a(f"s_sub_u32 s{sb}, s{sb}, 1\ns_cbranch_scc0 {lbl}\ns_mov_b32 s{sb}, 0")
    def poll(name, kd, n, issue, check, leave, sb):
        k, d = kd
        for i in range(k):
            if i == k - 1: a(f"L_{name}:")
            issue(i)
            if d and k > 1: a(f"s_sleep {d}")
        for i in range(k):
            a(f"s_waitcnt vmcnt({(k-1)*n})"); check(i)
            a(f"s_cbranch_vccz L_{name}ok{i}")
            if i < k - 1:
                issue(i)
                if d: a(f"s_sleep {d}")
        spin(f"L_{name}", sb)
        for i in reversed(range(k)):
            a(f"L_{name}ok{i}:"); leave(i)
            if i > 0: a(f"s_branch L_{name}j")
        a(f"L_{name}j:")
    def nonce(N, T):
        a(f"""s_or_b32 s{N}, s{N}, 0x01010101
        s_add_u32 s{N}, s{N}, 1
        s_or_b32 s{N}, s{N}, 0x01010101
        s_and_b32 s{T}, s{N}, 0xff
        s_bfe_u32 s{T+1}, s{N}, 0x80008
        s_bfe_u32 s{T+2}, s{N}, 0x80010
        s_lshr_b32 s{T+3}, s{N}, 24""")
    def tag4(r, vm, T):
        for k in range(4): a(f"v_bfi_b32 v{r+k}, v{vm}, s{T+k}, v{r+k}")
    def chk(regs, refs, acc):
        for n, (r, f) in enumerate(zip(regs, refs)):
            d = acc[n % 2]
            a(f"v_msad_u8 v{d}, v{r}, {f}, {'0' if n < 2 else 'v%d' % d}")
        a(f"v_or_b32 v{acc[0]}, v{acc[0]}, v{acc[1]}")
    def masks(dst, andm, t0, t1):
        a(f"""v_and_b32 v{t0}, 1, v0
        v_lshlrev_b32 v{t0}, 4, v{t0}
        v_mov_b32 v{t1}, 0xffff
        v_lshlrev_b32 v{t0}, v{t0}, v{t1}
        v_and_b32 v{t1}, {andm}, v0
        v_lshrrev_b32 v{t1}, 1, v{t1}""")
        for r in range(4):
            a(f"v_cmp_eq_u32 vcc, {r}, v{t1}\nv_cndmask_b32 v{dst+r}, 0, v{t0}, vcc")
    a(f"{KN}_kernel:")
    if o["stamps"]: a("s_memrealtime s[100:101]")
    a("""s_cmp_ge_u32 s2, 256
    s_cbranch_scc1 L_end
    s_load_dwordx16 s[4:19], s[0:1], 0
    s_load_dwordx8 s[20:27], s[0:1], 64
    v_lshrrev_b32 v2, 6, v0
    v_and_b32 v0, 63, v0
    v_readfirstlane_b32 s3, v2
    s_cmp_lt_u32 s2, 64
    s_cbranch_scc1 L_aux""")
    for i in range(192): assert (i * 171) >> 10 == i // 6
    K0, V0, AQ, DQ, ACC, MK, S0 = 16, 112, 208, 224, 248, 4, 8
    D2 = o["d2"]; DY = o["dyn"] or D2
    if DY: tile0 = """s_mul_i32 s39, s38, 40
    s_mul_i32 s42, s3, 5
    s_add_u32 s39, s39, s42
    s_sub_u32 s89, 240, s39
    s_lshl_b32 s90, s37, 7
    s_add_u32 s90, s90, %d""" % CNT
    else: tile0 = f"""    s_mul_i32 s39, s38, 43
    s_cmp_eq_u32 s38, 5
    s_cselect_b32 s40, 1, 0
    s_sub_u32 s39, s39, s40
    s_cmp_lt_u32 s38, 4
    s_cselect_b32 s40, 3, 2
    s_min_u32 s41, s3, s40
    s_mul_i32 s42, s3, 5
    s_add_u32 s39, s39, s41
    s_add_u32 s39, s39, s42
    s_cmp_lt_u32 s3, s40
    s_cselect_b32 s41, 0, 1
    s_cselect_b32 s43, 0, {OOB}
    s_cselect_b32 s44, 0, 0xff800000
    s_sub_u32 s39, s39, s41"""
    LQ = 5632
    a(f"""s_sub_u32 s36, s2, 64
    s_mul_i32 s37, s36, 171
    s_lshr_b32 s37, s37, 10
    s_mul_i32 s38, s37, 6
    s_sub_u32 s38, s36, s38
    {tile0}
    s_lshl_b32 s39, s39, 12
    s_lshl_b32 s42, s37, 20
    s_add_u32 s39, s39, s42
    v_bfe_u32 v2, v0, 2, 2
    v_lshrrev_b32 v3, 4, v0
    v_and_b32 v4, 3, v0
    v_lshlrev_b32 v2, 8, v2
    v_lshlrev_b32 v4, 4, v4
    v_lshl_add_u32 v2, v3, 6, v2
    v_add3_u32 v252, v2, v4, s39
    v_and_b32 v4, 15, v0
    v_lshlrev_b32 v3, 10, v3
    v_lshlrev_b32 v4, 4, v4
    v_add3_u32 v254, v3, v4, s39
    {"" if DY else "v_or_b32 v253, s43, v252"}
    {"" if DY else "v_or_b32 v255, s43, v254"}
    v_mov_b32 v2, 0
    v_mov_b32 v3, 0
    v_lshlrev_b32 v4, 3, v0
    ds_write_b64 v4, v[2:3] offset:{LQ}
    s_waitcnt lgkmcnt(0)
    s_barrier""")
    if o["stamps"]: a("v_mov_b32 v1, 0\nv_writelane_b32 v1, s100, 0")
    a(f"s_load_dword s84, s[26:27], {CAN}")
    srd(28, 6, 1 << 25); srd(32, 8, 1 << 25)
    if o["prio"]: a(f"s_cmp_lg_u32 s3, 0\ns_cbranch_scc1 L_noprio\ns_setprio {o['prio']}\nL_noprio:")
    for s_ in range(1, 6): a(f"s_mov_b32 s{15+s_}, {4096*(s_-1 if DY else s_)}")
    NV = o["nv"]; TH = o["thr"]; SG = o["stag"]
    KL = [f"buffer_load_dwordx4 {v(K0+16*sl+4*t,4)}, {'v253' if sl==0 else 'v252'}, s[28:31], {'0' if sl==0 else 's%d'%(15+sl)} offen offset:{1024*t} {KV}" for sl in range(6) for t in range(4)]
    VL = [f"buffer_load_dwordx4 {v(V0+16*sl+4*t,4)}, {'v255' if sl==0 else 'v254' if D2 else 'v248'}, s[32:35], {'0' if sl==0 else 's%d'%(15+sl)} offen offset:{256*t} {KV}" for sl in range(6) for t in range(4)]
    assert NV >= 4
    a("v_mov_b32 v248, v254")
    srd(12, 26, MBX)
    def progress(n, done=False):
        if o["trig"] and n in o["trig"][1:]:
            a(f"s_cmp_lg_u32 s3, {o['trig'][0]}\ns_cbranch_scc1 L_notrig{n}")
            if o["trig"][1] != o["trig"][2]: a(f"s_cmp_{'ge' if n == o['trig'][1] else 'lt'}_u32 s2, 175\ns_cbranch_scc1 L_notrig{n}")
            if n < 100 and not done: a("s_waitcnt lgkmcnt(0)\ns_or_b32 s22, s84, 0x01010101\ns_add_u32 s22, s22, 1\ns_or_b32 s22, s22, 0x01010101")
            else: a("s_mov_b32 s22, s84")
            a(f"""s_sub_u32 s24, s2, 64
            s_mul_i32 s23, s24, 171
            s_lshr_b32 s23, s23, 9
            s_mul_i32 s25, s23, 3
            s_sub_u32 s24, s24, s25
            s_cmp_ge_u32 s23, 37
            s_cselect_b32 s25, 37, 0
            s_sub_u32 s23, s23, s25
            s_cmp_eq_u32 s25, 0
            s_cselect_b32 s91, {37 // o["tw"]}, {27 // o["tw"]}
            v_mov_b32 v2, s23
            v_mad_u32_u24 v2, v0, s91, v2
            s_cselect_b32 s91, 37, 27
            v_subrev_u32 v3, s91, v2
            v_min_u32 v2, v2, v3
            v_add_u32 v2, s25, v2
            v_lshlrev_b32 v2, 7, v2
            v_mad_u32_u24 v3, v0, 12, v2
            s_lshl_b32 s24, s24, 2
            s_add_u32 s24, s24, {PG}
            v_add_u32 v3, s24, v3
            v_mov_b32 v2, s22
            s_mov_b64 exec, {(1 << o["tw"]) - 1}
            buffer_store_dword v2, v3, s[12:15], 0 offen sc1
            s_mov_b64 exec, -1
            L_notrig{n}:""")
    for i_ in range(192): assert (i_ * 171) >> 9 == i_ // 3
    def set_s():
        a(f"""s_lshl_b32 s5, s36, 9
        s_add_u32 s10, s26, s5
        s_addc_u32 s11, s27, 0
        s_mov_b32 s4, 0x100000
        {"" if DY else "s_mov_b32 s5, s44"}
        s_mul_i32 s6, s36, 640
        s_add_u32 s6, s6, {OM}
        s_mul_i32 s7, s3, 544
        s_mov_b32 s8, {f2u(LOG2E)}
        s_mov_b32 s9, 0x3db504f3
        s_mov_b32 s21, 0xffff0000
        """)
    def set_late():
        if not D2: masks(MK, 15, 2, 3)
        a(f"""v_and_b32 v2, 15, v0
        v_lshrrev_b32 v3, 4, v0
        v_lshlrev_b32 v2, 5, v2
        v_lshl_add_u32 v2, v3, 4, v2
        v_add_u32 v2, s7, v2
        v_lshlrev_b32 v3, 4, v0
        v_add_u32 v3, 4352, v3
        v_cmp_gt_u32 vcc, 32, v0
        v_cndmask_b32 v252, v3, v2, vcc
        s_add_u32 s22, s7, 512
        v_mov_b32 v2, s22
        v_cmp_eq_u32 vcc, 0, v0
        v_cndmask_b32 v253, v3, v2, vcc
        v_mov_b32 v3, {OOB}
        v_and_b32 v2, 7, v0
        v_mul_u32_u24 v255, 544, v2
        v_cmp_gt_u32 vcc, {o["r1"]}, v2
        v_mul_u32_u24 v14, {ORS}, v2
        v_add_u32 v14, s6, v14
        v_cndmask_b32 v14, v3, v14, vcc
        v_lshrrev_b32 v2, 3, v0
        v_lshlrev_b32 v2, 4, v2
        v_add_u32 v15, v14, v2
        v_add_u32 v15, 512, v15
        v_cmp_gt_u32 vcc, {64 if o["mlf"] else 8}, v0
        v_cndmask_b32 v15, v3, v15, vcc
        s_lshl_b32 s22, s3, 7
        v_add_u32 v2, s22, v2
        v_add_u32 v254, v255, v2
        v_add_u32 v14, v14, v2
        """)
        if o["one"]:
            a(f"""v_lshlrev_b32 v254, 3, v0
            v_and_b32 v2, 1, v0
            v_cmp_eq_u32 vcc, 0, v2
            v_add_u32 v2, s6, v254
            v_mov_b32 v3, {OOB}
            v_cndmask_b32 v14, v3, v2, vcc""")
    def set_q():
        a(f"""
        v_bfe_u32 v2, v0, 2, 2
        v_lshrrev_b32 v3, 4, v0
        v_and_b32 v8, 3, v0
        v_lshlrev_b32 v3, 6, v3
        v_lshl_add_u32 v3, v8, 4, v3
        v_mov_b32 v12, 256""")
        for t in range(4): a(f"v_cmp_eq_u32 vcc, {t}, v2\nv_cndmask_b32 v{8+t}, v12, v3, vcc")
        a("s_waitcnt lgkmcnt(0)"); nonce(84, 85)
    def q_wait():
        a("s_cmp_lg_u32 s3, 0\ns_cbranch_scc1 L_qwait")
        for h in range(2):
            a(f"""L_q{h}:
            s_load_dwordx16 s[36:51], s[10:11], {256*h} glc
            s_load_dwordx16 s[52:67], s[10:11], {256*h+64} glc
            s_load_dwordx16 s[68:83], s[10:11], {256*h+128} glc
            s_waitcnt lgkmcnt(0)
            s_xor_b32 s22, s39, s84""")
            for j_ in range(1, 11): a(f"s_xor_b32 s23, s{39+4*j_}, s84\ns_or_b32 s22, s22, s23")
            a(f"s_cbranch_scc0 L_q{h}ok")
            spin(f"L_q{h}", 4)
            a(f"L_q{h}ok:")
            if h == 0: stamp(2)
            for d in range(32): a(f"v_writelane_b32 v2, s{36 + 4*(d//3) + d%3}, {32*h+d}")
        a(f"""v_lshlrev_b32 v3, 2, v0
        v_mov_b32 v13, 1
        ds_write_b32 v3, v2 offset:{LQ}
        ds_write_b32 v12, v13 offset:{LQ+16}
        L_qwait:
        ds_read_b32 v13, v12 offset:{LQ+16}
        s_waitcnt lgkmcnt(0)
        v_cmp_eq_u32 vcc, 1, v13
        s_cbranch_vccnz L_qgo
        s_sleep 2""")
        spin("L_qwait", 4)
        a("L_qgo:")
        for t in range(4): a(f"ds_read_b128 {v(AQ+4*t,4)}, v{8+t} offset:{LQ}")
        a("s_waitcnt lgkmcnt(0)")
    if not DY:
        def issue(th, real, sfx):
            for n, x in enumerate(KL + VL[:NV]):
                a(x)
                if th and th <= n < 24 + NV - o["tail"] and (real or not (n < 4 or 24 <= n < 28)): a(f"s_waitcnt vmcnt({th})")
                if n == 23 and o["kbar"]: a("s_barrier")
                if not sfx: progress(n + 1)
        if o["thr5"]:
            assert o["trig"] is None or o["trig"][0] >= 3
            a("s_cmp_eq_u32 s43, 0\ns_cbranch_scc1 L_iss6")
            issue(o["thr5"], False, "")
            a("s_branch L_issd\nL_iss6:")
            issue(TH, True, "6")
            a("L_issd:")
        else: issue(TH, True, "")
        if SG:
            a("s_cmp_lt_u32 s3, 4\ns_cbranch_scc1 L_stag0")
            for n, x in enumerate(VL[NV:NV+SG]):
                a(x)
                if TH: a(f"s_waitcnt vmcnt({TH + o['tail']})")
                progress(25 + NV + n)
            a("L_stag0:")
        stamp(1); set_s(); set_late(); set_q(); q_wait()
    elif D2:
        def claim_use():
            a(f"""s_waitcnt vmcnt({36 - D2})
            v_readfirstlane_b32 s22, v15
            s_bitcmp1_b32 s22, 0
            s_cbranch_scc1 L_claimed
            s_waitcnt vmcnt(0)
            v_readfirstlane_b32 s22, v15
            L_claimed:
            s_lshr_b32 s22, s22, 1
            s_add_u32 s23, s22, s89
            s_lshl_b32 s23, s23, 12
            s_cmp_lt_u32 s22, 16
            s_cselect_b32 s23, s23, {OOB}
            s_cselect_b32 s5, 0, 1
            v_add_u32 v253, s23, v252
            v_add_u32 v255, s23, v254""")
            for x in KL[:4] + VL[20:] + VL[:4]: a(x)
            stamp(8)
            set_late()
        for n, x in enumerate(KL[4:] + VL[4:20]):
            if n == D2:
                a("s_waitcnt lgkmcnt(0)\ns_cmp_eq_u32 s95, s84\ns_cbranch_scc1 L_cok\nL_cw:\ns_load_dword s95, s[92:93], 4 glc\ns_waitcnt lgkmcnt(0)\ns_cmp_eq_u32 s95, s84\ns_cbranch_scc1 L_cok")
                spin("L_cw", 4)
                a("""L_cok:
                v_mov_b32 v15, 2
                v_mov_b32 v14, s90
                s_mov_b64 exec, 1
                buffer_atomic_add v15, v14, s[12:15], 0 offen sc0 sc1
                s_mov_b64 exec, -1""")
            if n == D2 - 6: a("s_load_dword s95, s[92:93], 4 glc")
            a(x)
            if n == 4:
                set_s(); set_q(); masks(MK, 15, 2, 3)
                a(f"""s_add_u32 s92, s26, s90
                s_addc_u32 s93, s27, 0
                s_or_b32 s22, s38, s3
                s_cmp_lg_u32 s22, 0
                s_cbranch_scc1 L_noinit
                v_mov_b32 v14, s84
                v_cmp_gt_u32 vcc, 1, v0
                v_cndmask_b32 v14, v14, 1, vcc
                v_lshl_add_u32 v15, v0, 2, s90
                s_mov_b32 exec_hi, 0
                buffer_store_dword v14, v15, s[12:15], 0 offen sc1
                s_mov_b64 exec, -1
                L_noinit:""")
            if TH and TH <= n < 36 - o["tail"]: a(f"s_waitcnt vmcnt({TH})")
            progress(n + 1, n >= 4)
        stamp(1)
        if o["pos"] == 0: claim_use()
        q_wait()
    else:
        order = KL[4:] + VL[4:20] + KL[:4] + VL[20:] + VL[:4]
        for n, x in enumerate(order):
            if n == DY:
                stamp(1); q_wait()
                a("""v_mov_b32 v13, 2
                v_mov_b32 v12, s90
                s_mov_b64 exec, 1
                buffer_atomic_add v13, v12, s[12:15], 0 offen sc0 sc1
                s_mov_b64 exec, -1""")
            if n == 36:
                a(f"""s_waitcnt vmcnt({36 - DY})
                v_readfirstlane_b32 s22, v13
                s_bitcmp1_b32 s22, 0
                s_cbranch_scc1 L_claimed
                s_waitcnt vmcnt(0)
                v_readfirstlane_b32 s22, v13
                L_claimed:
                s_lshr_b32 s22, s22, 1
                s_add_u32 s23, s22, s89
                s_lshl_b32 s23, s23, 12
                s_cmp_lt_u32 s22, 16
                s_cselect_b32 s23, s23, {OOB}
                s_cselect_b32 s5, 0, 0xff800000
                v_add_u32 v253, s23, v252
                v_add_u32 v255, s23, v248""")
                stamp(8)
            a(x)
            if n == 4: set_s(); set_q()
            if TH and TH <= n < 48 - o["tail"]: a(f"s_waitcnt vmcnt({TH})")
            progress(n + 1, n >= 4)
        set_late()
    def att_d2():
        D = "row_mask:0xf bank_mask:0xf"
        Y = 12 if o["pos"] == 0 else 0
        SL = [1, 2, 3, 4, 5]
        stamp(3)
        for sl in SL:
            a(f"s_waitcnt vmcnt({16 + Y + 4*(5-sl)})")
            for t in range(4):
                a(f"v_mfma_f32_16x16x32_bf16 {v(DQ+4*sl,4)}, {v(AQ+4*t,4)}, {v(K0+16*sl+4*t,4)}, {'0' if t==0 else v(DQ+4*sl,4)}")
        stamp(4); progress(100)
        def extract(L):
            for r in range(4):
                for sl in L:
                    qp = f"quad_perm:[{r},{r},{r},{r}] {D}"
                    if r == 0: a(f"v_mov_b32_dpp v{S0+sl}, v{DQ+4*sl} {qp}")
                    else: a(f"v_add_f32_dpp v{S0+sl}, v{DQ+4*sl+r}, v{S0+sl} {qp}")
        def red(op, R, TT):
            a(f"""v_{op}_f32_dpp v{R}, v{R}, v{R} row_ror:4 {D}
            v_{op}_f32_dpp v{R}, v{R}, v{R} row_ror:8 {D}
            v_mov_b32 v{TT}, v{R}
            v_permlane16_swap_b32 v{R}, v{TT}
            v_{op}_f32 v{R}, v{R}, v{TT}
            v_mov_b32 v{TT}, v{R}
            v_permlane32_swap_b32 v{R}, v{TT}
            v_{op}_f32 v{R}, v{R}, v{TT}""")
        extract(SL)
        T = DQ + 4; M, L_, TT, PK, F, A0 = T + 4, T + 5, T + 6, T + 8, T + 7, T + 8
        for rnd in range(2):
            a(f"v_cvt_pk_bf16_f32 v{T}, v{S0+1}, v{S0+1}")
            for p in (1, 2): a(f"v_cvt_pk_bf16_f32 v{T+p}, v{S0+2*p}, v{S0+2*p+1}")
            a(f"v_and_b32 v{S0+1}, s21, v{T}")
            for p in (1, 2): a(f"v_lshlrev_b32 v{S0+2*p}, 16, v{T+p}\nv_and_b32 v{S0+2*p+1}, s21, v{T+p}")
            if rnd == 0:
                for sl in SL: a(f"v_mul_f32 v{S0+sl}, s9, v{S0+sl}")
        a(f"v_max3_f32 v{M}, v{S0+1}, v{S0+2}, v{S0+3}\nv_max3_f32 v{M}, v{S0+4}, v{S0+5}, v{M}")
        red("max", M, TT)
        a(f"v_mul_f32 v{M}, s8, v{M}")
        for sl in SL: a(f"v_fma_f32 v{S0+sl}, v{S0+sl}, s8, -v{M}")
        for sl in SL: a(f"v_exp_f32 v{S0+sl}, v{S0+sl}")
        for sl in SL: a(f"v_cvt_pk_bf16_f32 v{PK+sl}, v{S0+sl}, v{S0+sl}")
        def pbuild(sl, src):
            for k in range(4):
                for r in range(4): a(f"v_and_b32_dpp v{K0+16*sl+4*k+r}, v{src}, v{MK+r} row_newbcast:{4*k} {D}")
        if o["pos"] == 2: claim_use()
        for sl in SL: pbuild(sl, PK+sl)
        a(f"""v_add_f32 v{L_}, v{S0+1}, v{S0+2}
        v_add_f32 v{TT}, v{S0+3}, v{S0+4}
        v_add_f32 v{L_}, v{L_}, v{S0+5}
        v_add_f32 v{L_}, v{L_}, v{TT}""")
        red("add", L_, TT)
        if o["pos"] == 1: claim_use()
        stamp(5)
        for sl in SL[:4]:
            a(f"s_waitcnt vmcnt({12 + 4*(4-sl)})"); progress(100 + sl)
            for k in range(4): a(f"v_mfma_f32_16x16x32_bf16 {v(ACC,4)}, {v(K0+16*sl+4*k,4)}, {v(V0+16*sl+4*k,4)}, {'0' if sl==1 and k==0 else v(ACC,4)}")
        def pv5():
            for k in range(4): a(f"s_waitcnt vmcnt({7-k})\nv_mfma_f32_16x16x32_bf16 {v(ACC,4)}, {v(K0+80+4*k,4)}, {v(V0+80+4*k,4)}, {v(ACC,4)}")
        a("s_cmp_eq_u32 s5, 0\ns_cbranch_scc1 L_won")
        pv5()
        a("s_branch L_pvdone\nL_won:\ns_waitcnt vmcnt(8)")
        for t in range(4): a(f"v_mfma_f32_16x16x32_bf16 {v(DQ,4)}, {v(AQ+4*t,4)}, {v(K0+4*t,4)}, {'0' if t==0 else v(DQ,4)}")
        extract([0])
        a(f"""v_cvt_pk_bf16_f32 v{S0}, v{S0}, v{S0}
        v_and_b32 v{S0}, s21, v{S0}
        v_mul_f32 v{S0}, s9, v{S0}
        v_cvt_pk_bf16_f32 v{S0}, v{S0}, v{S0}
        v_and_b32 v{S0}, s21, v{S0}
        v_mov_b32 v{S0+1}, v{S0}""")
        red("max", S0+1, TT)
        a(f"""v_mul_f32 v{S0+1}, s8, v{S0+1}
        v_max_f32 v{S0+1}, v{S0+1}, v{M}
        v_fma_f32 v{S0}, v{S0}, s8, -v{S0+1}
        v_sub_f32 v{F}, v{M}, v{S0+1}
        v_exp_f32 v{S0}, v{S0}
        v_exp_f32 v{F}, v{F}
        v_mov_b32 v{M}, v{S0+1}
        v_cvt_pk_bf16_f32 v{S0+2}, v{S0}, v{S0}""")
        pbuild(0, S0+2)
        pv5()
        red("add", S0, TT)
        a(f"v_fma_f32 v{L_}, v{L_}, v{F}, v{S0}")
        for k in range(4): a(f"s_waitcnt vmcnt({3-k})\nv_mfma_f32_16x16x32_bf16 {v(A0,4)}, {v(K0+4*k,4)}, {v(V0+4*k,4)}, {'0' if k==0 else v(A0,4)}")
        for r in range(4): a(f"v_fma_f32 v{ACC+r}, v{ACC+r}, v{F}, v{A0+r}")
        a(f"L_pvdone:\nds_write_b64 v253, {v(M,2)}")
    if D2: att_d2()
    else:
        stamp(3)
        for sl in ([1, 2, 3, 4, 5, 0] if DY else range(6)):
            if not DY: a(f"s_waitcnt vmcnt({20+NV-4*sl})")
            elif sl < 2: a(f"s_waitcnt vmcnt({28 if sl else 8})")
            for t in range(4):
                a(f"v_mfma_f32_16x16x32_bf16 {v(DQ+4*sl,4)}, {v(AQ+4*t,4)}, {v(K0+16*sl+4*t,4)}, {'0' if t==0 else v(DQ+4*sl,4)}")
        stamp(4); progress(100)
        for r in range(4):
            for sl in range(6):
                qp = f"quad_perm:[{r},{r},{r},{r}] row_mask:0xf bank_mask:0xf"
                if r == 0: a(f"v_mov_b32_dpp v{S0+sl}, v{DQ+4*sl} {qp}")
                else: a(f"v_add_f32_dpp v{S0+sl}, v{DQ+4*sl+r}, v{S0+sl} {qp}")
        T = AQ
        for rnd in range(2):
            for p in range(3): a(f"v_cvt_pk_bf16_f32 v{T+p}, v{S0+2*p}, v{S0+2*p+1}")
            for p in range(3): a(f"v_lshlrev_b32 v{S0+2*p}, 16, v{T+p}\nv_and_b32 v{S0+2*p+1}, s21, v{T+p}")
            if rnd == 0:
                for sl in range(6): a(f"v_mul_f32 v{S0+sl}, s9, v{S0+sl}")
        M, L_, TT = T + 4, T + 5, T + 6
        a(f"""v_add_f32 v{S0}, s5, v{S0}
        v_max3_f32 v{M}, v{S0+1}, v{S0+2}, v{S0+3}
        v_max3_f32 v{TT}, v{S0+4}, v{S0+5}, v{S0}
        v_max_f32 v{M}, v{M}, v{TT}
        v_max_f32_dpp v{M}, v{M}, v{M} row_ror:4 row_mask:0xf bank_mask:0xf
        v_max_f32_dpp v{M}, v{M}, v{M} row_ror:8 row_mask:0xf bank_mask:0xf
        v_mov_b32 v{TT}, v{M}
        v_permlane16_swap_b32 v{M}, v{TT}
        v_max_f32 v{M}, v{M}, v{TT}
        v_mov_b32 v{TT}, v{M}
        v_permlane32_swap_b32 v{M}, v{TT}
        v_max_f32 v{M}, v{M}, v{TT}
        v_mul_f32 v{M}, s8, v{M}""")
        for sl in range(6): a(f"v_fma_f32 v{S0+sl}, v{S0+sl}, s8, -v{M}")
        for sl in range(6): a(f"v_exp_f32 v{S0+sl}, v{S0+sl}")
        PK = T + 8
        for sl in range(6): a(f"v_cvt_pk_bf16_f32 v{PK+sl}, v{S0+sl}, v{S0+sl}")
        for sl in range(6):
            for k in range(4):
                for r in range(4):
                    a(f"v_and_b32_dpp v{K0+16*sl+4*k+r}, v{PK+sl}, v{MK+r} row_newbcast:{4*k} row_mask:0xf bank_mask:0xf")
        a(f"""v_add_f32 v{L_}, v{S0}, v{S0+1}
        v_add_f32 v{TT}, v{S0+2}, v{S0+3}
        v_add_f32 v{S0+4}, v{S0+4}, v{S0+5}
        v_add_f32 v{L_}, v{L_}, v{TT}
        v_add_f32 v{L_}, v{L_}, v{S0+4}
        v_add_f32_dpp v{L_}, v{L_}, v{L_} row_ror:4 row_mask:0xf bank_mask:0xf
        v_add_f32_dpp v{L_}, v{L_}, v{L_} row_ror:8 row_mask:0xf bank_mask:0xf
        v_mov_b32 v{TT}, v{L_}
        v_permlane16_swap_b32 v{L_}, v{TT}
        v_add_f32 v{L_}, v{L_}, v{TT}
        v_mov_b32 v{TT}, v{L_}
        v_permlane32_swap_b32 v{L_}, v{TT}
        v_add_f32 v{L_}, v{L_}, v{TT}
        ds_write_b64 v253, {v(M,2)}""")
        if SG:
            a("s_cmp_ge_u32 s3, 4\ns_cbranch_scc1 L_stag1")
            for x in VL[NV:NV+SG]: a(x)
            a("L_stag1:")
        if not DY:
            for x in VL[NV+SG:]: a(x)
        stamp(5)
        for i_, sl in enumerate([1, 2, 3, 4, 5, 0] if DY else range(6)):
            for k in range(4):
                n = 23 - 4 * i_ - k
                if DY:
                    if i_ >= 4: a(f"s_waitcnt vmcnt({n})")
                elif k == 0 or sl == 5: a(f"s_waitcnt vmcnt({n - (3 if sl < 5 else 0)})")
                if k == 0: progress(101 + i_)
                a(f"v_mfma_f32_16x16x32_bf16 {v(ACC,4)}, {v(K0+16*sl+4*k,4)}, {v(V0+16*sl+4*k,4)}, {'0' if i_==0 and k==0 else v(ACC,4)}")
    stamp(6)
    a(f"""ds_write_b128 v252, {v(ACC,4)}
    s_waitcnt lgkmcnt(0)""")
    if o["adry"]:
        a(f"""s_mov_b32 s14, 0
        s_cmp_lt_u32 s3, {1 if o["one"] else 4}
        s_cbranch_scc1 L_comb
        L_bar:
        s_mov_b32 s14, {MBX}""")
    a(f"""s_barrier
    """)
    if o["one"]:
        a("""s_cmp_lg_u32 s3, 0
        s_cbranch_scc1 L_att_end
        L_comb:
        ds_read_b64 v[16:17], v255 offset:512""")
        for k in range(8): a(f"ds_read_b64 {v(28+2*k,2)}, v254 offset:{544*k}")
        a("""v_mov_b32 v26, s84
        v_mov_b32 v27, s84
        v_mov_b32 v18, 0xff
        s_waitcnt lgkmcnt(8)
        v_max_f32_dpp v24, v16, v16 quad_perm:[1,0,3,2] row_mask:0xf bank_mask:0xf
        v_max_f32_dpp v24, v24, v24 quad_perm:[2,3,0,1] row_mask:0xf bank_mask:0xf
        v_max_f32_dpp v24, v24, v24 row_half_mirror row_mask:0xf bank_mask:0xf
        v_sub_f32 v16, v16, v24
        v_exp_f32 v16, v16
        s_waitcnt lgkmcnt(0)
        v_mul_f32 v25, v16, v17""")
        D = "row_mask:0xf bank_mask:0xf"
        for k in range(8):
            for e in range(2):
                dst = 20 + e + 2 * (k & 1)
                a(f"v_{'mul' if k < 2 else 'fmac'}_f32_dpp v{dst}, v16, v{28+2*k+e} row_newbcast:{k} {D}")
            if k in (1, 3, 5): a(f"v_add_f32_dpp v25, v25, v25 {['quad_perm:[1,0,3,2]', 'quad_perm:[2,3,0,1]', 'row_half_mirror'][k//2]} {D}")
        a(f"""v_pk_add_f32 v[20:21], v[20:21], v[22:23]
        v_mov_b32_dpp v22, v20 quad_perm:[1,0,3,2] {D}
        v_mov_b32_dpp v23, v21 quad_perm:[1,0,3,2] {D}""")
        tag4(20, 18, 85)
        a("""buffer_store_dwordx4 v[20:23], v14, s[12:15], 0 offen sc1
        buffer_store_dwordx4 v[24:27], v15, s[12:15], 0 offen sc1""")
    else:
      a(f"""    s_cmp_ge_u32 s3, 4
    s_cbranch_scc1 L_att_end
    L_comb:
    ds_read_b64 v[16:17], v255 offset:512
    ds_read_b128 v[20:23], v254
    v_mov_b32 v26, s84
    v_mov_b32 v27, s84
    v_mov_b32 v18, 0xff
    s_waitcnt lgkmcnt(1)
    v_max_f32_dpp v24, v16, v16 quad_perm:[1,0,3,2] row_mask:0xf bank_mask:0xf
    v_max_f32_dpp v24, v24, v24 quad_perm:[2,3,0,1] row_mask:0xf bank_mask:0xf
    v_max_f32_dpp v24, v24, v24 row_half_mirror row_mask:0xf bank_mask:0xf
    v_sub_f32 v16, v16, v24
    v_exp_f32 v16, v16
    s_waitcnt lgkmcnt(0)
    v_mul_f32 v25, v16, v17""")
      for r in range(4): a(f"v_mul_f32 v{20+r}, v16, v{20+r}")
      for dp in ("quad_perm:[1,0,3,2]", "quad_perm:[2,3,0,1]", "row_half_mirror"):
          for r in (20, 21, 22, 23, 25): a(f"v_add_f32_dpp v{r}, v{r}, v{r} {dp} row_mask:0xf bank_mask:0xf")
      tag4(20, 18, 85)
      a("""buffer_store_dwordx4 v[20:23], v14, s[12:15], 0 offen sc1
    s_cmp_lg_u32 s3, 0
    s_cbranch_scc1 L_comb_end
    buffer_store_dwordx4 v[24:27], v15, s[12:15], 0 offen sc1
    L_comb_end:""")
    if o["adry"]: a("s_cmp_eq_u32 s14, 0\ns_cbranch_scc1 L_bar")
    a("L_att_end:")
    stamp(7)
    if o["pf"] is not None:
        for k_ in range(192): assert (k_ * 171) >> 13 == k_ // 48
        a(f"""s_load_dwordx4 s[36:39], s[0:1], 48
        s_load_dwordx2 s[40:41], s[0:1], 64
        s_sub_u32 s22, s2, 64
        s_and_b32 s23, s22, 0xf8
        s_add_u32 s23, s23, s3
        s_mul_i32 s24, s23, 171
        s_lshr_b32 s24, s24, 13
        s_mul_i32 s25, s24, 48
        s_sub_u32 s23, s23, s25
        s_add_u32 s22, s22, 3
        s_and_b32 s22, s22, 7
        s_lshl_b32 s24, s24, 3
        s_add_u32 s22, s22, s24
        s_barrier
        s_cmp_ge_u32 s22, 27
        s_cbranch_scc1 L_pf_end
        s_mov_b32 s46, 2211840
        s_mov_b32 s47, 0x20000
        s_cmp_ge_u32 s23, 32
        s_cbranch_scc1 L_pf_dn
        s_and_b32 s24, s23, 15
        s_mul_i32 s24, s24, {40*3456}
        s_lshl_b32 s22, s22, 7
        s_add_u32 s24, s24, s22
        v_lshrrev_b32 v2, 3, v0
        v_and_b32 v3, 7, v0
        v_mul_u32_u24 v2, 3456, v2
        v_lshl_add_u32 v2, v3, 4, v2
        s_mov_b32 s25, {8*3456}
        s_cmp_lt_u32 s23, 16
        s_waitcnt lgkmcnt(0)
        s_cselect_b32 s44, s36, s38
        s_cselect_b32 s45, s37, s39
        s_branch L_pf_go
        L_pf_dn:
        s_sub_u32 s24, s23, 32
        s_mul_i32 s24, s24, 5120
        s_mul_i32 s22, s22, 81920
        s_add_u32 s24, s24, s22
        v_lshlrev_b32 v2, 4, v0
        s_mov_b32 s25, 1024
        s_waitcnt lgkmcnt(0)
        s_mov_b32 s44, s40
        s_mov_b32 s45, s41
        L_pf_go:""")
        for k_ in range(5): a(f"buffer_load_dwordx4 {v(32+4*k_,4)}, v2, s[44:47], s24 offen {o['pf']}\ns_add_u32 s24, s24, s25")
        a("s_waitcnt vmcnt(0)\nL_pf_end:")
    stamp_out()
    a("L_end:\ns_endpgm")
    GU, WO, DN = 16, 96, 160
    M8, M4 = 4, 8
    SB = 80
    HW, HS, HC, PW, PR, YW = 240, 241, 242, 243, 244, 245
    C640, CG2 = 246, 249
    NS, TS, E0, VM = 93, 56, 247, 14
    g1 = -2 * LOG2E * 0.7978845608028654
    SM = o["sm"]; DA = 124 if SM else 208
    assert not SM or (o["x2"] and o["lnf"] and not o["al2"] and o["skip"])
    def gq(t, m): return GU + 16*(t%5) + 8*m + 4*(t//5) if SM else GU + 8*t + 4*m
    def smf(d, a_, b_): a(f"v_smfmac_f32_16x16x64_bf16 {v(d,4)}, {v(a_,4)}, {v(b_,8)}, v10")
    def sm_tiles(tl, waits):
        for t, (x_, y_, w_) in enumerate(tl):
            if t in waits: a(f"s_waitcnt lgkmcnt({waits[t]})")
            for r in range(4): a(f"v_and_b32 v{228+4*(t%3)+r}, v{x_ if r < 2 else y_}, v{8+(r&1)}")
            if t > 0: smf(252, 228+4*((t-1)%3), tl[t-1][2])
        smf(252, 228+4*((len(tl)-1)%3), tl[-1][2])
    def gu_list():
        L = []
        for t in range(10):
            va = 250; k_ = t
            if o["al2"]: va, k_ = (110, t // 5) if t % 5 == 4 else (250, t - t // 5)
            so = "0" if k_ == 0 else f"s{59+k_}"
            L.append(f"buffer_load_dwordx4 {v(gq(t,0),4)}, v{va}, s[32:35], {so} offen {WT}")
            L.append(f"buffer_load_dwordx4 {v(gq(t,1),4)}, v{va}, s[36:39], {so} offen {WT}")
        return L
    def gu_setup():
        srd(32, 16, 2211840); srd(36, 18, 2211840)
        for t in range(1, 10): a(f"s_mov_b32 s{59+t}, {3456*t}")
        if o["al2"]:
            a("""s_lshl_b32 s72, s3, 3
            v_add_u32 v14, s72, v2
            v_mul_u32_u24 v250, 27648, v14
            v_mul_u32_u24 v110, 6912, v14
            s_lshl_b32 s72, s77, 7
            v_lshl_add_u32 v15, v3, 4, s72
            v_add_u32 v250, v250, v15
            v_add_u32 v110, v110, v15
            v_add_u32 v110, 1769472, v110
            v_lshrrev_b32 v14, 2, v0
            s_lshl_b32 s72, s3, 4
            v_add_u32 v111, s72, v14
            v_lshlrev_b32 v14, 3, v111
            v_lshlrev_b32 v15, 1, v111
            buffer_load_dwordx2 v[98:99], v14, s[28:31], 0 offen
            buffer_load_ushort v100, v15, s[28:31], 0 offen offset:1024""")
        else: a("s_lshl_b32 s72, s77, 7\nv_mul_u32_u24 v250, 3456, v12\nv_lshl_add_u32 v250, v3, 4, v250\nv_add_u32 v250, s72, v250")
        if SM:
            a("""v_bfe_u32 v14, v0, 4, 1
            v_bfe_u32 v15, v0, 2, 1
            v_lshl_add_u32 v14, v14, 1, v15
            v_bfe_u32 v15, v0, 3, 1
            v_lshl_add_u32 v14, v14, 1, v15
            v_lshrrev_b32 v15, 5, v0
            v_lshl_add_u32 v14, v14, 1, v15
            s_mul_i32 s72, s3, 80
            v_mad_u32_u24 v111, v14, 5, s72
            v_lshlrev_b32 v14, 1, v111""")
            for e in range(5): a(f"buffer_load_ushort v{96+e}, v14, s[28:31], 0 offen offset:{2*e}")
    def dn_loads():
        srd(44, 20, 2211840)
        a("""s_lshl_b32 s72, s77, 3
        s_add_u32 s72, s72, s3
        s_mul_i32 s72, s72, 10240
        v_lshrrev_b32 v14, 4, v0
        v_mul_u32_u24 v14, %d, v14
        v_and_b32 v15, 15, v0
        v_lshl_add_u32 v14, v15, 4, v14
        v_add_u32 v14, s72, v14""" % (1280 if SM else 2560))
        if SM:
            a("s_mov_b32 s72, 5120")
            for t in range(2):
                for b in range(5): a(f"buffer_load_dwordx4 {v(DN+8*b+4*t,4)}, v14, s[44:47], {'s72' if t else '0'} offen offset:{256*b} {WT}")
            return
        for t in range(2):
            for b in range(5): a(f"buffer_load_dwordx4 {v(DN+20*t+4*b,4)}, v14, s[44:47], 0 offen offset:{1280*t+256*b} {WT}")
    def wo_list():
        return [f"buffer_load_dwordx4 {v(WO+8*(t&7)+4*(t>>3) if SM else WO+4*t,4)}, v251, s[40:43], {'0' if t < 4 else 's%d' % (68 + t//4)} offen offset:{1280*(t&3)} {WT}" for t in range(16)]
    def xw_loads():
        XW = 16
        a(f"""s_mul_i32 s72, s79, 163840
                s_mul_i32 s73, s3, 20480
                s_add_u32 s72, s72, s73
                s_lshl_b32 s73, s75, 7
                s_add_u32 s72, s72, s73
                v_mul_u32_u24 v14, 2560, v2
                v_lshl_add_u32 v14, v3, 4, v14
                v_add_u32 v14, s72, v14
                s_mov_b32 s72, 163840
                s_mov_b32 s73, 327680""")
        for e in range(3):
            for t in range(2): a(f"buffer_load_dwordx4 {v(XW+8*e+4*t,4)}, v14, s[40:43], {['0','s72','s73'][e]} offen offset:{1280*t} {WT}")
    def wq_loads(base, va):
        for t in range(10): a(f"buffer_load_dwordx4 {v(base+4*t,4)}, v{va}, s[52:55], {'0' if t == 0 else 's%d' % (83+t)} offen {WT}")
    def ln(wait_c):
        for p in range(5): a(f"v_pk_add_f32 {v(204+2*p,2)}, {v(204+2*p,2)}, v[214:215] op_sel_hi:[1,0] neg_lo:[0,1] neg_hi:[0,1]")
        a("""v_pk_mul_f32 v[14:15], v[204:205], v[204:205]
        v_pk_add_f32 v[204:205], v[204:205], v[206:207]
        v_pk_fma_f32 v[14:15], v[206:207], v[206:207], v[14:15]
        v_pk_add_f32 v[206:207], v[208:209], v[210:211]
        v_pk_fma_f32 v[14:15], v[208:209], v[208:209], v[14:15]
        v_pk_add_f32 v[204:205], v[204:205], v[212:213]
        v_pk_fma_f32 v[14:15], v[210:211], v[210:211], v[14:15]
        v_pk_add_f32 v[204:205], v[204:205], v[206:207]
        v_pk_fma_f32 v[14:15], v[212:213], v[212:213], v[14:15]
        v_add_f32 v204, v204, v205
        v_add_f32 v14, v14, v15""")
        for dp in ("row_ror:1 row_mask:0xf", "row_ror:2 row_mask:0xf", "row_ror:4 row_mask:0xf", "row_ror:8 row_mask:0xf", "row_bcast:15 row_mask:0xa", "row_bcast:31 row_mask:0xc"):
            a(f"v_add_f32_dpp v204, v204, v204 {dp} bank_mask:0xf\nv_add_f32_dpp v14, v14, v14 {dp} bank_mask:0xf")
        a(f"""v_readlane_b32 s72, v204, 63
        v_readlane_b32 s73, v14, 63
        v_mul_f32 v14, s72, v{C640}
        v_mul_f32 v15, s73, v{C640}
        v_add_f32 v214, v214, v14
        v_fma_f32 v15, -v14, v14, v15
        v_cvt_pk_bf16_f32 v14, v214, v15
        v_and_b32 v15, s81, v14
        v_lshlrev_b32 v214, 16, v14
        v_add_f32 v15, {f2u(1e-5)}, v15""")
        a(wait_c)
        pk = [f"v_pk_add_f32 {v(216+2*p,2)}, {v(216+2*p,2)}, v[214:215] op_sel_hi:[1,0] neg_lo:[0,1] neg_hi:[0,1]" for p in range(5)]
        cv = [f"v_cvt_pk_bf16_f32 v{204+p}, v{216+2*p}, v{217+2*p}" for p in range(5)]
        un = [f"v_lshlrev_b32 v{216+2*p}, 16, v{204+p}\nv_and_b32 v{217+2*p}, s81, v{204+p}" for p in range(5)]
        a("v_cvt_pk_bf16_f32 v15, v15, v15"); a(pk[0]); a("v_and_b32 v15, s81, v15"); a(pk[1]); a("v_sqrt_f32 v15, v15")
        a(pk[2]); a(pk[3]); a("v_cvt_pk_bf16_f32 v15, v15, v15"); a(pk[4]); a("v_and_b32 v15, s81, v15"); a(cv[0]); a("v_rcp_f32 v14, v15")
        for x in cv[1:] + un: a(x)
        for p in range(5): a(f"v_pk_mul_f32 {v(216+2*p,2)}, {v(216+2*p,2)}, v[14:15] op_sel_hi:[1,0]")
        for t in range(10): a(f"v_cvt_pk_bf16_f32 v{216+t}, v{216+t}, v{216+t}")
    def qgemv(base, acc, after, nxt):
        nxt = list(nxt); issued = 0
        for t in range(10):
            for r in range(4): a(f"v_and_b32 v{228+4*(t%2)+r}, v{216+t}, v{M8+r}")
            a(f"s_waitcnt vmcnt({9-t+after+issued})")
            a(f"v_mfma_f32_16x16x32_bf16 {v(acc,4)}, {v(228+4*(t%2),4)}, {v(base+4*t,4)}, {'0' if t==0 else v(acc,4)}")
            for k in range(o["il"]):
                if nxt: a(nxt.pop(0)); issued += 1
        return nxt
    def psum():
        a(f"""ds_read2st64_b32 v[204:205], v{PR} offset0:0 offset1:17
        ds_read2st64_b32 v[206:207], v{PR} offset0:1 offset1:18
        s_waitcnt lgkmcnt(1)
        v_add_f32 v204, v204, v205
        s_waitcnt lgkmcnt(0)
        v_add_f32 v206, v206, v207""")
        for dp in ("quad_perm:[1,0,3,2]", "quad_perm:[2,3,0,1]", "row_half_mirror"):
            a(f"v_add_f32_dpp v204, v204, v204 {dp} row_mask:0xf bank_mask:0xf\nv_add_f32_dpp v206, v206, v206 {dp} row_mask:0xf bank_mask:0xf")
    for i in range(28): assert (i * 37) >> 8 == i // 7
    for i in range(9): assert (i * 86) >> 8 == i // 3
    for col in range(0, 640, 2): assert (col * 52429) >> 19 == col // 10
    a("""L_aux:
    v_lshrrev_b32 v2, 3, v0
    v_and_b32 v3, 7, v0
    s_mul_i32 s72, s3, 80
    v_mul_u32_u24 v12, 10, v2
    v_add_u32 v12, s72, v12
    v_lshlrev_b32 v13, 2, v0
    s_lshl_b32 s72, s3, 8
    v_add_u32 v13, s72, v13
    s_and_b32 s78, s2, 7
    s_lshl_b32 s78, s78, 3
    s_lshr_b32 s72, s2, 3
    s_add_u32 s78, s78, s72
    s_lshl_b32 s72, s78, 7
    v_lshlrev_b32 v252, 13, v12
    v_lshl_add_u32 v252, v3, 4, v252
    v_add_u32 v252, s72, v252
    v_mul_u32_u24 v254, 20, v0
    v_lshlrev_b32 v255, 1, v12""")
    for t in range(1, 10): a(f"s_mov_b32 s{83+t}, {8192*t}")
    a("""s_mul_i32 s74, s2, 37
    s_lshr_b32 s74, s74, 8
    s_mul_i32 s75, s74, 7
    s_sub_u32 s75, s2, s75
    s_lshl_b32 s76, s74, 3
    s_sub_u32 s72, s2, 28
    s_mul_i32 s73, s72, 86
    s_lshr_b32 s73, s73, 8
    s_mul_i32 s79, s73, 3
    s_sub_u32 s72, s72, s79
    s_add_u32 s72, s72, 7
    s_mul_i32 s79, s73, 11
    s_cmp_ge_u32 s2, 28
    s_cselect_b32 s74, s73, s74
    s_cselect_b32 s75, s72, s75
    s_cselect_b32 s76, s79, s76
    s_add_u32 s79, s76, 8
    s_add_u32 s76, s76, s3
    s_mul_i32 s72, s76, 163840
    s_lshl_b32 s73, s75, 7
    s_add_u32 s72, s72, s73
    v_mul_u32_u24 v251, 20480, v2
    v_lshl_add_u32 v251, v3, 4, v251
    v_add_u32 v251, s72, v251
    s_mov_b32 s69, 5120
    s_mov_b32 s70, 10240
    s_mov_b32 s71, 15360
    s_sub_u32 s77, s2, 37
    s_waitcnt lgkmcnt(0)
    s_load_dword s93, s[26:27], %d""" % CAN)
    if o["stamps"]: a("v_mov_b32 v1, 0\nv_writelane_b32 v1, s100, 0")
    srd(28, 4, 1280); srd(52, 10, 5242880)
    if o["dyn"]:
        srd(48, 26, MBX)
        a(f"""s_lshr_b32 s72, s78, 1
        s_lshl_b32 s72, s72, 7
        s_add_u32 s72, s72, {CNT}
        s_and_b32 s73, s78, 1
        s_or_b32 s73, s73, s3
        s_cmp_eq_u32 s73, 0
        s_cbranch_scc0 L_nocnt
        v_mov_b32 v14, 1
        v_lshl_add_u32 v15, v0, 2, s72
        s_mov_b32 exec_hi, 0
        buffer_store_dword v14, v15, s[48:51], 0 offen sc1
        s_mov_b64 exec, -1
        L_nocnt:""")
    a("""buffer_load_dwordx4 v[228:231], v254, s[28:31], 0 offen
    buffer_load_dword v232, v254, s[28:31], 0 offen offset:16
    buffer_load_dwordx4 v[236:239], v255, s[28:31], 0 offen
    buffer_load_dword v233, v255, s[28:31], 0 offen offset:16
    buffer_load_dword v200, v13, s[28:31], 0 offen""")
    wq_loads(DN, 252)
    srd(48, 26, MBX); srd(40, 12, 5242880)
    a(f"s_mov_b32 s{SB}, 0x40000")
    if o["xearly"]:
        a("s_sub_u32 s72, s2, 28\ns_cmp_lt_u32 s72, 9\ns_cbranch_scc0 L_consts\ns_barrier")
        for x in wo_list(): a(x)
        xw_loads()
        a("L_consts:")
    stamp(1)
    masks(M8, 7, 14, 15)
    if SM: a("""v_and_b32 v14, 4, v0
        v_cmp_eq_u32 vcc, 0, v14
        v_mov_b32 v14, 0xffff
        v_cndmask_b32 v8, 0, v14, vcc
        v_cndmask_b32 v9, v14, 0, vcc
        v_and_b32 v14, 3, v0
        v_mul_u32_u24 v10, 0x5555, v14""")
    else: masks(M4, 15, 14, 15)
    a(f"""s_mov_b32 s81, 0xffff0000
    v_mov_b32 v{C640}, {f2u(1/640)}
    v_mov_b32 v{CG2}, {f2u(g1*0.044715)}
    v_lshrrev_b32 v14, 1, v13
    s_mov_b32 s72, 52429
    v_mul_lo_u32 v15, v14, s72
    v_lshrrev_b32 v15, 19, v15
    v_lshlrev_b32 v15, 1, v15
    v_add_u32 v14, v14, v15
    v_lshlrev_b32 v{HW}, 2, v14
    v_mul_u32_u24 v{HS}, 48, v0
    s_lshl_b32 s72, s3, 3
    v_add_u32 v14, s72, v2
    v_mul_u32_u24 v{HC}, 48, v14
    v_lshlrev_b32 v14, 2, v14
    v_mul_u32_u24 v15, 544, v3
    v_add_u32 v{PR}, v14, v15
    v_add_u32 v{PR}, {LP}, v{PR}""")
    a(f"""v_lshrrev_b32 v14, 5, v0
    v_bfe_u32 v15, v0, 3, 1
    v_cmp_eq_u32 vcc, v14, v15
    s_lshl_b32 s72, s3, 1
    v_add_u32 v14, s72, v14
    v_bfe_u32 v15, v0, 4, 1
    v_lshlrev_b32 v15, 4, v15
    v_lshl_add_u32 v15, v3, 5, v15
    v_lshlrev_b32 v201, 4, v0
    v_add_u32 v201, {LDUMP}, v201
    v_mul_u32_u24 v202, 544, v14
    v_add_u32 v202, v202, v15
    v_add_u32 v202, {LP}, v202
    v_cndmask_b32 v{PW}, v201, v202, vcc
    v_mul_u32_u24 v202, 320, v14
    v_add_u32 v202, v202, v15
    v_add_u32 v202, {LY}, v202
    v_cndmask_b32 v{YW}, v201, v202, vcc
    """)
    if o["xearly"]: a("s_sub_u32 s72, s2, 28\ns_cmp_lt_u32 s72, 9\ns_cbranch_scc1 L_xx\ns_waitcnt vmcnt(11)\nL_xx:\ns_waitcnt vmcnt(33)")
    else: a("s_waitcnt vmcnt(11)")
    for p in range(5):
        src = 228 + p; srcc = 236 + p if p < 4 else 233
        a(f"v_lshlrev_b32 v{204+2*p}, 16, v{src}\nv_and_b32 v{205+2*p}, s81, v{src}\nv_lshlrev_b32 v{216+2*p}, 16, v{srcc}\nv_and_b32 v{217+2*p}, s81, v{srcc}")
    if o["lnf"] and not o["al2"]:
        a("v_bfe_u32 v14, v0, 2, 1\nv_cmp_eq_u32 vcc, 1, v14")
        for e in range(5): a(f"v_cndmask_b32 v{96+e}, v{216+e}, v{221+e}, vcc")
    a("v_readfirstlane_b32 s72, v204\nv_mov_b32 v214, s72")
    ln("")
    stamp(13)
    if o["xearly"]:
        a("s_sub_u32 s72, s2, 28\ns_cmp_lt_u32 s72, 9\ns_cbranch_scc0 L_q_n")
        qgemv(DN, 204, 22, [])
        a("s_branch L_q_sum\nL_q_n:")
    qgemv(DN, 204, 0, [])
    a("L_q_sum:")
    stamp(18)
    a(f"""ds_write_b128 v{PW}, v[204:207]
    s_waitcnt lgkmcnt(0)""")
    nonce(NS, TS)
    a(f"""v_and_b32 v14, 1, v0
    v_cmp_eq_u32 vcc, 0, v14
    v_mov_b32 v14, s{TS}
    v_mov_b32 v15, s{TS+1}
    v_mov_b32 v{E0}, s{TS+2}
    v_mov_b32 v{E0+1}, s{TS+3}
    v_cndmask_b32 v{E0}, v{E0}, v14, vcc
    v_cndmask_b32 v{E0+1}, v{E0+1}, v15, vcc
    s_barrier
    s_cmp_lg_u32 s3, 0
    s_cbranch_scc1 L_q_1
    v_lshlrev_b32 v14, 2, v0""")
    stamp(14)
    for r in range(16): a(f"ds_read_b32 v{204+r}, v14 offset:{LP+544*r}")
    a(f"""v_and_b32 v14, 15, v0
    v_mul_u32_u24 v224, 24, v14
    v_add_u32 v225, 8, v224
    v_add_u32 v226, 16, v224
    v_cmp_gt_u32 vcc, 11, v14
    v_lshlrev_b32 v14, 4, v14
    v_lshrrev_b32 v15, 4, v0
    v_lshl_add_u32 v14, v15, 9, v14
    s_lshr_b32 s72, s78, 1
    s_mul_i32 s72, s72, 3072
    s_and_b32 s73, s78, 1
    s_lshl_b32 s73, s73, 8
    s_add_u32 s72, s72, s73
    v_mov_b32 v15, {OOB}
    v_cndmask_b32 v14, v15, v14, vcc
    v_cmp_gt_u32 vcc, 32, v0
    v_cndmask_b32 v15, v15, v14, vcc
    v_mov_b32 v223, s{NS}
    s_waitcnt lgkmcnt(0)""")
    for w in (4, 2, 1):
        for p in range(w): a(f"v_pk_add_f32 {v(204+2*p,2)}, {v(204+2*p,2)}, {v(204+2*p+2*w,2)}")
    a(f"""v_add_f32 v204, v204, v205
    v_mov_b32_dpp v205, v204 quad_perm:[1,0,3,2] row_mask:0xf bank_mask:0xf
    v_cvt_pk_bf16_f32 v204, v204, v205
    ds_bpermute_b32 v220, v224, v204
    ds_bpermute_b32 v221, v225, v204
    ds_bpermute_b32 v222, v226, v204
    s_waitcnt lgkmcnt(0)
    buffer_store_dwordx4 v[220:223], v14, s[48:51], s72 offen sc1
    buffer_store_dwordx4 v[220:223], v15, s[48:51], s72 offen offset:2048 sc1
    L_q_1:
    s_barrier""")
    stamp(15)
    if o["dry"]:
        a(f"""s_mov_b32 s82, 1
        s_mov_b32 s50, 0
        s_mov_b32 s{SB}, 0
        s_cmp_ge_u32 s2, 37
        s_cbranch_scc1 L_ffn
        s_branch L_wo
        L_real:
        s_mov_b32 s82, 0
        s_mov_b32 s50, {MBX}
        s_mov_b32 s{SB}, 0x40000""")
        stamp(17)
    if o["trig"]:
        if o["trig"][1] == 0: a("s_cmp_lt_u32 s2, 37\ns_cbranch_scc1 L_go")
        elif not o["xtrig"]: a("s_sub_u32 s72, s2, 28\ns_cmp_lt_u32 s72, 9\ns_cbranch_scc1 L_go")
        a(f"""s_cmp_lg_u32 s3, 0
        s_cbranch_scc1 L_go1
        s_lshl_b32 s72, s2, 7
        s_add_u32 s72, s72, {PG}
        v_min_u32 v205, {3 * o["tw"] - 1}, v0
        v_lshlrev_b32 v205, 2, v205
        L_tr:
        buffer_load_dword v204, v205, s[48:51], s72 offen sc1
        s_waitcnt vmcnt(0)
        v_cmp_eq_u32 vcc, s{NS}, v204
        s_cbranch_vccnz L_go1
        s_sleep 4""")
        spin("L_tr", SB)
        a("L_go1:\ns_barrier\nL_go:")
        stamp(16)
    a("s_cmp_ge_u32 s2, 37\ns_cbranch_scc1 L_ld_f")
    if o["xearly"]: a("s_cmp_ge_u32 s2, 28\ns_cbranch_scc1 L_wo")
    for x in wo_list(): a(x)
    if not o["xearly"]:
        a("s_cmp_lt_u32 s2, 28\ns_cbranch_scc1 L_wo")
        xw_loads()
    a(f"""L_wo:
    s_mul_i32 s83, s75, {o["r1"] * 6554}
    s_lshr_b32 s83, s83, 16
    s_mul_i32 s83, s83, {ORS}
    s_add_u32 s83, s83, {OM}
    s_mul_i32 s72, s76, 3840
    s_add_u32 s72, s72, s83
    v_lshlrev_b32 v202, 3, v0
    v_add_u32 v203, s72, v202
    v_and_b32 v14, 15, v0
    v_cmp_gt_u32 vcc, 6, v14
    v_cndmask_b32 v205, 0, 1.0, vcc
    v_min_u32 v14, 5, v14
    v_mul_u32_u24 v14, 640, v14
    v_add_u32 v204, s72, v14
    s_lshl_b32 s72, s3, 9
    s_add_u32 s72, s72, {LO}
    v_add_u32 v202, s72, v202
    v_lshlrev_b32 v206, 6, v2
    v_add_u32 v206, s72, v206
    v_lshrrev_b32 v14, 2, v0
    v_and_b32 v15, 3, v0
    v_lshlrev_b32 v14, 4, v14
    v_cmp_gt_u32 vcc, {o["r2"]}, v15
    v_mul_u32_u24 v208, {YRS}, v15
    v_mul_u32_u24 v15, 320, v15
    v_add_u32 v207, v14, v15
    v_add_u32 v14, v14, v208
    s_mul_i32 s72, s74, 2560
    s_lshl_b32 s73, s75, 8
    s_add_u32 s72, s72, s73
    s_add_u32 s72, s72, {YM}
    v_add_u32 v14, s72, v14
    v_mov_b32 v15, {OOB}
    v_cndmask_b32 v208, v15, v14, vcc""")
    if o["g2"]: a(f"""s_lshl_b32 s72, s2, 7
        s_add_u32 s72, s72, {SOON}
        v_mov_b32 v94, s{NS}
        v_lshl_add_u32 v95, v0, 2, s72
        v_cmp_gt_u32 vcc, 32, v0
        v_cndmask_b32 v95, v15, v95, vcc""")
    if SM:
        a(f"""v_bfe_u32 v14, v0, 4, 1
        v_bfe_u32 v15, v0, 3, 1
        v_lshl_add_u32 v14, v14, 2, v15
        v_lshrrev_b32 v15, 5, v0
        v_lshl_add_u32 v209, v14, 1, v15
        s_lshl_b32 s72, s3, 9
        s_add_u32 s72, s72, {LO}
        v_lshl_add_u32 v206, v209, 5, s72""")
        for r in range(252, 256): a(f"v_mov_b32 v{r}, 0")
    XW, XO, XM, XA, XT, XOA, XMA, XE, XLW, XLR, XS = 16, 40, 46, 49, 50, 52, 53, 54, 55, 56, 58
    def wo_body(ex):
        t_ = "x" if ex else ""
        if ex:
            a(f"""v_lshrrev_b32 v14, 4, v0
            v_min_u32 v14, 2, v14
            v_add_u32 v14, s79, v14
            v_min_u32 v14, 31, v14
            v_mul_u32_u24 v14, 3840, v14
            v_add_u32 v14, s83, v14
            v_and_b32 v15, 15, v0
            v_lshl_add_u32 v{XOA}, v15, 2, v14
            s_lshl_b32 s72, s3, 6
            v_add_u32 v{XOA}, s72, v{XOA}
            v_min_u32 v15, 5, v15
            v_mul_u32_u24 v15, 640, v15
            v_add_u32 v{XMA}, v14, v15
            v_and_b32 v14, 3, v0
            v_lshlrev_b32 v14, 3, v14
            v_lshrrev_b32 v{XE}, v14, s{NS}
            v_and_b32 v{XE}, 0xff, v{XE}
            s_lshl_b32 s72, s3, 8
            s_add_u32 s72, s72, {LD}
            v_lshl_add_u32 v{XLW}, v0, 2, s72
            v_lshl_add_u32 v{XLR}, {'v209, 2' if SM else 'v2, 3'}, s72
            s_cmp_lg_u32 s74, 0
            s_cbranch_scc1 L_noz
            s_cmp_lg_u32 s3, 0
            s_cbranch_scc1 L_noz""")
            for k in range(4): a(f"v_mov_b32 v{212+k}, s{TS+k}")
            a("s_mov_b32 s72, 7680\nbuffer_store_dwordx4 v[212:215], v208, s[48:51], s72 offen sc1\nL_noz:")
        if o["gate"]:
            a(f"""L_h1a{t_}:
            buffer_load_dword v210, v204, s[48:51], 0 offen offset:520 sc1
            s_waitcnt vmcnt(0)
            v_cmp_eq_u32 vcc, s{NS}, v210
            s_and_b32 s72, vcc_lo, 63
            s_bcnt1_i32_b32 s72, s72
            s_cmp_ge_u32 s72, {o["gthr"]}
            s_cbranch_scc1 L_h1{t_}""")
            spin(f"L_h1a{t_}", SB)
        a(f"L_h1{t_}:")
        SETS = [(160, 172, 40, 46), (64, 76, 80, 86), (176, 188, 192, 90)]
        def h1_issue(i):
            ob, mb, xo, xm = SETS[i]
            if i == 0: stamp(19)
            a(f"buffer_load_dwordx3 {v(mb,3)}, v204, s[48:51], 0 offen offset:512 sc1")
            if ex: a(f"buffer_load_dwordx3 {v(xm,3)}, v{XMA}, s[48:51], 0 offen offset:512 sc1")
            for c in range(6): a(f"buffer_load_dwordx2 {v(ob+2*c,2)}, v203, s[48:51], 0 offen offset:{640*c} sc1")
            if ex:
                for c in range(6): a(f"buffer_load_dword v{xo+c}, v{XOA}, s[48:51], 0 offen offset:{640*c} sc1")
        def h1_check(i):
            ob, mb, xo, xm = SETS[i]
            a(f"v_xor_b32 v{mb+2}, s{NS}, v{mb+2}")
            if ex: a(f"v_xor_b32 v{xm+2}, s{NS}, v{xm+2}")
            chk(list(range(ob, ob+12)) + (list(range(xo, xo+6)) if ex else []), [f"v{E0}", f"v{E0+1}"] * 6 + [f"v{XE}"] * 6, (14, 15))
            a(f"v_or3_b32 v14, v14, v{mb+2}, v{xm+2}" if ex else f"v_or_b32 v14, v14, v{mb+2}")
            a("v_cmp_ne_u32 vcc, 0, v14")
        def comb(m, tmp, src, n, dst):
            m0, l0 = m, m + 1; m = tmp; l = tmp + 1; D = "row_mask:0xf bank_mask:0xf"
            q_ = [f"v_max_f32_dpp v{tmp}, v{m0}, v{m0} quad_perm:[1,0,3,2] {D}", f"v_mul_f32 v{l}, v{l0}, v205",
                  f"v_max_f32_dpp v{tmp}, v{tmp}, v{tmp} quad_perm:[2,3,0,1] {D}", f"v_max_f32_dpp v{tmp}, v{tmp}, v{tmp} row_half_mirror {D}",
                  f"v_sub_f32 v{m}, v{m0}, v{tmp}", f"v_exp_f32 v{m}, v{m}", f"v_mul_f32 v{l}, v{m}, v{l}"]
            q_ += [f"v_mul_f32_dpp v{dst+e}, v{m}, v{src+e} row_newbcast:0 {D}" for e in range(n)]
            q_ += [f"v_add_f32_dpp v{l}, v{l}, v{l} quad_perm:[1,0,3,2] {D}"]
            seq = [f"v_fmac_f32_dpp v{dst+e}, v{m}, v{src+n*c+e} row_newbcast:{c} {D}" for c in range(1, 6) for e in range(n)]
            seq.insert(n, f"v_add_f32_dpp v{l}, v{l}, v{l} quad_perm:[2,3,0,1] {D}")
            seq.insert(2*n+1, f"v_add_f32_dpp v{l}, v{l}, v{l} row_half_mirror {D}")
            seq.insert(3*n+2, f"v_rcp_f32 v{l}, v{l}")
            q_ += seq
            q_ += [f"v_mul_f32_dpp v{dst+e}, v{l}, v{dst+e} row_newbcast:0 {D}" for e in range(n)]
            q_ += [f"v_cvt_pk_bf16_f32 v{dst+e}, v{dst+e}, v{dst+e}" for e in range(n)]
            return q_
        def h1_leave(i):
            ob, mb, xo, xm = SETS[i]
            stamp(3)
            A1 = comb(mb, 14, ob, 2, 224); A2 = comb(xm, XT, xo, 1, XA) if ex else []
            k2 = 0
            for k1, x in enumerate(A1):
                a(x)
                while k2 < len(A2) and k2 * len(A1) <= k1 * len(A2): a(A2[k2]); k2 += 1
            for x in A2[k2:]: a(x)
        if o["skip"]:
            ob, mb, xo, xm = SETS[0]; AC = 64
            k_, d_ = o["p1"]
            L_ = [(AC+12, f"buffer_load_dwordx3 {v(mb,3)}, v204, s[48:51], 0 offen offset:512 sc1")]
            if ex: L_ += [(AC+13, f"buffer_load_dwordx3 {v(xm,3)}, v{XMA}, s[48:51], 0 offen offset:512 sc1")]
            L_ += [(AC+c, f"buffer_load_dwordx2 {v(ob+2*c,2)}, v203, s[48:51], 0 offen offset:{640*c} sc1") for c in range(6)]
            if ex: L_ += [(AC+6+c, f"buffer_load_dword v{xo+c}, v{XOA}, s[48:51], 0 offen offset:{640*c} sc1") for c in range(6)]
            h1_issue(0)
            X2 = ex and o["x2"]
            if X2:
                a("s_mov_b32 s64, 0")
                for r in range(252, 256): a(f"v_mov_b32 v{r}, 0")
            a("s_waitcnt vmcnt(0)")
            a(f"L_h1s{t_}:\nv_xor_b32 v{AC+12}, s{NS}, v{mb+2}")
            if ex: a(f"v_xor_b32 v{AC+13}, s{NS}, v{xm+2}")
            for c in range(6): a(f"v_msad_u8 v{AC+c}, v{ob+2*c}, v{E0}, 0")
            if ex:
                for c in range(6): a(f"v_msad_u8 v{AC+6+c}, v{xo+c}, v{XE}, 0")
            for c in range(6): a(f"v_msad_u8 v{AC+c}, v{ob+2*c+1}, v{E0+1}, v{AC+c}")
            if X2:
                def tiles_(tl, waits):
                    for t, (c_, w_) in enumerate(tl):
                        if t in waits: a(f"s_waitcnt lgkmcnt({waits[t]})")
                        for r in range(4): a(f"v_and_b32 v{228+4*(t%3)+r}, v{c_}, v{M8+r}")
                        if t > 0: a(f"v_mfma_f32_16x16x32_bf16 v[252:255], {v(228+4*((t-1)%3),4)}, {v(tl[t-1][1],4)}, v[252:255]")
                    t = len(tl) - 1
                    a(f"v_mfma_f32_16x16x32_bf16 v[252:255], {v(228+4*(t%3),4)}, {v(tl[t][1],4)}, v[252:255]")
                a(f"""v_or3_b32 v14, v{AC+12}, v{AC}, v{AC+1}
                v_or3_b32 v15, v{AC+13}, v{AC+6}, v{AC+7}
                v_or3_b32 v14, v14, v{AC+2}, v{AC+3}
                v_or3_b32 v15, v15, v{AC+8}, v{AC+9}
                v_or3_b32 v14, v14, v{AC+4}, v{AC+5}
                v_or3_b32 v15, v15, v{AC+10}, v{AC+11}
                v_cmp_ne_u32 s[60:61], 0, v14
                v_cmp_ne_u32 s[62:63], 0, v15
                s_or_b64 vcc, s[60:61], s[62:63]
                s_cbranch_scc0 L_x2p""")
                for n, (r, ld) in enumerate(L_): a(f"v_cmp_ne_u32 vcc, 0, v{r}\ns_cbranch_vccz L_h1k{t_}{n}\n{ld}\nL_h1k{t_}{n}:")
                a(f"""s_sub_u32 s{SB}, s{SB}, 1
                s_cbranch_scc0 L_x2p
                s_mov_b32 s{SB}, 0
                s_waitcnt vmcnt(0)
                s_mov_b64 s[60:61], 0
                s_mov_b64 s[62:63], 0
                L_x2p:
                s_bitcmp1_b32 s64, 0
                s_cbranch_scc1 L_x2m
                s_cmp_lg_u64 s[60:61], 0
                s_cbranch_scc1 L_x2m
                s_or_b32 s64, s64, 1""")
                stamp(3)
                for x in comb(mb, 14, ob, 2, 224): a(x)
                a("ds_write_b64 v202, v[224:225]")
                if SM:
                    for k in (0, 2, 1, 3): a(f"ds_read_b128 {v(212+4*k,4)}, v206 offset:{16*(k&1)+128*(k>>1)}")
                    sm_tiles([(212+u, 220+u, WO+8*u) for u in range(8)], {0: 2, 4: 0})
                else:
                    for k in range(4): a(f"ds_read_b128 {v(212+4*k,4)}, v206 offset:{16*k}")
                    tiles_([(212+t, WO+4*t) for t in range(16)], {0: 3, 4: 2, 8: 1, 12: 0})
                a(f"""L_x2m:
                s_bitcmp1_b32 s64, 1
                s_cbranch_scc1 L_x2e
                s_cmp_lg_u64 s[62:63], 0
                s_cbranch_scc1 L_x2e
                s_or_b32 s64, s64, 2""")
                for x in comb(xm, XT, xo, 1, XA): a(x)
                a(f"ds_write_b32 v{XLW}, v{XA}")
                if SM:
                    for e in range(3): a(f"ds_read2_b32 {v(XS+2*e,2)}, v{XLR} offset0:{16*e} offset1:{16*e+4}")
                    sm_tiles([(XS+2*e, XS+2*e+1, XW+8*e) for e in range(3)], {0: 2, 1: 1, 2: 0})
                else:
                    for e in range(3): a(f"ds_read_b64 {v(XS+2*e,2)}, v{XLR} offset:{64*e}")
                    tiles_([(XS+t, XW+4*t) for t in range(6)], {0: 2, 2: 1, 4: 0})
                a(f"""L_x2e:
                s_waitcnt vmcnt(0)
                s_cmp_lg_u32 s64, 3
                s_cbranch_scc1 L_h1s{t_}""")
                return
            if ex: a(f"""v_or3_b32 v15, v{AC+6}, v{AC+7}, v{AC+8}
                v_or3_b32 v14, v{AC+9}, v{AC+10}, v{AC+11}
                v_or3_b32 v15, v15, v{AC+12}, v{AC+13}
                v_or3_b32 v14, v14, v{AC}, v{AC+1}
                v_or3_b32 v15, v15, v{AC+2}, v{AC+3}
                v_or3_b32 v14, v14, v{AC+4}, v{AC+5}
                v_or_b32 v14, v14, v15""")
            else: a(f"""v_or3_b32 v14, v{AC+12}, v{AC}, v{AC+1}
                v_or3_b32 v15, v{AC+2}, v{AC+3}, v{AC+4}
                v_or3_b32 v14, v14, v15, v{AC+5}""")
            a(f"v_cmp_ne_u32 vcc, 0, v14\ns_cbranch_vccz L_h1ok{t_}")
            stamp(19)
            if k_ == 1:
                for n, (r, ld) in enumerate(L_): a(f"v_cmp_ne_u32 vcc, 0, v{r}\ns_cbranch_vccz L_h1k{t_}{n}\n{ld}\nL_h1k{t_}{n}:")
                a("s_waitcnt vmcnt(0)")
            else:
                MS = [60, 62, 64, 66, 84, 86, 88, 90, 4, 6, 8, 10, 14, 16]
                for n, (r, ld) in enumerate(L_): a(f"v_cmp_ne_u32 s[{MS[n]}:{MS[n]+1}], 0, v{r}")
                for n, (r, ld) in enumerate(L_): a(f"s_cmp_lg_u64 s[{MS[n]}:{MS[n]+1}], 0\ns_cselect_b64 exec, -1, 0\n{ld}")
                a("s_mov_b64 exec, -1")
                if d_: a(f"s_sleep {d_}")
                a(f"s_waitcnt vmcnt({(k_-1)*len(L_)})")
            spin(f"L_h1s{t_}", SB)
            a(f"L_h1ok{t_}:")
            if o["g2"]:
                a(f"""s_cmp_lg_u32 s3, 0
                s_cbranch_scc1 L_nsoon{t_}
                buffer_store_dword v94, v95, s[48:51], 0 offen sc1
                L_nsoon{t_}:""")
            h1_leave(0)
        else: poll(f"h1p{t_}", o["p1"], 14 if ex else 7, h1_issue, h1_check, h1_leave, SB)
        a("ds_write_b64 v202, v[224:225]")
        if SM:
            for k in (0, 2, 1, 3): a(f"ds_read_b128 {v(212+4*k,4)}, v206 offset:{16*(k&1)+128*(k>>1)}")
            sm_tiles([(212+u, 220+u, WO+8*u) for u in range(8)], {0: 2, 4: 0})
            return
        if ex: a(f"ds_write_b32 v{XLW}, v{XA}")
        for k in range(4): a(f"ds_read_b128 {v(212+4*k,4)}, v206 offset:{16*k}")
        if ex:
            for e in range(3): a(f"ds_read_b64 {v(XS+2*e,2)}, v{XLR} offset:{64*e}")
        tiles = [(212+t, WO+4*t) for t in range(16)] + ([(XS+t, XW+4*t) for t in range(6)] if ex else [])
        for t, (c_, w_) in enumerate(tiles):
            if t % 4 == 0 and t <= 16: a(f"s_waitcnt lgkmcnt({max(0, 3 - t//4 + (3 if ex and t < 16 else 0))})")
            ab = 228 + 4 * (t % 3)
            for r in range(4): a(f"v_and_b32 v{ab+r}, v{c_}, v{M8+r}")
            if t > 0: a(f"v_mfma_f32_16x16x32_bf16 v[252:255], {v(228+4*((t-1)%3),4)}, {v(tiles[t-1][1],4)}, {'0' if t==1 else 'v[252:255]'}")
        t = len(tiles) - 1
        a(f"v_mfma_f32_16x16x32_bf16 v[252:255], {v(228+4*(t%3),4)}, {v(tiles[t][1],4)}, v[252:255]")
    a("s_cmp_ge_u32 s2, 28\ns_cbranch_scc0 L_wo4")
    wo_body(True)
    a("s_branch L_wo_acc\nL_wo4:")
    wo_body(False)
    a("L_wo_acc:")
    if o["xm"] == 2: a("s_mov_b32 exec_lo, 0x00ff00ff\ns_mov_b32 exec_hi, 0xff00ff00")
    a(f"""ds_write_b128 v{YW}, v[252:255]
    {'s_mov_b64 exec, -1' if o["xm"] == 2 else ''}
    s_waitcnt lgkmcnt(0)
    s_barrier""")
    stamp(4)
    a("s_cmp_lg_u32 s3, 0\ns_cbranch_scc1 L_wo_done")
    for k in range(4): a(f"ds_read_b128 {v(212+4*k,4)}, v207 offset:{LY+1280*k}")
    a(f"v_mov_b32 v{VM}, 0xff")
    a("""s_waitcnt lgkmcnt(2)
    v_pk_add_f32 v[212:213], v[212:213], v[216:217]
    v_pk_add_f32 v[214:215], v[214:215], v[218:219]
    s_waitcnt lgkmcnt(0)
    v_pk_add_f32 v[220:221], v[220:221], v[224:225]
    v_pk_add_f32 v[222:223], v[222:223], v[226:227]
    v_pk_add_f32 v[212:213], v[212:213], v[220:221]
    v_pk_add_f32 v[214:215], v[214:215], v[222:223]""")
    for dp in ("quad_perm:[1,0,3,2]", "quad_perm:[2,3,0,1]"):
        for r in range(212, 216): a(f"v_add_f32_dpp v{r}, v{r}, v{r} {dp} row_mask:0xf bank_mask:0xf")
    tag4(212, VM, TS)
    a("buffer_store_dwordx4 v[212:215], v208, s[48:51], 0 offen sc1\nL_wo_done:")
    stamp(5)
    a("""s_cmp_ge_u32 s2, 20
    s_cbranch_scc1 L_aux_end
    s_cmp_lg_u32 s3, 7
    s_cbranch_scc1 L_aux_end""")
    srd(52, 22, 1280)
    if o["dry"]: a("s_cmp_eq_u32 s82, 1\ns_cselect_b32 s54, 0, s54")
    a(f"""s_lshl_b32 s72, s2, 7
    v_mul_u32_u24 v14, 2560, v2
    v_lshl_add_u32 v14, v3, 4, v14
    v_add_u32 v14, s72, v14
    s_and_b32 s73, s2, {o['r2']-1}
    s_mul_i32 s73, s73, {YRS}
    s_add_u32 s73, s73, {YM}
    v_add_u32 v202, s73, v14
    v_mov_b32 v15, {OOB}
    v_cmp_gt_u32 vcc, 32, v0
    v_cndmask_b32 v202, v15, v202, vcc
    v_add_u32 v203, {DM}, v14
    v_add_u32 v204, {DM+61440}, v14
    v_cmp_gt_u32 vcc, 24, v0
    v_cndmask_b32 v204, v15, v204, vcc
    v_bfe_u32 v14, v0, 4, 1
    v_lshrrev_b32 v205, 5, v0
    v_lshl_add_u32 v14, v14, 1, v205
    v_lshl_add_u32 v14, v3, 2, v14
    v_lshlrev_b32 v14, 1, v14
    s_lshl_b32 s72, s2, 6
    v_add_u32 v14, s72, v14
    buffer_load_ushort v206, v14, s[28:31], 0 offen
    v_bfe_u32 v205, v0, 3, 1
    v_cmp_eq_u32 vcc, 0, v205
    v_cndmask_b32 v205, v15, v14, vcc
    s_mov_b32 s72, 20480
    s_mov_b32 s73, 40960
    s_mov_b32 s60, 0xffffff
    s_mov_b32 s61, 0
    L_ry:
    buffer_load_dwordx4 v[212:215], v202, s[48:51], 0 offen sc1
    s_waitcnt vmcnt(0)""")
    TR = [f"s{TS+k}" for k in range(4)]
    chk(range(212, 216), TR, (14, 15))
    a("v_cmp_ne_u32 vcc, 0, v14\ns_cmp_eq_u32 vcc_lo, 0\ns_cbranch_scc1 L_ryok")
    spin("L_ry", SB)
    def rs4(b):
        a(f"""v_permlane32_swap_b32 v{b}, v{b+1}
        v_permlane32_swap_b32 v{b+2}, v{b+3}
        v_add_f32 v{b}, v{b}, v{b+1}
        v_add_f32 v{b+2}, v{b+2}, v{b+3}
        v_permlane16_swap_b32 v{b}, v{b+2}
        v_add_f32 v{b}, v{b}, v{b+2}
        v_add_f32_dpp v{b}, v{b}, v{b} row_ror:8 row_mask:0xf bank_mask:0xf""")
    def canary():
        a(f"""s_cmp_lg_u32 s2, 0
        s_cbranch_scc1 L_nocan
        v_mov_b32 v14, s93
        v_lshlrev_b32 v15, 2, v0
        v_add_u32 v15, {CAN}, v15
        {'s_mov_b32 exec_hi, 0' if o["can"] else 's_mov_b64 exec, 1'}
        buffer_store_dword v14, v15, s[48:51], 0 offen sc1
        s_mov_b64 exec, -1
        L_nocan:""")
    a("L_ryok:")
    if o["can"]: canary()
    rs4(212)
    a("""v_cvt_pk_bf16_f32 v212, v212, v212
    v_lshlrev_b32 v206, 16, v206
    v_and_b32 v212, s81, v212
    v_add_f32 v212, v212, v206
    v_cvt_pk_bf16_f32 v212, v212, v212
    v_and_b32 v206, s81, v212""")
    stamp(6)
    def h3_issue(i):
        b = 96 + 16*i
        a(f"""buffer_load_dwordx4 {v(b,4)}, v203, s[48:51], 0 offen sc1
        buffer_load_dwordx4 {v(b+4,4)}, v203, s[48:51], s72 offen sc1
        buffer_load_dwordx4 {v(b+8,4)}, v203, s[48:51], s73 offen sc1
        buffer_load_dwordx4 {v(b+12,4)}, v204, s[48:51], 0 offen sc1""")
    def h3_check(i):
        b = 96 + 16*i
        chk(range(b+12, b+16), TR, (207, 208))
        chk(range(b, b+12), TR * 3, (14, 15))
        a("v_cndmask_b32 v207, 0, v207, s[60:61]\nv_or_b32 v14, v14, v207\nv_cmp_ne_u32 vcc, 0, v14")
    def h3_leave(i):
        b = 96 + 16*i
        a(f"""v_pk_add_f32 v[212:213], {v(b,2)}, {v(b+4,2)}
        v_pk_add_f32 v[220:221], {v(b+8,2)}, {v(b+12,2)}
        v_pk_add_f32 v[214:215], {v(b+2,2)}, {v(b+6,2)}
        v_pk_add_f32 v[222:223], {v(b+10,2)}, {v(b+14,2)}""")
    poll("rd", o["p3"], 4, h3_issue, h3_check, h3_leave, SB)
    a("""v_pk_add_f32 v[212:213], v[212:213], v[220:221]
    v_pk_add_f32 v[214:215], v[214:215], v[222:223]""")
    rs4(212)
    OUTP = o["outp"]
    a(f"""v_cvt_pk_bf16_f32 v212, v212, v212
    v_and_b32 v212, s81, v212
    v_add_f32 v212, v212, v206
    v_cvt_pk_bf16_f32 v212, v212, v212
    buffer_store_short v212, v205, s[52:55], 0 offen {OUTP}
""")
    if not o["can"]: canary()
    stamp(7)
    a("s_branch L_aux_end")
    DW, DR, DS = 250, 251, 201
    a("L_ld_f:")
    gu_setup()
    for x in gu_list(): a(x)
    dn_loads()
    a(f"""L_ffn:
    v_and_b32 v14, 15, v0
    v_lshrrev_b32 v15, 4, v0
    v_lshlrev_b32 v14, 5, v14
    v_lshl_add_u32 v14, v15, 4, v14
    s_mul_i32 s72, s3, 2688
    s_add_u32 s72, s72, {LD}
    v_add_u32 v14, s72, v14
    v_lshlrev_b32 v15, 4, v0
    v_add_u32 v15, {LDUMP}, v15
    v_cmp_gt_u32 vcc, 32, v0
    v_cndmask_b32 v{DW}, v15, v14, vcc
    v_lshrrev_b32 v14, 1, v0
    v_lshlrev_b32 v14, 4, v14
    s_lshl_b32 s72, s3, 9
    v_add_u32 v14, s72, v14
    v_and_b32 v15, 1, v0
    v_cmp_eq_u32 vcc, 0, v15
    v_mul_u32_u24 v15, 2688, v15
    v_add_u32 v{DR}, v14, v15
    s_mul_i32 s72, s77, 2560
    s_add_u32 s72, s72, {DM}
    v_add_u32 v14, s72, v14
    v_mov_b32 v15, {OOB}
    v_cndmask_b32 v{DS}, v15, v14, vcc
    """)
    def mf(t):
        ab = 228 + 4 * (t % 3)
        if SM: smf(204, ab, GU+16*t); smf(208, ab, GU+16*t+8); return
        a(f"v_mfma_f32_16x16x32_bf16 v[204:207], {v(ab,4)}, {v(GU+8*t,4)}, {'0' if t==0 else 'v[204:207]'}")
        a(f"v_mfma_f32_16x16x32_bf16 v[208:211], {v(ab,4)}, {v(GU+8*t+4,4)}, {'0' if t==0 else 'v[208:211]'}")
    if o["lnf"]:
        X5, ER, SG, SU, YA, STW, STR, HD = 96, 101, 105, 106, 107, 108, 109, 220
        D = "row_mask:0xf bank_mask:0xf"
        a(f"""s_mov_b32 s82, 0x3f803f80
        v_lshrrev_b32 v14, 2, v0""")
        if SM: a("v_mov_b32 v14, v111")
        for e in range(4): a(f"v_add_u32 v15, {e}, v14\nv_and_b32 v15, 3, v15\nv_lshlrev_b32 v15, 3, v15\nv_bfe_u32 v{ER+e}, s{NS}, v15, 8")
        a(f"""s_and_b32 s72, s2, {o['r2']-1}
        s_mul_i32 s72, s72, {YRS}
        s_add_u32 s72, s72, {YM}
        v_and_b32 v15, 3, v0
        v_mul_u32_u24 v15, 2560, v15
        v_add_u32 v15, s72, v15""")
        if o["al2"]: a(f"v_lshl_add_u32 v{YA}, v111, 4, v15\nv_lshl_add_u32 v111, v111, 2, v15")
        elif SM: a(f"v_lshl_add_u32 v{YA}, v111, 2, v15")
        else: a(f"""v_and_b32 v14, 1, v14
        v_mul_u32_u24 v14, 20, v14
        v_lshl_add_u32 v14, v12, 2, v14
        v_add_u32 v{YA}, v14, v15""")
        a(f"""
        v_lshlrev_b32 v{STR}, 3, v3
        s_lshl_b32 s72, s3, 3
        v_mov_b32 v14, s72
        v_lshlrev_b32 v15, 4, v0
        v_add_u32 v15, {LDUMP}, v15
        v_cmp_eq_u32 vcc, 63, v0
        v_cndmask_b32 v{STW}, v15, v14, vcc""")
        for r in range(4): a(f"v_and_b32 v{228+r}, s82, v{8+(r&1) if SM else M8+r}")
        if SM:
            for r in list(range(204, 212)) + list(range(DA, DA+20)): a(f"v_mov_b32 v{r}, 0")
        a("s_waitcnt vmcnt(10)")
        if SM:
            for e in range(5): a(f"v_lshlrev_b32 v{96+e}, 16, v{96+e}")
            for t in range(5): smf(204, 228, GU+16*t); smf(208, 228, GU+16*t+8)
        if o["al2"]: a("v_lshlrev_b32 v96, 16, v98\nv_and_b32 v97, s81, v98\nv_lshlrev_b32 v98, 16, v99\nv_and_b32 v99, s81, v99\nv_lshlrev_b32 v100, 16, v100")
        for t in range(0 if SM else 10):
            a(f"v_mfma_f32_16x16x32_bf16 v[204:207], v[228:231], {v(GU+8*t,4)}, {'0' if t==0 else 'v[204:207]'}")
            a(f"v_mfma_f32_16x16x32_bf16 v[208:211], v[228:231], {v(GU+8*t+4,4)}, {'0' if t==0 else 'v[208:211]'}")
        a(f"""ds_write_b128 v{PW}, v[204:207]
        ds_write_b128 v{PW}, v[208:211] offset:256
        s_waitcnt lgkmcnt(0)
        s_barrier""")
        psum()
        a(f"v_mov_b32 v{SG}, v204\nv_mov_b32 v{SU}, v206")
        if SM:
            for r in range(204, 212): a(f"v_mov_b32 v{r}, 0")
        if o["g2"]:
            a(f"""s_cmp_lg_u32 s3, 0
            s_cbranch_scc1 L_g2ok
            v_min_u32 v14, 36, v0
            v_lshlrev_b32 v14, 7, v14
            v_add_u32 v14, {SOON}, v14
            L_g2:
            buffer_load_dword v15, v14, s[48:51], 0 offen sc1
            s_waitcnt vmcnt(0)
            v_cmp_eq_u32 vcc, s{NS}, v15
            s_and_b32 vcc_hi, vcc_hi, 31
            s_bcnt1_i32_b64 s72, vcc
            s_cmp_ge_u32 s72, {o["g2"]}
            s_cbranch_scc1 L_g2ok""")
            spin("L_g2", SB)
            a("L_g2ok:")
        a("s_barrier")
        def h2_issue(i):
            b = 112 + 6*i
            a(f"buffer_load_dwordx4 {v(b,4)}, v{YA}, s[48:51], 0 offen sc1")
            if o["al2"]: a(f"buffer_load_dword v{b+4}, v111, s[48:51], 0 offen offset:2048 sc1")
            else: a(f"buffer_load_dword v{b+4}, v{YA}, s[48:51], 0 offen offset:16 sc1")
        def h2_check(i):
            b = 112 + 6*i
            chk(range(b, b+5), TR + [f"v{ER}"] if o["al2"] else [f"v{ER+(e&3)}" for e in range(5)], (14, 15))
            a("v_cmp_ne_u32 vcc, 0, v14")
        def h2_leave(i):
            b = 112 + 6*i
            stamp(6)
            for e in range(5): a(f"v_add_f32_dpp v{212+e}, v{b+e}, v{b+e} quad_perm:[1,0,3,2] {D}")
        poll("h2", o["p2"], 2, h2_issue, h2_check, h2_leave, SB)
        for e in range(5): a(f"v_add_f32_dpp v{212+e}, v{212+e}, v{212+e} quad_perm:[2,3,0,1] {D}")
        a(f"""v_cvt_pk_bf16_f32 v218, v212, v213
        v_cvt_pk_bf16_f32 v219, v214, v215
        v_cvt_pk_bf16_f32 v216, v216, v216
        v_lshlrev_b32 v212, 16, v218
        v_and_b32 v213, s81, v218
        v_lshlrev_b32 v214, 16, v219
        v_and_b32 v215, s81, v219
        v_and_b32 v216, s81, v216""")
        for e in range(5): a(f"v_add_f32 v{212+e}, v{212+e}, v{X5+e}")
        for e in range(5): a(f"v_cvt_pk_bf16_f32 v{HD+e}, v{212+e}, v{212+e}")
        stamp(9)
        st = []
        for e in range(5): st += [f"v_dot2_f32_bf16 v226, v{HD+e}, s82, {'0' if e == 0 else 'v226'}", f"v_dot2_f32_bf16 v227, v{HD+e}, v{HD+e}, {'0' if e == 0 else 'v227'}"]
        for dp in ("row_half_mirror row_mask:0xf", "row_mirror row_mask:0xf", "row_bcast:15 row_mask:0xa", "row_bcast:31 row_mask:0xc"):
            st += [f"v_add_f32_dpp v226, v226, v226 {dp} bank_mask:0xf", f"v_add_f32_dpp v227, v227, v227 {dp} bank_mask:0xf"]
        st += [f"ds_write_b64 v{STW}, v[226:227]"]
        NT = 5 if SM else 10
        for t in range(NT):
            ab = 228 + 4 * (t % 3)
            for r in range(4):
                if SM: a(f"v_and_b32 v{ab+r}, v{HD+t}, v{8+(r&1)}" if r in (0, 3) else f"v_and_b32_dpp v{ab+r}, v{HD+t}, v{8+(r&1)} row_half_mirror {D}")
                elif (r < 2) == (t < 5): a(f"v_and_b32 v{ab+r}, v{HD+t%5}, v{M8+r}")
                else: a(f"v_and_b32_dpp v{ab+r}, v{HD+t%5}, v{M8+r} row_half_mirror {D}")
            if t > 0:
                mf(t - 1)
                for _ in range(4 if SM else 2):
                    if st: a(st.pop(0))
        mf(NT - 1)
        for x in st: a(x)
        if o["xm"] == 2: a("s_mov_b32 exec_lo, 0x00ff00ff\ns_mov_b32 exec_hi, 0xff00ff00")
        a(f"""ds_write_b128 v{PW}, v[204:207]
        ds_write_b128 v{PW}, v[208:211] offset:256
        {'s_mov_b64 exec, -1' if o["xm"] == 2 else ''}
        s_waitcnt lgkmcnt(0)
        s_barrier""")
        stamp(10)
        a(f"""ds_read_b64 v[212:213], v{STR}
        ds_read2st64_b32 v[204:205], v{PR} offset0:0 offset1:17
        ds_read2st64_b32 v[206:207], v{PR} offset0:1 offset1:18
        s_waitcnt lgkmcnt(2)""")
        DP = ("quad_perm:[1,0,3,2]", "quad_perm:[2,3,0,1]", "row_half_mirror")
        for dp in DP: a(f"v_add_f32_dpp v212, v212, v212 {dp} {D}\nv_add_f32_dpp v213, v213, v213 {dp} {D}")
        a(f"""v_mul_f32 v212, {f2u(1/1280)}, v212
        v_mul_f32 v213, {f2u(1/1280)}, v213
        s_waitcnt lgkmcnt(0)
        v_fma_f32 v213, -v212, v212, v213
        v_add_f32 v204, v204, v205
        v_max_f32 v213, 0, v213
        v_add_f32 v206, v206, v207
        v_cvt_pk_bf16_f32 v212, v212, v213
        v_add_f32_dpp v204, v204, v204 {DP[0]} {D}
        v_and_b32 v213, s81, v212
        v_add_f32_dpp v206, v206, v206 {DP[0]} {D}
        v_add_f32 v213, {f2u(1e-5)}, v213
        v_add_f32_dpp v204, v204, v204 {DP[1]} {D}
        v_cvt_pk_bf16_f32 v213, v213, v213
        v_add_f32_dpp v206, v206, v206 {DP[1]} {D}
        v_and_b32 v213, s81, v213
        v_add_f32_dpp v204, v204, v204 {DP[2]} {D}
        v_sqrt_f32 v213, v213
        v_add_f32_dpp v206, v206, v206 {DP[2]} {D}
        v_lshlrev_b32 v212, 16, v212
        v_cvt_pk_bf16_f32 v213, v213, v213
        v_fma_f32 v204, -v212, v{SG}, v204
        v_and_b32 v213, s81, v213
        v_fma_f32 v206, -v212, v{SU}, v206
        v_rcp_f32 v213, v213
        v_mul_f32 v204, v204, v213
        v_mul_f32 v206, v206, v213""")
    else:
        a(f"""s_waitcnt vmcnt(0)
        s_cmp_ge_u32 s3, 5
        s_cbranch_scc1 L_lng_bar
        v_lshlrev_b32 v14, 1, v13
        s_and_b32 s72, s2, {o['r2']-1}
        s_mul_i32 s72, s72, {YRS}
        s_add_u32 s72, s72, {YM}
        v_add_u32 v14, s72, v14
        s_mov_b32 s72, 5120
        L_h2:
        buffer_load_dwordx2 v[212:213], v14, s[48:51], 0 offen sc1
        buffer_load_dwordx2 v[214:215], v14, s[48:51], 0 offen offset:2560 sc1
        buffer_load_dwordx2 v[216:217], v14, s[48:51], s72 offen sc1
        buffer_load_dwordx2 v[218:219], v14, s[48:51], s72 offen offset:2560 sc1
        s_waitcnt vmcnt(0)""")
        chk(range(212, 220), [f"v{E0}", f"v{E0+1}"] * 4, (15, 202))
        a("v_cmp_ne_u32 vcc, 0, v15\ns_cbranch_vccz L_h2ok")
        spin("L_h2", SB)
        a("L_h2ok:")
        stamp(6)
        a("""v_pk_add_f32 v[212:213], v[212:213], v[214:215]
        v_pk_add_f32 v[216:217], v[216:217], v[218:219]
        v_lshlrev_b32 v202, 16, v200
        v_pk_add_f32 v[212:213], v[212:213], v[216:217]
        v_and_b32 v203, s81, v200
        v_cvt_pk_bf16_f32 v212, v212, v213
        v_lshlrev_b32 v214, 16, v212
        v_and_b32 v215, s81, v212
        v_pk_add_f32 v[202:203], v[202:203], v[214:215]
        v_cvt_pk_bf16_f32 v212, v202, v203
        v_lshlrev_b32 v202, 16, v212
        v_and_b32 v203, s81, v212""")
        a(f"""    ds_write_b64 v{HW}, v[202:203]
        s_waitcnt lgkmcnt(0)
        L_lng_bar:
        s_barrier
        v_mov_b32 v14, 0
        ds_read_b128 v[204:207], v{HS}
        ds_read_b32 v214, v14
        ds_read_b128 v[208:211], v{HS} offset:16
        ds_read_b64 v[212:213], v{HS} offset:32
        ds_read_b128 v[216:219], v{HC}
        ds_read_b128 v[220:223], v{HC} offset:16
        ds_read_b64 v[224:225], v{HC} offset:32""")
        stamp(8)
        a("s_waitcnt lgkmcnt(3)")
        ln("s_waitcnt lgkmcnt(0)")
        stamp(9)
        def mf(t):
            ab = 228 + 4 * (t % 3)
            a(f"v_mfma_f32_16x16x32_bf16 v[204:207], {v(ab,4)}, {v(GU+8*t,4)}, {'0' if t==0 else 'v[204:207]'}")
            a(f"v_mfma_f32_16x16x32_bf16 v[208:211], {v(ab,4)}, {v(GU+8*t+4,4)}, {'0' if t==0 else 'v[208:211]'}")
        for t in range(10):
            ab = 228 + 4 * (t % 3)
            for r in range(4): a(f"v_and_b32 v{ab+r}, v{216+t}, v{M8+r}")
            if t > 0: mf(t - 1)
        mf(9)
        a(f"""ds_write_b128 v{PW}, v[204:207]
        ds_write_b128 v{PW}, v[208:211] offset:256
        s_waitcnt lgkmcnt(0)
        s_barrier""")
        stamp(10)
        psum()
    a(f"""
    v_cvt_pk_bf16_f32 v204, v204, v206
    v_lshlrev_b32 v205, 16, v204
    v_and_b32 v206, s81, v204
    v_mul_f32 v207, v205, v205
    v_fmaak_f32 v207, v207, v{CG2}, {f2u(g1)}
    v_mul_f32 v207, v207, v205
    v_exp_f32 v207, v207
    v_add_f32 v207, 1.0, v207
    v_rcp_f32 v207, v207
    v_mul_f32 v207, v207, v205
    v_cvt_pk_bf16_f32 v207, v207, v207
    v_and_b32 v207, s81, v207
    v_mul_f32 v207, v207, v206
    v_cvt_pk_bf16_f32 v207, v207, v207""")
    if SM:
        for r in range(4): a(f"v_and_b32_dpp v{228+r}, v207, v{8+(r&1)} row_newbcast:{8*(r>>1)} row_mask:0xf bank_mask:0xf")
        for b in range(5): smf(DA+4*b, 228, DN+8*b)
    for t in range(0 if SM else 2):
        for r in range(4): a(f"v_and_b32_dpp v{228+4*t+r}, v207, v{M4+r} row_newbcast:{8*t} row_mask:0xf bank_mask:0xf")
    for t in range(0 if SM else 2):
        for b in range(5): a(f"v_mfma_f32_16x16x32_bf16 {v(208+4*b,4)}, {v(228+4*t,4)}, {v(DN+20*t+4*b,4)}, {'0' if t==0 else v(208+4*b,4)}")
    if o["xm"]: a("s_mov_b32 exec_hi, 0")
    for b in range(5): a(f"ds_write_b128 v{DW}, {v(DA+4*b,4)} offset:{512*b}")
    if o["xm"]: a("s_mov_b32 exec_hi, -1")
    a("s_waitcnt lgkmcnt(0)\ns_barrier")
    stamp(11)
    a("s_cmp_ge_u32 s3, 5\ns_cbranch_scc1 L_aux_end")
    for k in range(4): a(f"ds_read_b128 {v(212+4*k,4)}, v{DR} offset:{LD+5376*k}")
    a(f"v_mov_b32 v{VM}, 0xff")
    a("""s_waitcnt lgkmcnt(2)
    v_pk_add_f32 v[212:213], v[212:213], v[216:217]
    v_pk_add_f32 v[214:215], v[214:215], v[218:219]
    s_waitcnt lgkmcnt(0)
    v_pk_add_f32 v[220:221], v[220:221], v[224:225]
    v_pk_add_f32 v[222:223], v[222:223], v[226:227]
    v_pk_add_f32 v[212:213], v[212:213], v[220:221]
    v_pk_add_f32 v[214:215], v[214:215], v[222:223]""")
    for r in range(212, 216): a(f"v_add_f32_dpp v{r}, v{r}, v{r} quad_perm:[1,0,3,2] row_mask:0xf bank_mask:0xf")
    tag4(212, VM, TS)
    a(f"buffer_store_dwordx4 v[212:215], v{DS}, s[48:51], 0 offen sc1")
    stamp(12)
    a("L_aux_end:")
    if o["dry"]: a("s_cmp_eq_u32 s82, 1\ns_cbranch_scc1 L_real")
    stamp_out()
    a("s_endpgm")
    head = open(f"cdna_kernels/{KN}.s.ref").read().split("; Override launch")[0] if o["hdr"] else ""
    return finish(o, head, a.text(), LDS_SIZE)
def kd(name, vg):
    return f""".p2align 6
.amdhsa_kernel {name}
  .amdhsa_next_free_vgpr {vg}
  .amdhsa_next_free_sgpr 102
  .amdhsa_accum_offset {vg}
  .amdhsa_group_segment_fixed_size 0
  .amdhsa_kernarg_size 96
  .amdhsa_user_sgpr_count 2
  .amdhsa_user_sgpr_kernarg_segment_ptr 1
  .amdhsa_system_sgpr_workgroup_id_x 1
.end_amdhsa_kernel
"""
def diag_kernel(k, w0, w1, K, op, nw=2048):
    self_ = op == "self"
    if self_: op = "max"
    init = "0" if op == "max" else "-1"
    return f""".globl diag_kernel
.p2align 8
.type diag_kernel,@function
diag_kernel:
s_memrealtime s[20:21]
s_cmp_lg_u32 s2, 0
s_cbranch_scc1 LD_end
s_load_dwordx2 s[4:5], s[0:1], 88
s_waitcnt lgkmcnt(0)
s_add_u32 s4, s4, {STAMP_OFF}
s_addc_u32 s5, s5, 0
s_mov_b32 s6, 0x100000
s_mov_b32 s7, 0x20000
v_mov_b32 v1, -1
v_mov_b32 v2, {init}
v_mov_b32 v8, {init}
v_mov_b32 v3, v0
s_mov_b32 s8, 0
s_mov_b32 s12, {w0}
s_mov_b32 s13, {w1}
LD_l:
v_lshlrev_b32 v4, 8, v3
buffer_load_dword v5, v4, s[4:7], 0 offen sc1
buffer_load_dword v6, v4, s[4:7], 0 offen offset:{4*k} sc1
s_waitcnt vmcnt(0)
v_min_u32 v1, v1, v5
v_cmp_le_u32 vcc, s12, v3
s_nop 4
v_cndmask_b32 v6, v8, v6, vcc
v_cmp_gt_u32 vcc, s13, v3
s_nop 4
v_cndmask_b32 v6, v8, v6, vcc
v_cmp_ne_u32 vcc, 0, v6
s_nop 4
v_cndmask_b32 v6, v8, v6, vcc
v_{op}_u32 v2, v2, v6
v_add_u32 v3, 64, v3
s_add_u32 s8, s8, 1
s_cmp_lt_u32 s8, {nw//64}
s_cbranch_scc1 LD_l
s_mov_b32 s8, 0
s_mov_b32 s9, -1
s_mov_b32 s10, {init}
LD_r:
s_nop 4
v_readlane_b32 s11, v1, s8
v_readlane_b32 s14, v2, s8
s_nop 4
s_min_u32 s9, s9, s11
s_{op}_u32 s10, s10, s14
s_add_u32 s8, s8, 1
s_cmp_lt_u32 s8, 64
s_cbranch_scc1 LD_r
{"s_mov_b32 s10, s20" if self_ else ""}
s_sub_u32 s10, s10, s9
s_min_u32 s10, s10, 20000
s_mul_i32 s10, s10, {K}
s_memrealtime s[16:17]
s_waitcnt lgkmcnt(0)
LD_s:
s_memrealtime s[18:19]
s_waitcnt lgkmcnt(0)
s_sub_u32 s18, s18, s16
s_cmp_lt_u32 s18, s10
s_cbranch_scc1 LD_s
LD_end:
s_endpgm
"""
def finish(o, head, text, lds, grid=256, blk=512, vg=256):
    if o["diag"]:
        L = f"; @launch kernel={KN}_kernel grid=({grid},1,1) block=({blk},1,1) lds={lds}\n; @launch kernel=diag_kernel grid=(1,1,1) block=(64,1,1) lds=0\n"
        text = text + diag_kernel(*o["diag"]); extra = kd("diag_kernel", 16)
    elif o.get("pre") or o.get("post"):
        L = f"; @launch kernel={KN}_kernel grid=({grid},1,1) block=({blk},1,1) lds={lds}\n"
        e = lambda n, g, b, l: f"; @launch kernel=empty_kernel grid=({g},1,1) block=({b},1,1) lds={l}\n" * n
        if o.get("pre"): L = e(*o["pre"]) + L
        if o.get("post"): L = L + e(*o["post"])
        text = text + ".globl empty_kernel\n.p2align 8\n.type empty_kernel,@function\nempty_kernel:\ns_endpgm\n"; extra = kd("empty_kernel", o.get("evg", 16))
    else:
        L = f"; @launch grid=({grid},1,1) block=({blk},1,1) lds={lds}\n"; extra = ""
    return head + L + f""".amdgcn_target "amdgcn-amd-amdhsa--gfx950"
.text
.globl {KN}_kernel
.p2align 8
.type {KN}_kernel,@function
""" + text + '.section .rodata,"a"\n' + kd(KN + "_kernel", vg) + extra
def _old(a, head):
    return head + f"""; @launch grid=(256,1,1) block=(512,1,1) lds={LDS_SIZE}
.amdgcn_target "amdgcn-amd-amdhsa--gfx950"
.text
.globl {KN}_kernel
.p2align 8
.type {KN}_kernel,@function
""" + a.text() + f""".section .rodata,"a"
.p2align 6
.amdhsa_kernel {KN}_kernel
  .amdhsa_next_free_vgpr 256
  .amdhsa_next_free_sgpr 102
  .amdhsa_accum_offset 256
  .amdhsa_group_segment_fixed_size 0
  .amdhsa_kernarg_size 96
  .amdhsa_user_sgpr_count 2
  .amdhsa_user_sgpr_kernarg_segment_ptr 1
  .amdhsa_system_sgpr_workgroup_id_x 1
.end_amdhsa_kernel
"""
if __name__ == "__main__":
    kw = {}
    out = f"cdna_kernels/{KN}.s"
    for x in sys.argv[1:]:
        k, val = x.split("=", 1)
        if k == "out": out = val
        else: kw[k] = eval(val)
    open(out, "w").write(gen(**kw))
```

```python
import sys, struct
sys.path.insert(0, "exp")
from asmlib import *
KN = "sequential_preLN__gqa_block_cached__glu_gated_geglu__decode"
def f2u(x): return "0x%08x" % struct.unpack("<I", struct.pack("<f", x))[0]
LOG2E = 1.4426950408889634
QM, CAN, DM, PG, OM, YM, MBX = 0, 98304, 98432, 167552, 178176, 1161216, 1211008
SOON, CNT = 1202176, 1206912
ORS, YRS = 122880, 10240
OOB = 0x80000000
STAMP_OFF = 128 << 20
LH, LP, LO, LY, LD, LDUMP, LDS_SIZE = 0, 3072, 11776, 15872, 20992, 42496, 46592
DEF = dict(kv="nt", wt="nt", kbar=False, stamps=False, gate=True, hdr=True, shots=[(0,40),(1,32),(2,24),(3,12)], prio=0, il=2, diag=None, one=False, gthr=1, dry=False, adry=False, thr=0, tail=8, stag=0, trig=None, xearly=False, nv=24, vpos=1, outp="", lnf=False, p1=(1,0), p2=(1,0), p3=(1,0), skip=False, g2=0, r1=1, r2=1, mlf=False, al2=False, can=False, xtrig=False, dyn=0, d2=0, pos=1, pf=None, thr5=0, tw=1, x2=False, xm=False, sm=False, hp=False, dl=0, gb=False)
def gen(**kw):
    o = dict(DEF); o.update(kw)
    a = A()
    KV = o["kv"]; WT = o["wt"]
    def stamp(k):
        if o["stamps"] is True or (o["stamps"] and k in o["stamps"]): a(f"s_memrealtime s[100:101]\ns_waitcnt lgkmcnt(0)\nv_writelane_b32 v1, s100, {k}")
    def stamp_out():
        if o["stamps"]:
            a(f"""s_add_u32 s96, s26, {STAMP_OFF}
            s_addc_u32 s97, s27, 0
            s_mov_b32 s98, 0x100000
            s_mov_b32 s99, 0x20000
            s_lshl_b32 s94, s2, 3
            s_add_u32 s94, s94, s3
            s_lshl_b32 s94, s94, 8
            s_mov_b64 exec, -1
            v_lshlrev_b32 v2, 2, v0
            buffer_store_dword v1, v2, s[96:99], s94 offen""")
    def srd(d, b, n, add=None):
        if add is None: a(f"s_mov_b32 s{d}, s{b}\ns_mov_b32 s{d+1}, s{b+1}")
        else: a(f"s_add_u32 s{d}, s{b}, {add}\ns_addc_u32 s{d+1}, s{b+1}, 0")
        a(f"s_mov_b32 s{d+2}, {n}\ns_mov_b32 s{d+3}, 0x20000")
    def spin(lbl, sb):
        a(f"s_sub_u32 s{sb}, s{sb}, 1\ns_cbranch_scc0 {lbl}\ns_mov_b32 s{sb}, 0")
    def poll(name, kd, n, issue, check, leave, sb, pre=0):
        k, d = kd
        for i in range(k):
            if i < pre: continue
            if i == k - 1: a(f"L_{name}:")
            issue(i)
            if d and k > 1: a(f"s_sleep {d}")
        for i in range(k):
            a(f"s_waitcnt vmcnt({(k-1)*n})"); check(i)
            a(f"s_cbranch_vccz L_{name}ok{i}")
            if i < k - 1:
                issue(i)
                if d: a(f"s_sleep {d}")
        spin(f"L_{name}", sb)
        for i in reversed(range(k)):
            a(f"L_{name}ok{i}:"); leave(i)
            if i > 0: a(f"s_branch L_{name}j")
        a(f"L_{name}j:")
    def nonce(N, T):
        a(f"""s_or_b32 s{N}, s{N}, 0x01010101
        s_add_u32 s{N}, s{N}, 1
        s_or_b32 s{N}, s{N}, 0x01010101
        s_and_b32 s{T}, s{N}, 0xff
        s_bfe_u32 s{T+1}, s{N}, 0x80008
        s_bfe_u32 s{T+2}, s{N}, 0x80010
        s_lshr_b32 s{T+3}, s{N}, 24""")
    def tag4(r, vm, T):
        for k in range(4): a(f"v_bfi_b32 v{r+k}, v{vm}, s{T+k}, v{r+k}")
    def chk(regs, refs, acc):
        for n, (r, f) in enumerate(zip(regs, refs)):
            d = acc[n % 2]
            a(f"v_msad_u8 v{d}, v{r}, {f}, {'0' if n < 2 else 'v%d' % d}")
        a(f"v_or_b32 v{acc[0]}, v{acc[0]}, v{acc[1]}")
    def masks(dst, andm, t0, t1):
        a(f"""v_and_b32 v{t0}, 1, v0
        v_lshlrev_b32 v{t0}, 4, v{t0}
        v_mov_b32 v{t1}, 0xffff
        v_lshlrev_b32 v{t0}, v{t0}, v{t1}
        v_and_b32 v{t1}, {andm}, v0
        v_lshrrev_b32 v{t1}, 1, v{t1}""")
        for r in range(4):
            a(f"v_cmp_eq_u32 vcc, {r}, v{t1}\nv_cndmask_b32 v{dst+r}, 0, v{t0}, vcc")
    a(f"{KN}_kernel:")
    if o["stamps"]: a("s_memrealtime s[100:101]")
    a("""s_cmp_ge_u32 s2, 256
    s_cbranch_scc1 L_end
    s_load_dwordx16 s[4:19], s[0:1], 0
    s_load_dwordx8 s[20:27], s[0:1], 64
    v_lshrrev_b32 v2, 6, v0
    v_and_b32 v0, 63, v0
    v_readfirstlane_b32 s3, v2
    s_cmp_lt_u32 s2, 64
    s_cbranch_scc1 L_aux""")
    for i in range(192): assert (i * 171) >> 10 == i // 6
    K0, V0, AQ, DQ, ACC, MK, S0 = 16, 112, 208, 224, 248, 4, 8
    D2 = o["d2"]; DY = o["dyn"] or D2
    if DY: tile0 = """s_mul_i32 s39, s38, 40
    s_mul_i32 s42, s3, 5
    s_add_u32 s39, s39, s42
    s_sub_u32 s89, 240, s39
    s_lshl_b32 s90, s37, 7
    s_add_u32 s90, s90, %d""" % CNT
    else: tile0 = f"""    s_mul_i32 s39, s38, 43
    s_cmp_eq_u32 s38, 5
    s_cselect_b32 s40, 1, 0
    s_sub_u32 s39, s39, s40
    s_cmp_lt_u32 s38, 4
    s_cselect_b32 s40, 3, 2
    s_min_u32 s41, s3, s40
    s_mul_i32 s42, s3, 5
    s_add_u32 s39, s39, s41
    s_add_u32 s39, s39, s42
    s_cmp_lt_u32 s3, s40
    s_cselect_b32 s41, 0, 1
    s_cselect_b32 s43, 0, {OOB}
    s_cselect_b32 s44, 0, 0xff800000
    s_sub_u32 s39, s39, s41"""
    LQ = 5632
    a(f"""s_sub_u32 s36, s2, 64
    s_mul_i32 s37, s36, 171
    s_lshr_b32 s37, s37, 10
    s_mul_i32 s38, s37, 6
    s_sub_u32 s38, s36, s38
    {tile0}
    s_lshl_b32 s39, s39, 12
    s_lshl_b32 s42, s37, 20
    s_add_u32 s39, s39, s42
    v_bfe_u32 v2, v0, 2, 2
    v_lshrrev_b32 v3, 4, v0
    v_and_b32 v4, 3, v0
    v_lshlrev_b32 v2, 8, v2
    v_lshlrev_b32 v4, 4, v4
    v_lshl_add_u32 v2, v3, 6, v2
    v_add3_u32 v252, v2, v4, s39
    v_and_b32 v4, 15, v0
    v_lshlrev_b32 v3, 10, v3
    v_lshlrev_b32 v4, 4, v4
    v_add3_u32 v254, v3, v4, s39
    {"" if DY else "v_or_b32 v253, s43, v252"}
    {"" if DY else "v_or_b32 v255, s43, v254"}
    v_mov_b32 v2, 0
    v_mov_b32 v3, 0
    v_lshlrev_b32 v4, 3, v0
    ds_write_b64 v4, v[2:3] offset:{LQ}
    s_waitcnt lgkmcnt(0)
    s_barrier""")
    if o["stamps"]: a("v_mov_b32 v1, 0\nv_writelane_b32 v1, s100, 0")
    a(f"s_load_dword s84, s[26:27], {CAN}")
    srd(28, 6, 1 << 25); srd(32, 8, 1 << 25)
    if o["prio"]: a(f"s_cmp_lg_u32 s3, 0\ns_cbranch_scc1 L_noprio\ns_setprio {o['prio']}\nL_noprio:")
    for s_ in range(1, 6): a(f"s_mov_b32 s{15+s_}, {4096*(s_-1 if DY else s_)}")
    NV = o["nv"]; TH = o["thr"]; SG = o["stag"]
    KL = [f"buffer_load_dwordx4 {v(K0+16*sl+4*t,4)}, {'v253' if sl==0 else 'v252'}, s[28:31], {'0' if sl==0 else 's%d'%(15+sl)} offen offset:{1024*t} {KV}" for sl in range(6) for t in range(4)]
    VL = [f"buffer_load_dwordx4 {v(V0+16*sl+4*t,4)}, {'v255' if sl==0 else 'v254' if D2 else 'v248'}, s[32:35], {'0' if sl==0 else 's%d'%(15+sl)} offen offset:{256*t} {KV}" for sl in range(6) for t in range(4)]
    assert NV >= 4
    a("v_mov_b32 v248, v254")
    srd(12, 26, MBX)
    def progress(n, done=False):
        if o["trig"] and n in o["trig"][1:]:
            a(f"s_cmp_lg_u32 s3, {o['trig'][0]}\ns_cbranch_scc1 L_notrig{n}")
            if o["trig"][1] != o["trig"][2]: a(f"s_cmp_{'ge' if n == o['trig'][1] else 'lt'}_u32 s2, 175\ns_cbranch_scc1 L_notrig{n}")
            if n < 100 and not done: a("s_waitcnt lgkmcnt(0)\ns_or_b32 s22, s84, 0x01010101\ns_add_u32 s22, s22, 1\ns_or_b32 s22, s22, 0x01010101")
            else: a("s_mov_b32 s22, s84")
            a(f"""s_sub_u32 s24, s2, 64
            s_mul_i32 s23, s24, 171
            s_lshr_b32 s23, s23, 9
            s_mul_i32 s25, s23, 3
            s_sub_u32 s24, s24, s25
            s_cmp_ge_u32 s23, 37
            s_cselect_b32 s25, 37, 0
            s_sub_u32 s23, s23, s25
            s_cmp_eq_u32 s25, 0
            s_cselect_b32 s91, {37 // o["tw"]}, {27 // o["tw"]}
            v_mov_b32 v2, s23
            v_mad_u32_u24 v2, v0, s91, v2
            s_cselect_b32 s91, 37, 27
            v_subrev_u32 v3, s91, v2
            v_min_u32 v2, v2, v3
            v_add_u32 v2, s25, v2
            v_lshlrev_b32 v2, 7, v2
            v_mad_u32_u24 v3, v0, 12, v2
            s_lshl_b32 s24, s24, 2
            s_add_u32 s24, s24, {PG}
            v_add_u32 v3, s24, v3
            v_mov_b32 v2, s22
            s_mov_b64 exec, {(1 << o["tw"]) - 1}
            buffer_store_dword v2, v3, s[12:15], 0 offen sc1
            s_mov_b64 exec, -1
            L_notrig{n}:""")
    for i_ in range(192): assert (i_ * 171) >> 9 == i_ // 3
    def set_s():
        a(f"""s_lshl_b32 s5, s36, 9
        s_add_u32 s10, s26, s5
        s_addc_u32 s11, s27, 0
        s_mov_b32 s4, 0x100000
        {"" if DY else "s_mov_b32 s5, s44"}
        s_mul_i32 s6, s36, 640
        s_add_u32 s6, s6, {OM}
        s_mul_i32 s7, s3, 544
        s_mov_b32 s8, {f2u(LOG2E)}
        s_mov_b32 s9, 0x3db504f3
        s_mov_b32 s21, 0xffff0000
        """)
    def set_late():
        if not D2: masks(MK, 15, 2, 3)
        a(f"""v_and_b32 v2, 15, v0
        v_lshrrev_b32 v3, 4, v0
        v_lshlrev_b32 v2, 5, v2
        v_lshl_add_u32 v2, v3, 4, v2
        v_add_u32 v2, s7, v2
        v_lshlrev_b32 v3, 4, v0
        v_add_u32 v3, 4352, v3
        v_cmp_gt_u32 vcc, 32, v0
        v_cndmask_b32 v252, v3, v2, vcc
        s_add_u32 s22, s7, 512
        v_mov_b32 v2, s22
        v_cmp_eq_u32 vcc, 0, v0
        v_cndmask_b32 v253, v3, v2, vcc
        v_mov_b32 v3, {OOB}
        v_and_b32 v2, 7, v0
        v_mul_u32_u24 v255, 544, v2
        v_cmp_gt_u32 vcc, {o["r1"]}, v2
        v_mul_u32_u24 v14, {ORS}, v2
        v_add_u32 v14, s6, v14
        v_cndmask_b32 v14, v3, v14, vcc
        v_lshrrev_b32 v2, 3, v0
        v_lshlrev_b32 v2, 4, v2
        v_add_u32 v15, v14, v2
        v_add_u32 v15, 512, v15
        v_cmp_gt_u32 vcc, {64 if o["mlf"] else 8}, v0
        v_cndmask_b32 v15, v3, v15, vcc
        s_lshl_b32 s22, s3, 7
        v_add_u32 v2, s22, v2
        v_add_u32 v254, v255, v2
        v_add_u32 v14, v14, v2
        """)
        if o["one"]:
            a(f"""v_lshlrev_b32 v254, 3, v0
            v_and_b32 v2, 1, v0
            v_cmp_eq_u32 vcc, 0, v2
            v_add_u32 v2, s6, v254
            v_mov_b32 v3, {OOB}
            v_cndmask_b32 v14, v3, v2, vcc""")
    def set_q():
        a(f"""
        v_bfe_u32 v2, v0, 2, 2
        v_lshrrev_b32 v3, 4, v0
        v_and_b32 v8, 3, v0
        v_lshlrev_b32 v3, 6, v3
        v_lshl_add_u32 v3, v8, 4, v3
        v_mov_b32 v12, 256""")
        for t in range(4): a(f"v_cmp_eq_u32 vcc, {t}, v2\nv_cndmask_b32 v{8+t}, v12, v3, vcc")
        a("s_waitcnt lgkmcnt(0)"); nonce(84, 85)
    def q_wait():
        a("s_cmp_lg_u32 s3, 0\ns_cbranch_scc1 L_qwait")
        for h in range(2):
            a(f"""L_q{h}:
            s_load_dwordx16 s[36:51], s[10:11], {256*h} glc
            s_load_dwordx16 s[52:67], s[10:11], {256*h+64} glc
            s_load_dwordx16 s[68:83], s[10:11], {256*h+128} glc
            s_waitcnt lgkmcnt(0)
            s_xor_b32 s22, s39, s84""")
            for j_ in range(1, 11): a(f"s_xor_b32 s23, s{39+4*j_}, s84\ns_or_b32 s22, s22, s23")
            a(f"s_cbranch_scc0 L_q{h}ok")
            spin(f"L_q{h}", 4)
            a(f"L_q{h}ok:")
            if h == 0: stamp(2)
            for d in range(32): a(f"v_writelane_b32 v2, s{36 + 4*(d//3) + d%3}, {32*h+d}")
        a(f"""v_lshlrev_b32 v3, 2, v0
        v_mov_b32 v13, 1
        ds_write_b32 v3, v2 offset:{LQ}
        ds_write_b32 v12, v13 offset:{LQ+16}
        L_qwait:
        ds_read_b32 v13, v12 offset:{LQ+16}
        s_waitcnt lgkmcnt(0)
        v_cmp_eq_u32 vcc, 1, v13
        s_cbranch_vccnz L_qgo
        s_sleep 2""")
        spin("L_qwait", 4)
        a("L_qgo:")
        for t in range(4): a(f"ds_read_b128 {v(AQ+4*t,4)}, v{8+t} offset:{LQ}")
        a("s_waitcnt lgkmcnt(0)")
    if not DY:
        def issue(th, real, sfx):
            for n, x in enumerate(KL + VL[:NV]):
                a(x)
                if th and th <= n < 24 + NV - o["tail"] and (real or not (n < 4 or 24 <= n < 28)): a(f"s_waitcnt vmcnt({th})")
                if n == 23 and o["kbar"]: a("s_barrier")
                if not sfx: progress(n + 1)
        if o["thr5"]:
            assert o["trig"] is None or o["trig"][0] >= 3
            a("s_cmp_eq_u32 s43, 0\ns_cbranch_scc1 L_iss6")
            issue(o["thr5"], False, "")
            a("s_branch L_issd\nL_iss6:")
            issue(TH, True, "6")
            a("L_issd:")
        else: issue(TH, True, "")
        if SG:
            a("s_cmp_lt_u32 s3, 4\ns_cbranch_scc1 L_stag0")
            for n, x in enumerate(VL[NV:NV+SG]):
                a(x)
                if TH: a(f"s_waitcnt vmcnt({TH + o['tail']})")
                progress(25 + NV + n)
            a("L_stag0:")
        stamp(1); set_s(); set_late(); set_q(); q_wait()
    elif D2:
        def claim_use():
            a(f"""s_waitcnt vmcnt({36 - D2})
            v_readfirstlane_b32 s22, v15
            s_bitcmp1_b32 s22, 0
            s_cbranch_scc1 L_claimed
            s_waitcnt vmcnt(0)
            v_readfirstlane_b32 s22, v15
            L_claimed:
            s_lshr_b32 s22, s22, 1
            s_add_u32 s23, s22, s89
            s_lshl_b32 s23, s23, 12
            s_cmp_lt_u32 s22, 16
            s_cselect_b32 s23, s23, {OOB}
            s_cselect_b32 s5, 0, 1
            v_add_u32 v253, s23, v252
            v_add_u32 v255, s23, v254""")
            for x in KL[:4] + VL[20:] + VL[:4]: a(x)
            stamp(8)
            set_late()
        for n, x in enumerate(KL[4:] + VL[4:20]):
            if n == D2:
                a("s_waitcnt lgkmcnt(0)\ns_cmp_eq_u32 s95, s84\ns_cbranch_scc1 L_cok\nL_cw:\ns_load_dword s95, s[92:93], 4 glc\ns_waitcnt lgkmcnt(0)\ns_cmp_eq_u32 s95, s84\ns_cbranch_scc1 L_cok")
                spin("L_cw", 4)
                a("""L_cok:
                v_mov_b32 v15, 2
                v_mov_b32 v14, s90
                s_mov_b64 exec, 1
                buffer_atomic_add v15, v14, s[12:15], 0 offen sc0 sc1
                s_mov_b64 exec, -1""")
            if n == D2 - 6: a("s_load_dword s95, s[92:93], 4 glc")
            a(x)
            if n == 4:
                set_s(); set_q(); masks(MK, 15, 2, 3)
                a(f"""s_add_u32 s92, s26, s90
                s_addc_u32 s93, s27, 0
                s_or_b32 s22, s38, s3
                s_cmp_lg_u32 s22, 0
                s_cbranch_scc1 L_noinit
                v_mov_b32 v14, s84
                v_cmp_gt_u32 vcc, 1, v0
                v_cndmask_b32 v14, v14, 1, vcc
                v_lshl_add_u32 v15, v0, 2, s90
                s_mov_b32 exec_hi, 0
                buffer_store_dword v14, v15, s[12:15], 0 offen sc1
                s_mov_b64 exec, -1
                L_noinit:""")
            if TH and TH <= n < 36 - o["tail"]: a(f"s_waitcnt vmcnt({TH})")
            progress(n + 1, n >= 4)
        stamp(1)
        if o["pos"] == 0: claim_use()
        q_wait()
    else:
        order = KL[4:] + VL[4:20] + KL[:4] + VL[20:] + VL[:4]
        for n, x in enumerate(order):
            if n == DY:
                stamp(1); q_wait()
                a("""v_mov_b32 v13, 2
                v_mov_b32 v12, s90
                s_mov_b64 exec, 1
                buffer_atomic_add v13, v12, s[12:15], 0 offen sc0 sc1
                s_mov_b64 exec, -1""")
            if n == 36:
                a(f"""s_waitcnt vmcnt({36 - DY})
                v_readfirstlane_b32 s22, v13
                s_bitcmp1_b32 s22, 0
                s_cbranch_scc1 L_claimed
                s_waitcnt vmcnt(0)
                v_readfirstlane_b32 s22, v13
                L_claimed:
                s_lshr_b32 s22, s22, 1
                s_add_u32 s23, s22, s89
                s_lshl_b32 s23, s23, 12
                s_cmp_lt_u32 s22, 16
                s_cselect_b32 s23, s23, {OOB}
                s_cselect_b32 s5, 0, 0xff800000
                v_add_u32 v253, s23, v252
                v_add_u32 v255, s23, v248""")
                stamp(8)
            a(x)
            if n == 4: set_s(); set_q()
            if TH and TH <= n < 48 - o["tail"]: a(f"s_waitcnt vmcnt({TH})")
            progress(n + 1, n >= 4)
        set_late()
    def att_d2():
        D = "row_mask:0xf bank_mask:0xf"
        Y = 12 if o["pos"] == 0 else 0
        SL = [1, 2, 3, 4, 5]
        stamp(3)
        for sl in SL:
            a(f"s_waitcnt vmcnt({16 + Y + 4*(5-sl)})")
            for t in range(4):
                a(f"v_mfma_f32_16x16x32_bf16 {v(DQ+4*sl,4)}, {v(AQ+4*t,4)}, {v(K0+16*sl+4*t,4)}, {'0' if t==0 else v(DQ+4*sl,4)}")
        stamp(4); progress(100)
        def extract(L):
            for r in range(4):
                for sl in L:
                    qp = f"quad_perm:[{r},{r},{r},{r}] {D}"
                    if r == 0: a(f"v_mov_b32_dpp v{S0+sl}, v{DQ+4*sl} {qp}")
                    else: a(f"v_add_f32_dpp v{S0+sl}, v{DQ+4*sl+r}, v{S0+sl} {qp}")
        def red(op, R, TT):
            a(f"""v_{op}_f32_dpp v{R}, v{R}, v{R} row_ror:4 {D}
            v_{op}_f32_dpp v{R}, v{R}, v{R} row_ror:8 {D}
            v_mov_b32 v{TT}, v{R}
            v_permlane16_swap_b32 v{R}, v{TT}
            v_{op}_f32 v{R}, v{R}, v{TT}
            v_mov_b32 v{TT}, v{R}
            v_permlane32_swap_b32 v{R}, v{TT}
            v_{op}_f32 v{R}, v{R}, v{TT}""")
        extract(SL)
        T = DQ + 4; M, L_, TT, PK, F, A0 = T + 4, T + 5, T + 6, T + 8, T + 7, T + 8
        for rnd in range(2):
            a(f"v_cvt_pk_bf16_f32 v{T}, v{S0+1}, v{S0+1}")
            for p in (1, 2): a(f"v_cvt_pk_bf16_f32 v{T+p}, v{S0+2*p}, v{S0+2*p+1}")
            a(f"v_and_b32 v{S0+1}, s21, v{T}")
            for p in (1, 2): a(f"v_lshlrev_b32 v{S0+2*p}, 16, v{T+p}\nv_and_b32 v{S0+2*p+1}, s21, v{T+p}")
            if rnd == 0:
                for sl in SL: a(f"v_mul_f32 v{S0+sl}, s9, v{S0+sl}")
        a(f"v_max3_f32 v{M}, v{S0+1}, v{S0+2}, v{S0+3}\nv_max3_f32 v{M}, v{S0+4}, v{S0+5}, v{M}")
        red("max", M, TT)
        a(f"v_mul_f32 v{M}, s8, v{M}")
        for sl in SL: a(f"v_fma_f32 v{S0+sl}, v{S0+sl}, s8, -v{M}")
        for sl in SL: a(f"v_exp_f32 v{S0+sl}, v{S0+sl}")
        for sl in SL: a(f"v_cvt_pk_bf16_f32 v{PK+sl}, v{S0+sl}, v{S0+sl}")
        def pbuild(sl, src):
            for k in range(4):
                for r in range(4): a(f"v_and_b32_dpp v{K0+16*sl+4*k+r}, v{src}, v{MK+r} row_newbcast:{4*k} {D}")
        if o["pos"] == 2: claim_use()
        for sl in SL: pbuild(sl, PK+sl)
        a(f"""v_add_f32 v{L_}, v{S0+1}, v{S0+2}
        v_add_f32 v{TT}, v{S0+3}, v{S0+4}
        v_add_f32 v{L_}, v{L_}, v{S0+5}
        v_add_f32 v{L_}, v{L_}, v{TT}""")
        red("add", L_, TT)
        if o["pos"] == 1: claim_use()
        stamp(5)
        for sl in SL[:4]:
            a(f"s_waitcnt vmcnt({12 + 4*(4-sl)})"); progress(100 + sl)
            for k in range(4): a(f"v_mfma_f32_16x16x32_bf16 {v(ACC,4)}, {v(K0+16*sl+4*k,4)}, {v(V0+16*sl+4*k,4)}, {'0' if sl==1 and k==0 else v(ACC,4)}")
        def pv5():
            for k in range(4): a(f"s_waitcnt vmcnt({7-k})\nv_mfma_f32_16x16x32_bf16 {v(ACC,4)}, {v(K0+80+4*k,4)}, {v(V0+80+4*k,4)}, {v(ACC,4)}")
        a("s_cmp_eq_u32 s5, 0\ns_cbranch_scc1 L_won")
        pv5()
        a("s_branch L_pvdone\nL_won:\ns_waitcnt vmcnt(8)")
        for t in range(4): a(f"v_mfma_f32_16x16x32_bf16 {v(DQ,4)}, {v(AQ+4*t,4)}, {v(K0+4*t,4)}, {'0' if t==0 else v(DQ,4)}")
        extract([0])
        a(f"""v_cvt_pk_bf16_f32 v{S0}, v{S0}, v{S0}
        v_and_b32 v{S0}, s21, v{S0}
        v_mul_f32 v{S0}, s9, v{S0}
        v_cvt_pk_bf16_f32 v{S0}, v{S0}, v{S0}
        v_and_b32 v{S0}, s21, v{S0}
        v_mov_b32 v{S0+1}, v{S0}""")
        red("max", S0+1, TT)
        a(f"""v_mul_f32 v{S0+1}, s8, v{S0+1}
        v_max_f32 v{S0+1}, v{S0+1}, v{M}
        v_fma_f32 v{S0}, v{S0}, s8, -v{S0+1}
        v_sub_f32 v{F}, v{M}, v{S0+1}
        v_exp_f32 v{S0}, v{S0}
        v_exp_f32 v{F}, v{F}
        v_mov_b32 v{M}, v{S0+1}
        v_cvt_pk_bf16_f32 v{S0+2}, v{S0}, v{S0}""")
        pbuild(0, S0+2)
        pv5()
        red("add", S0, TT)
        a(f"v_fma_f32 v{L_}, v{L_}, v{F}, v{S0}")
        for k in range(4): a(f"s_waitcnt vmcnt({3-k})\nv_mfma_f32_16x16x32_bf16 {v(A0,4)}, {v(K0+4*k,4)}, {v(V0+4*k,4)}, {'0' if k==0 else v(A0,4)}")
        for r in range(4): a(f"v_fma_f32 v{ACC+r}, v{ACC+r}, v{F}, v{A0+r}")
        a(f"L_pvdone:\nds_write_b64 v253, {v(M,2)}")
    if D2: att_d2()
    else:
        stamp(3)
        for sl in ([1, 2, 3, 4, 5, 0] if DY else range(6)):
            if not DY: a(f"s_waitcnt vmcnt({20+NV-4*sl})")
            elif sl < 2: a(f"s_waitcnt vmcnt({28 if sl else 8})")
            for t in range(4):
                a(f"v_mfma_f32_16x16x32_bf16 {v(DQ+4*sl,4)}, {v(AQ+4*t,4)}, {v(K0+16*sl+4*t,4)}, {'0' if t==0 else v(DQ+4*sl,4)}")
        stamp(4); progress(100)
        for r in range(4):
            for sl in range(6):
                qp = f"quad_perm:[{r},{r},{r},{r}] row_mask:0xf bank_mask:0xf"
                if r == 0: a(f"v_mov_b32_dpp v{S0+sl}, v{DQ+4*sl} {qp}")
                else: a(f"v_add_f32_dpp v{S0+sl}, v{DQ+4*sl+r}, v{S0+sl} {qp}")
        T = AQ
        for rnd in range(2):
            for p in range(3): a(f"v_cvt_pk_bf16_f32 v{T+p}, v{S0+2*p}, v{S0+2*p+1}")
            for p in range(3): a(f"v_lshlrev_b32 v{S0+2*p}, 16, v{T+p}\nv_and_b32 v{S0+2*p+1}, s21, v{T+p}")
            if rnd == 0:
                for sl in range(6): a(f"v_mul_f32 v{S0+sl}, s9, v{S0+sl}")
        M, L_, TT = T + 4, T + 5, T + 6
        a(f"""v_add_f32 v{S0}, s5, v{S0}
        v_max3_f32 v{M}, v{S0+1}, v{S0+2}, v{S0+3}
        v_max3_f32 v{TT}, v{S0+4}, v{S0+5}, v{S0}
        v_max_f32 v{M}, v{M}, v{TT}
        v_max_f32_dpp v{M}, v{M}, v{M} row_ror:4 row_mask:0xf bank_mask:0xf
        v_max_f32_dpp v{M}, v{M}, v{M} row_ror:8 row_mask:0xf bank_mask:0xf
        v_mov_b32 v{TT}, v{M}
        v_permlane16_swap_b32 v{M}, v{TT}
        v_max_f32 v{M}, v{M}, v{TT}
        v_mov_b32 v{TT}, v{M}
        v_permlane32_swap_b32 v{M}, v{TT}
        v_max_f32 v{M}, v{M}, v{TT}
        v_mul_f32 v{M}, s8, v{M}""")
        for sl in range(6): a(f"v_fma_f32 v{S0+sl}, v{S0+sl}, s8, -v{M}")
        for sl in range(6): a(f"v_exp_f32 v{S0+sl}, v{S0+sl}")
        PK = T + 8
        for sl in range(6): a(f"v_cvt_pk_bf16_f32 v{PK+sl}, v{S0+sl}, v{S0+sl}")
        for sl in range(6):
            for k in range(4):
                for r in range(4):
                    a(f"v_and_b32_dpp v{K0+16*sl+4*k+r}, v{PK+sl}, v{MK+r} row_newbcast:{4*k} row_mask:0xf bank_mask:0xf")
        a(f"""v_add_f32 v{L_}, v{S0}, v{S0+1}
        v_add_f32 v{TT}, v{S0+2}, v{S0+3}
        v_add_f32 v{S0+4}, v{S0+4}, v{S0+5}
        v_add_f32 v{L_}, v{L_}, v{TT}
        v_add_f32 v{L_}, v{L_}, v{S0+4}
        v_add_f32_dpp v{L_}, v{L_}, v{L_} row_ror:4 row_mask:0xf bank_mask:0xf
        v_add_f32_dpp v{L_}, v{L_}, v{L_} row_ror:8 row_mask:0xf bank_mask:0xf
        v_mov_b32 v{TT}, v{L_}
        v_permlane16_swap_b32 v{L_}, v{TT}
        v_add_f32 v{L_}, v{L_}, v{TT}
        v_mov_b32 v{TT}, v{L_}
        v_permlane32_swap_b32 v{L_}, v{TT}
        v_add_f32 v{L_}, v{L_}, v{TT}
        ds_write_b64 v253, {v(M,2)}""")
        if SG:
            a("s_cmp_ge_u32 s3, 4\ns_cbranch_scc1 L_stag1")
            for x in VL[NV:NV+SG]: a(x)
            a("L_stag1:")
        if not DY:
            for x in VL[NV+SG:]: a(x)
        stamp(5)
        for i_, sl in enumerate([1, 2, 3, 4, 5, 0] if DY else range(6)):
            for k in range(4):
                n = 23 - 4 * i_ - k
                if DY:
                    if i_ >= 4: a(f"s_waitcnt vmcnt({n})")
                elif k == 0 or sl == 5: a(f"s_waitcnt vmcnt({n - (3 if sl < 5 else 0)})")
                if k == 0: progress(101 + i_)
                a(f"v_mfma_f32_16x16x32_bf16 {v(ACC,4)}, {v(K0+16*sl+4*k,4)}, {v(V0+16*sl+4*k,4)}, {'0' if i_==0 and k==0 else v(ACC,4)}")
    stamp(6)
    a(f"""ds_write_b128 v252, {v(ACC,4)}
    s_waitcnt lgkmcnt(0)""")
    if o["adry"]:
        a(f"""s_mov_b32 s14, 0
        s_cmp_lt_u32 s3, {1 if o["one"] else 4}
        s_cbranch_scc1 L_comb
        L_bar:
        s_mov_b32 s14, {MBX}""")
    a(f"""s_barrier
    """)
    if o["one"]:
        a("""s_cmp_lg_u32 s3, 0
        s_cbranch_scc1 L_att_end
        L_comb:
        ds_read_b64 v[16:17], v255 offset:512""")
        for k in range(8): a(f"ds_read_b64 {v(28+2*k,2)}, v254 offset:{544*k}")
        a("""v_mov_b32 v26, s84
        v_mov_b32 v27, s84
        v_mov_b32 v18, 0xff
        s_waitcnt lgkmcnt(8)
        v_max_f32_dpp v24, v16, v16 quad_perm:[1,0,3,2] row_mask:0xf bank_mask:0xf
        v_max_f32_dpp v24, v24, v24 quad_perm:[2,3,0,1] row_mask:0xf bank_mask:0xf
        v_max_f32_dpp v24, v24, v24 row_half_mirror row_mask:0xf bank_mask:0xf
        v_sub_f32 v16, v16, v24
        v_exp_f32 v16, v16
        s_waitcnt lgkmcnt(0)
        v_mul_f32 v25, v16, v17""")
        D = "row_mask:0xf bank_mask:0xf"
        for k in range(8):
            for e in range(2):
                dst = 20 + e + 2 * (k & 1)
                a(f"v_{'mul' if k < 2 else 'fmac'}_f32_dpp v{dst}, v16, v{28+2*k+e} row_newbcast:{k} {D}")
            if k in (1, 3, 5): a(f"v_add_f32_dpp v25, v25, v25 {['quad_perm:[1,0,3,2]', 'quad_perm:[2,3,0,1]', 'row_half_mirror'][k//2]} {D}")
        a(f"""v_pk_add_f32 v[20:21], v[20:21], v[22:23]
        v_mov_b32_dpp v22, v20 quad_perm:[1,0,3,2] {D}
        v_mov_b32_dpp v23, v21 quad_perm:[1,0,3,2] {D}""")
        tag4(20, 18, 85)
        a("""buffer_store_dwordx4 v[20:23], v14, s[12:15], 0 offen sc1
        buffer_store_dwordx4 v[24:27], v15, s[12:15], 0 offen sc1""")
    else:
      a(f"""    s_cmp_ge_u32 s3, 4
    s_cbranch_scc1 L_att_end
    L_comb:
    ds_read_b64 v[16:17], v255 offset:512
    ds_read_b128 v[20:23], v254
    v_mov_b32 v26, s84
    v_mov_b32 v27, s84
    v_mov_b32 v18, 0xff
    s_waitcnt lgkmcnt(1)
    v_max_f32_dpp v24, v16, v16 quad_perm:[1,0,3,2] row_mask:0xf bank_mask:0xf
    v_max_f32_dpp v24, v24, v24 quad_perm:[2,3,0,1] row_mask:0xf bank_mask:0xf
    v_max_f32_dpp v24, v24, v24 row_half_mirror row_mask:0xf bank_mask:0xf
    v_sub_f32 v16, v16, v24
    v_exp_f32 v16, v16
    s_waitcnt lgkmcnt(0)
    v_mul_f32 v25, v16, v17""")
      for r in range(4): a(f"v_mul_f32 v{20+r}, v16, v{20+r}")
      for dp in ("quad_perm:[1,0,3,2]", "quad_perm:[2,3,0,1]", "row_half_mirror"):
          for r in (20, 21, 22, 23, 25): a(f"v_add_f32_dpp v{r}, v{r}, v{r} {dp} row_mask:0xf bank_mask:0xf")
      tag4(20, 18, 85)
      a("""buffer_store_dwordx4 v[20:23], v14, s[12:15], 0 offen sc1
    s_cmp_lg_u32 s3, 0
    s_cbranch_scc1 L_comb_end
    buffer_store_dwordx4 v[24:27], v15, s[12:15], 0 offen sc1
    L_comb_end:""")
    if o["adry"]: a("s_cmp_eq_u32 s14, 0\ns_cbranch_scc1 L_bar")
    a("L_att_end:")
    stamp(7)
    if o["pf"] is not None:
        for k_ in range(192): assert (k_ * 171) >> 13 == k_ // 48
        a(f"""s_load_dwordx4 s[36:39], s[0:1], 48
        s_load_dwordx2 s[40:41], s[0:1], 64
        s_sub_u32 s22, s2, 64
        s_and_b32 s23, s22, 0xf8
        s_add_u32 s23, s23, s3
        s_mul_i32 s24, s23, 171
        s_lshr_b32 s24, s24, 13
        s_mul_i32 s25, s24, 48
        s_sub_u32 s23, s23, s25
        s_add_u32 s22, s22, 3
        s_and_b32 s22, s22, 7
        s_lshl_b32 s24, s24, 3
        s_add_u32 s22, s22, s24
        s_barrier
        s_cmp_ge_u32 s22, 27
        s_cbranch_scc1 L_pf_end
        s_mov_b32 s46, 2211840
        s_mov_b32 s47, 0x20000
        s_cmp_ge_u32 s23, 32
        s_cbranch_scc1 L_pf_dn
        s_and_b32 s24, s23, 15
        s_mul_i32 s24, s24, {40*3456}
        s_lshl_b32 s22, s22, 7
        s_add_u32 s24, s24, s22
        v_lshrrev_b32 v2, 3, v0
        v_and_b32 v3, 7, v0
        v_mul_u32_u24 v2, 3456, v2
        v_lshl_add_u32 v2, v3, 4, v2
        s_mov_b32 s25, {8*3456}
        s_cmp_lt_u32 s23, 16
        s_waitcnt lgkmcnt(0)
        s_cselect_b32 s44, s36, s38
        s_cselect_b32 s45, s37, s39
        s_branch L_pf_go
        L_pf_dn:
        s_sub_u32 s24, s23, 32
        s_mul_i32 s24, s24, 5120
        s_mul_i32 s22, s22, 81920
        s_add_u32 s24, s24, s22
        v_lshlrev_b32 v2, 4, v0
        s_mov_b32 s25, 1024
        s_waitcnt lgkmcnt(0)
        s_mov_b32 s44, s40
        s_mov_b32 s45, s41
        L_pf_go:""")
        for k_ in range(5): a(f"buffer_load_dwordx4 {v(32+4*k_,4)}, v2, s[44:47], s24 offen {o['pf']}\ns_add_u32 s24, s24, s25")
        a("s_waitcnt vmcnt(0)\nL_pf_end:")
    stamp_out()
    a("L_end:\ns_endpgm")
    GU, WO, DN = 16, 96, 160
    M8, M4 = 4, 8
    SB = 80
    HW, HS, HC, PW, PR, YW = 240, 241, 242, 243, 244, 245
    C640, CG2 = 246, 249
    NS, TS, E0, VM = 93, 56, 247, 14
    g1 = -2 * LOG2E * 0.7978845608028654
    SM = o["sm"]; DA = 124 if SM else 208
    assert not SM or (o["x2"] and o["lnf"] and not o["al2"] and o["skip"])
    def gq(t, m): return GU + 16*(t%5) + 8*m + 4*(t//5) if SM else GU + 8*t + 4*m
    def smf(d, a_, b_): a(f"v_smfmac_f32_16x16x64_bf16 {v(d,4)}, {v(a_,4)}, {v(b_,8)}, v10")
    def sm_tiles(tl, waits):
        for t, (x_, y_, w_) in enumerate(tl):
            if t in waits: a(f"s_waitcnt lgkmcnt({waits[t]})")
            for r in range(4): a(f"v_and_b32 v{228+4*(t%3)+r}, v{x_ if r < 2 else y_}, v{8+(r&1)}")
            if t > 0: smf(252, 228+4*((t-1)%3), tl[t-1][2])
        smf(252, 228+4*((len(tl)-1)%3), tl[-1][2])
    def gu_list():
        L = []
        for t in range(10):
            va = 250; k_ = t
            if o["al2"]: va, k_ = (110, t // 5) if t % 5 == 4 else (250, t - t // 5)
            so = "0" if k_ == 0 else f"s{59+k_}"
            L.append(f"buffer_load_dwordx4 {v(gq(t,0),4)}, v{va}, s[32:35], {so} offen {WT}")
            L.append(f"buffer_load_dwordx4 {v(gq(t,1),4)}, v{va}, s[36:39], {so} offen {WT}")
        return L
    def gu_setup():
        srd(32, 16, 2211840); srd(36, 18, 2211840)
        for t in range(1, 10): a(f"s_mov_b32 s{59+t}, {3456*t}")
        if o["al2"]:
            a("""s_lshl_b32 s72, s3, 3
            v_add_u32 v14, s72, v2
            v_mul_u32_u24 v250, 27648, v14
            v_mul_u32_u24 v110, 6912, v14
            s_lshl_b32 s72, s77, 7
            v_lshl_add_u32 v15, v3, 4, s72
            v_add_u32 v250, v250, v15
            v_add_u32 v110, v110, v15
            v_add_u32 v110, 1769472, v110
            v_lshrrev_b32 v14, 2, v0
            s_lshl_b32 s72, s3, 4
            v_add_u32 v111, s72, v14
            v_lshlrev_b32 v14, 3, v111
            v_lshlrev_b32 v15, 1, v111
            buffer_load_dwordx2 v[98:99], v14, s[28:31], 0 offen
            buffer_load_ushort v100, v15, s[28:31], 0 offen offset:1024""")
        else: a("s_lshl_b32 s72, s77, 7\nv_mul_u32_u24 v250, 3456, v12\nv_lshl_add_u32 v250, v3, 4, v250\nv_add_u32 v250, s72, v250")
        if SM:
            a("""v_bfe_u32 v14, v0, 4, 1
            v_bfe_u32 v15, v0, 2, 1
            v_lshl_add_u32 v14, v14, 1, v15
            v_bfe_u32 v15, v0, 3, 1
            v_lshl_add_u32 v14, v14, 1, v15
            v_lshrrev_b32 v15, 5, v0
            v_lshl_add_u32 v14, v14, 1, v15
            s_mul_i32 s72, s3, 80
            v_mad_u32_u24 v111, v14, 5, s72
            v_lshlrev_b32 v14, 1, v111""")
            for e in range(5): a(f"buffer_load_ushort v{96+e}, v14, s[28:31], 0 offen offset:{2*e}")
    def dn_loads():
        srd(44, 20, 2211840)
        a("""s_lshl_b32 s72, s77, 3
        s_add_u32 s72, s72, s3
        s_mul_i32 s72, s72, 10240
        v_lshrrev_b32 v14, 4, v0
        v_mul_u32_u24 v14, %d, v14
        v_and_b32 v15, 15, v0
        v_lshl_add_u32 v14, v15, 4, v14
        v_add_u32 v14, s72, v14""" % (1280 if SM else 2560))
        if SM:
            a("s_mov_b32 s69, 5120\nv_mov_b32 v110, v14")
            L = [f"buffer_load_dwordx4 {v(DN+8*b+4*t,4)}, v110, s[44:47], {'s69' if t else '0'} offen offset:{256*b} {WT}" for b in range(5) for t in range(2)]
            for x in L[:10 - o["dl"]]: a(x)
            return L[10 - o["dl"]:]
        for t in range(2):
            for b in range(5): a(f"buffer_load_dwordx4 {v(DN+20*t+4*b,4)}, v14, s[44:47], 0 offen offset:{1280*t+256*b} {WT}")
    def wo_list():
        return [f"buffer_load_dwordx4 {v(WO+8*(t&7)+4*(t>>3) if SM else WO+4*t,4)}, v251, s[40:43], {'0' if t < 4 else 's%d' % (68 + t//4)} offen offset:{1280*(t&3)} {WT}" for t in range(16)]
    def xw_loads():
        XW = 16
        a(f"""s_mul_i32 s72, s79, 163840
                s_mul_i32 s73, s3, 20480
                s_add_u32 s72, s72, s73
                s_lshl_b32 s73, s75, 7
                s_add_u32 s72, s72, s73
                v_mul_u32_u24 v14, 2560, v2
                v_lshl_add_u32 v14, v3, 4, v14
                v_add_u32 v14, s72, v14
                s_mov_b32 s72, 163840
                s_mov_b32 s73, 327680""")
        for e in range(3):
            for t in range(2): a(f"buffer_load_dwordx4 {v(XW+8*e+4*t,4)}, v14, s[40:43], {['0','s72','s73'][e]} offen offset:{1280*t} {WT}")
    def wq_loads(base, va):
        for t in range(10): a(f"buffer_load_dwordx4 {v(base+4*t,4)}, v{va}, s[52:55], {'0' if t == 0 else 's%d' % (83+t)} offen {WT}")
    def ln(wait_c):
        for p in range(5): a(f"v_pk_add_f32 {v(204+2*p,2)}, {v(204+2*p,2)}, v[214:215] op_sel_hi:[1,0] neg_lo:[0,1] neg_hi:[0,1]")
        a("""v_pk_mul_f32 v[14:15], v[204:205], v[204:205]
        v_pk_add_f32 v[204:205], v[204:205], v[206:207]
        v_pk_fma_f32 v[14:15], v[206:207], v[206:207], v[14:15]
        v_pk_add_f32 v[206:207], v[208:209], v[210:211]
        v_pk_fma_f32 v[14:15], v[208:209], v[208:209], v[14:15]
        v_pk_add_f32 v[204:205], v[204:205], v[212:213]
        v_pk_fma_f32 v[14:15], v[210:211], v[210:211], v[14:15]
        v_pk_add_f32 v[204:205], v[204:205], v[206:207]
        v_pk_fma_f32 v[14:15], v[212:213], v[212:213], v[14:15]
        v_add_f32 v204, v204, v205
        v_add_f32 v14, v14, v15""")
        for dp in ("row_ror:1 row_mask:0xf", "row_ror:2 row_mask:0xf", "row_ror:4 row_mask:0xf", "row_ror:8 row_mask:0xf", "row_bcast:15 row_mask:0xa", "row_bcast:31 row_mask:0xc"):
            a(f"v_add_f32_dpp v204, v204, v204 {dp} bank_mask:0xf\nv_add_f32_dpp v14, v14, v14 {dp} bank_mask:0xf")
        a(f"""v_readlane_b32 s72, v204, 63
        v_readlane_b32 s73, v14, 63
        v_mul_f32 v14, s72, v{C640}
        v_mul_f32 v15, s73, v{C640}
        v_add_f32 v214, v214, v14
        v_fma_f32 v15, -v14, v14, v15
        v_cvt_pk_bf16_f32 v14, v214, v15
        v_and_b32 v15, s81, v14
        v_lshlrev_b32 v214, 16, v14
        v_add_f32 v15, {f2u(1e-5)}, v15""")
        a(wait_c)
        pk = [f"v_pk_add_f32 {v(216+2*p,2)}, {v(216+2*p,2)}, v[214:215] op_sel_hi:[1,0] neg_lo:[0,1] neg_hi:[0,1]" for p in range(5)]
        cv = [f"v_cvt_pk_bf16_f32 v{204+p}, v{216+2*p}, v{217+2*p}" for p in range(5)]
        un = [f"v_lshlrev_b32 v{216+2*p}, 16, v{204+p}\nv_and_b32 v{217+2*p}, s81, v{204+p}" for p in range(5)]
        a("v_cvt_pk_bf16_f32 v15, v15, v15"); a(pk[0]); a("v_and_b32 v15, s81, v15"); a(pk[1]); a("v_sqrt_f32 v15, v15")
        a(pk[2]); a(pk[3]); a("v_cvt_pk_bf16_f32 v15, v15, v15"); a(pk[4]); a("v_and_b32 v15, s81, v15"); a(cv[0]); a("v_rcp_f32 v14, v15")
        for x in cv[1:] + un: a(x)
        for p in range(5): a(f"v_pk_mul_f32 {v(216+2*p,2)}, {v(216+2*p,2)}, v[14:15] op_sel_hi:[1,0]")
        for t in range(10): a(f"v_cvt_pk_bf16_f32 v{216+t}, v{216+t}, v{216+t}")
    def qgemv(base, acc, after, nxt):
        nxt = list(nxt); issued = 0
        for t in range(10):
            for r in range(4): a(f"v_and_b32 v{228+4*(t%2)+r}, v{216+t}, v{M8+r}")
            a(f"s_waitcnt vmcnt({9-t+after+issued})")
            a(f"v_mfma_f32_16x16x32_bf16 {v(acc,4)}, {v(228+4*(t%2),4)}, {v(base+4*t,4)}, {'0' if t==0 else v(acc,4)}")
            for k in range(o["il"]):
                if nxt: a(nxt.pop(0)); issued += 1
        return nxt
    def psum():
        a(f"""ds_read2st64_b32 v[204:205], v{PR} offset0:0 offset1:17
        ds_read2st64_b32 v[206:207], v{PR} offset0:1 offset1:18
        s_waitcnt lgkmcnt(1)
        v_add_f32 v204, v204, v205
        s_waitcnt lgkmcnt(0)
        v_add_f32 v206, v206, v207""")
        for dp in ("quad_perm:[1,0,3,2]", "quad_perm:[2,3,0,1]", "row_half_mirror"):
            a(f"v_add_f32_dpp v204, v204, v204 {dp} row_mask:0xf bank_mask:0xf\nv_add_f32_dpp v206, v206, v206 {dp} row_mask:0xf bank_mask:0xf")
    for i in range(28): assert (i * 37) >> 8 == i // 7
    for i in range(9): assert (i * 86) >> 8 == i // 3
    for col in range(0, 640, 2): assert (col * 52429) >> 19 == col // 10
    a("""L_aux:
    v_lshrrev_b32 v2, 3, v0
    v_and_b32 v3, 7, v0
    s_mul_i32 s72, s3, 80
    v_mul_u32_u24 v12, 10, v2
    v_add_u32 v12, s72, v12
    v_lshlrev_b32 v13, 2, v0
    s_lshl_b32 s72, s3, 8
    v_add_u32 v13, s72, v13
    s_and_b32 s78, s2, 7
    s_lshl_b32 s78, s78, 3
    s_lshr_b32 s72, s2, 3
    s_add_u32 s78, s78, s72
    s_lshl_b32 s72, s78, 7
    v_lshlrev_b32 v252, 13, v12
    v_lshl_add_u32 v252, v3, 4, v252
    v_add_u32 v252, s72, v252
    v_mul_u32_u24 v254, 20, v0
    v_lshlrev_b32 v255, 1, v12""")
    for t in range(1, 10): a(f"s_mov_b32 s{83+t}, {8192*t}")
    a("""s_mul_i32 s74, s2, 37
    s_lshr_b32 s74, s74, 8
    s_mul_i32 s75, s74, 7
    s_sub_u32 s75, s2, s75
    s_lshl_b32 s76, s74, 3
    s_sub_u32 s72, s2, 28
    s_mul_i32 s73, s72, 86
    s_lshr_b32 s73, s73, 8
    s_mul_i32 s79, s73, 3
    s_sub_u32 s72, s72, s79
    s_add_u32 s72, s72, 7
    s_mul_i32 s79, s73, 11
    s_cmp_ge_u32 s2, 28
    s_cselect_b32 s74, s73, s74
    s_cselect_b32 s75, s72, s75
    s_cselect_b32 s76, s79, s76
    s_add_u32 s79, s76, 8
    s_add_u32 s76, s76, s3
    s_mul_i32 s72, s76, 163840
    s_lshl_b32 s73, s75, 7
    s_add_u32 s72, s72, s73
    v_mul_u32_u24 v251, 20480, v2
    v_lshl_add_u32 v251, v3, 4, v251
    v_add_u32 v251, s72, v251
    s_mov_b32 s69, 5120
    s_mov_b32 s70, 10240
    s_mov_b32 s71, 15360
    s_sub_u32 s77, s2, 37
    s_waitcnt lgkmcnt(0)
    s_load_dword s93, s[26:27], %d""" % CAN)
    if o["stamps"]: a("v_mov_b32 v1, 0\nv_writelane_b32 v1, s100, 0")
    srd(28, 4, 1280); srd(52, 10, 5242880)
    if o["dyn"]:
        srd(48, 26, MBX)
        a(f"""s_lshr_b32 s72, s78, 1
        s_lshl_b32 s72, s72, 7
        s_add_u32 s72, s72, {CNT}
        s_and_b32 s73, s78, 1
        s_or_b32 s73, s73, s3
        s_cmp_eq_u32 s73, 0
        s_cbranch_scc0 L_nocnt
        v_mov_b32 v14, 1
        v_lshl_add_u32 v15, v0, 2, s72
        s_mov_b32 exec_hi, 0
        buffer_store_dword v14, v15, s[48:51], 0 offen sc1
        s_mov_b64 exec, -1
        L_nocnt:""")
    a("""buffer_load_dwordx4 v[228:231], v254, s[28:31], 0 offen
    buffer_load_dword v232, v254, s[28:31], 0 offen offset:16
    buffer_load_dwordx4 v[236:239], v255, s[28:31], 0 offen
    buffer_load_dword v233, v255, s[28:31], 0 offen offset:16
    buffer_load_dword v200, v13, s[28:31], 0 offen""")
    wq_loads(DN, 252)
    srd(48, 26, MBX); srd(40, 12, 5242880)
    a(f"s_mov_b32 s{SB}, 0x40000")
    if o["xearly"]:
        a("s_sub_u32 s72, s2, 28\ns_cmp_lt_u32 s72, 9\ns_cbranch_scc0 L_consts\ns_barrier")
        for x in wo_list(): a(x)
        xw_loads()
        a("L_consts:")
    stamp(1)
    masks(M8, 7, 14, 15)
    if SM: a("""v_and_b32 v14, 4, v0
        v_cmp_eq_u32 vcc, 0, v14
        v_mov_b32 v14, 0xffff
        v_cndmask_b32 v8, 0, v14, vcc
        v_cndmask_b32 v9, v14, 0, vcc
        v_and_b32 v14, 3, v0
        v_mul_u32_u24 v10, 0x5555, v14""")
    else: masks(M4, 15, 14, 15)
    a(f"""s_mov_b32 s81, 0xffff0000
    v_mov_b32 v{C640}, {f2u(1/640)}
    v_mov_b32 v{CG2}, {f2u(g1*0.044715)}
    v_lshrrev_b32 v14, 1, v13
    s_mov_b32 s72, 52429
    v_mul_lo_u32 v15, v14, s72
    v_lshrrev_b32 v15, 19, v15
    v_lshlrev_b32 v15, 1, v15
    v_add_u32 v14, v14, v15
    v_lshlrev_b32 v{HW}, 2, v14
    v_mul_u32_u24 v{HS}, 48, v0
    s_lshl_b32 s72, s3, 3
    v_add_u32 v14, s72, v2
    v_mul_u32_u24 v{HC}, 48, v14
    v_lshlrev_b32 v14, 2, v14
    v_mul_u32_u24 v15, 544, v3
    v_add_u32 v{PR}, v14, v15
    v_add_u32 v{PR}, {LP}, v{PR}""")
    a(f"""v_lshrrev_b32 v14, 5, v0
    v_bfe_u32 v15, v0, 3, 1
    v_cmp_eq_u32 vcc, v14, v15
    s_lshl_b32 s72, s3, 1
    v_add_u32 v14, s72, v14
    v_bfe_u32 v15, v0, 4, 1
    v_lshlrev_b32 v15, 4, v15
    v_lshl_add_u32 v15, v3, 5, v15
    v_lshlrev_b32 v201, 4, v0
    v_add_u32 v201, {LDUMP}, v201
    v_mul_u32_u24 v202, 544, v14
    v_add_u32 v202, v202, v15
    v_add_u32 v202, {LP}, v202
    v_cndmask_b32 v{PW}, v201, v202, vcc
    v_mul_u32_u24 v202, 320, v14
    v_add_u32 v202, v202, v15
    v_add_u32 v202, {LY}, v202
    v_cndmask_b32 v{YW}, v201, v202, vcc
    """)
    if o["xearly"]: a("s_sub_u32 s72, s2, 28\ns_cmp_lt_u32 s72, 9\ns_cbranch_scc1 L_xx\ns_waitcnt vmcnt(11)\nL_xx:\ns_waitcnt vmcnt(33)")
    else: a("s_waitcnt vmcnt(11)")
    for p in range(5):
        src = 228 + p; srcc = 236 + p if p < 4 else 233
        a(f"v_lshlrev_b32 v{204+2*p}, 16, v{src}\nv_and_b32 v{205+2*p}, s81, v{src}\nv_lshlrev_b32 v{216+2*p}, 16, v{srcc}\nv_and_b32 v{217+2*p}, s81, v{srcc}")
    if o["lnf"] and not o["al2"]:
        a("v_bfe_u32 v14, v0, 2, 1\nv_cmp_eq_u32 vcc, 1, v14")
        for e in range(5): a(f"v_cndmask_b32 v{96+e}, v{216+e}, v{221+e}, vcc")
    a("v_readfirstlane_b32 s72, v204\nv_mov_b32 v214, s72")
    ln("")
    stamp(13)
    if o["xearly"]:
        a("s_sub_u32 s72, s2, 28\ns_cmp_lt_u32 s72, 9\ns_cbranch_scc0 L_q_n")
        qgemv(DN, 204, 22, [])
        a("s_branch L_q_sum\nL_q_n:")
    qgemv(DN, 204, 0, [])
    a("L_q_sum:")
    stamp(18)
    a(f"""ds_write_b128 v{PW}, v[204:207]
    s_waitcnt lgkmcnt(0)""")
    nonce(NS, TS)
    a(f"""v_and_b32 v14, 1, v0
    v_cmp_eq_u32 vcc, 0, v14
    v_mov_b32 v14, s{TS}
    v_mov_b32 v15, s{TS+1}
    v_mov_b32 v{E0}, s{TS+2}
    v_mov_b32 v{E0+1}, s{TS+3}
    v_cndmask_b32 v{E0}, v{E0}, v14, vcc
    v_cndmask_b32 v{E0+1}, v{E0+1}, v15, vcc
    s_barrier
    s_cmp_lg_u32 s3, 0
    s_cbranch_scc1 L_q_1
    v_lshlrev_b32 v14, 2, v0""")
    stamp(14)
    for r in range(16): a(f"ds_read_b32 v{204+r}, v14 offset:{LP+544*r}")
    a(f"""v_and_b32 v14, 15, v0
    v_mul_u32_u24 v224, 24, v14
    v_add_u32 v225, 8, v224
    v_add_u32 v226, 16, v224
    v_cmp_gt_u32 vcc, 11, v14
    v_lshlrev_b32 v14, 4, v14
    v_lshrrev_b32 v15, 4, v0
    v_lshl_add_u32 v14, v15, 9, v14
    s_lshr_b32 s72, s78, 1
    s_mul_i32 s72, s72, 3072
    s_and_b32 s73, s78, 1
    s_lshl_b32 s73, s73, 8
    s_add_u32 s72, s72, s73
    v_mov_b32 v15, {OOB}
    v_cndmask_b32 v14, v15, v14, vcc
    v_cmp_gt_u32 vcc, 32, v0
    v_cndmask_b32 v15, v15, v14, vcc
    v_mov_b32 v223, s{NS}
    s_waitcnt lgkmcnt(0)""")
    for w in (4, 2, 1):
        for p in range(w): a(f"v_pk_add_f32 {v(204+2*p,2)}, {v(204+2*p,2)}, {v(204+2*p+2*w,2)}")
    a(f"""v_add_f32 v204, v204, v205
    v_mov_b32_dpp v205, v204 quad_perm:[1,0,3,2] row_mask:0xf bank_mask:0xf
    v_cvt_pk_bf16_f32 v204, v204, v205
    ds_bpermute_b32 v220, v224, v204
    ds_bpermute_b32 v221, v225, v204
    ds_bpermute_b32 v222, v226, v204
    s_waitcnt lgkmcnt(0)
    buffer_store_dwordx4 v[220:223], v14, s[48:51], s72 offen sc1
    buffer_store_dwordx4 v[220:223], v15, s[48:51], s72 offen offset:2048 sc1
    L_q_1:
    s_barrier""")
    stamp(15)
    if o["dry"]:
        a(f"""s_mov_b32 s82, 1
        s_mov_b32 s50, 0
        s_mov_b32 s{SB}, 0
        s_cmp_ge_u32 s2, 37
        s_cbranch_scc1 L_ffn
        s_branch L_wo
        L_real:
        s_mov_b32 s82, 0
        s_mov_b32 s50, {MBX}
        s_mov_b32 s{SB}, 0x40000""")
        stamp(17)
    if o["trig"]:
        if o["trig"][1] == 0: a("s_cmp_lt_u32 s2, 37\ns_cbranch_scc1 L_go")
        elif not o["xtrig"]: a("s_sub_u32 s72, s2, 28\ns_cmp_lt_u32 s72, 9\ns_cbranch_scc1 L_go")
        a(f"""s_cmp_lg_u32 s3, 0
        s_cbranch_scc1 L_go1
        s_lshl_b32 s72, s2, 7
        s_add_u32 s72, s72, {PG}
        v_min_u32 v205, {3 * o["tw"] - 1}, v0
        v_lshlrev_b32 v205, 2, v205
        L_tr:
        buffer_load_dword v204, v205, s[48:51], s72 offen sc1
        s_waitcnt vmcnt(0)
        v_cmp_eq_u32 vcc, s{NS}, v204
        s_cbranch_vccnz L_go1
        s_sleep 4""")
        spin("L_tr", SB)
        a("L_go1:\ns_barrier\nL_go:")
        stamp(16)
    a("s_cmp_ge_u32 s2, 37\ns_cbranch_scc1 L_ld_f")
    if o["xearly"]: a("s_cmp_ge_u32 s2, 28\ns_cbranch_scc1 L_wo")
    for x in wo_list(): a(x)
    if not o["xearly"]:
        a("s_cmp_lt_u32 s2, 28\ns_cbranch_scc1 L_wo")
        xw_loads()
    a(f"""L_wo:
    s_mul_i32 s83, s75, {o["r1"] * 6554}
    s_lshr_b32 s83, s83, 16
    s_mul_i32 s83, s83, {ORS}
    s_add_u32 s83, s83, {OM}
    s_mul_i32 s72, s76, 3840
    s_add_u32 s72, s72, s83
    v_lshlrev_b32 v202, 3, v0
    v_add_u32 v203, s72, v202
    v_and_b32 v14, 15, v0
    v_cmp_gt_u32 vcc, 6, v14
    v_cndmask_b32 v205, 0, 1.0, vcc
    v_min_u32 v14, 5, v14
    v_mul_u32_u24 v14, 640, v14
    v_add_u32 v204, s72, v14
    s_lshl_b32 s72, s3, 9
    s_add_u32 s72, s72, {LO}
    v_add_u32 v202, s72, v202
    v_lshlrev_b32 v206, 6, v2
    v_add_u32 v206, s72, v206
    v_lshrrev_b32 v14, 2, v0
    v_and_b32 v15, 3, v0
    v_lshlrev_b32 v14, 4, v14
    v_cmp_gt_u32 vcc, {o["r2"]}, v15
    v_mul_u32_u24 v208, {YRS}, v15
    v_mul_u32_u24 v15, 320, v15
    v_add_u32 v207, v14, v15
    v_add_u32 v14, v14, v208
    s_mul_i32 s72, s74, 2560
    s_lshl_b32 s73, s75, 8
    s_add_u32 s72, s72, s73
    s_add_u32 s72, s72, {YM}
    v_add_u32 v14, s72, v14
    v_mov_b32 v15, {OOB}
    v_cndmask_b32 v208, v15, v14, vcc""")
    if o["g2"]: a(f"""s_lshl_b32 s72, s2, 7
        s_add_u32 s72, s72, {SOON}
        v_mov_b32 v94, s{NS}
        v_lshl_add_u32 v95, v0, 2, s72
        v_cmp_gt_u32 vcc, 32, v0
        v_cndmask_b32 v95, v15, v95, vcc""")
    if SM:
        a(f"""v_bfe_u32 v14, v0, 4, 1
        v_bfe_u32 v15, v0, 3, 1
        v_lshl_add_u32 v14, v14, 2, v15
        v_lshrrev_b32 v15, 5, v0
        v_lshl_add_u32 v209, v14, 1, v15
        s_lshl_b32 s72, s3, 9
        s_add_u32 s72, s72, {LO}
        v_lshl_add_u32 v206, v209, 5, s72""")
        for r in range(252, 256): a(f"v_mov_b32 v{r}, 0")
    XW, XO, XM, XA, XT, XOA, XMA, XE, XLW, XLR, XS = 16, 40, 46, 49, 50, 52, 53, 54, 55, 56, 58
    def wo_body(ex):
        t_ = "x" if ex else ""
        if ex:
            a(f"""v_lshrrev_b32 v14, 4, v0
            v_min_u32 v14, 2, v14
            v_add_u32 v14, s79, v14
            v_min_u32 v14, 31, v14
            v_mul_u32_u24 v14, 3840, v14
            v_add_u32 v14, s83, v14
            v_and_b32 v15, 15, v0
            v_lshl_add_u32 v{XOA}, v15, 2, v14
            s_lshl_b32 s72, s3, 6
            v_add_u32 v{XOA}, s72, v{XOA}
            v_min_u32 v15, 5, v15
            v_mul_u32_u24 v15, 640, v15
            v_add_u32 v{XMA}, v14, v15
            v_and_b32 v14, 3, v0
            v_lshlrev_b32 v14, 3, v14
            v_lshrrev_b32 v{XE}, v14, s{NS}
            v_and_b32 v{XE}, 0xff, v{XE}
            s_lshl_b32 s72, s3, 8
            s_add_u32 s72, s72, {LD}
            v_lshl_add_u32 v{XLW}, v0, 2, s72
            v_lshl_add_u32 v{XLR}, {'v209, 2' if SM else 'v2, 3'}, s72
            s_cmp_lg_u32 s74, 0
            s_cbranch_scc1 L_noz
            s_cmp_lg_u32 s3, 0
            s_cbranch_scc1 L_noz""")
            for k in range(4): a(f"v_mov_b32 v{212+k}, s{TS+k}")
            a("s_mov_b32 s72, 7680\nbuffer_store_dwordx4 v[212:215], v208, s[48:51], s72 offen sc1\nL_noz:")
        if o["gate"]:
            a(f"""L_h1a{t_}:
            buffer_load_dword v210, v204, s[48:51], 0 offen offset:520 sc1
            s_waitcnt vmcnt(0)
            v_cmp_eq_u32 vcc, s{NS}, v210
            s_and_b32 s72, vcc_lo, 63
            s_bcnt1_i32_b32 s72, s72
            s_cmp_ge_u32 s72, {o["gthr"]}
            s_cbranch_scc1 L_h1{t_}""")
            spin(f"L_h1a{t_}", SB)
        a(f"L_h1{t_}:")
        SETS = [(160, 172, 40, 46), (64, 76, 80, 86), (176, 188, 192, 90)]
        def h1_issue(i):
            ob, mb, xo, xm = SETS[i]
            if i == 0: stamp(19)
            a(f"buffer_load_dwordx3 {v(mb,3)}, v204, s[48:51], 0 offen offset:512 sc1")
            if ex: a(f"buffer_load_dwordx3 {v(xm,3)}, v{XMA}, s[48:51], 0 offen offset:512 sc1")
            for c in range(6): a(f"buffer_load_dwordx2 {v(ob+2*c,2)}, v203, s[48:51], 0 offen offset:{640*c} sc1")
            if ex:
                for c in range(6): a(f"buffer_load_dword v{xo+c}, v{XOA}, s[48:51], 0 offen offset:{640*c} sc1")
        def h1_check(i):
            ob, mb, xo, xm = SETS[i]
            a(f"v_xor_b32 v{mb+2}, s{NS}, v{mb+2}")
            if ex: a(f"v_xor_b32 v{xm+2}, s{NS}, v{xm+2}")
            chk(list(range(ob, ob+12)) + (list(range(xo, xo+6)) if ex else []), [f"v{E0}", f"v{E0+1}"] * 6 + [f"v{XE}"] * 6, (14, 15))
            a(f"v_or3_b32 v14, v14, v{mb+2}, v{xm+2}" if ex else f"v_or_b32 v14, v14, v{mb+2}")
            a("v_cmp_ne_u32 vcc, 0, v14")
        def comb(m, tmp, src, n, dst):
            m0, l0 = m, m + 1; m = tmp; l = tmp + 1; D = "row_mask:0xf bank_mask:0xf"
            q_ = [f"v_max_f32_dpp v{tmp}, v{m0}, v{m0} quad_perm:[1,0,3,2] {D}", f"v_mul_f32 v{l}, v{l0}, v205",
                  f"v_max_f32_dpp v{tmp}, v{tmp}, v{tmp} quad_perm:[2,3,0,1] {D}", f"v_max_f32_dpp v{tmp}, v{tmp}, v{tmp} row_half_mirror {D}",
                  f"v_sub_f32 v{m}, v{m0}, v{tmp}", f"v_exp_f32 v{m}, v{m}", f"v_mul_f32 v{l}, v{m}, v{l}"]
            q_ += [f"v_mul_f32_dpp v{dst+e}, v{m}, v{src+e} row_newbcast:0 {D}" for e in range(n)]
            q_ += [f"v_add_f32_dpp v{l}, v{l}, v{l} quad_perm:[1,0,3,2] {D}"]
            seq = [f"v_fmac_f32_dpp v{dst+e}, v{m}, v{src+n*c+e} row_newbcast:{c} {D}" for c in range(1, 6) for e in range(n)]
            seq.insert(n, f"v_add_f32_dpp v{l}, v{l}, v{l} quad_perm:[2,3,0,1] {D}")
            seq.insert(2*n+1, f"v_add_f32_dpp v{l}, v{l}, v{l} row_half_mirror {D}")
            seq.insert(3*n+2, f"v_rcp_f32 v{l}, v{l}")
            q_ += seq
            q_ += [f"v_mul_f32_dpp v{dst+e}, v{l}, v{dst+e} row_newbcast:0 {D}" for e in range(n)]
            q_ += [f"v_cvt_pk_bf16_f32 v{dst+e}, v{dst+e}, v{dst+e}" for e in range(n)]
            return q_
        def h1_leave(i):
            ob, mb, xo, xm = SETS[i]
            stamp(3)
            A1 = comb(mb, 14, ob, 2, 224); A2 = comb(xm, XT, xo, 1, XA) if ex else []
            k2 = 0
            for k1, x in enumerate(A1):
                a(x)
                while k2 < len(A2) and k2 * len(A1) <= k1 * len(A2): a(A2[k2]); k2 += 1
            for x in A2[k2:]: a(x)
        if o["skip"]:
            ob, mb, xo, xm = SETS[0]; AC = 64
            k_, d_ = o["p1"]
            L_ = [(AC+12, f"buffer_load_dwordx3 {v(mb,3)}, v204, s[48:51], 0 offen offset:512 sc1")]
            if ex: L_ += [(AC+13, f"buffer_load_dwordx3 {v(xm,3)}, v{XMA}, s[48:51], 0 offen offset:512 sc1")]
            L_ += [(AC+c, f"buffer_load_dwordx2 {v(ob+2*c,2)}, v203, s[48:51], 0 offen offset:{640*c} sc1") for c in range(6)]
            if ex: L_ += [(AC+6+c, f"buffer_load_dword v{xo+c}, v{XOA}, s[48:51], 0 offen offset:{640*c} sc1") for c in range(6)]
            h1_issue(0)
            X2 = ex and o["x2"]
            if X2:
                a("s_mov_b32 s64, 0")
                for r in range(252, 256): a(f"v_mov_b32 v{r}, 0")
            a("s_waitcnt vmcnt(0)")
            a(f"L_h1s{t_}:\nv_xor_b32 v{AC+12}, s{NS}, v{mb+2}")
            if ex: a(f"v_xor_b32 v{AC+13}, s{NS}, v{xm+2}")
            for c in range(6): a(f"v_msad_u8 v{AC+c}, v{ob+2*c}, v{E0}, 0")
            if ex:
                for c in range(6): a(f"v_msad_u8 v{AC+6+c}, v{xo+c}, v{XE}, 0")
            for c in range(6): a(f"v_msad_u8 v{AC+c}, v{ob+2*c+1}, v{E0+1}, v{AC+c}")
            if X2:
                def tiles_(tl, waits):
                    for t, (c_, w_) in enumerate(tl):
                        if t in waits: a(f"s_waitcnt lgkmcnt({waits[t]})")
                        for r in range(4): a(f"v_and_b32 v{228+4*(t%3)+r}, v{c_}, v{M8+r}")
                        if t > 0: a(f"v_mfma_f32_16x16x32_bf16 v[252:255], {v(228+4*((t-1)%3),4)}, {v(tl[t-1][1],4)}, v[252:255]")
                    t = len(tl) - 1
                    a(f"v_mfma_f32_16x16x32_bf16 v[252:255], {v(228+4*(t%3),4)}, {v(tl[t][1],4)}, v[252:255]")
                a(f"""v_or3_b32 v14, v{AC+12}, v{AC}, v{AC+1}
                v_or3_b32 v15, v{AC+13}, v{AC+6}, v{AC+7}
                v_or3_b32 v14, v14, v{AC+2}, v{AC+3}
                v_or3_b32 v15, v15, v{AC+8}, v{AC+9}
                v_or3_b32 v14, v14, v{AC+4}, v{AC+5}
                v_or3_b32 v15, v15, v{AC+10}, v{AC+11}
                v_cmp_ne_u32 s[60:61], 0, v14
                v_cmp_ne_u32 s[62:63], 0, v15
                s_or_b64 vcc, s[60:61], s[62:63]
                s_cbranch_scc0 L_x2p""")
                for n, (r, ld) in enumerate(L_): a(f"v_cmp_ne_u32 vcc, 0, v{r}\ns_cbranch_vccz L_h1k{t_}{n}\n{ld}\nL_h1k{t_}{n}:")
                a(f"""s_sub_u32 s{SB}, s{SB}, 1
                s_cbranch_scc0 L_x2p
                s_mov_b32 s{SB}, 0
                s_waitcnt vmcnt(0)
                s_mov_b64 s[60:61], 0
                s_mov_b64 s[62:63], 0
                L_x2p:
                s_bitcmp1_b32 s64, 0
                s_cbranch_scc1 L_x2m
                s_cmp_lg_u64 s[60:61], 0
                s_cbranch_scc1 L_x2m
                s_or_b32 s64, s64, 1""")
                stamp(3)
                for x in comb(mb, 14, ob, 2, 224): a(x)
                a("ds_write_b64 v202, v[224:225]")
                if SM:
                    for k in (0, 2, 1, 3): a(f"ds_read_b128 {v(212+4*k,4)}, v206 offset:{16*(k&1)+128*(k>>1)}")
                    sm_tiles([(212+u, 220+u, WO+8*u) for u in range(8)], {0: 2, 4: 0})
                else:
                    for k in range(4): a(f"ds_read_b128 {v(212+4*k,4)}, v206 offset:{16*k}")
                    tiles_([(212+t, WO+4*t) for t in range(16)], {0: 3, 4: 2, 8: 1, 12: 0})
                a(f"""L_x2m:
                s_bitcmp1_b32 s64, 1
                s_cbranch_scc1 L_x2e
                s_cmp_lg_u64 s[62:63], 0
                s_cbranch_scc1 L_x2e
                s_or_b32 s64, s64, 2""")
                for x in comb(xm, XT, xo, 1, XA): a(x)
                a(f"ds_write_b32 v{XLW}, v{XA}")
                if SM:
                    for e in range(3): a(f"ds_read2_b32 {v(XS+2*e,2)}, v{XLR} offset0:{16*e} offset1:{16*e+4}")
                    sm_tiles([(XS+2*e, XS+2*e+1, XW+8*e) for e in range(3)], {0: 2, 1: 1, 2: 0})
                else:
                    for e in range(3): a(f"ds_read_b64 {v(XS+2*e,2)}, v{XLR} offset:{64*e}")
                    tiles_([(XS+t, XW+4*t) for t in range(6)], {0: 2, 2: 1, 4: 0})
                a(f"""L_x2e:
                s_waitcnt vmcnt(0)
                s_cmp_lg_u32 s64, 3
                s_cbranch_scc1 L_h1s{t_}""")
                return
            if ex: a(f"""v_or3_b32 v15, v{AC+6}, v{AC+7}, v{AC+8}
                v_or3_b32 v14, v{AC+9}, v{AC+10}, v{AC+11}
                v_or3_b32 v15, v15, v{AC+12}, v{AC+13}
                v_or3_b32 v14, v14, v{AC}, v{AC+1}
                v_or3_b32 v15, v15, v{AC+2}, v{AC+3}
                v_or3_b32 v14, v14, v{AC+4}, v{AC+5}
                v_or_b32 v14, v14, v15""")
            else: a(f"""v_or3_b32 v14, v{AC+12}, v{AC}, v{AC+1}
                v_or3_b32 v15, v{AC+2}, v{AC+3}, v{AC+4}
                v_or3_b32 v14, v14, v15, v{AC+5}""")
            a(f"v_cmp_ne_u32 vcc, 0, v14\ns_cbranch_vccz L_h1ok{t_}")
            stamp(19)
            if k_ == 1:
                for n, (r, ld) in enumerate(L_): a(f"v_cmp_ne_u32 vcc, 0, v{r}\ns_cbranch_vccz L_h1k{t_}{n}\n{ld}\nL_h1k{t_}{n}:")
                a("s_waitcnt vmcnt(0)")
            else:
                MS = [60, 62, 64, 66, 84, 86, 88, 90, 4, 6, 8, 10, 14, 16]
                for n, (r, ld) in enumerate(L_): a(f"v_cmp_ne_u32 s[{MS[n]}:{MS[n]+1}], 0, v{r}")
                for n, (r, ld) in enumerate(L_): a(f"s_cmp_lg_u64 s[{MS[n]}:{MS[n]+1}], 0\ns_cselect_b64 exec, -1, 0\n{ld}")
                a("s_mov_b64 exec, -1")
                if d_: a(f"s_sleep {d_}")
                a(f"s_waitcnt vmcnt({(k_-1)*len(L_)})")
            spin(f"L_h1s{t_}", SB)
            a(f"L_h1ok{t_}:")
            if o["g2"]:
                a(f"""s_cmp_lg_u32 s3, 0
                s_cbranch_scc1 L_nsoon{t_}
                buffer_store_dword v94, v95, s[48:51], 0 offen sc1
                L_nsoon{t_}:""")
            h1_leave(0)
        else: poll(f"h1p{t_}", o["p1"], 14 if ex else 7, h1_issue, h1_check, h1_leave, SB)
        a("ds_write_b64 v202, v[224:225]")
        if SM:
            for k in (0, 2, 1, 3): a(f"ds_read_b128 {v(212+4*k,4)}, v206 offset:{16*(k&1)+128*(k>>1)}")
            sm_tiles([(212+u, 220+u, WO+8*u) for u in range(8)], {0: 2, 4: 0})
            return
        if ex: a(f"ds_write_b32 v{XLW}, v{XA}")
        for k in range(4): a(f"ds_read_b128 {v(212+4*k,4)}, v206 offset:{16*k}")
        if ex:
            for e in range(3): a(f"ds_read_b64 {v(XS+2*e,2)}, v{XLR} offset:{64*e}")
        tiles = [(212+t, WO+4*t) for t in range(16)] + ([(XS+t, XW+4*t) for t in range(6)] if ex else [])
        for t, (c_, w_) in enumerate(tiles):
            if t % 4 == 0 and t <= 16: a(f"s_waitcnt lgkmcnt({max(0, 3 - t//4 + (3 if ex and t < 16 else 0))})")
            ab = 228 + 4 * (t % 3)
            for r in range(4): a(f"v_and_b32 v{ab+r}, v{c_}, v{M8+r}")
            if t > 0: a(f"v_mfma_f32_16x16x32_bf16 v[252:255], {v(228+4*((t-1)%3),4)}, {v(tiles[t-1][1],4)}, {'0' if t==1 else 'v[252:255]'}")
        t = len(tiles) - 1
        a(f"v_mfma_f32_16x16x32_bf16 v[252:255], {v(228+4*(t%3),4)}, {v(tiles[t][1],4)}, v[252:255]")
    a("s_cmp_ge_u32 s2, 28\ns_cbranch_scc0 L_wo4")
    wo_body(True)
    a("s_branch L_wo_acc\nL_wo4:")
    wo_body(False)
    a("L_wo_acc:")
    if o["xm"] == 2: a("s_mov_b32 exec_lo, 0x00ff00ff\ns_mov_b32 exec_hi, 0xff00ff00")
    a(f"""ds_write_b128 v{YW}, v[252:255]
    {'s_mov_b64 exec, -1' if o["xm"] == 2 else ''}
    s_waitcnt lgkmcnt(0)
    s_barrier""")
    stamp(4)
    a("s_cmp_lg_u32 s3, 0\ns_cbranch_scc1 L_wo_done")
    for k in range(4): a(f"ds_read_b128 {v(212+4*k,4)}, v207 offset:{LY+1280*k}")
    a(f"v_mov_b32 v{VM}, 0xff")
    a("""s_waitcnt lgkmcnt(2)
    v_pk_add_f32 v[212:213], v[212:213], v[216:217]
    v_pk_add_f32 v[214:215], v[214:215], v[218:219]
    s_waitcnt lgkmcnt(0)
    v_pk_add_f32 v[220:221], v[220:221], v[224:225]
    v_pk_add_f32 v[222:223], v[222:223], v[226:227]
    v_pk_add_f32 v[212:213], v[212:213], v[220:221]
    v_pk_add_f32 v[214:215], v[214:215], v[222:223]""")
    for dp in ("quad_perm:[1,0,3,2]", "quad_perm:[2,3,0,1]"):
        for r in range(212, 216): a(f"v_add_f32_dpp v{r}, v{r}, v{r} {dp} row_mask:0xf bank_mask:0xf")
    tag4(212, VM, TS)
    a("buffer_store_dwordx4 v[212:215], v208, s[48:51], 0 offen sc1\nL_wo_done:")
    stamp(5)
    a("""s_cmp_ge_u32 s2, 20
    s_cbranch_scc1 L_aux_end
    s_cmp_lg_u32 s3, 7
    s_cbranch_scc1 L_aux_end""")
    srd(52, 22, 1280)
    if o["dry"]: a("s_cmp_eq_u32 s82, 1\ns_cselect_b32 s54, 0, s54")
    a(f"""s_lshl_b32 s72, s2, 7
    v_mul_u32_u24 v14, 2560, v2
    v_lshl_add_u32 v14, v3, 4, v14
    v_add_u32 v14, s72, v14
    s_and_b32 s73, s2, {o['r2']-1}
    s_mul_i32 s73, s73, {YRS}
    s_add_u32 s73, s73, {YM}
    v_add_u32 v202, s73, v14
    v_mov_b32 v15, {OOB}
    v_cmp_gt_u32 vcc, 32, v0
    v_cndmask_b32 v202, v15, v202, vcc
    v_add_u32 v203, {DM}, v14
    v_add_u32 v204, {DM+61440}, v14
    v_cmp_gt_u32 vcc, 24, v0
    v_cndmask_b32 v204, v15, v204, vcc
    v_bfe_u32 v14, v0, 4, 1
    v_lshrrev_b32 v205, 5, v0
    v_lshl_add_u32 v14, v14, 1, v205
    v_lshl_add_u32 v14, v3, 2, v14
    v_lshlrev_b32 v14, 1, v14
    s_lshl_b32 s72, s2, 6
    v_add_u32 v14, s72, v14
    buffer_load_ushort v206, v14, s[28:31], 0 offen
    v_bfe_u32 v205, v0, 3, 1
    v_cmp_eq_u32 vcc, 0, v205
    v_cndmask_b32 v205, v15, v14, vcc
    s_mov_b32 s72, 20480
    s_mov_b32 s73, 40960
    s_mov_b32 s60, 0xffffff
    s_mov_b32 s61, 0
    L_ry:
    buffer_load_dwordx4 v[212:215], v202, s[48:51], 0 offen sc1
    s_waitcnt vmcnt(0)""")
    TR = [f"s{TS+k}" for k in range(4)]
    chk(range(212, 216), TR, (14, 15))
    a("v_cmp_ne_u32 vcc, 0, v14\ns_cmp_eq_u32 vcc_lo, 0\ns_cbranch_scc1 L_ryok")
    spin("L_ry", SB)
    def rs4(b):
        a(f"""v_permlane32_swap_b32 v{b}, v{b+1}
        v_permlane32_swap_b32 v{b+2}, v{b+3}
        v_add_f32 v{b}, v{b}, v{b+1}
        v_add_f32 v{b+2}, v{b+2}, v{b+3}
        v_permlane16_swap_b32 v{b}, v{b+2}
        v_add_f32 v{b}, v{b}, v{b+2}
        v_add_f32_dpp v{b}, v{b}, v{b} row_ror:8 row_mask:0xf bank_mask:0xf""")
    def canary():
        a(f"""s_cmp_lg_u32 s2, 0
        s_cbranch_scc1 L_nocan
        v_mov_b32 v14, s93
        v_lshlrev_b32 v15, 2, v0
        v_add_u32 v15, {CAN}, v15
        {'s_mov_b32 exec_hi, 0' if o["can"] else 's_mov_b64 exec, 1'}
        buffer_store_dword v14, v15, s[48:51], 0 offen sc1
        s_mov_b64 exec, -1
        L_nocan:""")
    a("L_ryok:")
    if o["can"]: canary()
    rs4(212)
    a("""v_cvt_pk_bf16_f32 v212, v212, v212
    v_lshlrev_b32 v206, 16, v206
    v_and_b32 v212, s81, v212
    v_add_f32 v212, v212, v206
    v_cvt_pk_bf16_f32 v212, v212, v212
    v_and_b32 v206, s81, v212""")
    stamp(6)
    def h3_issue(i):
        b = 96 + 16*i
        a(f"""buffer_load_dwordx4 {v(b,4)}, v203, s[48:51], 0 offen sc1
        buffer_load_dwordx4 {v(b+4,4)}, v203, s[48:51], s72 offen sc1
        buffer_load_dwordx4 {v(b+8,4)}, v203, s[48:51], s73 offen sc1
        buffer_load_dwordx4 {v(b+12,4)}, v204, s[48:51], 0 offen sc1""")
    def h3_check(i):
        b = 96 + 16*i
        chk(range(b+12, b+16), TR, (207, 208))
        chk(range(b, b+12), TR * 3, (14, 15))
        a("v_cndmask_b32 v207, 0, v207, s[60:61]\nv_or_b32 v14, v14, v207\nv_cmp_ne_u32 vcc, 0, v14")
    def h3_leave(i):
        b = 96 + 16*i
        a(f"""v_pk_add_f32 v[212:213], {v(b,2)}, {v(b+4,2)}
        v_pk_add_f32 v[220:221], {v(b+8,2)}, {v(b+12,2)}
        v_pk_add_f32 v[214:215], {v(b+2,2)}, {v(b+6,2)}
        v_pk_add_f32 v[222:223], {v(b+10,2)}, {v(b+14,2)}""")
    poll("rd", o["p3"], 4, h3_issue, h3_check, h3_leave, SB)
    a("""v_pk_add_f32 v[212:213], v[212:213], v[220:221]
    v_pk_add_f32 v[214:215], v[214:215], v[222:223]""")
    rs4(212)
    OUTP = o["outp"]
    a(f"""v_cvt_pk_bf16_f32 v212, v212, v212
    v_and_b32 v212, s81, v212
    v_add_f32 v212, v212, v206
    v_cvt_pk_bf16_f32 v212, v212, v212
    buffer_store_short v212, v205, s[52:55], 0 offen {OUTP}
""")
    if not o["can"]: canary()
    stamp(7)
    a("s_branch L_aux_end")
    DW, DR, DS = 250, 251, 201
    a("L_ld_f:")
    gu_setup()
    for x in gu_list(): a(x)
    if o["gb"]: a("s_barrier")
    DNL = dn_loads()
    a(f"""L_ffn:
    v_and_b32 v14, 15, v0
    v_lshrrev_b32 v15, 4, v0
    v_lshlrev_b32 v14, 5, v14
    v_lshl_add_u32 v14, v15, 4, v14
    s_mul_i32 s72, s3, 2688
    s_add_u32 s72, s72, {LD}
    v_add_u32 v14, s72, v14
    v_lshlrev_b32 v15, 4, v0
    v_add_u32 v15, {LDUMP}, v15
    v_cmp_gt_u32 vcc, 32, v0
    v_cndmask_b32 v{DW}, v15, v14, vcc
    v_lshrrev_b32 v14, 1, v0
    v_lshlrev_b32 v14, 4, v14
    s_lshl_b32 s72, s3, 9
    v_add_u32 v14, s72, v14
    v_and_b32 v15, 1, v0
    v_cmp_eq_u32 vcc, 0, v15
    v_mul_u32_u24 v15, 2688, v15
    v_add_u32 v{DR}, v14, v15
    s_mul_i32 s72, s77, 2560
    s_add_u32 s72, s72, {DM}
    v_add_u32 v14, s72, v14
    v_mov_b32 v15, {OOB}
    v_cndmask_b32 v{DS}, v15, v14, vcc
    """)
    def mf(t):
        ab = 228 + 4 * (t % 3)
        if SM: smf(204, ab, GU+16*t); smf(208, ab, GU+16*t+8); return
        a(f"v_mfma_f32_16x16x32_bf16 v[204:207], {v(ab,4)}, {v(GU+8*t,4)}, {'0' if t==0 else 'v[204:207]'}")
        a(f"v_mfma_f32_16x16x32_bf16 v[208:211], {v(ab,4)}, {v(GU+8*t+4,4)}, {'0' if t==0 else 'v[208:211]'}")
    if o["lnf"]:
        X5, ER, SG, SU, YA, STW, STR, HD = 96, 101, 105, 106, 107, 108, 109, 220
        D = "row_mask:0xf bank_mask:0xf"
        a(f"""s_mov_b32 s82, 0x3f803f80
        v_lshrrev_b32 v14, 2, v0""")
        if SM: a("v_mov_b32 v14, v111")
        for e in range(4): a(f"v_add_u32 v15, {e}, v14\nv_and_b32 v15, 3, v15\nv_lshlrev_b32 v15, 3, v15\nv_bfe_u32 v{ER+e}, s{NS}, v15, 8")
        a(f"""s_and_b32 s72, s2, {o['r2']-1}
        s_mul_i32 s72, s72, {YRS}
        s_add_u32 s72, s72, {YM}
        v_and_b32 v15, 3, v0
        v_mul_u32_u24 v15, 2560, v15
        v_add_u32 v15, s72, v15""")
        if o["al2"]: a(f"v_lshl_add_u32 v{YA}, v111, 4, v15\nv_lshl_add_u32 v111, v111, 2, v15")
        elif SM: a(f"v_lshl_add_u32 v{YA}, v111, 2, v15")
        else: a(f"""v_and_b32 v14, 1, v14
        v_mul_u32_u24 v14, 20, v14
        v_lshl_add_u32 v14, v12, 2, v14
        v_add_u32 v{YA}, v14, v15""")
        a(f"""
        v_lshlrev_b32 v{STR}, 3, v3
        s_lshl_b32 s72, s3, 3
        v_mov_b32 v14, s72
        v_lshlrev_b32 v15, 4, v0
        v_add_u32 v15, {LDUMP}, v15
        v_cmp_eq_u32 vcc, 63, v0
        v_cndmask_b32 v{STW}, v15, v14, vcc""")
        for r in range(4): a(f"v_and_b32 v{228+r}, s82, v{8+(r&1) if SM else M8+r}")
        if SM:
            for r in list(range(204, 212)) + list(range(DA, DA+20)): a(f"v_mov_b32 v{r}, 0")
        DL = o["dl"]
        if DL:
            a(f"s_waitcnt vmcnt({10 - DL})")
            for i in range(2):
                a(f"buffer_load_dwordx4 {v(112+6*i,4)}, v{YA}, s[48:51], 0 offen sc1\nbuffer_load_dword v{116+6*i}, v{YA}, s[48:51], 0 offen offset:16 sc1")
                for x in (DNL[:DL//2], DNL[DL//2:])[i]: a(x)
        else: a("s_waitcnt vmcnt(10)")
        if o["hp"]: a(f"buffer_load_dwordx4 v[112:115], v{YA}, s[48:51], 0 offen sc1\nbuffer_load_dword v116, v{YA}, s[48:51], 0 offen offset:16 sc1")
        if SM:
            for e in range(5): a(f"v_lshlrev_b32 v{96+e}, 16, v{96+e}")
            for t in range(5): smf(204, 228, GU+16*t); smf(208, 228, GU+16*t+8)
        if o["al2"]: a("v_lshlrev_b32 v96, 16, v98\nv_and_b32 v97, s81, v98\nv_lshlrev_b32 v98, 16, v99\nv_and_b32 v99, s81, v99\nv_lshlrev_b32 v100, 16, v100")
        for t in range(0 if SM else 10):
            a(f"v_mfma_f32_16x16x32_bf16 v[204:207], v[228:231], {v(GU+8*t,4)}, {'0' if t==0 else 'v[204:207]'}")
            a(f"v_mfma_f32_16x16x32_bf16 v[208:211], v[228:231], {v(GU+8*t+4,4)}, {'0' if t==0 else 'v[208:211]'}")
        a(f"""ds_write_b128 v{PW}, v[204:207]
        ds_write_b128 v{PW}, v[208:211] offset:256
        s_waitcnt lgkmcnt(0)
        s_barrier""")
        psum()
        a(f"v_mov_b32 v{SG}, v204\nv_mov_b32 v{SU}, v206")
        if SM:
            for r in range(204, 212): a(f"v_mov_b32 v{r}, 0")
        if o["g2"]:
            a(f"""s_cmp_lg_u32 s3, 0
            s_cbranch_scc1 L_g2ok
            v_min_u32 v14, 36, v0
            v_lshlrev_b32 v14, 7, v14
            v_add_u32 v14, {SOON}, v14
            L_g2:
            buffer_load_dword v15, v14, s[48:51], 0 offen sc1
            s_waitcnt vmcnt(0)
            v_cmp_eq_u32 vcc, s{NS}, v15
            s_and_b32 vcc_hi, vcc_hi, 31
            s_bcnt1_i32_b64 s72, vcc
            s_cmp_ge_u32 s72, {o["g2"]}
            s_cbranch_scc1 L_g2ok""")
            spin("L_g2", SB)
            a("L_g2ok:")
        a("s_barrier")
        def h2_issue(i):
            b = 112 + 6*i
            a(f"buffer_load_dwordx4 {v(b,4)}, v{YA}, s[48:51], 0 offen sc1")
            if o["al2"]: a(f"buffer_load_dword v{b+4}, v111, s[48:51], 0 offen offset:2048 sc1")
            else: a(f"buffer_load_dword v{b+4}, v{YA}, s[48:51], 0 offen offset:16 sc1")
        def h2_check(i):
            b = 112 + 6*i
            chk(range(b, b+5), TR + [f"v{ER}"] if o["al2"] else [f"v{ER+(e&3)}" for e in range(5)], (14, 15))
            a("v_cmp_ne_u32 vcc, 0, v14")
        def h2_leave(i):
            b = 112 + 6*i
            stamp(6)
            for e in range(5): a(f"v_add_f32_dpp v{212+e}, v{b+e}, v{b+e} quad_perm:[1,0,3,2] {D}")
        if DL:
            for i in range(2):
                a(f"s_waitcnt vmcnt({(DL + 2, DL - DL//2)[i]})"); h2_check(i); a(f"s_cbranch_vccz L_h2ok{i}")
        poll("h2", o["p2"], 2, h2_issue, h2_check, h2_leave, SB, 1 if o["hp"] else 0)
        for e in range(5): a(f"v_add_f32_dpp v{212+e}, v{212+e}, v{212+e} quad_perm:[2,3,0,1] {D}")
        a(f"""v_cvt_pk_bf16_f32 v218, v212, v213
        v_cvt_pk_bf16_f32 v219, v214, v215
        v_cvt_pk_bf16_f32 v216, v216, v216
        v_lshlrev_b32 v212, 16, v218
        v_and_b32 v213, s81, v218
        v_lshlrev_b32 v214, 16, v219
        v_and_b32 v215, s81, v219
        v_and_b32 v216, s81, v216""")
        for e in range(5): a(f"v_add_f32 v{212+e}, v{212+e}, v{X5+e}")
        for e in range(5): a(f"v_cvt_pk_bf16_f32 v{HD+e}, v{212+e}, v{212+e}")
        stamp(9)
        st = []
        for e in range(5): st += [f"v_dot2_f32_bf16 v226, v{HD+e}, s82, {'0' if e == 0 else 'v226'}", f"v_dot2_f32_bf16 v227, v{HD+e}, v{HD+e}, {'0' if e == 0 else 'v227'}"]
        for dp in ("row_half_mirror row_mask:0xf", "row_mirror row_mask:0xf", "row_bcast:15 row_mask:0xa", "row_bcast:31 row_mask:0xc"):
            st += [f"v_add_f32_dpp v226, v226, v226 {dp} bank_mask:0xf", f"v_add_f32_dpp v227, v227, v227 {dp} bank_mask:0xf"]
        st += [f"ds_write_b64 v{STW}, v[226:227]"]
        NT = 5 if SM else 10
        for t in range(NT):
            ab = 228 + 4 * (t % 3)
            for r in range(4):
                if SM: a(f"v_and_b32 v{ab+r}, v{HD+t}, v{8+(r&1)}" if r in (0, 3) else f"v_and_b32_dpp v{ab+r}, v{HD+t}, v{8+(r&1)} row_half_mirror {D}")
                elif (r < 2) == (t < 5): a(f"v_and_b32 v{ab+r}, v{HD+t%5}, v{M8+r}")
                else: a(f"v_and_b32_dpp v{ab+r}, v{HD+t%5}, v{M8+r} row_half_mirror {D}")
            if t > 0:
                mf(t - 1)
                for _ in range(4 if SM else 2):
                    if st: a(st.pop(0))
        mf(NT - 1)
        for x in st: a(x)
        if o["xm"] == 2: a("s_mov_b32 exec_lo, 0x00ff00ff\ns_mov_b32 exec_hi, 0xff00ff00")
        a(f"""ds_write_b128 v{PW}, v[204:207]
        ds_write_b128 v{PW}, v[208:211] offset:256
        {'s_mov_b64 exec, -1' if o["xm"] == 2 else ''}
        s_waitcnt lgkmcnt(0)
        s_barrier""")
        stamp(10)
        a(f"""ds_read_b64 v[212:213], v{STR}
        ds_read2st64_b32 v[204:205], v{PR} offset0:0 offset1:17
        ds_read2st64_b32 v[206:207], v{PR} offset0:1 offset1:18
        s_waitcnt lgkmcnt(2)""")
        DP = ("quad_perm:[1,0,3,2]", "quad_perm:[2,3,0,1]", "row_half_mirror")
        for dp in DP: a(f"v_add_f32_dpp v212, v212, v212 {dp} {D}\nv_add_f32_dpp v213, v213, v213 {dp} {D}")
        a(f"""v_mul_f32 v212, {f2u(1/1280)}, v212
        v_mul_f32 v213, {f2u(1/1280)}, v213
        s_waitcnt lgkmcnt(0)
        v_fma_f32 v213, -v212, v212, v213
        v_add_f32 v204, v204, v205
        v_max_f32 v213, 0, v213
        v_add_f32 v206, v206, v207
        v_cvt_pk_bf16_f32 v212, v212, v213
        v_add_f32_dpp v204, v204, v204 {DP[0]} {D}
        v_and_b32 v213, s81, v212
        v_add_f32_dpp v206, v206, v206 {DP[0]} {D}
        v_add_f32 v213, {f2u(1e-5)}, v213
        v_add_f32_dpp v204, v204, v204 {DP[1]} {D}
        v_cvt_pk_bf16_f32 v213, v213, v213
        v_add_f32_dpp v206, v206, v206 {DP[1]} {D}
        v_and_b32 v213, s81, v213
        v_add_f32_dpp v204, v204, v204 {DP[2]} {D}
        v_sqrt_f32 v213, v213
        v_add_f32_dpp v206, v206, v206 {DP[2]} {D}
        v_lshlrev_b32 v212, 16, v212
        v_cvt_pk_bf16_f32 v213, v213, v213
        v_fma_f32 v204, -v212, v{SG}, v204
        v_and_b32 v213, s81, v213
        v_fma_f32 v206, -v212, v{SU}, v206
        v_rcp_f32 v213, v213
        v_mul_f32 v204, v204, v213
        v_mul_f32 v206, v206, v213""")
    else:
        a(f"""s_waitcnt vmcnt(0)
        s_cmp_ge_u32 s3, 5
        s_cbranch_scc1 L_lng_bar
        v_lshlrev_b32 v14, 1, v13
        s_and_b32 s72, s2, {o['r2']-1}
        s_mul_i32 s72, s72, {YRS}
        s_add_u32 s72, s72, {YM}
        v_add_u32 v14, s72, v14
        s_mov_b32 s72, 5120
        L_h2:
        buffer_load_dwordx2 v[212:213], v14, s[48:51], 0 offen sc1
        buffer_load_dwordx2 v[214:215], v14, s[48:51], 0 offen offset:2560 sc1
        buffer_load_dwordx2 v[216:217], v14, s[48:51], s72 offen sc1
        buffer_load_dwordx2 v[218:219], v14, s[48:51], s72 offen offset:2560 sc1
        s_waitcnt vmcnt(0)""")
        chk(range(212, 220), [f"v{E0}", f"v{E0+1}"] * 4, (15, 202))
        a("v_cmp_ne_u32 vcc, 0, v15\ns_cbranch_vccz L_h2ok")
        spin("L_h2", SB)
        a("L_h2ok:")
        stamp(6)
        a("""v_pk_add_f32 v[212:213], v[212:213], v[214:215]
        v_pk_add_f32 v[216:217], v[216:217], v[218:219]
        v_lshlrev_b32 v202, 16, v200
        v_pk_add_f32 v[212:213], v[212:213], v[216:217]
        v_and_b32 v203, s81, v200
        v_cvt_pk_bf16_f32 v212, v212, v213
        v_lshlrev_b32 v214, 16, v212
        v_and_b32 v215, s81, v212
        v_pk_add_f32 v[202:203], v[202:203], v[214:215]
        v_cvt_pk_bf16_f32 v212, v202, v203
        v_lshlrev_b32 v202, 16, v212
        v_and_b32 v203, s81, v212""")
        a(f"""    ds_write_b64 v{HW}, v[202:203]
        s_waitcnt lgkmcnt(0)
        L_lng_bar:
        s_barrier
        v_mov_b32 v14, 0
        ds_read_b128 v[204:207], v{HS}
        ds_read_b32 v214, v14
        ds_read_b128 v[208:211], v{HS} offset:16
        ds_read_b64 v[212:213], v{HS} offset:32
        ds_read_b128 v[216:219], v{HC}
        ds_read_b128 v[220:223], v{HC} offset:16
        ds_read_b64 v[224:225], v{HC} offset:32""")
        stamp(8)
        a("s_waitcnt lgkmcnt(3)")
        ln("s_waitcnt lgkmcnt(0)")
        stamp(9)
        def mf(t):
            ab = 228 + 4 * (t % 3)
            a(f"v_mfma_f32_16x16x32_bf16 v[204:207], {v(ab,4)}, {v(GU+8*t,4)}, {'0' if t==0 else 'v[204:207]'}")
            a(f"v_mfma_f32_16x16x32_bf16 v[208:211], {v(ab,4)}, {v(GU+8*t+4,4)}, {'0' if t==0 else 'v[208:211]'}")
        for t in range(10):
            ab = 228 + 4 * (t % 3)
            for r in range(4): a(f"v_and_b32 v{ab+r}, v{216+t}, v{M8+r}")
            if t > 0: mf(t - 1)
        mf(9)
        a(f"""ds_write_b128 v{PW}, v[204:207]
        ds_write_b128 v{PW}, v[208:211] offset:256
        s_waitcnt lgkmcnt(0)
        s_barrier""")
        stamp(10)
        psum()
    a(f"""
    v_cvt_pk_bf16_f32 v204, v204, v206
    v_lshlrev_b32 v205, 16, v204
    v_and_b32 v206, s81, v204
    v_mul_f32 v207, v205, v205
    v_fmaak_f32 v207, v207, v{CG2}, {f2u(g1)}
    v_mul_f32 v207, v207, v205
    v_exp_f32 v207, v207
    v_add_f32 v207, 1.0, v207
    v_rcp_f32 v207, v207
    v_mul_f32 v207, v207, v205
    v_cvt_pk_bf16_f32 v207, v207, v207
    v_and_b32 v207, s81, v207
    v_mul_f32 v207, v207, v206
    v_cvt_pk_bf16_f32 v207, v207, v207""")
    if SM:
        for r in range(4): a(f"v_and_b32_dpp v{228+r}, v207, v{8+(r&1)} row_newbcast:{8*(r>>1)} row_mask:0xf bank_mask:0xf")
        if o["dl"]: a("s_waitcnt vmcnt(0)")
        for b in range(5): smf(DA+4*b, 228, DN+8*b)
    for t in range(0 if SM else 2):
        for r in range(4): a(f"v_and_b32_dpp v{228+4*t+r}, v207, v{M4+r} row_newbcast:{8*t} row_mask:0xf bank_mask:0xf")
    for t in range(0 if SM else 2):
        for b in range(5): a(f"v_mfma_f32_16x16x32_bf16 {v(208+4*b,4)}, {v(228+4*t,4)}, {v(DN+20*t+4*b,4)}, {'0' if t==0 else v(208+4*b,4)}")
    if o["xm"]: a("s_mov_b32 exec_hi, 0")
    for b in range(5): a(f"ds_write_b128 v{DW}, {v(DA+4*b,4)} offset:{512*b}")
    if o["xm"]: a("s_mov_b32 exec_hi, -1")
    a("s_waitcnt lgkmcnt(0)\ns_barrier")
    stamp(11)
    a("s_cmp_ge_u32 s3, 5\ns_cbranch_scc1 L_aux_end")
    for k in range(4): a(f"ds_read_b128 {v(212+4*k,4)}, v{DR} offset:{LD+5376*k}")
    a(f"v_mov_b32 v{VM}, 0xff")
    a("""s_waitcnt lgkmcnt(2)
    v_pk_add_f32 v[212:213], v[212:213], v[216:217]
    v_pk_add_f32 v[214:215], v[214:215], v[218:219]
    s_waitcnt lgkmcnt(0)
    v_pk_add_f32 v[220:221], v[220:221], v[224:225]
    v_pk_add_f32 v[222:223], v[222:223], v[226:227]
    v_pk_add_f32 v[212:213], v[212:213], v[220:221]
    v_pk_add_f32 v[214:215], v[214:215], v[222:223]""")
    for r in range(212, 216): a(f"v_add_f32_dpp v{r}, v{r}, v{r} quad_perm:[1,0,3,2] row_mask:0xf bank_mask:0xf")
    tag4(212, VM, TS)
    a(f"buffer_store_dwordx4 v[212:215], v{DS}, s[48:51], 0 offen sc1")
    stamp(12)
    a("L_aux_end:")
    if o["dry"]: a("s_cmp_eq_u32 s82, 1\ns_cbranch_scc1 L_real")
    stamp_out()
    a("s_endpgm")
    head = open(f"cdna_kernels/{KN}.s.ref").read().split("; Override launch")[0] if o["hdr"] else ""
    return finish(o, head, a.text(), LDS_SIZE)
def kd(name, vg):
    return f""".p2align 6
.amdhsa_kernel {name}
  .amdhsa_next_free_vgpr {vg}
  .amdhsa_next_free_sgpr 102
  .amdhsa_accum_offset {vg}
  .amdhsa_group_segment_fixed_size 0
  .amdhsa_kernarg_size 96
  .amdhsa_user_sgpr_count 2
  .amdhsa_user_sgpr_kernarg_segment_ptr 1
  .amdhsa_system_sgpr_workgroup_id_x 1
.end_amdhsa_kernel
"""
def diag_kernel(k, w0, w1, K, op, nw=2048):
    self_ = op == "self"
    if self_: op = "max"
    init = "0" if op == "max" else "-1"
    return f""".globl diag_kernel
.p2align 8
.type diag_kernel,@function
diag_kernel:
s_memrealtime s[20:21]
s_cmp_lg_u32 s2, 0
s_cbranch_scc1 LD_end
s_load_dwordx2 s[4:5], s[0:1], 88
s_waitcnt lgkmcnt(0)
s_add_u32 s4, s4, {STAMP_OFF}
s_addc_u32 s5, s5, 0
s_mov_b32 s6, 0x100000
s_mov_b32 s7, 0x20000
v_mov_b32 v1, -1
v_mov_b32 v2, {init}
v_mov_b32 v8, {init}
v_mov_b32 v3, v0
s_mov_b32 s8, 0
s_mov_b32 s12, {w0}
s_mov_b32 s13, {w1}
LD_l:
v_lshlrev_b32 v4, 8, v3
buffer_load_dword v5, v4, s[4:7], 0 offen sc1
buffer_load_dword v6, v4, s[4:7], 0 offen offset:{4*k} sc1
s_waitcnt vmcnt(0)
v_min_u32 v1, v1, v5
v_cmp_le_u32 vcc, s12, v3
s_nop 4
v_cndmask_b32 v6, v8, v6, vcc
v_cmp_gt_u32 vcc, s13, v3
s_nop 4
v_cndmask_b32 v6, v8, v6, vcc
v_cmp_ne_u32 vcc, 0, v6
s_nop 4
v_cndmask_b32 v6, v8, v6, vcc
v_{op}_u32 v2, v2, v6
v_add_u32 v3, 64, v3
s_add_u32 s8, s8, 1
s_cmp_lt_u32 s8, {nw//64}
s_cbranch_scc1 LD_l
s_mov_b32 s8, 0
s_mov_b32 s9, -1
s_mov_b32 s10, {init}
LD_r:
s_nop 4
v_readlane_b32 s11, v1, s8
v_readlane_b32 s14, v2, s8
s_nop 4
s_min_u32 s9, s9, s11
s_{op}_u32 s10, s10, s14
s_add_u32 s8, s8, 1
s_cmp_lt_u32 s8, 64
s_cbranch_scc1 LD_r
{"s_mov_b32 s10, s20" if self_ else ""}
s_sub_u32 s10, s10, s9
s_min_u32 s10, s10, 20000
s_mul_i32 s10, s10, {K}
s_memrealtime s[16:17]
s_waitcnt lgkmcnt(0)
LD_s:
s_memrealtime s[18:19]
s_waitcnt lgkmcnt(0)
s_sub_u32 s18, s18, s16
s_cmp_lt_u32 s18, s10
s_cbranch_scc1 LD_s
LD_end:
s_endpgm
"""
def finish(o, head, text, lds, grid=256, blk=512, vg=256):
    if o["diag"]:
        L = f"; @launch kernel={KN}_kernel grid=({grid},1,1) block=({blk},1,1) lds={lds}\n; @launch kernel=diag_kernel grid=(1,1,1) block=(64,1,1) lds=0\n"
        text = text + diag_kernel(*o["diag"]); extra = kd("diag_kernel", 16)
    elif o.get("pre") or o.get("post"):
        L = f"; @launch kernel={KN}_kernel grid=({grid},1,1) block=({blk},1,1) lds={lds}\n"
        e = lambda n, g, b, l: f"; @launch kernel=empty_kernel grid=({g},1,1) block=({b},1,1) lds={l}\n" * n
        if o.get("pre"): L = e(*o["pre"]) + L
        if o.get("post"): L = L + e(*o["post"])
        text = text + ".globl empty_kernel\n.p2align 8\n.type empty_kernel,@function\nempty_kernel:\ns_endpgm\n"; extra = kd("empty_kernel", o.get("evg", 16))
    else:
        L = f"; @launch grid=({grid},1,1) block=({blk},1,1) lds={lds}\n"; extra = ""
    return head + L + f""".amdgcn_target "amdgcn-amd-amdhsa--gfx950"
.text
.globl {KN}_kernel
.p2align 8
.type {KN}_kernel,@function
""" + text + '.section .rodata,"a"\n' + kd(KN + "_kernel", vg) + extra
def _old(a, head):
    return head + f"""; @launch grid=(256,1,1) block=(512,1,1) lds={LDS_SIZE}
.amdgcn_target "amdgcn-amd-amdhsa--gfx950"
.text
.globl {KN}_kernel
.p2align 8
.type {KN}_kernel,@function
""" + a.text() + f""".section .rodata,"a"
.p2align 6
.amdhsa_kernel {KN}_kernel
  .amdhsa_next_free_vgpr 256
  .amdhsa_next_free_sgpr 102
  .amdhsa_accum_offset 256
  .amdhsa_group_segment_fixed_size 0
  .amdhsa_kernarg_size 96
  .amdhsa_user_sgpr_count 2
  .amdhsa_user_sgpr_kernarg_segment_ptr 1
  .amdhsa_system_sgpr_workgroup_id_x 1
.end_amdhsa_kernel
"""
if __name__ == "__main__":
    kw = {}
    out = f"cdna_kernels/{KN}.s"
    for x in sys.argv[1:]:
        k, val = x.split("=", 1)
        if k == "out": out = val
        else: kw[k] = eval(val)
    open(out, "w").write(gen(**kw))
```

```python
import sys, struct
sys.path.insert(0, "exp")
from asmlib import *
KN = "sequential_preLN__gqa_block_cached__glu_gated_geglu__decode"
def f2u(x): return "0x%08x" % struct.unpack("<I", struct.pack("<f", x))[0]
LOG2E = 1.4426950408889634
QM, CAN, DM, PG, OM, YM, MBX = 0, 98304, 98432, 167552, 178176, 1161216, 1211008
SOON, CNT = 1202176, 1206912
ORS, YRS = 122880, 10240
OOB = 0x80000000
STAMP_OFF = 128 << 20
LH, LP, LO, LY, LD, LDUMP, LDS_SIZE = 0, 3072, 11776, 15872, 20992, 42496, 46592
DEF = dict(kv="nt", wt="nt", kbar=False, stamps=False, gate=True, hdr=True, shots=[(0,40),(1,32),(2,24),(3,12)], prio=0, il=2, diag=None, one=False, gthr=1, dry=False, adry=False, thr=0, tail=8, stag=0, trig=None, xearly=False, nv=24, vpos=1, outp="", lnf=False, p1=(1,0), p2=(1,0), p3=(1,0), skip=False, g2=0, r1=1, r2=1, mlf=False, al2=False, can=False, xtrig=False, dyn=0, d2=0, pos=1, pf=None, thr5=0, tw=1, x2=False, xm=False, sm=False, hp=False, dl=0, gb=False, rot=0, lb=False, bal=None)
def gen(**kw):
    o = dict(DEF); o.update(kw)
    a = A()
    KV = o["kv"]; WT = o["wt"]
    def stamp(k):
        if o["stamps"] is True or (o["stamps"] and k in o["stamps"]): a(f"s_memrealtime s[100:101]\ns_waitcnt lgkmcnt(0)\nv_writelane_b32 v1, s100, {k}")
    def stamp_out():
        if o["stamps"]:
            a(f"""s_add_u32 s96, s26, {STAMP_OFF}
            s_addc_u32 s97, s27, 0
            s_mov_b32 s98, 0x100000
            s_mov_b32 s99, 0x20000
            s_lshl_b32 s94, s2, 3
            s_add_u32 s94, s94, s3
            s_lshl_b32 s94, s94, 8
            s_mov_b64 exec, -1
            v_lshlrev_b32 v2, 2, v0
            buffer_store_dword v1, v2, s[96:99], s94 offen""")
    def srd(d, b, n, add=None):
        if add is None: a(f"s_mov_b32 s{d}, s{b}\ns_mov_b32 s{d+1}, s{b+1}")
        else: a(f"s_add_u32 s{d}, s{b}, {add}\ns_addc_u32 s{d+1}, s{b+1}, 0")
        a(f"s_mov_b32 s{d+2}, {n}\ns_mov_b32 s{d+3}, 0x20000")
    def spin(lbl, sb):
        a(f"s_sub_u32 s{sb}, s{sb}, 1\ns_cbranch_scc0 {lbl}\ns_mov_b32 s{sb}, 0")
    def poll(name, kd, n, issue, check, leave, sb, pre=0):
        k, d = kd
        for i in range(k):
            if i < pre: continue
            if i == k - 1: a(f"L_{name}:")
            issue(i)
            if d and k > 1: a(f"s_sleep {d}")
        for i in range(k):
            a(f"s_waitcnt vmcnt({(k-1)*n})"); check(i)
            a(f"s_cbranch_vccz L_{name}ok{i}")
            if i < k - 1:
                issue(i)
                if d: a(f"s_sleep {d}")
        spin(f"L_{name}", sb)
        for i in reversed(range(k)):
            a(f"L_{name}ok{i}:"); leave(i)
            if i > 0: a(f"s_branch L_{name}j")
        a(f"L_{name}j:")
    def nonce(N, T):
        a(f"""s_or_b32 s{N}, s{N}, 0x01010101
        s_add_u32 s{N}, s{N}, 1
        s_or_b32 s{N}, s{N}, 0x01010101
        s_and_b32 s{T}, s{N}, 0xff
        s_bfe_u32 s{T+1}, s{N}, 0x80008
        s_bfe_u32 s{T+2}, s{N}, 0x80010
        s_lshr_b32 s{T+3}, s{N}, 24""")
    def tag4(r, vm, T):
        for k in range(4): a(f"v_bfi_b32 v{r+k}, v{vm}, s{T+k}, v{r+k}")
    def chk(regs, refs, acc):
        for n, (r, f) in enumerate(zip(regs, refs)):
            d = acc[n % 2]
            a(f"v_msad_u8 v{d}, v{r}, {f}, {'0' if n < 2 else 'v%d' % d}")
        a(f"v_or_b32 v{acc[0]}, v{acc[0]}, v{acc[1]}")
    def masks(dst, andm, t0, t1):
        a(f"""v_and_b32 v{t0}, 1, v0
        v_lshlrev_b32 v{t0}, 4, v{t0}
        v_mov_b32 v{t1}, 0xffff
        v_lshlrev_b32 v{t0}, v{t0}, v{t1}
        v_and_b32 v{t1}, {andm}, v0
        v_lshrrev_b32 v{t1}, 1, v{t1}""")
        for r in range(4):
            a(f"v_cmp_eq_u32 vcc, {r}, v{t1}\nv_cndmask_b32 v{dst+r}, 0, v{t0}, vcc")
    a(f"{KN}_kernel:")
    if o["stamps"]: a("s_memrealtime s[100:101]")
    a("""s_cmp_ge_u32 s2, 256
    s_cbranch_scc1 L_end
    s_load_dwordx16 s[4:19], s[0:1], 0
    s_load_dwordx8 s[20:27], s[0:1], 64
    v_lshrrev_b32 v2, 6, v0
    v_and_b32 v0, 63, v0
    v_readfirstlane_b32 s3, v2""")
    if o["rot"]: a(f"s_add_u32 s2, s2, {o['rot']}\ns_and_b32 s2, s2, 255")
    a("""s_cmp_lt_u32 s2, 64
    s_cbranch_scc1 L_aux""")
    for i in range(192): assert (i * 171) >> 10 == i // 6
    K0, V0, AQ, DQ, ACC, MK, S0 = 16, 112, 208, 224, 248, 4, 8
    D2 = o["d2"]; DY = o["dyn"] or D2
    if DY: tile0 = """s_mul_i32 s39, s38, 40
    s_mul_i32 s42, s3, 5
    s_add_u32 s39, s39, s42
    s_sub_u32 s89, 240, s39
    s_lshl_b32 s90, s37, 7
    s_add_u32 s90, s90, %d""" % CNT
    else:
      BAL = {"A": [3,3,3,3,2,2, 2,2,3,3,3,3, 2,2,3,3,3,3, 3,3,2,2,3,3], "B": [4,4,3,3,1,1, 2,2,3,3,3,3, 1,1,3,3,4,4, 4,4,1,1,3,3],
             "C": [3,3,4,4,1,1, 2,2,3,3,3,3, 2,2,3,3,3,3, 3,3,2,2,3,3]}.get(o["bal"])
      if BAL:
        assert all(sum(BAL[6*h_:6*h_+6]) == 16 for h_ in range(4))
        by = [BAL[j_] | sum(BAL[j_-j_%6:j_]) << 3 for j_ in range(24)]
        dw = [sum(by[4*k_+e_] << (8*e_) for e_ in range(4)) for k_ in range(6)]
        sel = "\n".join(f"s_cmp_eq_u32 s41, {k_}\ns_cselect_b32 s40, {dw[k_]}, s40" for k_ in range(1, 6))
        first = f"""s_and_b32 s41, s37, 3
        s_mul_i32 s41, s41, 6
        s_add_u32 s41, s41, s38
        s_and_b32 s42, s41, 3
        s_lshl_b32 s42, s42, 3
        s_lshr_b32 s41, s41, 2
        s_mov_b32 s40, {dw[0]}
        {sel}
        s_lshr_b32 s40, s40, s42
        s_bfe_u32 s41, s40, 0x50003
        s_and_b32 s40, s40, 7
        s_mul_i32 s39, s38, 40
        s_add_u32 s39, s39, s41"""
      else: first = """s_mul_i32 s39, s38, 43
    s_cmp_eq_u32 s38, 5
    s_cselect_b32 s40, 1, 0
    s_sub_u32 s39, s39, s40
    s_cmp_lt_u32 s38, 4
    s_cselect_b32 s40, 3, 2"""
      tile0 = f"""{first}
    s_min_u32 s41, s3, s40
    s_mul_i32 s42, s3, 5
    s_add_u32 s39, s39, s41
    s_add_u32 s39, s39, s42
    s_cmp_lt_u32 s3, s40
    s_cselect_b32 s41, 0, 1
    s_cselect_b32 s43, 0, {OOB}
    s_cselect_b32 s44, 0, 0xff800000
    s_sub_u32 s39, s39, s41"""
    LQ = 5632
    a(f"""s_sub_u32 s36, s2, 64
    s_mul_i32 s37, s36, 171
    s_lshr_b32 s37, s37, 10
    s_mul_i32 s38, s37, 6
    s_sub_u32 s38, s36, s38
    {tile0}
    s_lshl_b32 s39, s39, 12
    s_lshl_b32 s42, s37, 20
    s_add_u32 s39, s39, s42
    v_bfe_u32 v2, v0, 2, 2
    v_lshrrev_b32 v3, 4, v0
    v_and_b32 v4, 3, v0
    v_lshlrev_b32 v2, 8, v2
    v_lshlrev_b32 v4, 4, v4
    v_lshl_add_u32 v2, v3, 6, v2
    v_add3_u32 v252, v2, v4, s39
    v_and_b32 v4, 15, v0
    v_lshlrev_b32 v3, 10, v3
    v_lshlrev_b32 v4, 4, v4
    v_add3_u32 v254, v3, v4, s39
    {"" if DY else "v_or_b32 v253, s43, v252"}
    {"" if DY else "v_or_b32 v255, s43, v254"}
    v_mov_b32 v2, 0
    v_mov_b32 v3, 0
    v_lshlrev_b32 v4, 3, v0
    ds_write_b64 v4, v[2:3] offset:{LQ}
    s_waitcnt lgkmcnt(0)
    {"" if o["lb"] else "s_barrier"}""")
    if o["stamps"]: a("v_mov_b32 v1, 0\nv_writelane_b32 v1, s100, 0")
    a(f"s_load_dword s84, s[26:27], {CAN}")
    srd(28, 6, 1 << 25); srd(32, 8, 1 << 25)
    if o["prio"]: a(f"s_cmp_lg_u32 s3, 0\ns_cbranch_scc1 L_noprio\ns_setprio {o['prio']}\nL_noprio:")
    for s_ in range(1, 6): a(f"s_mov_b32 s{15+s_}, {4096*(s_-1 if DY else s_)}")
    NV = o["nv"]; TH = o["thr"]; SG = o["stag"]
    KL = [f"buffer_load_dwordx4 {v(K0+16*sl+4*t,4)}, {'v253' if sl==0 else 'v252'}, s[28:31], {'0' if sl==0 else 's%d'%(15+sl)} offen offset:{1024*t} {KV}" for sl in range(6) for t in range(4)]
    VL = [f"buffer_load_dwordx4 {v(V0+16*sl+4*t,4)}, {'v255' if sl==0 else 'v254' if D2 else 'v248'}, s[32:35], {'0' if sl==0 else 's%d'%(15+sl)} offen offset:{256*t} {KV}" for sl in range(6) for t in range(4)]
    assert NV >= 4
    a("v_mov_b32 v248, v254")
    srd(12, 26, MBX)
    def progress(n, done=False):
        if o["trig"] and n in o["trig"][1:]:
            a(f"s_cmp_lg_u32 s3, {o['trig'][0]}\ns_cbranch_scc1 L_notrig{n}")
            if o["trig"][1] != o["trig"][2]: a(f"s_cmp_{'ge' if n == o['trig'][1] else 'lt'}_u32 s2, 175\ns_cbranch_scc1 L_notrig{n}")
            if n < 100 and not done: a("s_waitcnt lgkmcnt(0)\ns_or_b32 s22, s84, 0x01010101\ns_add_u32 s22, s22, 1\ns_or_b32 s22, s22, 0x01010101")
            else: a("s_mov_b32 s22, s84")
            a(f"""s_sub_u32 s24, s2, 64
            s_mul_i32 s23, s24, 171
            s_lshr_b32 s23, s23, 9
            s_mul_i32 s25, s23, 3
            s_sub_u32 s24, s24, s25
            s_cmp_ge_u32 s23, 37
            s_cselect_b32 s25, 37, 0
            s_sub_u32 s23, s23, s25
            s_cmp_eq_u32 s25, 0
            s_cselect_b32 s91, {37 // o["tw"]}, {27 // o["tw"]}
            v_mov_b32 v2, s23
            v_mad_u32_u24 v2, v0, s91, v2
            s_cselect_b32 s91, 37, 27
            v_subrev_u32 v3, s91, v2
            v_min_u32 v2, v2, v3
            v_add_u32 v2, s25, v2
            v_lshlrev_b32 v2, 7, v2
            v_mad_u32_u24 v3, v0, 12, v2
            s_lshl_b32 s24, s24, 2
            s_add_u32 s24, s24, {PG}
            v_add_u32 v3, s24, v3
            v_mov_b32 v2, s22
            s_mov_b64 exec, {(1 << o["tw"]) - 1}
            buffer_store_dword v2, v3, s[12:15], 0 offen sc1
            s_mov_b64 exec, -1
            L_notrig{n}:""")
    for i_ in range(192): assert (i_ * 171) >> 9 == i_ // 3
    def set_s():
        a(f"""s_lshl_b32 s5, s36, 9
        s_add_u32 s10, s26, s5
        s_addc_u32 s11, s27, 0
        s_mov_b32 s4, 0x100000
        {"" if DY else "s_mov_b32 s5, s44"}
        s_mul_i32 s6, s36, 640
        s_add_u32 s6, s6, {OM}
        s_mul_i32 s7, s3, 544
        s_mov_b32 s8, {f2u(LOG2E)}
        s_mov_b32 s9, 0x3db504f3
        s_mov_b32 s21, 0xffff0000
        """)
    def set_late():
        if not D2: masks(MK, 15, 2, 3)
        a(f"""v_and_b32 v2, 15, v0
        v_lshrrev_b32 v3, 4, v0
        v_lshlrev_b32 v2, 5, v2
        v_lshl_add_u32 v2, v3, 4, v2
        v_add_u32 v2, s7, v2
        v_lshlrev_b32 v3, 4, v0
        v_add_u32 v3, 4352, v3
        v_cmp_gt_u32 vcc, 32, v0
        v_cndmask_b32 v252, v3, v2, vcc
        s_add_u32 s22, s7, 512
        v_mov_b32 v2, s22
        v_cmp_eq_u32 vcc, 0, v0
        v_cndmask_b32 v253, v3, v2, vcc
        v_mov_b32 v3, {OOB}
        v_and_b32 v2, 7, v0
        v_mul_u32_u24 v255, 544, v2
        v_cmp_gt_u32 vcc, {o["r1"]}, v2
        v_mul_u32_u24 v14, {ORS}, v2
        v_add_u32 v14, s6, v14
        v_cndmask_b32 v14, v3, v14, vcc
        v_lshrrev_b32 v2, 3, v0
        v_lshlrev_b32 v2, 4, v2
        v_add_u32 v15, v14, v2
        v_add_u32 v15, 512, v15
        v_cmp_gt_u32 vcc, {64 if o["mlf"] else 8}, v0
        v_cndmask_b32 v15, v3, v15, vcc
        s_lshl_b32 s22, s3, 7
        v_add_u32 v2, s22, v2
        v_add_u32 v254, v255, v2
        v_add_u32 v14, v14, v2
        """)
        if o["one"]:
            a(f"""v_lshlrev_b32 v254, 3, v0
            v_and_b32 v2, 1, v0
            v_cmp_eq_u32 vcc, 0, v2
            v_add_u32 v2, s6, v254
            v_mov_b32 v3, {OOB}
            v_cndmask_b32 v14, v3, v2, vcc""")
    def set_q():
        a(f"""
        v_bfe_u32 v2, v0, 2, 2
        v_lshrrev_b32 v3, 4, v0
        v_and_b32 v8, 3, v0
        v_lshlrev_b32 v3, 6, v3
        v_lshl_add_u32 v3, v8, 4, v3
        v_mov_b32 v12, 256""")
        for t in range(4): a(f"v_cmp_eq_u32 vcc, {t}, v2\nv_cndmask_b32 v{8+t}, v12, v3, vcc")
        a("s_waitcnt lgkmcnt(0)"); nonce(84, 85)
    def q_wait():
        a("s_cmp_lg_u32 s3, 0\ns_cbranch_scc1 L_qwait")
        for h in range(2):
            a(f"""L_q{h}:
            s_load_dwordx16 s[36:51], s[10:11], {256*h} glc
            s_load_dwordx16 s[52:67], s[10:11], {256*h+64} glc
            s_load_dwordx16 s[68:83], s[10:11], {256*h+128} glc
            s_waitcnt lgkmcnt(0)
            s_xor_b32 s22, s39, s84""")
            for j_ in range(1, 11): a(f"s_xor_b32 s23, s{39+4*j_}, s84\ns_or_b32 s22, s22, s23")
            a(f"s_cbranch_scc0 L_q{h}ok")
            spin(f"L_q{h}", 4)
            a(f"L_q{h}ok:")
            if h == 0: stamp(2)
            for d in range(32): a(f"v_writelane_b32 v2, s{36 + 4*(d//3) + d%3}, {32*h+d}")
        a(f"""v_lshlrev_b32 v3, 2, v0
        v_mov_b32 v13, 1
        ds_write_b32 v3, v2 offset:{LQ}
        ds_write_b32 v12, v13 offset:{LQ+16}
        L_qwait:
        ds_read_b32 v13, v12 offset:{LQ+16}
        s_waitcnt lgkmcnt(0)
        v_cmp_eq_u32 vcc, 1, v13
        s_cbranch_vccnz L_qgo
        s_sleep 2""")
        spin("L_qwait", 4)
        a("L_qgo:")
        for t in range(4): a(f"ds_read_b128 {v(AQ+4*t,4)}, v{8+t} offset:{LQ}")
        a("s_waitcnt lgkmcnt(0)")
    if not DY:
        def issue(th, real, sfx):
            for n, x in enumerate(KL + VL[:NV]):
                a(x)
                if o["lb"] and n == th: a("s_barrier")
                if th and th <= n < 24 + NV - o["tail"] and (real or not (n < 4 or 24 <= n < 28)): a(f"s_waitcnt vmcnt({th})")
                if n == 23 and o["kbar"]: a("s_barrier")
                if not sfx: progress(n + 1)
        if o["thr5"]:
            assert o["trig"] is None or o["trig"][0] >= 3
            a("s_cmp_eq_u32 s43, 0\ns_cbranch_scc1 L_iss6")
            issue(o["thr5"], False, "")
            a("s_branch L_issd\nL_iss6:")
            issue(TH, True, "6")
            a("L_issd:")
        else: issue(TH, True, "")
        if SG:
            a("s_cmp_lt_u32 s3, 4\ns_cbranch_scc1 L_stag0")
            for n, x in enumerate(VL[NV:NV+SG]):
                a(x)
                if TH: a(f"s_waitcnt vmcnt({TH + o['tail']})")
                progress(25 + NV + n)
            a("L_stag0:")
        stamp(1); set_s(); set_late(); set_q(); q_wait()
    elif D2:
        def claim_use():
            a(f"""s_waitcnt vmcnt({36 - D2})
            v_readfirstlane_b32 s22, v15
            s_bitcmp1_b32 s22, 0
            s_cbranch_scc1 L_claimed
            s_waitcnt vmcnt(0)
            v_readfirstlane_b32 s22, v15
            L_claimed:
            s_lshr_b32 s22, s22, 1
            s_add_u32 s23, s22, s89
            s_lshl_b32 s23, s23, 12
            s_cmp_lt_u32 s22, 16
            s_cselect_b32 s23, s23, {OOB}
            s_cselect_b32 s5, 0, 1
            v_add_u32 v253, s23, v252
            v_add_u32 v255, s23, v254""")
            for x in KL[:4] + VL[20:] + VL[:4]: a(x)
            stamp(8)
            set_late()
        for n, x in enumerate(KL[4:] + VL[4:20]):
            if n == D2:
                a("s_waitcnt lgkmcnt(0)\ns_cmp_eq_u32 s95, s84\ns_cbranch_scc1 L_cok\nL_cw:\ns_load_dword s95, s[92:93], 4 glc\ns_waitcnt lgkmcnt(0)\ns_cmp_eq_u32 s95, s84\ns_cbranch_scc1 L_cok")
                spin("L_cw", 4)
                a("""L_cok:
                v_mov_b32 v15, 2
                v_mov_b32 v14, s90
                s_mov_b64 exec, 1
                buffer_atomic_add v15, v14, s[12:15], 0 offen sc0 sc1
                s_mov_b64 exec, -1""")
            if n == D2 - 6: a("s_load_dword s95, s[92:93], 4 glc")
            a(x)
            if n == 4:
                set_s(); set_q(); masks(MK, 15, 2, 3)
                a(f"""s_add_u32 s92, s26, s90
                s_addc_u32 s93, s27, 0
                s_or_b32 s22, s38, s3
                s_cmp_lg_u32 s22, 0
                s_cbranch_scc1 L_noinit
                v_mov_b32 v14, s84
                v_cmp_gt_u32 vcc, 1, v0
                v_cndmask_b32 v14, v14, 1, vcc
                v_lshl_add_u32 v15, v0, 2, s90
                s_mov_b32 exec_hi, 0
                buffer_store_dword v14, v15, s[12:15], 0 offen sc1
                s_mov_b64 exec, -1
                L_noinit:""")
            if TH and TH <= n < 36 - o["tail"]: a(f"s_waitcnt vmcnt({TH})")
            progress(n + 1, n >= 4)
        stamp(1)
        if o["pos"] == 0: claim_use()
        q_wait()
    else:
        order = KL[4:] + VL[4:20] + KL[:4] + VL[20:] + VL[:4]
        for n, x in enumerate(order):
            if n == DY:
                stamp(1); q_wait()
                a("""v_mov_b32 v13, 2
                v_mov_b32 v12, s90
                s_mov_b64 exec, 1
                buffer_atomic_add v13, v12, s[12:15], 0 offen sc0 sc1
                s_mov_b64 exec, -1""")
            if n == 36:
                a(f"""s_waitcnt vmcnt({36 - DY})
                v_readfirstlane_b32 s22, v13
                s_bitcmp1_b32 s22, 0
                s_cbranch_scc1 L_claimed
                s_waitcnt vmcnt(0)
                v_readfirstlane_b32 s22, v13
                L_claimed:
                s_lshr_b32 s22, s22, 1
                s_add_u32 s23, s22, s89
                s_lshl_b32 s23, s23, 12
                s_cmp_lt_u32 s22, 16
                s_cselect_b32 s23, s23, {OOB}
                s_cselect_b32 s5, 0, 0xff800000
                v_add_u32 v253, s23, v252
                v_add_u32 v255, s23, v248""")
                stamp(8)
            a(x)
            if n == 4: set_s(); set_q()
            if TH and TH <= n < 48 - o["tail"]: a(f"s_waitcnt vmcnt({TH})")
            progress(n + 1, n >= 4)
        set_late()
    def att_d2():
        D = "row_mask:0xf bank_mask:0xf"
        Y = 12 if o["pos"] == 0 else 0
        SL = [1, 2, 3, 4, 5]
        stamp(3)
        for sl in SL:
            a(f"s_waitcnt vmcnt({16 + Y + 4*(5-sl)})")
            for t in range(4):
                a(f"v_mfma_f32_16x16x32_bf16 {v(DQ+4*sl,4)}, {v(AQ+4*t,4)}, {v(K0+16*sl+4*t,4)}, {'0' if t==0 else v(DQ+4*sl,4)}")
        stamp(4); progress(100)
        def extract(L):
            for r in range(4):
                for sl in L:
                    qp = f"quad_perm:[{r},{r},{r},{r}] {D}"
                    if r == 0: a(f"v_mov_b32_dpp v{S0+sl}, v{DQ+4*sl} {qp}")
                    else: a(f"v_add_f32_dpp v{S0+sl}, v{DQ+4*sl+r}, v{S0+sl} {qp}")
        def red(op, R, TT):
            a(f"""v_{op}_f32_dpp v{R}, v{R}, v{R} row_ror:4 {D}
            v_{op}_f32_dpp v{R}, v{R}, v{R} row_ror:8 {D}
            v_mov_b32 v{TT}, v{R}
            v_permlane16_swap_b32 v{R}, v{TT}
            v_{op}_f32 v{R}, v{R}, v{TT}
            v_mov_b32 v{TT}, v{R}
            v_permlane32_swap_b32 v{R}, v{TT}
            v_{op}_f32 v{R}, v{R}, v{TT}""")
        extract(SL)
        T = DQ + 4; M, L_, TT, PK, F, A0 = T + 4, T + 5, T + 6, T + 8, T + 7, T + 8
        for rnd in range(2):
            a(f"v_cvt_pk_bf16_f32 v{T}, v{S0+1}, v{S0+1}")
            for p in (1, 2): a(f"v_cvt_pk_bf16_f32 v{T+p}, v{S0+2*p}, v{S0+2*p+1}")
            a(f"v_and_b32 v{S0+1}, s21, v{T}")
            for p in (1, 2): a(f"v_lshlrev_b32 v{S0+2*p}, 16, v{T+p}\nv_and_b32 v{S0+2*p+1}, s21, v{T+p}")
            if rnd == 0:
                for sl in SL: a(f"v_mul_f32 v{S0+sl}, s9, v{S0+sl}")
        a(f"v_max3_f32 v{M}, v{S0+1}, v{S0+2}, v{S0+3}\nv_max3_f32 v{M}, v{S0+4}, v{S0+5}, v{M}")
        red("max", M, TT)
        a(f"v_mul_f32 v{M}, s8, v{M}")
        for sl in SL: a(f"v_fma_f32 v{S0+sl}, v{S0+sl}, s8, -v{M}")
        for sl in SL: a(f"v_exp_f32 v{S0+sl}, v{S0+sl}")
        for sl in SL: a(f"v_cvt_pk_bf16_f32 v{PK+sl}, v{S0+sl}, v{S0+sl}")
        def pbuild(sl, src):
            for k in range(4):
                for r in range(4): a(f"v_and_b32_dpp v{K0+16*sl+4*k+r}, v{src}, v{MK+r} row_newbcast:{4*k} {D}")
        if o["pos"] == 2: claim_use()
        for sl in SL: pbuild(sl, PK+sl)
        a(f"""v_add_f32 v{L_}, v{S0+1}, v{S0+2}
        v_add_f32 v{TT}, v{S0+3}, v{S0+4}
        v_add_f32 v{L_}, v{L_}, v{S0+5}
        v_add_f32 v{L_}, v{L_}, v{TT}""")
        red("add", L_, TT)
        if o["pos"] == 1: claim_use()
        stamp(5)
        for sl in SL[:4]:
            a(f"s_waitcnt vmcnt({12 + 4*(4-sl)})"); progress(100 + sl)
            for k in range(4): a(f"v_mfma_f32_16x16x32_bf16 {v(ACC,4)}, {v(K0+16*sl+4*k,4)}, {v(V0+16*sl+4*k,4)}, {'0' if sl==1 and k==0 else v(ACC,4)}")
        def pv5():
            for k in range(4): a(f"s_waitcnt vmcnt({7-k})\nv_mfma_f32_16x16x32_bf16 {v(ACC,4)}, {v(K0+80+4*k,4)}, {v(V0+80+4*k,4)}, {v(ACC,4)}")
        a("s_cmp_eq_u32 s5, 0\ns_cbranch_scc1 L_won")
        pv5()
        a("s_branch L_pvdone\nL_won:\ns_waitcnt vmcnt(8)")
        for t in range(4): a(f"v_mfma_f32_16x16x32_bf16 {v(DQ,4)}, {v(AQ+4*t,4)}, {v(K0+4*t,4)}, {'0' if t==0 else v(DQ,4)}")
        extract([0])
        a(f"""v_cvt_pk_bf16_f32 v{S0}, v{S0}, v{S0}
        v_and_b32 v{S0}, s21, v{S0}
        v_mul_f32 v{S0}, s9, v{S0}
        v_cvt_pk_bf16_f32 v{S0}, v{S0}, v{S0}
        v_and_b32 v{S0}, s21, v{S0}
        v_mov_b32 v{S0+1}, v{S0}""")
        red("max", S0+1, TT)
        a(f"""v_mul_f32 v{S0+1}, s8, v{S0+1}
        v_max_f32 v{S0+1}, v{S0+1}, v{M}
        v_fma_f32 v{S0}, v{S0}, s8, -v{S0+1}
        v_sub_f32 v{F}, v{M}, v{S0+1}
        v_exp_f32 v{S0}, v{S0}
        v_exp_f32 v{F}, v{F}
        v_mov_b32 v{M}, v{S0+1}
        v_cvt_pk_bf16_f32 v{S0+2}, v{S0}, v{S0}""")
        pbuild(0, S0+2)
        pv5()
        red("add", S0, TT)
        a(f"v_fma_f32 v{L_}, v{L_}, v{F}, v{S0}")
        for k in range(4): a(f"s_waitcnt vmcnt({3-k})\nv_mfma_f32_16x16x32_bf16 {v(A0,4)}, {v(K0+4*k,4)}, {v(V0+4*k,4)}, {'0' if k==0 else v(A0,4)}")
        for r in range(4): a(f"v_fma_f32 v{ACC+r}, v{ACC+r}, v{F}, v{A0+r}")
        a(f"L_pvdone:\nds_write_b64 v253, {v(M,2)}")
    if D2: att_d2()
    else:
        stamp(3)
        for sl in ([1, 2, 3, 4, 5, 0] if DY else range(6)):
            if not DY: a(f"s_waitcnt vmcnt({20+NV-4*sl})")
            elif sl < 2: a(f"s_waitcnt vmcnt({28 if sl else 8})")
            for t in range(4):
                a(f"v_mfma_f32_16x16x32_bf16 {v(DQ+4*sl,4)}, {v(AQ+4*t,4)}, {v(K0+16*sl+4*t,4)}, {'0' if t==0 else v(DQ+4*sl,4)}")
        stamp(4); progress(100)
        for r in range(4):
            for sl in range(6):
                qp = f"quad_perm:[{r},{r},{r},{r}] row_mask:0xf bank_mask:0xf"
                if r == 0: a(f"v_mov_b32_dpp v{S0+sl}, v{DQ+4*sl} {qp}")
                else: a(f"v_add_f32_dpp v{S0+sl}, v{DQ+4*sl+r}, v{S0+sl} {qp}")
        T = AQ
        for rnd in range(2):
            for p in range(3): a(f"v_cvt_pk_bf16_f32 v{T+p}, v{S0+2*p}, v{S0+2*p+1}")
            for p in range(3): a(f"v_lshlrev_b32 v{S0+2*p}, 16, v{T+p}\nv_and_b32 v{S0+2*p+1}, s21, v{T+p}")
            if rnd == 0:
                for sl in range(6): a(f"v_mul_f32 v{S0+sl}, s9, v{S0+sl}")
        M, L_, TT = T + 4, T + 5, T + 6
        a(f"""v_add_f32 v{S0}, s5, v{S0}
        v_max3_f32 v{M}, v{S0+1}, v{S0+2}, v{S0+3}
        v_max3_f32 v{TT}, v{S0+4}, v{S0+5}, v{S0}
        v_max_f32 v{M}, v{M}, v{TT}
        v_max_f32_dpp v{M}, v{M}, v{M} row_ror:4 row_mask:0xf bank_mask:0xf
        v_max_f32_dpp v{M}, v{M}, v{M} row_ror:8 row_mask:0xf bank_mask:0xf
        v_mov_b32 v{TT}, v{M}
        v_permlane16_swap_b32 v{M}, v{TT}
        v_max_f32 v{M}, v{M}, v{TT}
        v_mov_b32 v{TT}, v{M}
        v_permlane32_swap_b32 v{M}, v{TT}
        v_max_f32 v{M}, v{M}, v{TT}
        v_mul_f32 v{M}, s8, v{M}""")
        for sl in range(6): a(f"v_fma_f32 v{S0+sl}, v{S0+sl}, s8, -v{M}")
        for sl in range(6): a(f"v_exp_f32 v{S0+sl}, v{S0+sl}")
        PK = T + 8
        for sl in range(6): a(f"v_cvt_pk_bf16_f32 v{PK+sl}, v{S0+sl}, v{S0+sl}")
        for sl in range(6):
            for k in range(4):
                for r in range(4):
                    a(f"v_and_b32_dpp v{K0+16*sl+4*k+r}, v{PK+sl}, v{MK+r} row_newbcast:{4*k} row_mask:0xf bank_mask:0xf")
        a(f"""v_add_f32 v{L_}, v{S0}, v{S0+1}
        v_add_f32 v{TT}, v{S0+2}, v{S0+3}
        v_add_f32 v{S0+4}, v{S0+4}, v{S0+5}
        v_add_f32 v{L_}, v{L_}, v{TT}
        v_add_f32 v{L_}, v{L_}, v{S0+4}
        v_add_f32_dpp v{L_}, v{L_}, v{L_} row_ror:4 row_mask:0xf bank_mask:0xf
        v_add_f32_dpp v{L_}, v{L_}, v{L_} row_ror:8 row_mask:0xf bank_mask:0xf
        v_mov_b32 v{TT}, v{L_}
        v_permlane16_swap_b32 v{L_}, v{TT}
        v_add_f32 v{L_}, v{L_}, v{TT}
        v_mov_b32 v{TT}, v{L_}
        v_permlane32_swap_b32 v{L_}, v{TT}
        v_add_f32 v{L_}, v{L_}, v{TT}
        ds_write_b64 v253, {v(M,2)}""")
        if SG:
            a("s_cmp_ge_u32 s3, 4\ns_cbranch_scc1 L_stag1")
            for x in VL[NV:NV+SG]: a(x)
            a("L_stag1:")
        if not DY:
            for x in VL[NV+SG:]: a(x)
        stamp(5)
        for i_, sl in enumerate([1, 2, 3, 4, 5, 0] if DY else range(6)):
            for k in range(4):
                n = 23 - 4 * i_ - k
                if DY:
                    if i_ >= 4: a(f"s_waitcnt vmcnt({n})")
                elif k == 0 or sl == 5: a(f"s_waitcnt vmcnt({n - (3 if sl < 5 else 0)})")
                if k == 0: progress(101 + i_)
                a(f"v_mfma_f32_16x16x32_bf16 {v(ACC,4)}, {v(K0+16*sl+4*k,4)}, {v(V0+16*sl+4*k,4)}, {'0' if i_==0 and k==0 else v(ACC,4)}")
    stamp(6)
    a(f"""ds_write_b128 v252, {v(ACC,4)}
    s_waitcnt lgkmcnt(0)""")
    if o["adry"]:
        a(f"""s_mov_b32 s14, 0
        s_cmp_lt_u32 s3, {1 if o["one"] else 4}
        s_cbranch_scc1 L_comb
        L_bar:
        s_mov_b32 s14, {MBX}""")
    a(f"""s_barrier
    """)
    if o["one"]:
        a("""s_cmp_lg_u32 s3, 0
        s_cbranch_scc1 L_att_end
        L_comb:
        ds_read_b64 v[16:17], v255 offset:512""")
        for k in range(8): a(f"ds_read_b64 {v(28+2*k,2)}, v254 offset:{544*k}")
        a("""v_mov_b32 v26, s84
        v_mov_b32 v27, s84
        v_mov_b32 v18, 0xff
        s_waitcnt lgkmcnt(8)
        v_max_f32_dpp v24, v16, v16 quad_perm:[1,0,3,2] row_mask:0xf bank_mask:0xf
        v_max_f32_dpp v24, v24, v24 quad_perm:[2,3,0,1] row_mask:0xf bank_mask:0xf
        v_max_f32_dpp v24, v24, v24 row_half_mirror row_mask:0xf bank_mask:0xf
        v_sub_f32 v16, v16, v24
        v_exp_f32 v16, v16
        s_waitcnt lgkmcnt(0)
        v_mul_f32 v25, v16, v17""")
        D = "row_mask:0xf bank_mask:0xf"
        for k in range(8):
            for e in range(2):
                dst = 20 + e + 2 * (k & 1)
                a(f"v_{'mul' if k < 2 else 'fmac'}_f32_dpp v{dst}, v16, v{28+2*k+e} row_newbcast:{k} {D}")
            if k in (1, 3, 5): a(f"v_add_f32_dpp v25, v25, v25 {['quad_perm:[1,0,3,2]', 'quad_perm:[2,3,0,1]', 'row_half_mirror'][k//2]} {D}")
        a(f"""v_pk_add_f32 v[20:21], v[20:21], v[22:23]
        v_mov_b32_dpp v22, v20 quad_perm:[1,0,3,2] {D}
        v_mov_b32_dpp v23, v21 quad_perm:[1,0,3,2] {D}""")
        tag4(20, 18, 85)
        a("""buffer_store_dwordx4 v[20:23], v14, s[12:15], 0 offen sc1
        buffer_store_dwordx4 v[24:27], v15, s[12:15], 0 offen sc1""")
    else:
      a(f"""    s_cmp_ge_u32 s3, 4
    s_cbranch_scc1 L_att_end
    L_comb:
    ds_read_b64 v[16:17], v255 offset:512
    ds_read_b128 v[20:23], v254
    v_mov_b32 v26, s84
    v_mov_b32 v27, s84
    v_mov_b32 v18, 0xff
    s_waitcnt lgkmcnt(1)
    v_max_f32_dpp v24, v16, v16 quad_perm:[1,0,3,2] row_mask:0xf bank_mask:0xf
    v_max_f32_dpp v24, v24, v24 quad_perm:[2,3,0,1] row_mask:0xf bank_mask:0xf
    v_max_f32_dpp v24, v24, v24 row_half_mirror row_mask:0xf bank_mask:0xf
    v_sub_f32 v16, v16, v24
    v_exp_f32 v16, v16
    s_waitcnt lgkmcnt(0)
    v_mul_f32 v25, v16, v17""")
      for r in range(4): a(f"v_mul_f32 v{20+r}, v16, v{20+r}")
      for dp in ("quad_perm:[1,0,3,2]", "quad_perm:[2,3,0,1]", "row_half_mirror"):
          for r in (20, 21, 22, 23, 25): a(f"v_add_f32_dpp v{r}, v{r}, v{r} {dp} row_mask:0xf bank_mask:0xf")
      tag4(20, 18, 85)
      a("""buffer_store_dwordx4 v[20:23], v14, s[12:15], 0 offen sc1
    s_cmp_lg_u32 s3, 0
    s_cbranch_scc1 L_comb_end
    buffer_store_dwordx4 v[24:27], v15, s[12:15], 0 offen sc1
    L_comb_end:""")
    if o["adry"]: a("s_cmp_eq_u32 s14, 0\ns_cbranch_scc1 L_bar")
    a("L_att_end:")
    stamp(7)
    if o["pf"] is not None:
        for k_ in range(192): assert (k_ * 171) >> 13 == k_ // 48
        a(f"""s_load_dwordx4 s[36:39], s[0:1], 48
        s_load_dwordx2 s[40:41], s[0:1], 64
        s_sub_u32 s22, s2, 64
        s_and_b32 s23, s22, 0xf8
        s_add_u32 s23, s23, s3
        s_mul_i32 s24, s23, 171
        s_lshr_b32 s24, s24, 13
        s_mul_i32 s25, s24, 48
        s_sub_u32 s23, s23, s25
        s_add_u32 s22, s22, 3
        s_and_b32 s22, s22, 7
        s_lshl_b32 s24, s24, 3
        s_add_u32 s22, s22, s24
        s_barrier
        s_cmp_ge_u32 s22, 27
        s_cbranch_scc1 L_pf_end
        s_mov_b32 s46, 2211840
        s_mov_b32 s47, 0x20000
        s_cmp_ge_u32 s23, 32
        s_cbranch_scc1 L_pf_dn
        s_and_b32 s24, s23, 15
        s_mul_i32 s24, s24, {40*3456}
        s_lshl_b32 s22, s22, 7
        s_add_u32 s24, s24, s22
        v_lshrrev_b32 v2, 3, v0
        v_and_b32 v3, 7, v0
        v_mul_u32_u24 v2, 3456, v2
        v_lshl_add_u32 v2, v3, 4, v2
        s_mov_b32 s25, {8*3456}
        s_cmp_lt_u32 s23, 16
        s_waitcnt lgkmcnt(0)
        s_cselect_b32 s44, s36, s38
        s_cselect_b32 s45, s37, s39
        s_branch L_pf_go
        L_pf_dn:
        s_sub_u32 s24, s23, 32
        s_mul_i32 s24, s24, 5120
        s_mul_i32 s22, s22, 81920
        s_add_u32 s24, s24, s22
        v_lshlrev_b32 v2, 4, v0
        s_mov_b32 s25, 1024
        s_waitcnt lgkmcnt(0)
        s_mov_b32 s44, s40
        s_mov_b32 s45, s41
        L_pf_go:""")
        for k_ in range(5): a(f"buffer_load_dwordx4 {v(32+4*k_,4)}, v2, s[44:47], s24 offen {o['pf']}\ns_add_u32 s24, s24, s25")
        a("s_waitcnt vmcnt(0)\nL_pf_end:")
    stamp_out()
    a("L_end:\ns_endpgm")
    GU, WO, DN = 16, 96, 160
    M8, M4 = 4, 8
    SB = 80
    HW, HS, HC, PW, PR, YW = 240, 241, 242, 243, 244, 245
    C640, CG2 = 246, 249
    NS, TS, E0, VM = 93, 56, 247, 14
    g1 = -2 * LOG2E * 0.7978845608028654
    SM = o["sm"]; DA = 124 if SM else 208
    assert not SM or (o["x2"] and o["lnf"] and not o["al2"] and o["skip"])
    def gq(t, m): return GU + 16*(t%5) + 8*m + 4*(t//5) if SM else GU + 8*t + 4*m
    def smf(d, a_, b_): a(f"v_smfmac_f32_16x16x64_bf16 {v(d,4)}, {v(a_,4)}, {v(b_,8)}, v10")
    def sm_tiles(tl, waits):
        for t, (x_, y_, w_) in enumerate(tl):
            if t in waits: a(f"s_waitcnt lgkmcnt({waits[t]})")
            for r in range(4): a(f"v_and_b32 v{228+4*(t%3)+r}, v{x_ if r < 2 else y_}, v{8+(r&1)}")
            if t > 0: smf(252, 228+4*((t-1)%3), tl[t-1][2])
        smf(252, 228+4*((len(tl)-1)%3), tl[-1][2])
    def gu_list():
        L = []
        for t in range(10):
            va = 250; k_ = t
            if o["al2"]: va, k_ = (110, t // 5) if t % 5 == 4 else (250, t - t // 5)
            so = "0" if k_ == 0 else f"s{59+k_}"
            L.append(f"buffer_load_dwordx4 {v(gq(t,0),4)}, v{va}, s[32:35], {so} offen {WT}")
            L.append(f"buffer_load_dwordx4 {v(gq(t,1),4)}, v{va}, s[36:39], {so} offen {WT}")
        return L
    def gu_setup():
        srd(32, 16, 2211840); srd(36, 18, 2211840)
        for t in range(1, 10): a(f"s_mov_b32 s{59+t}, {3456*t}")
        if o["al2"]:
            a("""s_lshl_b32 s72, s3, 3
            v_add_u32 v14, s72, v2
            v_mul_u32_u24 v250, 27648, v14
            v_mul_u32_u24 v110, 6912, v14
            s_lshl_b32 s72, s77, 7
            v_lshl_add_u32 v15, v3, 4, s72
            v_add_u32 v250, v250, v15
            v_add_u32 v110, v110, v15
            v_add_u32 v110, 1769472, v110
            v_lshrrev_b32 v14, 2, v0
            s_lshl_b32 s72, s3, 4
            v_add_u32 v111, s72, v14
            v_lshlrev_b32 v14, 3, v111
            v_lshlrev_b32 v15, 1, v111
            buffer_load_dwordx2 v[98:99], v14, s[28:31], 0 offen
            buffer_load_ushort v100, v15, s[28:31], 0 offen offset:1024""")
        else: a("s_lshl_b32 s72, s77, 7\nv_mul_u32_u24 v250, 3456, v12\nv_lshl_add_u32 v250, v3, 4, v250\nv_add_u32 v250, s72, v250")
        if SM:
            a("""v_bfe_u32 v14, v0, 4, 1
            v_bfe_u32 v15, v0, 2, 1
            v_lshl_add_u32 v14, v14, 1, v15
            v_bfe_u32 v15, v0, 3, 1
            v_lshl_add_u32 v14, v14, 1, v15
            v_lshrrev_b32 v15, 5, v0
            v_lshl_add_u32 v14, v14, 1, v15
            s_mul_i32 s72, s3, 80
            v_mad_u32_u24 v111, v14, 5, s72
            v_lshlrev_b32 v14, 1, v111""")
            for e in range(5): a(f"buffer_load_ushort v{96+e}, v14, s[28:31], 0 offen offset:{2*e}")
    def dn_loads():
        srd(44, 20, 2211840)
        a("""s_lshl_b32 s72, s77, 3
        s_add_u32 s72, s72, s3
        s_mul_i32 s72, s72, 10240
        v_lshrrev_b32 v14, 4, v0
        v_mul_u32_u24 v14, %d, v14
        v_and_b32 v15, 15, v0
        v_lshl_add_u32 v14, v15, 4, v14
        v_add_u32 v14, s72, v14""" % (1280 if SM else 2560))
        if SM:
            a("s_mov_b32 s69, 5120\nv_mov_b32 v110, v14")
            L = [f"buffer_load_dwordx4 {v(DN+8*b+4*t,4)}, v110, s[44:47], {'s69' if t else '0'} offen offset:{256*b} {WT}" for b in range(5) for t in range(2)]
            for x in L[:10 - o["dl"]]: a(x)
            return L[10 - o["dl"]:]
        for t in range(2):
            for b in range(5): a(f"buffer_load_dwordx4 {v(DN+20*t+4*b,4)}, v14, s[44:47], 0 offen offset:{1280*t+256*b} {WT}")
    def wo_list():
        return [f"buffer_load_dwordx4 {v(WO+8*(t&7)+4*(t>>3) if SM else WO+4*t,4)}, v251, s[40:43], {'0' if t < 4 else 's%d' % (68 + t//4)} offen offset:{1280*(t&3)} {WT}" for t in range(16)]
    def xw_loads():
        XW = 16
        a(f"""s_mul_i32 s72, s79, 163840
                s_mul_i32 s73, s3, 20480
                s_add_u32 s72, s72, s73
                s_lshl_b32 s73, s75, 7
                s_add_u32 s72, s72, s73
                v_mul_u32_u24 v14, 2560, v2
                v_lshl_add_u32 v14, v3, 4, v14
                v_add_u32 v14, s72, v14
                s_mov_b32 s72, 163840
                s_mov_b32 s73, 327680""")
        for e in range(3):
            for t in range(2): a(f"buffer_load_dwordx4 {v(XW+8*e+4*t,4)}, v14, s[40:43], {['0','s72','s73'][e]} offen offset:{1280*t} {WT}")
    def wq_loads(base, va):
        for t in range(10): a(f"buffer_load_dwordx4 {v(base+4*t,4)}, v{va}, s[52:55], {'0' if t == 0 else 's%d' % (83+t)} offen {WT}")
    def ln(wait_c):
        for p in range(5): a(f"v_pk_add_f32 {v(204+2*p,2)}, {v(204+2*p,2)}, v[214:215] op_sel_hi:[1,0] neg_lo:[0,1] neg_hi:[0,1]")
        a("""v_pk_mul_f32 v[14:15], v[204:205], v[204:205]
        v_pk_add_f32 v[204:205], v[204:205], v[206:207]
        v_pk_fma_f32 v[14:15], v[206:207], v[206:207], v[14:15]
        v_pk_add_f32 v[206:207], v[208:209], v[210:211]
        v_pk_fma_f32 v[14:15], v[208:209], v[208:209], v[14:15]
        v_pk_add_f32 v[204:205], v[204:205], v[212:213]
        v_pk_fma_f32 v[14:15], v[210:211], v[210:211], v[14:15]
        v_pk_add_f32 v[204:205], v[204:205], v[206:207]
        v_pk_fma_f32 v[14:15], v[212:213], v[212:213], v[14:15]
        v_add_f32 v204, v204, v205
        v_add_f32 v14, v14, v15""")
        for dp in ("row_ror:1 row_mask:0xf", "row_ror:2 row_mask:0xf", "row_ror:4 row_mask:0xf", "row_ror:8 row_mask:0xf", "row_bcast:15 row_mask:0xa", "row_bcast:31 row_mask:0xc"):
            a(f"v_add_f32_dpp v204, v204, v204 {dp} bank_mask:0xf\nv_add_f32_dpp v14, v14, v14 {dp} bank_mask:0xf")
        a(f"""v_readlane_b32 s72, v204, 63
        v_readlane_b32 s73, v14, 63
        v_mul_f32 v14, s72, v{C640}
        v_mul_f32 v15, s73, v{C640}
        v_add_f32 v214, v214, v14
        v_fma_f32 v15, -v14, v14, v15
        v_cvt_pk_bf16_f32 v14, v214, v15
        v_and_b32 v15, s81, v14
        v_lshlrev_b32 v214, 16, v14
        v_add_f32 v15, {f2u(1e-5)}, v15""")
        a(wait_c)
        pk = [f"v_pk_add_f32 {v(216+2*p,2)}, {v(216+2*p,2)}, v[214:215] op_sel_hi:[1,0] neg_lo:[0,1] neg_hi:[0,1]" for p in range(5)]
        cv = [f"v_cvt_pk_bf16_f32 v{204+p}, v{216+2*p}, v{217+2*p}" for p in range(5)]
        un = [f"v_lshlrev_b32 v{216+2*p}, 16, v{204+p}\nv_and_b32 v{217+2*p}, s81, v{204+p}" for p in range(5)]
        a("v_cvt_pk_bf16_f32 v15, v15, v15"); a(pk[0]); a("v_and_b32 v15, s81, v15"); a(pk[1]); a("v_sqrt_f32 v15, v15")
        a(pk[2]); a(pk[3]); a("v_cvt_pk_bf16_f32 v15, v15, v15"); a(pk[4]); a("v_and_b32 v15, s81, v15"); a(cv[0]); a("v_rcp_f32 v14, v15")
        for x in cv[1:] + un: a(x)
        for p in range(5): a(f"v_pk_mul_f32 {v(216+2*p,2)}, {v(216+2*p,2)}, v[14:15] op_sel_hi:[1,0]")
        for t in range(10): a(f"v_cvt_pk_bf16_f32 v{216+t}, v{216+t}, v{216+t}")
    def qgemv(base, acc, after, nxt):
        nxt = list(nxt); issued = 0
        for t in range(10):
            for r in range(4): a(f"v_and_b32 v{228+4*(t%2)+r}, v{216+t}, v{M8+r}")
            a(f"s_waitcnt vmcnt({9-t+after+issued})")
            a(f"v_mfma_f32_16x16x32_bf16 {v(acc,4)}, {v(228+4*(t%2),4)}, {v(base+4*t,4)}, {'0' if t==0 else v(acc,4)}")
            for k in range(o["il"]):
                if nxt: a(nxt.pop(0)); issued += 1
        return nxt
    def psum():
        a(f"""ds_read2st64_b32 v[204:205], v{PR} offset0:0 offset1:17
        ds_read2st64_b32 v[206:207], v{PR} offset0:1 offset1:18
        s_waitcnt lgkmcnt(1)
        v_add_f32 v204, v204, v205
        s_waitcnt lgkmcnt(0)
        v_add_f32 v206, v206, v207""")
        for dp in ("quad_perm:[1,0,3,2]", "quad_perm:[2,3,0,1]", "row_half_mirror"):
            a(f"v_add_f32_dpp v204, v204, v204 {dp} row_mask:0xf bank_mask:0xf\nv_add_f32_dpp v206, v206, v206 {dp} row_mask:0xf bank_mask:0xf")
    for i in range(28): assert (i * 37) >> 8 == i // 7
    for i in range(9): assert (i * 86) >> 8 == i // 3
    for col in range(0, 640, 2): assert (col * 52429) >> 19 == col // 10
    a("""L_aux:
    v_lshrrev_b32 v2, 3, v0
    v_and_b32 v3, 7, v0
    s_mul_i32 s72, s3, 80
    v_mul_u32_u24 v12, 10, v2
    v_add_u32 v12, s72, v12
    v_lshlrev_b32 v13, 2, v0
    s_lshl_b32 s72, s3, 8
    v_add_u32 v13, s72, v13
    s_and_b32 s78, s2, 7
    s_lshl_b32 s78, s78, 3
    s_lshr_b32 s72, s2, 3
    s_add_u32 s78, s78, s72
    s_lshl_b32 s72, s78, 7
    v_lshlrev_b32 v252, 13, v12
    v_lshl_add_u32 v252, v3, 4, v252
    v_add_u32 v252, s72, v252
    v_mul_u32_u24 v254, 20, v0
    v_lshlrev_b32 v255, 1, v12""")
    for t in range(1, 10): a(f"s_mov_b32 s{83+t}, {8192*t}")
    a("""s_mul_i32 s74, s2, 37
    s_lshr_b32 s74, s74, 8
    s_mul_i32 s75, s74, 7
    s_sub_u32 s75, s2, s75
    s_lshl_b32 s76, s74, 3
    s_sub_u32 s72, s2, 28
    s_mul_i32 s73, s72, 86
    s_lshr_b32 s73, s73, 8
    s_mul_i32 s79, s73, 3
    s_sub_u32 s72, s72, s79
    s_add_u32 s72, s72, 7
    s_mul_i32 s79, s73, 11
    s_cmp_ge_u32 s2, 28
    s_cselect_b32 s74, s73, s74
    s_cselect_b32 s75, s72, s75
    s_cselect_b32 s76, s79, s76
    s_add_u32 s79, s76, 8
    s_add_u32 s76, s76, s3
    s_mul_i32 s72, s76, 163840
    s_lshl_b32 s73, s75, 7
    s_add_u32 s72, s72, s73
    v_mul_u32_u24 v251, 20480, v2
    v_lshl_add_u32 v251, v3, 4, v251
    v_add_u32 v251, s72, v251
    s_mov_b32 s69, 5120
    s_mov_b32 s70, 10240
    s_mov_b32 s71, 15360
    s_sub_u32 s77, s2, 37
    s_waitcnt lgkmcnt(0)
    s_load_dword s93, s[26:27], %d""" % CAN)
    if o["stamps"]: a("v_mov_b32 v1, 0\nv_writelane_b32 v1, s100, 0")
    srd(28, 4, 1280); srd(52, 10, 5242880)
    if o["dyn"]:
        srd(48, 26, MBX)
        a(f"""s_lshr_b32 s72, s78, 1
        s_lshl_b32 s72, s72, 7
        s_add_u32 s72, s72, {CNT}
        s_and_b32 s73, s78, 1
        s_or_b32 s73, s73, s3
        s_cmp_eq_u32 s73, 0
        s_cbranch_scc0 L_nocnt
        v_mov_b32 v14, 1
        v_lshl_add_u32 v15, v0, 2, s72
        s_mov_b32 exec_hi, 0
        buffer_store_dword v14, v15, s[48:51], 0 offen sc1
        s_mov_b64 exec, -1
        L_nocnt:""")
    a("""buffer_load_dwordx4 v[228:231], v254, s[28:31], 0 offen
    buffer_load_dword v232, v254, s[28:31], 0 offen offset:16
    buffer_load_dwordx4 v[236:239], v255, s[28:31], 0 offen
    buffer_load_dword v233, v255, s[28:31], 0 offen offset:16
    buffer_load_dword v200, v13, s[28:31], 0 offen""")
    wq_loads(DN, 252)
    srd(48, 26, MBX); srd(40, 12, 5242880)
    a(f"s_mov_b32 s{SB}, 0x40000")
    if o["xearly"]:
        a("s_sub_u32 s72, s2, 28\ns_cmp_lt_u32 s72, 9\ns_cbranch_scc0 L_consts\ns_barrier")
        for x in wo_list(): a(x)
        xw_loads()
        a("L_consts:")
    stamp(1)
    masks(M8, 7, 14, 15)
    if SM: a("""v_and_b32 v14, 4, v0
        v_cmp_eq_u32 vcc, 0, v14
        v_mov_b32 v14, 0xffff
        v_cndmask_b32 v8, 0, v14, vcc
        v_cndmask_b32 v9, v14, 0, vcc
        v_and_b32 v14, 3, v0
        v_mul_u32_u24 v10, 0x5555, v14""")
    else: masks(M4, 15, 14, 15)
    a(f"""s_mov_b32 s81, 0xffff0000
    v_mov_b32 v{C640}, {f2u(1/640)}
    v_mov_b32 v{CG2}, {f2u(g1*0.044715)}
    v_lshrrev_b32 v14, 1, v13
    s_mov_b32 s72, 52429
    v_mul_lo_u32 v15, v14, s72
    v_lshrrev_b32 v15, 19, v15
    v_lshlrev_b32 v15, 1, v15
    v_add_u32 v14, v14, v15
    v_lshlrev_b32 v{HW}, 2, v14
    v_mul_u32_u24 v{HS}, 48, v0
    s_lshl_b32 s72, s3, 3
    v_add_u32 v14, s72, v2
    v_mul_u32_u24 v{HC}, 48, v14
    v_lshlrev_b32 v14, 2, v14
    v_mul_u32_u24 v15, 544, v3
    v_add_u32 v{PR}, v14, v15
    v_add_u32 v{PR}, {LP}, v{PR}""")
    a(f"""v_lshrrev_b32 v14, 5, v0
    v_bfe_u32 v15, v0, 3, 1
    v_cmp_eq_u32 vcc, v14, v15
    s_lshl_b32 s72, s3, 1
    v_add_u32 v14, s72, v14
    v_bfe_u32 v15, v0, 4, 1
    v_lshlrev_b32 v15, 4, v15
    v_lshl_add_u32 v15, v3, 5, v15
    v_lshlrev_b32 v201, 4, v0
    v_add_u32 v201, {LDUMP}, v201
    v_mul_u32_u24 v202, 544, v14
    v_add_u32 v202, v202, v15
    v_add_u32 v202, {LP}, v202
    v_cndmask_b32 v{PW}, v201, v202, vcc
    v_mul_u32_u24 v202, 320, v14
    v_add_u32 v202, v202, v15
    v_add_u32 v202, {LY}, v202
    v_cndmask_b32 v{YW}, v201, v202, vcc
    """)
    if o["xearly"]: a("s_sub_u32 s72, s2, 28\ns_cmp_lt_u32 s72, 9\ns_cbranch_scc1 L_xx\ns_waitcnt vmcnt(11)\nL_xx:\ns_waitcnt vmcnt(33)")
    else: a("s_waitcnt vmcnt(11)")
    for p in range(5):
        src = 228 + p; srcc = 236 + p if p < 4 else 233
        a(f"v_lshlrev_b32 v{204+2*p}, 16, v{src}\nv_and_b32 v{205+2*p}, s81, v{src}\nv_lshlrev_b32 v{216+2*p}, 16, v{srcc}\nv_and_b32 v{217+2*p}, s81, v{srcc}")
    if o["lnf"] and not o["al2"]:
        a("v_bfe_u32 v14, v0, 2, 1\nv_cmp_eq_u32 vcc, 1, v14")
        for e in range(5): a(f"v_cndmask_b32 v{96+e}, v{216+e}, v{221+e}, vcc")
    a("v_readfirstlane_b32 s72, v204\nv_mov_b32 v214, s72")
    ln("")
    stamp(13)
    if o["xearly"]:
        a("s_sub_u32 s72, s2, 28\ns_cmp_lt_u32 s72, 9\ns_cbranch_scc0 L_q_n")
        qgemv(DN, 204, 22, [])
        a("s_branch L_q_sum\nL_q_n:")
    qgemv(DN, 204, 0, [])
    a("L_q_sum:")
    stamp(18)
    a(f"""ds_write_b128 v{PW}, v[204:207]
    s_waitcnt lgkmcnt(0)""")
    nonce(NS, TS)
    a(f"""v_and_b32 v14, 1, v0
    v_cmp_eq_u32 vcc, 0, v14
    v_mov_b32 v14, s{TS}
    v_mov_b32 v15, s{TS+1}
    v_mov_b32 v{E0}, s{TS+2}
    v_mov_b32 v{E0+1}, s{TS+3}
    v_cndmask_b32 v{E0}, v{E0}, v14, vcc
    v_cndmask_b32 v{E0+1}, v{E0+1}, v15, vcc
    s_barrier
    s_cmp_lg_u32 s3, 0
    s_cbranch_scc1 L_q_1
    v_lshlrev_b32 v14, 2, v0""")
    stamp(14)
    for r in range(16): a(f"ds_read_b32 v{204+r}, v14 offset:{LP+544*r}")
    a(f"""v_and_b32 v14, 15, v0
    v_mul_u32_u24 v224, 24, v14
    v_add_u32 v225, 8, v224
    v_add_u32 v226, 16, v224
    v_cmp_gt_u32 vcc, 11, v14
    v_lshlrev_b32 v14, 4, v14
    v_lshrrev_b32 v15, 4, v0
    v_lshl_add_u32 v14, v15, 9, v14
    s_lshr_b32 s72, s78, 1
    s_mul_i32 s72, s72, 3072
    s_and_b32 s73, s78, 1
    s_lshl_b32 s73, s73, 8
    s_add_u32 s72, s72, s73
    v_mov_b32 v15, {OOB}
    v_cndmask_b32 v14, v15, v14, vcc
    v_cmp_gt_u32 vcc, 32, v0
    v_cndmask_b32 v15, v15, v14, vcc
    v_mov_b32 v223, s{NS}
    s_waitcnt lgkmcnt(0)""")
    for w in (4, 2, 1):
        for p in range(w): a(f"v_pk_add_f32 {v(204+2*p,2)}, {v(204+2*p,2)}, {v(204+2*p+2*w,2)}")
    a(f"""v_add_f32 v204, v204, v205
    v_mov_b32_dpp v205, v204 quad_perm:[1,0,3,2] row_mask:0xf bank_mask:0xf
    v_cvt_pk_bf16_f32 v204, v204, v205
    ds_bpermute_b32 v220, v224, v204
    ds_bpermute_b32 v221, v225, v204
    ds_bpermute_b32 v222, v226, v204
    s_waitcnt lgkmcnt(0)
    buffer_store_dwordx4 v[220:223], v14, s[48:51], s72 offen sc1
    buffer_store_dwordx4 v[220:223], v15, s[48:51], s72 offen offset:2048 sc1
    L_q_1:
    s_barrier""")
    stamp(15)
    if o["dry"]:
        a(f"""s_mov_b32 s82, 1
        s_mov_b32 s50, 0
        s_mov_b32 s{SB}, 0
        s_cmp_ge_u32 s2, 37
        s_cbranch_scc1 L_ffn
        s_branch L_wo
        L_real:
        s_mov_b32 s82, 0
        s_mov_b32 s50, {MBX}
        s_mov_b32 s{SB}, 0x40000""")
        stamp(17)
    if o["trig"]:
        if o["trig"][1] == 0: a("s_cmp_lt_u32 s2, 37\ns_cbranch_scc1 L_go")
        elif not o["xtrig"]: a("s_sub_u32 s72, s2, 28\ns_cmp_lt_u32 s72, 9\ns_cbranch_scc1 L_go")
        a(f"""s_cmp_lg_u32 s3, 0
        s_cbranch_scc1 L_go1
        s_lshl_b32 s72, s2, 7
        s_add_u32 s72, s72, {PG}
        v_min_u32 v205, {3 * o["tw"] - 1}, v0
        v_lshlrev_b32 v205, 2, v205
        L_tr:
        buffer_load_dword v204, v205, s[48:51], s72 offen sc1
        s_waitcnt vmcnt(0)
        v_cmp_eq_u32 vcc, s{NS}, v204
        s_cbranch_vccnz L_go1
        s_sleep 4""")
        spin("L_tr", SB)
        a("L_go1:\ns_barrier\nL_go:")
        stamp(16)
    a("s_cmp_ge_u32 s2, 37\ns_cbranch_scc1 L_ld_f")
    if o["xearly"]: a("s_cmp_ge_u32 s2, 28\ns_cbranch_scc1 L_wo")
    for x in wo_list(): a(x)
    if not o["xearly"]:
        a("s_cmp_lt_u32 s2, 28\ns_cbranch_scc1 L_wo")
        xw_loads()
    a(f"""L_wo:
    s_mul_i32 s83, s75, {o["r1"] * 6554}
    s_lshr_b32 s83, s83, 16
    s_mul_i32 s83, s83, {ORS}
    s_add_u32 s83, s83, {OM}
    s_mul_i32 s72, s76, 3840
    s_add_u32 s72, s72, s83
    v_lshlrev_b32 v202, 3, v0
    v_add_u32 v203, s72, v202
    v_and_b32 v14, 15, v0
    v_cmp_gt_u32 vcc, 6, v14
    v_cndmask_b32 v205, 0, 1.0, vcc
    v_min_u32 v14, 5, v14
    v_mul_u32_u24 v14, 640, v14
    v_add_u32 v204, s72, v14
    s_lshl_b32 s72, s3, 9
    s_add_u32 s72, s72, {LO}
    v_add_u32 v202, s72, v202
    v_lshlrev_b32 v206, 6, v2
    v_add_u32 v206, s72, v206
    v_lshrrev_b32 v14, 2, v0
    v_and_b32 v15, 3, v0
    v_lshlrev_b32 v14, 4, v14
    v_cmp_gt_u32 vcc, {o["r2"]}, v15
    v_mul_u32_u24 v208, {YRS}, v15
    v_mul_u32_u24 v15, 320, v15
    v_add_u32 v207, v14, v15
    v_add_u32 v14, v14, v208
    s_mul_i32 s72, s74, 2560
    s_lshl_b32 s73, s75, 8
    s_add_u32 s72, s72, s73
    s_add_u32 s72, s72, {YM}
    v_add_u32 v14, s72, v14
    v_mov_b32 v15, {OOB}
    v_cndmask_b32 v208, v15, v14, vcc""")
    if o["g2"]: a(f"""s_lshl_b32 s72, s2, 7
        s_add_u32 s72, s72, {SOON}
        v_mov_b32 v94, s{NS}
        v_lshl_add_u32 v95, v0, 2, s72
        v_cmp_gt_u32 vcc, 32, v0
        v_cndmask_b32 v95, v15, v95, vcc""")
    if SM:
        a(f"""v_bfe_u32 v14, v0, 4, 1
        v_bfe_u32 v15, v0, 3, 1
        v_lshl_add_u32 v14, v14, 2, v15
        v_lshrrev_b32 v15, 5, v0
        v_lshl_add_u32 v209, v14, 1, v15
        s_lshl_b32 s72, s3, 9
        s_add_u32 s72, s72, {LO}
        v_lshl_add_u32 v206, v209, 5, s72""")
        for r in range(252, 256): a(f"v_mov_b32 v{r}, 0")
    XW, XO, XM, XA, XT, XOA, XMA, XE, XLW, XLR, XS = 16, 40, 46, 49, 50, 52, 53, 54, 55, 56, 58
    def wo_body(ex):
        t_ = "x" if ex else ""
        if ex:
            a(f"""v_lshrrev_b32 v14, 4, v0
            v_min_u32 v14, 2, v14
            v_add_u32 v14, s79, v14
            v_min_u32 v14, 31, v14
            v_mul_u32_u24 v14, 3840, v14
            v_add_u32 v14, s83, v14
            v_and_b32 v15, 15, v0
            v_lshl_add_u32 v{XOA}, v15, 2, v14
            s_lshl_b32 s72, s3, 6
            v_add_u32 v{XOA}, s72, v{XOA}
            v_min_u32 v15, 5, v15
            v_mul_u32_u24 v15, 640, v15
            v_add_u32 v{XMA}, v14, v15
            v_and_b32 v14, 3, v0
            v_lshlrev_b32 v14, 3, v14
            v_lshrrev_b32 v{XE}, v14, s{NS}
            v_and_b32 v{XE}, 0xff, v{XE}
            s_lshl_b32 s72, s3, 8
            s_add_u32 s72, s72, {LD}
            v_lshl_add_u32 v{XLW}, v0, 2, s72
            v_lshl_add_u32 v{XLR}, {'v209, 2' if SM else 'v2, 3'}, s72
            s_cmp_lg_u32 s74, 0
            s_cbranch_scc1 L_noz
            s_cmp_lg_u32 s3, 0
            s_cbranch_scc1 L_noz""")
            for k in range(4): a(f"v_mov_b32 v{212+k}, s{TS+k}")
            a("s_mov_b32 s72, 7680\nbuffer_store_dwordx4 v[212:215], v208, s[48:51], s72 offen sc1\nL_noz:")
        if o["gate"]:
            a(f"""L_h1a{t_}:
            buffer_load_dword v210, v204, s[48:51], 0 offen offset:520 sc1
            s_waitcnt vmcnt(0)
            v_cmp_eq_u32 vcc, s{NS}, v210
            s_and_b32 s72, vcc_lo, 63
            s_bcnt1_i32_b32 s72, s72
            s_cmp_ge_u32 s72, {o["gthr"]}
            s_cbranch_scc1 L_h1{t_}""")
            spin(f"L_h1a{t_}", SB)
        a(f"L_h1{t_}:")
        SETS = [(160, 172, 40, 46), (64, 76, 80, 86), (176, 188, 192, 90)]
        def h1_issue(i):
            ob, mb, xo, xm = SETS[i]
            if i == 0: stamp(19)
            a(f"buffer_load_dwordx3 {v(mb,3)}, v204, s[48:51], 0 offen offset:512 sc1")
            if ex: a(f"buffer_load_dwordx3 {v(xm,3)}, v{XMA}, s[48:51], 0 offen offset:512 sc1")
            for c in range(6): a(f"buffer_load_dwordx2 {v(ob+2*c,2)}, v203, s[48:51], 0 offen offset:{640*c} sc1")
            if ex:
                for c in range(6): a(f"buffer_load_dword v{xo+c}, v{XOA}, s[48:51], 0 offen offset:{640*c} sc1")
        def h1_check(i):
            ob, mb, xo, xm = SETS[i]
            a(f"v_xor_b32 v{mb+2}, s{NS}, v{mb+2}")
            if ex: a(f"v_xor_b32 v{xm+2}, s{NS}, v{xm+2}")
            chk(list(range(ob, ob+12)) + (list(range(xo, xo+6)) if ex else []), [f"v{E0}", f"v{E0+1}"] * 6 + [f"v{XE}"] * 6, (14, 15))
            a(f"v_or3_b32 v14, v14, v{mb+2}, v{xm+2}" if ex else f"v_or_b32 v14, v14, v{mb+2}")
            a("v_cmp_ne_u32 vcc, 0, v14")
        def comb(m, tmp, src, n, dst):
            m0, l0 = m, m + 1; m = tmp; l = tmp + 1; D = "row_mask:0xf bank_mask:0xf"
            q_ = [f"v_max_f32_dpp v{tmp}, v{m0}, v{m0} quad_perm:[1,0,3,2] {D}", f"v_mul_f32 v{l}, v{l0}, v205",
                  f"v_max_f32_dpp v{tmp}, v{tmp}, v{tmp} quad_perm:[2,3,0,1] {D}", f"v_max_f32_dpp v{tmp}, v{tmp}, v{tmp} row_half_mirror {D}",
                  f"v_sub_f32 v{m}, v{m0}, v{tmp}", f"v_exp_f32 v{m}, v{m}", f"v_mul_f32 v{l}, v{m}, v{l}"]
            q_ += [f"v_mul_f32_dpp v{dst+e}, v{m}, v{src+e} row_newbcast:0 {D}" for e in range(n)]
            q_ += [f"v_add_f32_dpp v{l}, v{l}, v{l} quad_perm:[1,0,3,2] {D}"]
            seq = [f"v_fmac_f32_dpp v{dst+e}, v{m}, v{src+n*c+e} row_newbcast:{c} {D}" for c in range(1, 6) for e in range(n)]
            seq.insert(n, f"v_add_f32_dpp v{l}, v{l}, v{l} quad_perm:[2,3,0,1] {D}")
            seq.insert(2*n+1, f"v_add_f32_dpp v{l}, v{l}, v{l} row_half_mirror {D}")
            seq.insert(3*n+2, f"v_rcp_f32 v{l}, v{l}")
            q_ += seq
            q_ += [f"v_mul_f32_dpp v{dst+e}, v{l}, v{dst+e} row_newbcast:0 {D}" for e in range(n)]
            q_ += [f"v_cvt_pk_bf16_f32 v{dst+e}, v{dst+e}, v{dst+e}" for e in range(n)]
            return q_
        def h1_leave(i):
            ob, mb, xo, xm = SETS[i]
            stamp(3)
            A1 = comb(mb, 14, ob, 2, 224); A2 = comb(xm, XT, xo, 1, XA) if ex else []
            k2 = 0
            for k1, x in enumerate(A1):
                a(x)
                while k2 < len(A2) and k2 * len(A1) <= k1 * len(A2): a(A2[k2]); k2 += 1
            for x in A2[k2:]: a(x)
        if o["skip"]:
            ob, mb, xo, xm = SETS[0]; AC = 64
            k_, d_ = o["p1"]
            L_ = [(AC+12, f"buffer_load_dwordx3 {v(mb,3)}, v204, s[48:51], 0 offen offset:512 sc1")]
            if ex: L_ += [(AC+13, f"buffer_load_dwordx3 {v(xm,3)}, v{XMA}, s[48:51], 0 offen offset:512 sc1")]
            L_ += [(AC+c, f"buffer_load_dwordx2 {v(ob+2*c,2)}, v203, s[48:51], 0 offen offset:{640*c} sc1") for c in range(6)]
            if ex: L_ += [(AC+6+c, f"buffer_load_dword v{xo+c}, v{XOA}, s[48:51], 0 offen offset:{640*c} sc1") for c in range(6)]
            h1_issue(0)
            X2 = ex and o["x2"]
            if X2:
                a("s_mov_b32 s64, 0")
                for r in range(252, 256): a(f"v_mov_b32 v{r}, 0")
            a("s_waitcnt vmcnt(0)")
            a(f"L_h1s{t_}:\nv_xor_b32 v{AC+12}, s{NS}, v{mb+2}")
            if ex: a(f"v_xor_b32 v{AC+13}, s{NS}, v{xm+2}")
            for c in range(6): a(f"v_msad_u8 v{AC+c}, v{ob+2*c}, v{E0}, 0")
            if ex:
                for c in range(6): a(f"v_msad_u8 v{AC+6+c}, v{xo+c}, v{XE}, 0")
            for c in range(6): a(f"v_msad_u8 v{AC+c}, v{ob+2*c+1}, v{E0+1}, v{AC+c}")
            if X2:
                def tiles_(tl, waits):
                    for t, (c_, w_) in enumerate(tl):
                        if t in waits: a(f"s_waitcnt lgkmcnt({waits[t]})")
                        for r in range(4): a(f"v_and_b32 v{228+4*(t%3)+r}, v{c_}, v{M8+r}")
                        if t > 0: a(f"v_mfma_f32_16x16x32_bf16 v[252:255], {v(228+4*((t-1)%3),4)}, {v(tl[t-1][1],4)}, v[252:255]")
                    t = len(tl) - 1
                    a(f"v_mfma_f32_16x16x32_bf16 v[252:255], {v(228+4*(t%3),4)}, {v(tl[t][1],4)}, v[252:255]")
                a(f"""v_or3_b32 v14, v{AC+12}, v{AC}, v{AC+1}
                v_or3_b32 v15, v{AC+13}, v{AC+6}, v{AC+7}
                v_or3_b32 v14, v14, v{AC+2}, v{AC+3}
                v_or3_b32 v15, v15, v{AC+8}, v{AC+9}
                v_or3_b32 v14, v14, v{AC+4}, v{AC+5}
                v_or3_b32 v15, v15, v{AC+10}, v{AC+11}
                v_cmp_ne_u32 s[60:61], 0, v14
                v_cmp_ne_u32 s[62:63], 0, v15
                s_or_b64 vcc, s[60:61], s[62:63]
                s_cbranch_scc0 L_x2p""")
                for n, (r, ld) in enumerate(L_): a(f"v_cmp_ne_u32 vcc, 0, v{r}\ns_cbranch_vccz L_h1k{t_}{n}\n{ld}\nL_h1k{t_}{n}:")
                a(f"""s_sub_u32 s{SB}, s{SB}, 1
                s_cbranch_scc0 L_x2p
                s_mov_b32 s{SB}, 0
                s_waitcnt vmcnt(0)
                s_mov_b64 s[60:61], 0
                s_mov_b64 s[62:63], 0
                L_x2p:
                s_bitcmp1_b32 s64, 0
                s_cbranch_scc1 L_x2m
                s_cmp_lg_u64 s[60:61], 0
                s_cbranch_scc1 L_x2m
                s_or_b32 s64, s64, 1""")
                stamp(3)
                for x in comb(mb, 14, ob, 2, 224): a(x)
                a("ds_write_b64 v202, v[224:225]")
                if SM:
                    for k in (0, 2, 1, 3): a(f"ds_read_b128 {v(212+4*k,4)}, v206 offset:{16*(k&1)+128*(k>>1)}")
                    sm_tiles([(212+u, 220+u, WO+8*u) for u in range(8)], {0: 2, 4: 0})
                else:
                    for k in range(4): a(f"ds_read_b128 {v(212+4*k,4)}, v206 offset:{16*k}")
                    tiles_([(212+t, WO+4*t) for t in range(16)], {0: 3, 4: 2, 8: 1, 12: 0})
                a(f"""L_x2m:
                s_bitcmp1_b32 s64, 1
                s_cbranch_scc1 L_x2e
                s_cmp_lg_u64 s[62:63], 0
                s_cbranch_scc1 L_x2e
                s_or_b32 s64, s64, 2""")
                for x in comb(xm, XT, xo, 1, XA): a(x)
                a(f"ds_write_b32 v{XLW}, v{XA}")
                if SM:
                    for e in range(3): a(f"ds_read2_b32 {v(XS+2*e,2)}, v{XLR} offset0:{16*e} offset1:{16*e+4}")
                    sm_tiles([(XS+2*e, XS+2*e+1, XW+8*e) for e in range(3)], {0: 2, 1: 1, 2: 0})
                else:
                    for e in range(3): a(f"ds_read_b64 {v(XS+2*e,2)}, v{XLR} offset:{64*e}")
                    tiles_([(XS+t, XW+4*t) for t in range(6)], {0: 2, 2: 1, 4: 0})
                a(f"""L_x2e:
                s_waitcnt vmcnt(0)
                s_cmp_lg_u32 s64, 3
                s_cbranch_scc1 L_h1s{t_}""")
                return
            if ex: a(f"""v_or3_b32 v15, v{AC+6}, v{AC+7}, v{AC+8}
                v_or3_b32 v14, v{AC+9}, v{AC+10}, v{AC+11}
                v_or3_b32 v15, v15, v{AC+12}, v{AC+13}
                v_or3_b32 v14, v14, v{AC}, v{AC+1}
                v_or3_b32 v15, v15, v{AC+2}, v{AC+3}
                v_or3_b32 v14, v14, v{AC+4}, v{AC+5}
                v_or_b32 v14, v14, v15""")
            else: a(f"""v_or3_b32 v14, v{AC+12}, v{AC}, v{AC+1}
                v_or3_b32 v15, v{AC+2}, v{AC+3}, v{AC+4}
                v_or3_b32 v14, v14, v15, v{AC+5}""")
            a(f"v_cmp_ne_u32 vcc, 0, v14\ns_cbranch_vccz L_h1ok{t_}")
            stamp(19)
            if k_ == 1:
                for n, (r, ld) in enumerate(L_): a(f"v_cmp_ne_u32 vcc, 0, v{r}\ns_cbranch_vccz L_h1k{t_}{n}\n{ld}\nL_h1k{t_}{n}:")
                a("s_waitcnt vmcnt(0)")
            else:
                MS = [60, 62, 64, 66, 84, 86, 88, 90, 4, 6, 8, 10, 14, 16]
                for n, (r, ld) in enumerate(L_): a(f"v_cmp_ne_u32 s[{MS[n]}:{MS[n]+1}], 0, v{r}")
                for n, (r, ld) in enumerate(L_): a(f"s_cmp_lg_u64 s[{MS[n]}:{MS[n]+1}], 0\ns_cselect_b64 exec, -1, 0\n{ld}")
                a("s_mov_b64 exec, -1")
                if d_: a(f"s_sleep {d_}")
                a(f"s_waitcnt vmcnt({(k_-1)*len(L_)})")
            spin(f"L_h1s{t_}", SB)
            a(f"L_h1ok{t_}:")
            if o["g2"]:
                a(f"""s_cmp_lg_u32 s3, 0
                s_cbranch_scc1 L_nsoon{t_}
                buffer_store_dword v94, v95, s[48:51], 0 offen sc1
                L_nsoon{t_}:""")
            h1_leave(0)
        else: poll(f"h1p{t_}", o["p1"], 14 if ex else 7, h1_issue, h1_check, h1_leave, SB)
        a("ds_write_b64 v202, v[224:225]")
        if SM:
            for k in (0, 2, 1, 3): a(f"ds_read_b128 {v(212+4*k,4)}, v206 offset:{16*(k&1)+128*(k>>1)}")
            sm_tiles([(212+u, 220+u, WO+8*u) for u in range(8)], {0: 2, 4: 0})
            return
        if ex: a(f"ds_write_b32 v{XLW}, v{XA}")
        for k in range(4): a(f"ds_read_b128 {v(212+4*k,4)}, v206 offset:{16*k}")
        if ex:
            for e in range(3): a(f"ds_read_b64 {v(XS+2*e,2)}, v{XLR} offset:{64*e}")
        tiles = [(212+t, WO+4*t) for t in range(16)] + ([(XS+t, XW+4*t) for t in range(6)] if ex else [])
        for t, (c_, w_) in enumerate(tiles):
            if t % 4 == 0 and t <= 16: a(f"s_waitcnt lgkmcnt({max(0, 3 - t//4 + (3 if ex and t < 16 else 0))})")
            ab = 228 + 4 * (t % 3)
            for r in range(4): a(f"v_and_b32 v{ab+r}, v{c_}, v{M8+r}")
            if t > 0: a(f"v_mfma_f32_16x16x32_bf16 v[252:255], {v(228+4*((t-1)%3),4)}, {v(tiles[t-1][1],4)}, {'0' if t==1 else 'v[252:255]'}")
        t = len(tiles) - 1
        a(f"v_mfma_f32_16x16x32_bf16 v[252:255], {v(228+4*(t%3),4)}, {v(tiles[t][1],4)}, v[252:255]")
    a("s_cmp_ge_u32 s2, 28\ns_cbranch_scc0 L_wo4")
    wo_body(True)
    a("s_branch L_wo_acc\nL_wo4:")
    wo_body(False)
    a("L_wo_acc:")
    if o["xm"] == 2: a("s_mov_b32 exec_lo, 0x00ff00ff\ns_mov_b32 exec_hi, 0xff00ff00")
    a(f"""ds_write_b128 v{YW}, v[252:255]
    {'s_mov_b64 exec, -1' if o["xm"] == 2 else ''}
    s_waitcnt lgkmcnt(0)
    s_barrier""")
    stamp(4)
    a("s_cmp_lg_u32 s3, 0\ns_cbranch_scc1 L_wo_done")
    for k in range(4): a(f"ds_read_b128 {v(212+4*k,4)}, v207 offset:{LY+1280*k}")
    a(f"v_mov_b32 v{VM}, 0xff")
    a("""s_waitcnt lgkmcnt(2)
    v_pk_add_f32 v[212:213], v[212:213], v[216:217]
    v_pk_add_f32 v[214:215], v[214:215], v[218:219]
    s_waitcnt lgkmcnt(0)
    v_pk_add_f32 v[220:221], v[220:221], v[224:225]
    v_pk_add_f32 v[222:223], v[222:223], v[226:227]
    v_pk_add_f32 v[212:213], v[212:213], v[220:221]
    v_pk_add_f32 v[214:215], v[214:215], v[222:223]""")
    for dp in ("quad_perm:[1,0,3,2]", "quad_perm:[2,3,0,1]"):
        for r in range(212, 216): a(f"v_add_f32_dpp v{r}, v{r}, v{r} {dp} row_mask:0xf bank_mask:0xf")
    tag4(212, VM, TS)
    a("buffer_store_dwordx4 v[212:215], v208, s[48:51], 0 offen sc1\nL_wo_done:")
    stamp(5)
    a("""s_cmp_ge_u32 s2, 20
    s_cbranch_scc1 L_aux_end
    s_cmp_lg_u32 s3, 7
    s_cbranch_scc1 L_aux_end""")
    srd(52, 22, 1280)
    if o["dry"]: a("s_cmp_eq_u32 s82, 1\ns_cselect_b32 s54, 0, s54")
    a(f"""s_lshl_b32 s72, s2, 7
    v_mul_u32_u24 v14, 2560, v2
    v_lshl_add_u32 v14, v3, 4, v14
    v_add_u32 v14, s72, v14
    s_and_b32 s73, s2, {o['r2']-1}
    s_mul_i32 s73, s73, {YRS}
    s_add_u32 s73, s73, {YM}
    v_add_u32 v202, s73, v14
    v_mov_b32 v15, {OOB}
    v_cmp_gt_u32 vcc, 32, v0
    v_cndmask_b32 v202, v15, v202, vcc
    v_add_u32 v203, {DM}, v14
    v_add_u32 v204, {DM+61440}, v14
    v_cmp_gt_u32 vcc, 24, v0
    v_cndmask_b32 v204, v15, v204, vcc
    v_bfe_u32 v14, v0, 4, 1
    v_lshrrev_b32 v205, 5, v0
    v_lshl_add_u32 v14, v14, 1, v205
    v_lshl_add_u32 v14, v3, 2, v14
    v_lshlrev_b32 v14, 1, v14
    s_lshl_b32 s72, s2, 6
    v_add_u32 v14, s72, v14
    buffer_load_ushort v206, v14, s[28:31], 0 offen
    v_bfe_u32 v205, v0, 3, 1
    v_cmp_eq_u32 vcc, 0, v205
    v_cndmask_b32 v205, v15, v14, vcc
    s_mov_b32 s72, 20480
    s_mov_b32 s73, 40960
    s_mov_b32 s60, 0xffffff
    s_mov_b32 s61, 0
    L_ry:
    buffer_load_dwordx4 v[212:215], v202, s[48:51], 0 offen sc1
    s_waitcnt vmcnt(0)""")
    TR = [f"s{TS+k}" for k in range(4)]
    chk(range(212, 216), TR, (14, 15))
    a("v_cmp_ne_u32 vcc, 0, v14\ns_cmp_eq_u32 vcc_lo, 0\ns_cbranch_scc1 L_ryok")
    spin("L_ry", SB)
    def rs4(b):
        a(f"""v_permlane32_swap_b32 v{b}, v{b+1}
        v_permlane32_swap_b32 v{b+2}, v{b+3}
        v_add_f32 v{b}, v{b}, v{b+1}
        v_add_f32 v{b+2}, v{b+2}, v{b+3}
        v_permlane16_swap_b32 v{b}, v{b+2}
        v_add_f32 v{b}, v{b}, v{b+2}
        v_add_f32_dpp v{b}, v{b}, v{b} row_ror:8 row_mask:0xf bank_mask:0xf""")
    def canary():
        a(f"""s_cmp_lg_u32 s2, 0
        s_cbranch_scc1 L_nocan
        v_mov_b32 v14, s93
        v_lshlrev_b32 v15, 2, v0
        v_add_u32 v15, {CAN}, v15
        {'s_mov_b32 exec_hi, 0' if o["can"] else 's_mov_b64 exec, 1'}
        buffer_store_dword v14, v15, s[48:51], 0 offen sc1
        s_mov_b64 exec, -1
        L_nocan:""")
    a("L_ryok:")
    if o["can"]: canary()
    rs4(212)
    a("""v_cvt_pk_bf16_f32 v212, v212, v212
    v_lshlrev_b32 v206, 16, v206
    v_and_b32 v212, s81, v212
    v_add_f32 v212, v212, v206
    v_cvt_pk_bf16_f32 v212, v212, v212
    v_and_b32 v206, s81, v212""")
    stamp(6)
    def h3_issue(i):
        b = 96 + 16*i
        a(f"""buffer_load_dwordx4 {v(b,4)}, v203, s[48:51], 0 offen sc1
        buffer_load_dwordx4 {v(b+4,4)}, v203, s[48:51], s72 offen sc1
        buffer_load_dwordx4 {v(b+8,4)}, v203, s[48:51], s73 offen sc1
        buffer_load_dwordx4 {v(b+12,4)}, v204, s[48:51], 0 offen sc1""")
    def h3_check(i):
        b = 96 + 16*i
        chk(range(b+12, b+16), TR, (207, 208))
        chk(range(b, b+12), TR * 3, (14, 15))
        a("v_cndmask_b32 v207, 0, v207, s[60:61]\nv_or_b32 v14, v14, v207\nv_cmp_ne_u32 vcc, 0, v14")
    def h3_leave(i):
        b = 96 + 16*i
        a(f"""v_pk_add_f32 v[212:213], {v(b,2)}, {v(b+4,2)}
        v_pk_add_f32 v[220:221], {v(b+8,2)}, {v(b+12,2)}
        v_pk_add_f32 v[214:215], {v(b+2,2)}, {v(b+6,2)}
        v_pk_add_f32 v[222:223], {v(b+10,2)}, {v(b+14,2)}""")
    poll("rd", o["p3"], 4, h3_issue, h3_check, h3_leave, SB)
    a("""v_pk_add_f32 v[212:213], v[212:213], v[220:221]
    v_pk_add_f32 v[214:215], v[214:215], v[222:223]""")
    rs4(212)
    OUTP = o["outp"]
    a(f"""v_cvt_pk_bf16_f32 v212, v212, v212
    v_and_b32 v212, s81, v212
    v_add_f32 v212, v212, v206
    v_cvt_pk_bf16_f32 v212, v212, v212
    buffer_store_short v212, v205, s[52:55], 0 offen {OUTP}
""")
    if not o["can"]: canary()
    stamp(7)
    a("s_branch L_aux_end")
    DW, DR, DS = 250, 251, 201
    a("L_ld_f:")
    gu_setup()
    for x in gu_list(): a(x)
    if o["gb"]: a("s_barrier")
    DNL = dn_loads()
    a(f"""L_ffn:
    v_and_b32 v14, 15, v0
    v_lshrrev_b32 v15, 4, v0
    v_lshlrev_b32 v14, 5, v14
    v_lshl_add_u32 v14, v15, 4, v14
    s_mul_i32 s72, s3, 2688
    s_add_u32 s72, s72, {LD}
    v_add_u32 v14, s72, v14
    v_lshlrev_b32 v15, 4, v0
    v_add_u32 v15, {LDUMP}, v15
    v_cmp_gt_u32 vcc, 32, v0
    v_cndmask_b32 v{DW}, v15, v14, vcc
    v_lshrrev_b32 v14, 1, v0
    v_lshlrev_b32 v14, 4, v14
    s_lshl_b32 s72, s3, 9
    v_add_u32 v14, s72, v14
    v_and_b32 v15, 1, v0
    v_cmp_eq_u32 vcc, 0, v15
    v_mul_u32_u24 v15, 2688, v15
    v_add_u32 v{DR}, v14, v15
    s_mul_i32 s72, s77, 2560
    s_add_u32 s72, s72, {DM}
    v_add_u32 v14, s72, v14
    v_mov_b32 v15, {OOB}
    v_cndmask_b32 v{DS}, v15, v14, vcc
    """)
    def mf(t):
        ab = 228 + 4 * (t % 3)
        if SM: smf(204, ab, GU+16*t); smf(208, ab, GU+16*t+8); return
        a(f"v_mfma_f32_16x16x32_bf16 v[204:207], {v(ab,4)}, {v(GU+8*t,4)}, {'0' if t==0 else 'v[204:207]'}")
        a(f"v_mfma_f32_16x16x32_bf16 v[208:211], {v(ab,4)}, {v(GU+8*t+4,4)}, {'0' if t==0 else 'v[208:211]'}")
    if o["lnf"]:
        X5, ER, SG, SU, YA, STW, STR, HD = 96, 101, 105, 106, 107, 108, 109, 220
        D = "row_mask:0xf bank_mask:0xf"
        a(f"""s_mov_b32 s82, 0x3f803f80
        v_lshrrev_b32 v14, 2, v0""")
        if SM: a("v_mov_b32 v14, v111")
        for e in range(4): a(f"v_add_u32 v15, {e}, v14\nv_and_b32 v15, 3, v15\nv_lshlrev_b32 v15, 3, v15\nv_bfe_u32 v{ER+e}, s{NS}, v15, 8")
        a(f"""s_and_b32 s72, s2, {o['r2']-1}
        s_mul_i32 s72, s72, {YRS}
        s_add_u32 s72, s72, {YM}
        v_and_b32 v15, 3, v0
        v_mul_u32_u24 v15, 2560, v15
        v_add_u32 v15, s72, v15""")
        if o["al2"]: a(f"v_lshl_add_u32 v{YA}, v111, 4, v15\nv_lshl_add_u32 v111, v111, 2, v15")
        elif SM: a(f"v_lshl_add_u32 v{YA}, v111, 2, v15")
        else: a(f"""v_and_b32 v14, 1, v14
        v_mul_u32_u24 v14, 20, v14
        v_lshl_add_u32 v14, v12, 2, v14
        v_add_u32 v{YA}, v14, v15""")
        a(f"""
        v_lshlrev_b32 v{STR}, 3, v3
        s_lshl_b32 s72, s3, 3
        v_mov_b32 v14, s72
        v_lshlrev_b32 v15, 4, v0
        v_add_u32 v15, {LDUMP}, v15
        v_cmp_eq_u32 vcc, 63, v0
        v_cndmask_b32 v{STW}, v15, v14, vcc""")
        for r in range(4): a(f"v_and_b32 v{228+r}, s82, v{8+(r&1) if SM else M8+r}")
        if SM:
            for r in list(range(204, 212)) + list(range(DA, DA+20)): a(f"v_mov_b32 v{r}, 0")
        DL = o["dl"]
        if DL:
            a(f"s_waitcnt vmcnt({10 - DL})")
            for i in range(2):
                a(f"buffer_load_dwordx4 {v(112+6*i,4)}, v{YA}, s[48:51], 0 offen sc1\nbuffer_load_dword v{116+6*i}, v{YA}, s[48:51], 0 offen offset:16 sc1")
                for x in (DNL[:DL//2], DNL[DL//2:])[i]: a(x)
        else: a("s_waitcnt vmcnt(10)")
        if o["hp"]: a(f"buffer_load_dwordx4 v[112:115], v{YA}, s[48:51], 0 offen sc1\nbuffer_load_dword v116, v{YA}, s[48:51], 0 offen offset:16 sc1")
        if SM:
            for e in range(5): a(f"v_lshlrev_b32 v{96+e}, 16, v{96+e}")
            for t in range(5): smf(204, 228, GU+16*t); smf(208, 228, GU+16*t+8)
        if o["al2"]: a("v_lshlrev_b32 v96, 16, v98\nv_and_b32 v97, s81, v98\nv_lshlrev_b32 v98, 16, v99\nv_and_b32 v99, s81, v99\nv_lshlrev_b32 v100, 16, v100")
        for t in range(0 if SM else 10):
            a(f"v_mfma_f32_16x16x32_bf16 v[204:207], v[228:231], {v(GU+8*t,4)}, {'0' if t==0 else 'v[204:207]'}")
            a(f"v_mfma_f32_16x16x32_bf16 v[208:211], v[228:231], {v(GU+8*t+4,4)}, {'0' if t==0 else 'v[208:211]'}")
        a(f"""ds_write_b128 v{PW}, v[204:207]
        ds_write_b128 v{PW}, v[208:211] offset:256
        s_waitcnt lgkmcnt(0)
        s_barrier""")
        psum()
        a(f"v_mov_b32 v{SG}, v204\nv_mov_b32 v{SU}, v206")
        if SM:
            for r in range(204, 212): a(f"v_mov_b32 v{r}, 0")
        if o["g2"]:
            a(f"""s_cmp_lg_u32 s3, 0
            s_cbranch_scc1 L_g2ok
            v_min_u32 v14, 36, v0
            v_lshlrev_b32 v14, 7, v14
            v_add_u32 v14, {SOON}, v14
            L_g2:
            buffer_load_dword v15, v14, s[48:51], 0 offen sc1
            s_waitcnt vmcnt(0)
            v_cmp_eq_u32 vcc, s{NS}, v15
            s_and_b32 vcc_hi, vcc_hi, 31
            s_bcnt1_i32_b64 s72, vcc
            s_cmp_ge_u32 s72, {o["g2"]}
            s_cbranch_scc1 L_g2ok""")
            spin("L_g2", SB)
            a("L_g2ok:")
        a("s_barrier")
        def h2_issue(i):
            b = 112 + 6*i
            a(f"buffer_load_dwordx4 {v(b,4)}, v{YA}, s[48:51], 0 offen sc1")
            if o["al2"]: a(f"buffer_load_dword v{b+4}, v111, s[48:51], 0 offen offset:2048 sc1")
            else: a(f"buffer_load_dword v{b+4}, v{YA}, s[48:51], 0 offen offset:16 sc1")
        def h2_check(i):
            b = 112 + 6*i
            chk(range(b, b+5), TR + [f"v{ER}"] if o["al2"] else [f"v{ER+(e&3)}" for e in range(5)], (14, 15))
            a("v_cmp_ne_u32 vcc, 0, v14")
        def h2_leave(i):
            b = 112 + 6*i
            stamp(6)
            for e in range(5): a(f"v_add_f32_dpp v{212+e}, v{b+e}, v{b+e} quad_perm:[1,0,3,2] {D}")
        if DL:
            for i in range(2):
                a(f"s_waitcnt vmcnt({(DL + 2, DL - DL//2)[i]})"); h2_check(i); a(f"s_cbranch_vccz L_h2ok{i}")
        poll("h2", o["p2"], 2, h2_issue, h2_check, h2_leave, SB, 1 if o["hp"] else 0)
        for e in range(5): a(f"v_add_f32_dpp v{212+e}, v{212+e}, v{212+e} quad_perm:[2,3,0,1] {D}")
        a(f"""v_cvt_pk_bf16_f32 v218, v212, v213
        v_cvt_pk_bf16_f32 v219, v214, v215
        v_cvt_pk_bf16_f32 v216, v216, v216
        v_lshlrev_b32 v212, 16, v218
        v_and_b32 v213, s81, v218
        v_lshlrev_b32 v214, 16, v219
        v_and_b32 v215, s81, v219
        v_and_b32 v216, s81, v216""")
        for e in range(5): a(f"v_add_f32 v{212+e}, v{212+e}, v{X5+e}")
        for e in range(5): a(f"v_cvt_pk_bf16_f32 v{HD+e}, v{212+e}, v{212+e}")
        stamp(9)
        st = []
        for e in range(5): st += [f"v_dot2_f32_bf16 v226, v{HD+e}, s82, {'0' if e == 0 else 'v226'}", f"v_dot2_f32_bf16 v227, v{HD+e}, v{HD+e}, {'0' if e == 0 else 'v227'}"]
        for dp in ("row_half_mirror row_mask:0xf", "row_mirror row_mask:0xf", "row_bcast:15 row_mask:0xa", "row_bcast:31 row_mask:0xc"):
            st += [f"v_add_f32_dpp v226, v226, v226 {dp} bank_mask:0xf", f"v_add_f32_dpp v227, v227, v227 {dp} bank_mask:0xf"]
        st += [f"ds_write_b64 v{STW}, v[226:227]"]
        NT = 5 if SM else 10
        for t in range(NT):
            ab = 228 + 4 * (t % 3)
            for r in range(4):
                if SM: a(f"v_and_b32 v{ab+r}, v{HD+t}, v{8+(r&1)}" if r in (0, 3) else f"v_and_b32_dpp v{ab+r}, v{HD+t}, v{8+(r&1)} row_half_mirror {D}")
                elif (r < 2) == (t < 5): a(f"v_and_b32 v{ab+r}, v{HD+t%5}, v{M8+r}")
                else: a(f"v_and_b32_dpp v{ab+r}, v{HD+t%5}, v{M8+r} row_half_mirror {D}")
            if t > 0:
                mf(t - 1)
                for _ in range(4 if SM else 2):
                    if st: a(st.pop(0))
        mf(NT - 1)
        for x in st: a(x)
        if o["xm"] == 2: a("s_mov_b32 exec_lo, 0x00ff00ff\ns_mov_b32 exec_hi, 0xff00ff00")
        a(f"""ds_write_b128 v{PW}, v[204:207]
        ds_write_b128 v{PW}, v[208:211] offset:256
        {'s_mov_b64 exec, -1' if o["xm"] == 2 else ''}
        s_waitcnt lgkmcnt(0)
        s_barrier""")
        stamp(10)
        a(f"""ds_read_b64 v[212:213], v{STR}
        ds_read2st64_b32 v[204:205], v{PR} offset0:0 offset1:17
        ds_read2st64_b32 v[206:207], v{PR} offset0:1 offset1:18
        s_waitcnt lgkmcnt(2)""")
        DP = ("quad_perm:[1,0,3,2]", "quad_perm:[2,3,0,1]", "row_half_mirror")
        for dp in DP: a(f"v_add_f32_dpp v212, v212, v212 {dp} {D}\nv_add_f32_dpp v213, v213, v213 {dp} {D}")
        a(f"""v_mul_f32 v212, {f2u(1/1280)}, v212
        v_mul_f32 v213, {f2u(1/1280)}, v213
        s_waitcnt lgkmcnt(0)
        v_fma_f32 v213, -v212, v212, v213
        v_add_f32 v204, v204, v205
        v_max_f32 v213, 0, v213
        v_add_f32 v206, v206, v207
        v_cvt_pk_bf16_f32 v212, v212, v213
        v_add_f32_dpp v204, v204, v204 {DP[0]} {D}
        v_and_b32 v213, s81, v212
        v_add_f32_dpp v206, v206, v206 {DP[0]} {D}
        v_add_f32 v213, {f2u(1e-5)}, v213
        v_add_f32_dpp v204, v204, v204 {DP[1]} {D}
        v_cvt_pk_bf16_f32 v213, v213, v213
        v_add_f32_dpp v206, v206, v206 {DP[1]} {D}
        v_and_b32 v213, s81, v213
        v_add_f32_dpp v204, v204, v204 {DP[2]} {D}
        v_sqrt_f32 v213, v213
        v_add_f32_dpp v206, v206, v206 {DP[2]} {D}
        v_lshlrev_b32 v212, 16, v212
        v_cvt_pk_bf16_f32 v213, v213, v213
        v_fma_f32 v204, -v212, v{SG}, v204
        v_and_b32 v213, s81, v213
        v_fma_f32 v206, -v212, v{SU}, v206
        v_rcp_f32 v213, v213
        v_mul_f32 v204, v204, v213
        v_mul_f32 v206, v206, v213""")
    else:
        a(f"""s_waitcnt vmcnt(0)
        s_cmp_ge_u32 s3, 5
        s_cbranch_scc1 L_lng_bar
        v_lshlrev_b32 v14, 1, v13
        s_and_b32 s72, s2, {o['r2']-1}
        s_mul_i32 s72, s72, {YRS}
        s_add_u32 s72, s72, {YM}
        v_add_u32 v14, s72, v14
        s_mov_b32 s72, 5120
        L_h2:
        buffer_load_dwordx2 v[212:213], v14, s[48:51], 0 offen sc1
        buffer_load_dwordx2 v[214:215], v14, s[48:51], 0 offen offset:2560 sc1
        buffer_load_dwordx2 v[216:217], v14, s[48:51], s72 offen sc1
        buffer_load_dwordx2 v[218:219], v14, s[48:51], s72 offen offset:2560 sc1
        s_waitcnt vmcnt(0)""")
        chk(range(212, 220), [f"v{E0}", f"v{E0+1}"] * 4, (15, 202))
        a("v_cmp_ne_u32 vcc, 0, v15\ns_cbranch_vccz L_h2ok")
        spin("L_h2", SB)
        a("L_h2ok:")
        stamp(6)
        a("""v_pk_add_f32 v[212:213], v[212:213], v[214:215]
        v_pk_add_f32 v[216:217], v[216:217], v[218:219]
        v_lshlrev_b32 v202, 16, v200
        v_pk_add_f32 v[212:213], v[212:213], v[216:217]
        v_and_b32 v203, s81, v200
        v_cvt_pk_bf16_f32 v212, v212, v213
        v_lshlrev_b32 v214, 16, v212
        v_and_b32 v215, s81, v212
        v_pk_add_f32 v[202:203], v[202:203], v[214:215]
        v_cvt_pk_bf16_f32 v212, v202, v203
        v_lshlrev_b32 v202, 16, v212
        v_and_b32 v203, s81, v212""")
        a(f"""    ds_write_b64 v{HW}, v[202:203]
        s_waitcnt lgkmcnt(0)
        L_lng_bar:
        s_barrier
        v_mov_b32 v14, 0
        ds_read_b128 v[204:207], v{HS}
        ds_read_b32 v214, v14
        ds_read_b128 v[208:211], v{HS} offset:16
        ds_read_b64 v[212:213], v{HS} offset:32
        ds_read_b128 v[216:219], v{HC}
        ds_read_b128 v[220:223], v{HC} offset:16
        ds_read_b64 v[224:225], v{HC} offset:32""")
        stamp(8)
        a("s_waitcnt lgkmcnt(3)")
        ln("s_waitcnt lgkmcnt(0)")
        stamp(9)
        def mf(t):
            ab = 228 + 4 * (t % 3)
            a(f"v_mfma_f32_16x16x32_bf16 v[204:207], {v(ab,4)}, {v(GU+8*t,4)}, {'0' if t==0 else 'v[204:207]'}")
            a(f"v_mfma_f32_16x16x32_bf16 v[208:211], {v(ab,4)}, {v(GU+8*t+4,4)}, {'0' if t==0 else 'v[208:211]'}")
        for t in range(10):
            ab = 228 + 4 * (t % 3)
            for r in range(4): a(f"v_and_b32 v{ab+r}, v{216+t}, v{M8+r}")
            if t > 0: mf(t - 1)
        mf(9)
        a(f"""ds_write_b128 v{PW}, v[204:207]
        ds_write_b128 v{PW}, v[208:211] offset:256
        s_waitcnt lgkmcnt(0)
        s_barrier""")
        stamp(10)
        psum()
    a(f"""
    v_cvt_pk_bf16_f32 v204, v204, v206
    v_lshlrev_b32 v205, 16, v204
    v_and_b32 v206, s81, v204
    v_mul_f32 v207, v205, v205
    v_fmaak_f32 v207, v207, v{CG2}, {f2u(g1)}
    v_mul_f32 v207, v207, v205
    v_exp_f32 v207, v207
    v_add_f32 v207, 1.0, v207
    v_rcp_f32 v207, v207
    v_mul_f32 v207, v207, v205
    v_cvt_pk_bf16_f32 v207, v207, v207
    v_and_b32 v207, s81, v207
    v_mul_f32 v207, v207, v206
    v_cvt_pk_bf16_f32 v207, v207, v207""")
    if SM:
        for r in range(4): a(f"v_and_b32_dpp v{228+r}, v207, v{8+(r&1)} row_newbcast:{8*(r>>1)} row_mask:0xf bank_mask:0xf")
        if o["dl"]: a("s_waitcnt vmcnt(0)")
        for b in range(5): smf(DA+4*b, 228, DN+8*b)
    for t in range(0 if SM else 2):
        for r in range(4): a(f"v_and_b32_dpp v{228+4*t+r}, v207, v{M4+r} row_newbcast:{8*t} row_mask:0xf bank_mask:0xf")
    for t in range(0 if SM else 2):
        for b in range(5): a(f"v_mfma_f32_16x16x32_bf16 {v(208+4*b,4)}, {v(228+4*t,4)}, {v(DN+20*t+4*b,4)}, {'0' if t==0 else v(208+4*b,4)}")
    if o["xm"]: a("s_mov_b32 exec_hi, 0")
    for b in range(5): a(f"ds_write_b128 v{DW}, {v(DA+4*b,4)} offset:{512*b}")
    if o["xm"]: a("s_mov_b32 exec_hi, -1")
    a("s_waitcnt lgkmcnt(0)\ns_barrier")
    stamp(11)
    a("s_cmp_ge_u32 s3, 5\ns_cbranch_scc1 L_aux_end")
    for k in range(4): a(f"ds_read_b128 {v(212+4*k,4)}, v{DR} offset:{LD+5376*k}")
    a(f"v_mov_b32 v{VM}, 0xff")
    a("""s_waitcnt lgkmcnt(2)
    v_pk_add_f32 v[212:213], v[212:213], v[216:217]
    v_pk_add_f32 v[214:215], v[214:215], v[218:219]
    s_waitcnt lgkmcnt(0)
    v_pk_add_f32 v[220:221], v[220:221], v[224:225]
    v_pk_add_f32 v[222:223], v[222:223], v[226:227]
    v_pk_add_f32 v[212:213], v[212:213], v[220:221]
    v_pk_add_f32 v[214:215], v[214:215], v[222:223]""")
    for r in range(212, 216): a(f"v_add_f32_dpp v{r}, v{r}, v{r} quad_perm:[1,0,3,2] row_mask:0xf bank_mask:0xf")
    tag4(212, VM, TS)
    a(f"buffer_store_dwordx4 v[212:215], v{DS}, s[48:51], 0 offen sc1")
    stamp(12)
    a("L_aux_end:")
    if o["dry"]: a("s_cmp_eq_u32 s82, 1\ns_cbranch_scc1 L_real")
    stamp_out()
    a("s_endpgm")
    head = open(f"cdna_kernels/{KN}.s.ref").read().split("; Override launch")[0] if o["hdr"] else ""
    return finish(o, head, a.text(), LDS_SIZE)
def kd(name, vg):
    return f""".p2align 6
.amdhsa_kernel {name}
  .amdhsa_next_free_vgpr {vg}
  .amdhsa_next_free_sgpr 102
  .amdhsa_accum_offset {vg}
  .amdhsa_group_segment_fixed_size 0
  .amdhsa_kernarg_size 96
  .amdhsa_user_sgpr_count 2
  .amdhsa_user_sgpr_kernarg_segment_ptr 1
  .amdhsa_system_sgpr_workgroup_id_x 1
.end_amdhsa_kernel
"""
def diag_kernel(k, w0, w1, K, op, nw=2048):
    self_ = op == "self"
    if self_: op = "max"
    init = "0" if op == "max" else "-1"
    return f""".globl diag_kernel
.p2align 8
.type diag_kernel,@function
diag_kernel:
s_memrealtime s[20:21]
s_cmp_lg_u32 s2, 0
s_cbranch_scc1 LD_end
s_load_dwordx2 s[4:5], s[0:1], 88
s_waitcnt lgkmcnt(0)
s_add_u32 s4, s4, {STAMP_OFF}
s_addc_u32 s5, s5, 0
s_mov_b32 s6, 0x100000
s_mov_b32 s7, 0x20000
v_mov_b32 v1, -1
v_mov_b32 v2, {init}
v_mov_b32 v8, {init}
v_mov_b32 v3, v0
s_mov_b32 s8, 0
s_mov_b32 s12, {w0}
s_mov_b32 s13, {w1}
LD_l:
v_lshlrev_b32 v4, 8, v3
buffer_load_dword v5, v4, s[4:7], 0 offen sc1
buffer_load_dword v6, v4, s[4:7], 0 offen offset:{4*k} sc1
s_waitcnt vmcnt(0)
v_min_u32 v1, v1, v5
v_cmp_le_u32 vcc, s12, v3
s_nop 4
v_cndmask_b32 v6, v8, v6, vcc
v_cmp_gt_u32 vcc, s13, v3
s_nop 4
v_cndmask_b32 v6, v8, v6, vcc
v_cmp_ne_u32 vcc, 0, v6
s_nop 4
v_cndmask_b32 v6, v8, v6, vcc
v_{op}_u32 v2, v2, v6
v_add_u32 v3, 64, v3
s_add_u32 s8, s8, 1
s_cmp_lt_u32 s8, {nw//64}
s_cbranch_scc1 LD_l
s_mov_b32 s8, 0
s_mov_b32 s9, -1
s_mov_b32 s10, {init}
LD_r:
s_nop 4
v_readlane_b32 s11, v1, s8
v_readlane_b32 s14, v2, s8
s_nop 4
s_min_u32 s9, s9, s11
s_{op}_u32 s10, s10, s14
s_add_u32 s8, s8, 1
s_cmp_lt_u32 s8, 64
s_cbranch_scc1 LD_r
{"s_mov_b32 s10, s20" if self_ else ""}
s_sub_u32 s10, s10, s9
s_min_u32 s10, s10, 20000
s_mul_i32 s10, s10, {K}
s_memrealtime s[16:17]
s_waitcnt lgkmcnt(0)
LD_s:
s_memrealtime s[18:19]
s_waitcnt lgkmcnt(0)
s_sub_u32 s18, s18, s16
s_cmp_lt_u32 s18, s10
s_cbranch_scc1 LD_s
LD_end:
s_endpgm
"""
def finish(o, head, text, lds, grid=256, blk=512, vg=256):
    if o["diag"]:
        L = f"; @launch kernel={KN}_kernel grid=({grid},1,1) block=({blk},1,1) lds={lds}\n; @launch kernel=diag_kernel grid=(1,1,1) block=(64,1,1) lds=0\n"
        text = text + diag_kernel(*o["diag"]); extra = kd("diag_kernel", 16)
    elif o.get("pre") or o.get("post"):
        L = f"; @launch kernel={KN}_kernel grid=({grid},1,1) block=({blk},1,1) lds={lds}\n"
        e = lambda n, g, b, l: f"; @launch kernel=empty_kernel grid=({g},1,1) block=({b},1,1) lds={l}\n" * n
        if o.get("pre"): L = e(*o["pre"]) + L
        if o.get("post"): L = L + e(*o["post"])
        text = text + ".globl empty_kernel\n.p2align 8\n.type empty_kernel,@function\nempty_kernel:\ns_endpgm\n"; extra = kd("empty_kernel", o.get("evg", 16))
    else:
        L = f"; @launch grid=({grid},1,1) block=({blk},1,1) lds={lds}\n"; extra = ""
    return head + L + f""".amdgcn_target "amdgcn-amd-amdhsa--gfx950"
.text
.globl {KN}_kernel
.p2align 8
.type {KN}_kernel,@function
""" + text + '.section .rodata,"a"\n' + kd(KN + "_kernel", vg) + extra
def _old(a, head):
    return head + f"""; @launch grid=(256,1,1) block=(512,1,1) lds={LDS_SIZE}
.amdgcn_target "amdgcn-amd-amdhsa--gfx950"
.text
.globl {KN}_kernel
.p2align 8
.type {KN}_kernel,@function
""" + a.text() + f""".section .rodata,"a"
.p2align 6
.amdhsa_kernel {KN}_kernel
  .amdhsa_next_free_vgpr 256
  .amdhsa_next_free_sgpr 102
  .amdhsa_accum_offset 256
  .amdhsa_group_segment_fixed_size 0
  .amdhsa_kernarg_size 96
  .amdhsa_user_sgpr_count 2
  .amdhsa_user_sgpr_kernarg_segment_ptr 1
  .amdhsa_system_sgpr_workgroup_id_x 1
.end_amdhsa_kernel
"""
if __name__ == "__main__":
    kw = {}
    out = f"cdna_kernels/{KN}.s"
    for x in sys.argv[1:]:
        k, val = x.split("=", 1)
        if k == "out": out = val
        else: kw[k] = eval(val)
    open(out, "w").write(gen(**kw))
```

```python
import sys, struct
sys.path.insert(0, "exp")
from asmlib import *
KN = "sequential_preLN__gqa_block_cached__glu_gated_geglu__decode"
def f2u(x): return "0x%08x" % struct.unpack("<I", struct.pack("<f", x))[0]
LOG2E = 1.4426950408889634
QM, CAN, DM, PG, OM, YM, MBX = 0, 98304, 98432, 167552, 178176, 1161216, 1211008
SOON, CNT = 1202176, 1206912
ORS, YRS = 122880, 10240
OOB = 0x80000000
STAMP_OFF = 128 << 20
LH, LP, LO, LY, LD, LDUMP, LDS_SIZE = 0, 3072, 11776, 15872, 20992, 42496, 46592
DEF = dict(kv="nt", wt="nt", kbar=False, stamps=False, gate=True, hdr=True, shots=[(0,40),(1,32),(2,24),(3,12)], prio=0, il=2, diag=None, one=False, gthr=1, dry=False, adry=False, thr=4, tail=8, stag=0, trig=(7,32,32), xearly=False, nv=16, vpos=1, outp="", lnf=True, p1=(1,0), p2=(2,3), p3=(2,3), skip=True, g2=0, r1=1, r2=1, mlf=True, al2=False, can=True, xtrig=False, dyn=0, d2=0, pos=1, pf=None, thr5=0, tw=4, x2=True, xm=False, sm=True, hp=False, dl=0, gb=True, rot=0, lb=True, bal=None, det=True)
def gen(**kw):
    o = dict(DEF); o.update(kw)
    a = A()
    KV = o["kv"]; WT = o["wt"]
    def stamp(k):
        if o["stamps"] is True or (o["stamps"] and k in o["stamps"]): a(f"s_memrealtime s[100:101]\ns_waitcnt lgkmcnt(0)\nv_writelane_b32 v1, s100, {k}")
    def stamp_out():
        if o["stamps"]:
            a(f"""s_add_u32 s96, s26, {STAMP_OFF}
            s_addc_u32 s97, s27, 0
            s_mov_b32 s98, 0x100000
            s_mov_b32 s99, 0x20000
            s_lshl_b32 s94, s2, 3
            s_add_u32 s94, s94, s3
            s_lshl_b32 s94, s94, 8
            s_mov_b64 exec, -1
            v_lshlrev_b32 v2, 2, v0
            buffer_store_dword v1, v2, s[96:99], s94 offen""")
    def srd(d, b, n, add=None):
        if add is None: a(f"s_mov_b32 s{d}, s{b}\ns_mov_b32 s{d+1}, s{b+1}")
        else: a(f"s_add_u32 s{d}, s{b}, {add}\ns_addc_u32 s{d+1}, s{b+1}, 0")
        a(f"s_mov_b32 s{d+2}, {n}\ns_mov_b32 s{d+3}, 0x20000")
    def spin(lbl, sb):
        a(f"s_sub_u32 s{sb}, s{sb}, 1\ns_cbranch_scc0 {lbl}\ns_mov_b32 s{sb}, 0")
    def poll(name, kd, n, issue, check, leave, sb, pre=0):
        k, d = kd
        for i in range(k):
            if i < pre: continue
            if i == k - 1: a(f"L_{name}:")
            issue(i)
            if d and k > 1: a(f"s_sleep {d}")
        for i in range(k):
            a(f"s_waitcnt vmcnt({(k-1)*n})"); check(i)
            a(f"s_cbranch_vccz L_{name}ok{i}")
            if i < k - 1:
                issue(i)
                if d: a(f"s_sleep {d}")
        spin(f"L_{name}", sb)
        for i in reversed(range(k)):
            a(f"L_{name}ok{i}:"); leave(i)
            if i > 0: a(f"s_branch L_{name}j")
        a(f"L_{name}j:")
    def nonce(N, T):
        a(f"""s_or_b32 s{N}, s{N}, 0x01010101
        s_add_u32 s{N}, s{N}, 1
        s_or_b32 s{N}, s{N}, 0x01010101
        s_and_b32 s{T}, s{N}, 0xff
        s_bfe_u32 s{T+1}, s{N}, 0x80008
        s_bfe_u32 s{T+2}, s{N}, 0x80010
        s_lshr_b32 s{T+3}, s{N}, 24""")
    def tag4(r, vm, T):
        for k in range(4): a(f"v_bfi_b32 v{r+k}, v{vm}, s{T+k}, v{r+k}")
    def chk(regs, refs, acc):
        for n, (r, f) in enumerate(zip(regs, refs)):
            d = acc[n % 2]
            a(f"v_msad_u8 v{d}, v{r}, {f}, {'0' if n < 2 else 'v%d' % d}")
        a(f"v_or_b32 v{acc[0]}, v{acc[0]}, v{acc[1]}")
    def untag(regs):
        return [f"v_and_b32 v{r}, 0xffffff00, v{r}" for r in regs] if o["det"] else []
    def masks(dst, andm, t0, t1):
        a(f"""v_and_b32 v{t0}, 1, v0
        v_lshlrev_b32 v{t0}, 4, v{t0}
        v_mov_b32 v{t1}, 0xffff
        v_lshlrev_b32 v{t0}, v{t0}, v{t1}
        v_and_b32 v{t1}, {andm}, v0
        v_lshrrev_b32 v{t1}, 1, v{t1}""")
        for r in range(4):
            a(f"v_cmp_eq_u32 vcc, {r}, v{t1}\nv_cndmask_b32 v{dst+r}, 0, v{t0}, vcc")
    a(f"{KN}_kernel:")
    if o["stamps"]: a("s_memrealtime s[100:101]")
    a("""s_cmp_ge_u32 s2, 256
    s_cbranch_scc1 L_end
    s_load_dwordx16 s[4:19], s[0:1], 0
    s_load_dwordx8 s[20:27], s[0:1], 64
    v_lshrrev_b32 v2, 6, v0
    v_and_b32 v0, 63, v0
    v_readfirstlane_b32 s3, v2""")
    if o["rot"]: a(f"s_add_u32 s2, s2, {o['rot']}\ns_and_b32 s2, s2, 255")
    a("""s_cmp_lt_u32 s2, 64
    s_cbranch_scc1 L_aux""")
    for i in range(192): assert (i * 171) >> 10 == i // 6
    K0, V0, AQ, DQ, ACC, MK, S0 = 16, 112, 208, 224, 248, 4, 8
    D2 = o["d2"]; DY = o["dyn"] or D2
    if DY: tile0 = """s_mul_i32 s39, s38, 40
    s_mul_i32 s42, s3, 5
    s_add_u32 s39, s39, s42
    s_sub_u32 s89, 240, s39
    s_lshl_b32 s90, s37, 7
    s_add_u32 s90, s90, %d""" % CNT
    else:
      BAL = {"A": [3,3,3,3,2,2, 2,2,3,3,3,3, 2,2,3,3,3,3, 3,3,2,2,3,3], "B": [4,4,3,3,1,1, 2,2,3,3,3,3, 1,1,3,3,4,4, 4,4,1,1,3,3],
             "C": [3,3,4,4,1,1, 2,2,3,3,3,3, 2,2,3,3,3,3, 3,3,2,2,3,3]}.get(o["bal"])
      if BAL:
        assert all(sum(BAL[6*h_:6*h_+6]) == 16 for h_ in range(4))
        by = [BAL[j_] | sum(BAL[j_-j_%6:j_]) << 3 for j_ in range(24)]
        dw = [sum(by[4*k_+e_] << (8*e_) for e_ in range(4)) for k_ in range(6)]
        sel = "\n".join(f"s_cmp_eq_u32 s41, {k_}\ns_cselect_b32 s40, {dw[k_]}, s40" for k_ in range(1, 6))
        first = f"""s_and_b32 s41, s37, 3
        s_mul_i32 s41, s41, 6
        s_add_u32 s41, s41, s38
        s_and_b32 s42, s41, 3
        s_lshl_b32 s42, s42, 3
        s_lshr_b32 s41, s41, 2
        s_mov_b32 s40, {dw[0]}
        {sel}
        s_lshr_b32 s40, s40, s42
        s_bfe_u32 s41, s40, 0x50003
        s_and_b32 s40, s40, 7
        s_mul_i32 s39, s38, 40
        s_add_u32 s39, s39, s41"""
      else: first = """s_mul_i32 s39, s38, 43
    s_cmp_eq_u32 s38, 5
    s_cselect_b32 s40, 1, 0
    s_sub_u32 s39, s39, s40
    s_cmp_lt_u32 s38, 4
    s_cselect_b32 s40, 3, 2"""
      tile0 = f"""{first}
    s_min_u32 s41, s3, s40
    s_mul_i32 s42, s3, 5
    s_add_u32 s39, s39, s41
    s_add_u32 s39, s39, s42
    s_cmp_lt_u32 s3, s40
    s_cselect_b32 s41, 0, 1
    s_cselect_b32 s43, 0, {OOB}
    s_cselect_b32 s44, 0, 0xff800000
    s_sub_u32 s39, s39, s41"""
    LQ = 5632
    a(f"""s_sub_u32 s36, s2, 64
    s_mul_i32 s37, s36, 171
    s_lshr_b32 s37, s37, 10
    s_mul_i32 s38, s37, 6
    s_sub_u32 s38, s36, s38
    {tile0}
    s_lshl_b32 s39, s39, 12
    s_lshl_b32 s42, s37, 20
    s_add_u32 s39, s39, s42
    v_bfe_u32 v2, v0, 2, 2
    v_lshrrev_b32 v3, 4, v0
    v_and_b32 v4, 3, v0
    v_lshlrev_b32 v2, 8, v2
    v_lshlrev_b32 v4, 4, v4
    v_lshl_add_u32 v2, v3, 6, v2
    v_add3_u32 v252, v2, v4, s39
    v_and_b32 v4, 15, v0
    v_lshlrev_b32 v3, 10, v3
    v_lshlrev_b32 v4, 4, v4
    v_add3_u32 v254, v3, v4, s39
    {"" if DY else "v_or_b32 v253, s43, v252"}
    {"" if DY else "v_or_b32 v255, s43, v254"}
    v_mov_b32 v2, 0
    v_mov_b32 v3, 0
    v_lshlrev_b32 v4, 3, v0
    ds_write_b64 v4, v[2:3] offset:{LQ}
    s_waitcnt lgkmcnt(0)
    {"" if o["lb"] else "s_barrier"}""")
    if o["stamps"]: a("v_mov_b32 v1, 0\nv_writelane_b32 v1, s100, 0")
    a(f"s_load_dword s84, s[26:27], {CAN}")
    srd(28, 6, 1 << 25); srd(32, 8, 1 << 25)
    if o["prio"]: a(f"s_cmp_lg_u32 s3, 0\ns_cbranch_scc1 L_noprio\ns_setprio {o['prio']}\nL_noprio:")
    for s_ in range(1, 6): a(f"s_mov_b32 s{15+s_}, {4096*(s_-1 if DY else s_)}")
    NV = o["nv"]; TH = o["thr"]; SG = o["stag"]
    KL = [f"buffer_load_dwordx4 {v(K0+16*sl+4*t,4)}, {'v253' if sl==0 else 'v252'}, s[28:31], {'0' if sl==0 else 's%d'%(15+sl)} offen offset:{1024*t} {KV}" for sl in range(6) for t in range(4)]
    VL = [f"buffer_load_dwordx4 {v(V0+16*sl+4*t,4)}, {'v255' if sl==0 else 'v254' if D2 else 'v248'}, s[32:35], {'0' if sl==0 else 's%d'%(15+sl)} offen offset:{256*t} {KV}" for sl in range(6) for t in range(4)]
    assert NV >= 4
    a("v_mov_b32 v248, v254")
    srd(12, 26, MBX)
    def progress(n, done=False):
        if o["trig"] and n in o["trig"][1:]:
            a(f"s_cmp_lg_u32 s3, {o['trig'][0]}\ns_cbranch_scc1 L_notrig{n}")
            if o["trig"][1] != o["trig"][2]: a(f"s_cmp_{'ge' if n == o['trig'][1] else 'lt'}_u32 s2, 175\ns_cbranch_scc1 L_notrig{n}")
            if n < 100 and not done: a("s_waitcnt lgkmcnt(0)\ns_or_b32 s22, s84, 0x01010101\ns_add_u32 s22, s22, 1\ns_or_b32 s22, s22, 0x01010101")
            else: a("s_mov_b32 s22, s84")
            a(f"""s_sub_u32 s24, s2, 64
            s_mul_i32 s23, s24, 171
            s_lshr_b32 s23, s23, 9
            s_mul_i32 s25, s23, 3
            s_sub_u32 s24, s24, s25
            s_cmp_ge_u32 s23, 37
            s_cselect_b32 s25, 37, 0
            s_sub_u32 s23, s23, s25
            s_cmp_eq_u32 s25, 0
            s_cselect_b32 s91, {37 // o["tw"]}, {27 // o["tw"]}
            v_mov_b32 v2, s23
            v_mad_u32_u24 v2, v0, s91, v2
            s_cselect_b32 s91, 37, 27
            v_subrev_u32 v3, s91, v2
            v_min_u32 v2, v2, v3
            v_add_u32 v2, s25, v2
            v_lshlrev_b32 v2, 7, v2
            v_mad_u32_u24 v3, v0, 12, v2
            s_lshl_b32 s24, s24, 2
            s_add_u32 s24, s24, {PG}
            v_add_u32 v3, s24, v3
            v_mov_b32 v2, s22
            s_mov_b64 exec, {(1 << o["tw"]) - 1}
            buffer_store_dword v2, v3, s[12:15], 0 offen sc1
            s_mov_b64 exec, -1
            L_notrig{n}:""")
    for i_ in range(192): assert (i_ * 171) >> 9 == i_ // 3
    def set_s():
        a(f"""s_lshl_b32 s5, s36, 9
        s_add_u32 s10, s26, s5
        s_addc_u32 s11, s27, 0
        s_mov_b32 s4, 0x100000
        {"" if DY else "s_mov_b32 s5, s44"}
        s_mul_i32 s6, s36, 640
        s_add_u32 s6, s6, {OM}
        s_mul_i32 s7, s3, 544
        s_mov_b32 s8, {f2u(LOG2E)}
        s_mov_b32 s9, 0x3db504f3
        s_mov_b32 s21, 0xffff0000
        """)
    def set_late():
        if not D2: masks(MK, 15, 2, 3)
        a(f"""v_and_b32 v2, 15, v0
        v_lshrrev_b32 v3, 4, v0
        v_lshlrev_b32 v2, 5, v2
        v_lshl_add_u32 v2, v3, 4, v2
        v_add_u32 v2, s7, v2
        v_lshlrev_b32 v3, 4, v0
        v_add_u32 v3, 4352, v3
        v_cmp_gt_u32 vcc, 32, v0
        v_cndmask_b32 v252, v3, v2, vcc
        s_add_u32 s22, s7, 512
        v_mov_b32 v2, s22
        v_cmp_eq_u32 vcc, 0, v0
        v_cndmask_b32 v253, v3, v2, vcc
        v_mov_b32 v3, {OOB}
        v_and_b32 v2, 7, v0
        v_mul_u32_u24 v255, 544, v2
        v_cmp_gt_u32 vcc, {o["r1"]}, v2
        v_mul_u32_u24 v14, {ORS}, v2
        v_add_u32 v14, s6, v14
        v_cndmask_b32 v14, v3, v14, vcc
        v_lshrrev_b32 v2, 3, v0
        v_lshlrev_b32 v2, 4, v2
        v_add_u32 v15, v14, v2
        v_add_u32 v15, 512, v15
        v_cmp_gt_u32 vcc, {64 if o["mlf"] else 8}, v0
        v_cndmask_b32 v15, v3, v15, vcc
        s_lshl_b32 s22, s3, 7
        v_add_u32 v2, s22, v2
        v_add_u32 v254, v255, v2
        v_add_u32 v14, v14, v2
        """)
        if o["one"]:
            a(f"""v_lshlrev_b32 v254, 3, v0
            v_and_b32 v2, 1, v0
            v_cmp_eq_u32 vcc, 0, v2
            v_add_u32 v2, s6, v254
            v_mov_b32 v3, {OOB}
            v_cndmask_b32 v14, v3, v2, vcc""")
    def set_q():
        a(f"""
        v_bfe_u32 v2, v0, 2, 2
        v_lshrrev_b32 v3, 4, v0
        v_and_b32 v8, 3, v0
        v_lshlrev_b32 v3, 6, v3
        v_lshl_add_u32 v3, v8, 4, v3
        v_mov_b32 v12, 256""")
        for t in range(4): a(f"v_cmp_eq_u32 vcc, {t}, v2\nv_cndmask_b32 v{8+t}, v12, v3, vcc")
        a("s_waitcnt lgkmcnt(0)"); nonce(84, 85)
    def q_wait():
        a("s_cmp_lg_u32 s3, 0\ns_cbranch_scc1 L_qwait")
        for h in range(2):
            a(f"""L_q{h}:
            s_load_dwordx16 s[36:51], s[10:11], {256*h} glc
            s_load_dwordx16 s[52:67], s[10:11], {256*h+64} glc
            s_load_dwordx16 s[68:83], s[10:11], {256*h+128} glc
            s_waitcnt lgkmcnt(0)
            s_xor_b32 s22, s39, s84""")
            for j_ in range(1, 11): a(f"s_xor_b32 s23, s{39+4*j_}, s84\ns_or_b32 s22, s22, s23")
            a(f"s_cbranch_scc0 L_q{h}ok")
            spin(f"L_q{h}", 4)
            a(f"L_q{h}ok:")
            if h == 0: stamp(2)
            for d in range(32): a(f"v_writelane_b32 v2, s{36 + 4*(d//3) + d%3}, {32*h+d}")
        a(f"""v_lshlrev_b32 v3, 2, v0
        v_mov_b32 v13, 1
        ds_write_b32 v3, v2 offset:{LQ}
        ds_write_b32 v12, v13 offset:{LQ+16}
        L_qwait:
        ds_read_b32 v13, v12 offset:{LQ+16}
        s_waitcnt lgkmcnt(0)
        v_cmp_eq_u32 vcc, 1, v13
        s_cbranch_vccnz L_qgo
        s_sleep 2""")
        spin("L_qwait", 4)
        a("L_qgo:")
        for t in range(4): a(f"ds_read_b128 {v(AQ+4*t,4)}, v{8+t} offset:{LQ}")
        a("s_waitcnt lgkmcnt(0)")
    if not DY:
        def issue(th, real, sfx):
            for n, x in enumerate(KL + VL[:NV]):
                a(x)
                if o["lb"] and n == th: a("s_barrier")
                if th and th <= n < 24 + NV - o["tail"] and (real or not (n < 4 or 24 <= n < 28)): a(f"s_waitcnt vmcnt({th})")
                if n == 23 and o["kbar"]: a("s_barrier")
                if not sfx: progress(n + 1)
        if o["thr5"]:
            assert o["trig"] is None or o["trig"][0] >= 3
            a("s_cmp_eq_u32 s43, 0\ns_cbranch_scc1 L_iss6")
            issue(o["thr5"], False, "")
            a("s_branch L_issd\nL_iss6:")
            issue(TH, True, "6")
            a("L_issd:")
        else: issue(TH, True, "")
        if SG:
            a("s_cmp_lt_u32 s3, 4\ns_cbranch_scc1 L_stag0")
            for n, x in enumerate(VL[NV:NV+SG]):
                a(x)
                if TH: a(f"s_waitcnt vmcnt({TH + o['tail']})")
                progress(25 + NV + n)
            a("L_stag0:")
        stamp(1); set_s(); set_late(); set_q(); q_wait()
    elif D2:
        def claim_use():
            a(f"""s_waitcnt vmcnt({36 - D2})
            v_readfirstlane_b32 s22, v15
            s_bitcmp1_b32 s22, 0
            s_cbranch_scc1 L_claimed
            s_waitcnt vmcnt(0)
            v_readfirstlane_b32 s22, v15
            L_claimed:
            s_lshr_b32 s22, s22, 1
            s_add_u32 s23, s22, s89
            s_lshl_b32 s23, s23, 12
            s_cmp_lt_u32 s22, 16
            s_cselect_b32 s23, s23, {OOB}
            s_cselect_b32 s5, 0, 1
            v_add_u32 v253, s23, v252
            v_add_u32 v255, s23, v254""")
            for x in KL[:4] + VL[20:] + VL[:4]: a(x)
            stamp(8)
            set_late()
        for n, x in enumerate(KL[4:] + VL[4:20]):
            if n == D2:
                a("s_waitcnt lgkmcnt(0)\ns_cmp_eq_u32 s95, s84\ns_cbranch_scc1 L_cok\nL_cw:\ns_load_dword s95, s[92:93], 4 glc\ns_waitcnt lgkmcnt(0)\ns_cmp_eq_u32 s95, s84\ns_cbranch_scc1 L_cok")
                spin("L_cw", 4)
                a("""L_cok:
                v_mov_b32 v15, 2
                v_mov_b32 v14, s90
                s_mov_b64 exec, 1
                buffer_atomic_add v15, v14, s[12:15], 0 offen sc0 sc1
                s_mov_b64 exec, -1""")
            if n == D2 - 6: a("s_load_dword s95, s[92:93], 4 glc")
            a(x)
            if n == 4:
                set_s(); set_q(); masks(MK, 15, 2, 3)
                a(f"""s_add_u32 s92, s26, s90
                s_addc_u32 s93, s27, 0
                s_or_b32 s22, s38, s3
                s_cmp_lg_u32 s22, 0
                s_cbranch_scc1 L_noinit
                v_mov_b32 v14, s84
                v_cmp_gt_u32 vcc, 1, v0
                v_cndmask_b32 v14, v14, 1, vcc
                v_lshl_add_u32 v15, v0, 2, s90
                s_mov_b32 exec_hi, 0
                buffer_store_dword v14, v15, s[12:15], 0 offen sc1
                s_mov_b64 exec, -1
                L_noinit:""")
            if TH and TH <= n < 36 - o["tail"]: a(f"s_waitcnt vmcnt({TH})")
            progress(n + 1, n >= 4)
        stamp(1)
        if o["pos"] == 0: claim_use()
        q_wait()
    else:
        order = KL[4:] + VL[4:20] + KL[:4] + VL[20:] + VL[:4]
        for n, x in enumerate(order):
            if n == DY:
                stamp(1); q_wait()
                a("""v_mov_b32 v13, 2
                v_mov_b32 v12, s90
                s_mov_b64 exec, 1
                buffer_atomic_add v13, v12, s[12:15], 0 offen sc0 sc1
                s_mov_b64 exec, -1""")
            if n == 36:
                a(f"""s_waitcnt vmcnt({36 - DY})
                v_readfirstlane_b32 s22, v13
                s_bitcmp1_b32 s22, 0
                s_cbranch_scc1 L_claimed
                s_waitcnt vmcnt(0)
                v_readfirstlane_b32 s22, v13
                L_claimed:
                s_lshr_b32 s22, s22, 1
                s_add_u32 s23, s22, s89
                s_lshl_b32 s23, s23, 12
                s_cmp_lt_u32 s22, 16
                s_cselect_b32 s23, s23, {OOB}
                s_cselect_b32 s5, 0, 0xff800000
                v_add_u32 v253, s23, v252
                v_add_u32 v255, s23, v248""")
                stamp(8)
            a(x)
            if n == 4: set_s(); set_q()
            if TH and TH <= n < 48 - o["tail"]: a(f"s_waitcnt vmcnt({TH})")
            progress(n + 1, n >= 4)
        set_late()
    def att_d2():
        D = "row_mask:0xf bank_mask:0xf"
        Y = 12 if o["pos"] == 0 else 0
        SL = [1, 2, 3, 4, 5]
        stamp(3)
        for sl in SL:
            a(f"s_waitcnt vmcnt({16 + Y + 4*(5-sl)})")
            for t in range(4):
                a(f"v_mfma_f32_16x16x32_bf16 {v(DQ+4*sl,4)}, {v(AQ+4*t,4)}, {v(K0+16*sl+4*t,4)}, {'0' if t==0 else v(DQ+4*sl,4)}")
        stamp(4); progress(100)
        def extract(L):
            for r in range(4):
                for sl in L:
                    qp = f"quad_perm:[{r},{r},{r},{r}] {D}"
                    if r == 0: a(f"v_mov_b32_dpp v{S0+sl}, v{DQ+4*sl} {qp}")
                    else: a(f"v_add_f32_dpp v{S0+sl}, v{DQ+4*sl+r}, v{S0+sl} {qp}")
        def red(op, R, TT):
            a(f"""v_{op}_f32_dpp v{R}, v{R}, v{R} row_ror:4 {D}
            v_{op}_f32_dpp v{R}, v{R}, v{R} row_ror:8 {D}
            v_mov_b32 v{TT}, v{R}
            v_permlane16_swap_b32 v{R}, v{TT}
            v_{op}_f32 v{R}, v{R}, v{TT}
            v_mov_b32 v{TT}, v{R}
            v_permlane32_swap_b32 v{R}, v{TT}
            v_{op}_f32 v{R}, v{R}, v{TT}""")
        extract(SL)
        T = DQ + 4; M, L_, TT, PK, F, A0 = T + 4, T + 5, T + 6, T + 8, T + 7, T + 8
        for rnd in range(2):
            a(f"v_cvt_pk_bf16_f32 v{T}, v{S0+1}, v{S0+1}")
            for p in (1, 2): a(f"v_cvt_pk_bf16_f32 v{T+p}, v{S0+2*p}, v{S0+2*p+1}")
            a(f"v_and_b32 v{S0+1}, s21, v{T}")
            for p in (1, 2): a(f"v_lshlrev_b32 v{S0+2*p}, 16, v{T+p}\nv_and_b32 v{S0+2*p+1}, s21, v{T+p}")
            if rnd == 0:
                for sl in SL: a(f"v_mul_f32 v{S0+sl}, s9, v{S0+sl}")
        a(f"v_max3_f32 v{M}, v{S0+1}, v{S0+2}, v{S0+3}\nv_max3_f32 v{M}, v{S0+4}, v{S0+5}, v{M}")
        red("max", M, TT)
        a(f"v_mul_f32 v{M}, s8, v{M}")
        for sl in SL: a(f"v_fma_f32 v{S0+sl}, v{S0+sl}, s8, -v{M}")
        for sl in SL: a(f"v_exp_f32 v{S0+sl}, v{S0+sl}")
        for sl in SL: a(f"v_cvt_pk_bf16_f32 v{PK+sl}, v{S0+sl}, v{S0+sl}")
        def pbuild(sl, src):
            for k in range(4):
                for r in range(4): a(f"v_and_b32_dpp v{K0+16*sl+4*k+r}, v{src}, v{MK+r} row_newbcast:{4*k} {D}")
        if o["pos"] == 2: claim_use()
        for sl in SL: pbuild(sl, PK+sl)
        a(f"""v_add_f32 v{L_}, v{S0+1}, v{S0+2}
        v_add_f32 v{TT}, v{S0+3}, v{S0+4}
        v_add_f32 v{L_}, v{L_}, v{S0+5}
        v_add_f32 v{L_}, v{L_}, v{TT}""")
        red("add", L_, TT)
        if o["pos"] == 1: claim_use()
        stamp(5)
        for sl in SL[:4]:
            a(f"s_waitcnt vmcnt({12 + 4*(4-sl)})"); progress(100 + sl)
            for k in range(4): a(f"v_mfma_f32_16x16x32_bf16 {v(ACC,4)}, {v(K0+16*sl+4*k,4)}, {v(V0+16*sl+4*k,4)}, {'0' if sl==1 and k==0 else v(ACC,4)}")
        def pv5():
            for k in range(4): a(f"s_waitcnt vmcnt({7-k})\nv_mfma_f32_16x16x32_bf16 {v(ACC,4)}, {v(K0+80+4*k,4)}, {v(V0+80+4*k,4)}, {v(ACC,4)}")
        a("s_cmp_eq_u32 s5, 0\ns_cbranch_scc1 L_won")
        pv5()
        a("s_branch L_pvdone\nL_won:\ns_waitcnt vmcnt(8)")
        for t in range(4): a(f"v_mfma_f32_16x16x32_bf16 {v(DQ,4)}, {v(AQ+4*t,4)}, {v(K0+4*t,4)}, {'0' if t==0 else v(DQ,4)}")
        extract([0])
        a(f"""v_cvt_pk_bf16_f32 v{S0}, v{S0}, v{S0}
        v_and_b32 v{S0}, s21, v{S0}
        v_mul_f32 v{S0}, s9, v{S0}
        v_cvt_pk_bf16_f32 v{S0}, v{S0}, v{S0}
        v_and_b32 v{S0}, s21, v{S0}
        v_mov_b32 v{S0+1}, v{S0}""")
        red("max", S0+1, TT)
        a(f"""v_mul_f32 v{S0+1}, s8, v{S0+1}
        v_max_f32 v{S0+1}, v{S0+1}, v{M}
        v_fma_f32 v{S0}, v{S0}, s8, -v{S0+1}
        v_sub_f32 v{F}, v{M}, v{S0+1}
        v_exp_f32 v{S0}, v{S0}
        v_exp_f32 v{F}, v{F}
        v_mov_b32 v{M}, v{S0+1}
        v_cvt_pk_bf16_f32 v{S0+2}, v{S0}, v{S0}""")
        pbuild(0, S0+2)
        pv5()
        red("add", S0, TT)
        a(f"v_fma_f32 v{L_}, v{L_}, v{F}, v{S0}")
        for k in range(4): a(f"s_waitcnt vmcnt({3-k})\nv_mfma_f32_16x16x32_bf16 {v(A0,4)}, {v(K0+4*k,4)}, {v(V0+4*k,4)}, {'0' if k==0 else v(A0,4)}")
        for r in range(4): a(f"v_fma_f32 v{ACC+r}, v{ACC+r}, v{F}, v{A0+r}")
        a(f"L_pvdone:\nds_write_b64 v253, {v(M,2)}")
    if D2: att_d2()
    else:
        stamp(3)
        for sl in ([1, 2, 3, 4, 5, 0] if DY else range(6)):
            if not DY: a(f"s_waitcnt vmcnt({20+NV-4*sl})")
            elif sl < 2: a(f"s_waitcnt vmcnt({28 if sl else 8})")
            for t in range(4):
                a(f"v_mfma_f32_16x16x32_bf16 {v(DQ+4*sl,4)}, {v(AQ+4*t,4)}, {v(K0+16*sl+4*t,4)}, {'0' if t==0 else v(DQ+4*sl,4)}")
        stamp(4); progress(100)
        for r in range(4):
            for sl in range(6):
                qp = f"quad_perm:[{r},{r},{r},{r}] row_mask:0xf bank_mask:0xf"
                if r == 0: a(f"v_mov_b32_dpp v{S0+sl}, v{DQ+4*sl} {qp}")
                else: a(f"v_add_f32_dpp v{S0+sl}, v{DQ+4*sl+r}, v{S0+sl} {qp}")
        T = AQ
        for rnd in range(2):
            for p in range(3): a(f"v_cvt_pk_bf16_f32 v{T+p}, v{S0+2*p}, v{S0+2*p+1}")
            for p in range(3): a(f"v_lshlrev_b32 v{S0+2*p}, 16, v{T+p}\nv_and_b32 v{S0+2*p+1}, s21, v{T+p}")
            if rnd == 0:
                for sl in range(6): a(f"v_mul_f32 v{S0+sl}, s9, v{S0+sl}")
        M, L_, TT = T + 4, T + 5, T + 6
        a(f"""v_add_f32 v{S0}, s5, v{S0}
        v_max3_f32 v{M}, v{S0+1}, v{S0+2}, v{S0+3}
        v_max3_f32 v{TT}, v{S0+4}, v{S0+5}, v{S0}
        v_max_f32 v{M}, v{M}, v{TT}
        v_max_f32_dpp v{M}, v{M}, v{M} row_ror:4 row_mask:0xf bank_mask:0xf
        v_max_f32_dpp v{M}, v{M}, v{M} row_ror:8 row_mask:0xf bank_mask:0xf
        v_mov_b32 v{TT}, v{M}
        v_permlane16_swap_b32 v{M}, v{TT}
        v_max_f32 v{M}, v{M}, v{TT}
        v_mov_b32 v{TT}, v{M}
        v_permlane32_swap_b32 v{M}, v{TT}
        v_max_f32 v{M}, v{M}, v{TT}
        v_mul_f32 v{M}, s8, v{M}""")
        for sl in range(6): a(f"v_fma_f32 v{S0+sl}, v{S0+sl}, s8, -v{M}")
        for sl in range(6): a(f"v_exp_f32 v{S0+sl}, v{S0+sl}")
        PK = T + 8
        for sl in range(6): a(f"v_cvt_pk_bf16_f32 v{PK+sl}, v{S0+sl}, v{S0+sl}")
        for sl in range(6):
            for k in range(4):
                for r in range(4):
                    a(f"v_and_b32_dpp v{K0+16*sl+4*k+r}, v{PK+sl}, v{MK+r} row_newbcast:{4*k} row_mask:0xf bank_mask:0xf")
        a(f"""v_add_f32 v{L_}, v{S0}, v{S0+1}
        v_add_f32 v{TT}, v{S0+2}, v{S0+3}
        v_add_f32 v{S0+4}, v{S0+4}, v{S0+5}
        v_add_f32 v{L_}, v{L_}, v{TT}
        v_add_f32 v{L_}, v{L_}, v{S0+4}
        v_add_f32_dpp v{L_}, v{L_}, v{L_} row_ror:4 row_mask:0xf bank_mask:0xf
        v_add_f32_dpp v{L_}, v{L_}, v{L_} row_ror:8 row_mask:0xf bank_mask:0xf
        v_mov_b32 v{TT}, v{L_}
        v_permlane16_swap_b32 v{L_}, v{TT}
        v_add_f32 v{L_}, v{L_}, v{TT}
        v_mov_b32 v{TT}, v{L_}
        v_permlane32_swap_b32 v{L_}, v{TT}
        v_add_f32 v{L_}, v{L_}, v{TT}
        ds_write_b64 v253, {v(M,2)}""")
        if SG:
            a("s_cmp_ge_u32 s3, 4\ns_cbranch_scc1 L_stag1")
            for x in VL[NV:NV+SG]: a(x)
            a("L_stag1:")
        if not DY:
            for x in VL[NV+SG:]: a(x)
        stamp(5)
        for i_, sl in enumerate([1, 2, 3, 4, 5, 0] if DY else range(6)):
            for k in range(4):
                n = 23 - 4 * i_ - k
                if DY:
                    if i_ >= 4: a(f"s_waitcnt vmcnt({n})")
                elif k == 0 or sl == 5: a(f"s_waitcnt vmcnt({n - (3 if sl < 5 else 0)})")
                if k == 0: progress(101 + i_)
                a(f"v_mfma_f32_16x16x32_bf16 {v(ACC,4)}, {v(K0+16*sl+4*k,4)}, {v(V0+16*sl+4*k,4)}, {'0' if i_==0 and k==0 else v(ACC,4)}")
    stamp(6)
    a(f"""ds_write_b128 v252, {v(ACC,4)}
    s_waitcnt lgkmcnt(0)""")
    if o["adry"]:
        a(f"""s_mov_b32 s14, 0
        s_cmp_lt_u32 s3, {1 if o["one"] else 4}
        s_cbranch_scc1 L_comb
        L_bar:
        s_mov_b32 s14, {MBX}""")
    a(f"""s_barrier
    """)
    if o["one"]:
        a("""s_cmp_lg_u32 s3, 0
        s_cbranch_scc1 L_att_end
        L_comb:
        ds_read_b64 v[16:17], v255 offset:512""")
        for k in range(8): a(f"ds_read_b64 {v(28+2*k,2)}, v254 offset:{544*k}")
        a("""v_mov_b32 v26, s84
        v_mov_b32 v27, s84
        v_mov_b32 v18, 0xff
        s_waitcnt lgkmcnt(8)
        v_max_f32_dpp v24, v16, v16 quad_perm:[1,0,3,2] row_mask:0xf bank_mask:0xf
        v_max_f32_dpp v24, v24, v24 quad_perm:[2,3,0,1] row_mask:0xf bank_mask:0xf
        v_max_f32_dpp v24, v24, v24 row_half_mirror row_mask:0xf bank_mask:0xf
        v_sub_f32 v16, v16, v24
        v_exp_f32 v16, v16
        s_waitcnt lgkmcnt(0)
        v_mul_f32 v25, v16, v17""")
        D = "row_mask:0xf bank_mask:0xf"
        for k in range(8):
            for e in range(2):
                dst = 20 + e + 2 * (k & 1)
                a(f"v_{'mul' if k < 2 else 'fmac'}_f32_dpp v{dst}, v16, v{28+2*k+e} row_newbcast:{k} {D}")
            if k in (1, 3, 5): a(f"v_add_f32_dpp v25, v25, v25 {['quad_perm:[1,0,3,2]', 'quad_perm:[2,3,0,1]', 'row_half_mirror'][k//2]} {D}")
        a(f"""v_pk_add_f32 v[20:21], v[20:21], v[22:23]
        v_mov_b32_dpp v22, v20 quad_perm:[1,0,3,2] {D}
        v_mov_b32_dpp v23, v21 quad_perm:[1,0,3,2] {D}""")
        tag4(20, 18, 85)
        a("""buffer_store_dwordx4 v[20:23], v14, s[12:15], 0 offen sc1
        buffer_store_dwordx4 v[24:27], v15, s[12:15], 0 offen sc1""")
    else:
      a(f"""    s_cmp_ge_u32 s3, 4
    s_cbranch_scc1 L_att_end
    L_comb:
    ds_read_b64 v[16:17], v255 offset:512
    ds_read_b128 v[20:23], v254
    v_mov_b32 v26, s84
    v_mov_b32 v27, s84
    v_mov_b32 v18, 0xff
    s_waitcnt lgkmcnt(1)
    v_max_f32_dpp v24, v16, v16 quad_perm:[1,0,3,2] row_mask:0xf bank_mask:0xf
    v_max_f32_dpp v24, v24, v24 quad_perm:[2,3,0,1] row_mask:0xf bank_mask:0xf
    v_max_f32_dpp v24, v24, v24 row_half_mirror row_mask:0xf bank_mask:0xf
    v_sub_f32 v16, v16, v24
    v_exp_f32 v16, v16
    s_waitcnt lgkmcnt(0)
    v_mul_f32 v25, v16, v17""")
      for r in range(4): a(f"v_mul_f32 v{20+r}, v16, v{20+r}")
      for dp in ("quad_perm:[1,0,3,2]", "quad_perm:[2,3,0,1]", "row_half_mirror"):
          for r in (20, 21, 22, 23, 25): a(f"v_add_f32_dpp v{r}, v{r}, v{r} {dp} row_mask:0xf bank_mask:0xf")
      tag4(20, 18, 85)
      a("""buffer_store_dwordx4 v[20:23], v14, s[12:15], 0 offen sc1
    s_cmp_lg_u32 s3, 0
    s_cbranch_scc1 L_comb_end
    buffer_store_dwordx4 v[24:27], v15, s[12:15], 0 offen sc1
    L_comb_end:""")
    if o["adry"]: a("s_cmp_eq_u32 s14, 0\ns_cbranch_scc1 L_bar")
    a("L_att_end:")
    stamp(7)
    if o["pf"] is not None:
        for k_ in range(192): assert (k_ * 171) >> 13 == k_ // 48
        a(f"""s_load_dwordx4 s[36:39], s[0:1], 48
        s_load_dwordx2 s[40:41], s[0:1], 64
        s_sub_u32 s22, s2, 64
        s_and_b32 s23, s22, 0xf8
        s_add_u32 s23, s23, s3
        s_mul_i32 s24, s23, 171
        s_lshr_b32 s24, s24, 13
        s_mul_i32 s25, s24, 48
        s_sub_u32 s23, s23, s25
        s_add_u32 s22, s22, 3
        s_and_b32 s22, s22, 7
        s_lshl_b32 s24, s24, 3
        s_add_u32 s22, s22, s24
        s_barrier
        s_cmp_ge_u32 s22, 27
        s_cbranch_scc1 L_pf_end
        s_mov_b32 s46, 2211840
        s_mov_b32 s47, 0x20000
        s_cmp_ge_u32 s23, 32
        s_cbranch_scc1 L_pf_dn
        s_and_b32 s24, s23, 15
        s_mul_i32 s24, s24, {40*3456}
        s_lshl_b32 s22, s22, 7
        s_add_u32 s24, s24, s22
        v_lshrrev_b32 v2, 3, v0
        v_and_b32 v3, 7, v0
        v_mul_u32_u24 v2, 3456, v2
        v_lshl_add_u32 v2, v3, 4, v2
        s_mov_b32 s25, {8*3456}
        s_cmp_lt_u32 s23, 16
        s_waitcnt lgkmcnt(0)
        s_cselect_b32 s44, s36, s38
        s_cselect_b32 s45, s37, s39
        s_branch L_pf_go
        L_pf_dn:
        s_sub_u32 s24, s23, 32
        s_mul_i32 s24, s24, 5120
        s_mul_i32 s22, s22, 81920
        s_add_u32 s24, s24, s22
        v_lshlrev_b32 v2, 4, v0
        s_mov_b32 s25, 1024
        s_waitcnt lgkmcnt(0)
        s_mov_b32 s44, s40
        s_mov_b32 s45, s41
        L_pf_go:""")
        for k_ in range(5): a(f"buffer_load_dwordx4 {v(32+4*k_,4)}, v2, s[44:47], s24 offen {o['pf']}\ns_add_u32 s24, s24, s25")
        a("s_waitcnt vmcnt(0)\nL_pf_end:")
    stamp_out()
    a("L_end:\ns_endpgm")
    GU, WO, DN = 16, 96, 160
    M8, M4 = 4, 8
    SB = 80
    HW, HS, HC, PW, PR, YW = 240, 241, 242, 243, 244, 245
    C640, CG2 = 246, 249
    NS, TS, E0, VM = 93, 56, 247, 14
    g1 = -2 * LOG2E * 0.7978845608028654
    SM = o["sm"]; DA = 124 if SM else 208
    assert not SM or (o["x2"] and o["lnf"] and not o["al2"] and o["skip"])
    def gq(t, m): return GU + 16*(t%5) + 8*m + 4*(t//5) if SM else GU + 8*t + 4*m
    def smf(d, a_, b_): a(f"v_smfmac_f32_16x16x64_bf16 {v(d,4)}, {v(a_,4)}, {v(b_,8)}, v10")
    def sm_tiles(tl, waits, acc=252):
        for t, (x_, y_, w_) in enumerate(tl):
            if t in waits: a(f"s_waitcnt lgkmcnt({waits[t]})")
            for r in range(4): a(f"v_and_b32 v{228+4*(t%3)+r}, v{x_ if r < 2 else y_}, v{8+(r&1)}")
            if t > 0: smf(acc, 228+4*((t-1)%3), tl[t-1][2])
        smf(acc, 228+4*((len(tl)-1)%3), tl[-1][2])
    def gu_list():
        L = []
        for t in range(10):
            va = 250; k_ = t
            if o["al2"]: va, k_ = (110, t // 5) if t % 5 == 4 else (250, t - t // 5)
            so = "0" if k_ == 0 else f"s{59+k_}"
            L.append(f"buffer_load_dwordx4 {v(gq(t,0),4)}, v{va}, s[32:35], {so} offen {WT}")
            L.append(f"buffer_load_dwordx4 {v(gq(t,1),4)}, v{va}, s[36:39], {so} offen {WT}")
        return L
    def gu_setup():
        srd(32, 16, 2211840); srd(36, 18, 2211840)
        for t in range(1, 10): a(f"s_mov_b32 s{59+t}, {3456*t}")
        if o["al2"]:
            a("""s_lshl_b32 s72, s3, 3
            v_add_u32 v14, s72, v2
            v_mul_u32_u24 v250, 27648, v14
            v_mul_u32_u24 v110, 6912, v14
            s_lshl_b32 s72, s77, 7
            v_lshl_add_u32 v15, v3, 4, s72
            v_add_u32 v250, v250, v15
            v_add_u32 v110, v110, v15
            v_add_u32 v110, 1769472, v110
            v_lshrrev_b32 v14, 2, v0
            s_lshl_b32 s72, s3, 4
            v_add_u32 v111, s72, v14
            v_lshlrev_b32 v14, 3, v111
            v_lshlrev_b32 v15, 1, v111
            buffer_load_dwordx2 v[98:99], v14, s[28:31], 0 offen
            buffer_load_ushort v100, v15, s[28:31], 0 offen offset:1024""")
        else: a("s_lshl_b32 s72, s77, 7\nv_mul_u32_u24 v250, 3456, v12\nv_lshl_add_u32 v250, v3, 4, v250\nv_add_u32 v250, s72, v250")
        if SM:
            a("""v_bfe_u32 v14, v0, 4, 1
            v_bfe_u32 v15, v0, 2, 1
            v_lshl_add_u32 v14, v14, 1, v15
            v_bfe_u32 v15, v0, 3, 1
            v_lshl_add_u32 v14, v14, 1, v15
            v_lshrrev_b32 v15, 5, v0
            v_lshl_add_u32 v14, v14, 1, v15
            s_mul_i32 s72, s3, 80
            v_mad_u32_u24 v111, v14, 5, s72
            v_lshlrev_b32 v14, 1, v111""")
            for e in range(5): a(f"buffer_load_ushort v{96+e}, v14, s[28:31], 0 offen offset:{2*e}")
    def dn_loads():
        srd(44, 20, 2211840)
        a("""s_lshl_b32 s72, s77, 3
        s_add_u32 s72, s72, s3
        s_mul_i32 s72, s72, 10240
        v_lshrrev_b32 v14, 4, v0
        v_mul_u32_u24 v14, %d, v14
        v_and_b32 v15, 15, v0
        v_lshl_add_u32 v14, v15, 4, v14
        v_add_u32 v14, s72, v14""" % (1280 if SM else 2560))
        if SM:
            a("s_mov_b32 s69, 5120\nv_mov_b32 v110, v14")
            L = [f"buffer_load_dwordx4 {v(DN+8*b+4*t,4)}, v110, s[44:47], {'s69' if t else '0'} offen offset:{256*b} {WT}" for b in range(5) for t in range(2)]
            for x in L[:10 - o["dl"]]: a(x)
            return L[10 - o["dl"]:]
        for t in range(2):
            for b in range(5): a(f"buffer_load_dwordx4 {v(DN+20*t+4*b,4)}, v14, s[44:47], 0 offen offset:{1280*t+256*b} {WT}")
    def wo_list():
        return [f"buffer_load_dwordx4 {v(WO+8*(t&7)+4*(t>>3) if SM else WO+4*t,4)}, v251, s[40:43], {'0' if t < 4 else 's%d' % (68 + t//4)} offen offset:{1280*(t&3)} {WT}" for t in range(16)]
    def xw_loads():
        XW = 16
        a(f"""s_mul_i32 s72, s79, 163840
                s_mul_i32 s73, s3, 20480
                s_add_u32 s72, s72, s73
                s_lshl_b32 s73, s75, 7
                s_add_u32 s72, s72, s73
                v_mul_u32_u24 v14, 2560, v2
                v_lshl_add_u32 v14, v3, 4, v14
                v_add_u32 v14, s72, v14
                s_mov_b32 s72, 163840
                s_mov_b32 s73, 327680""")
        for e in range(3):
            for t in range(2): a(f"buffer_load_dwordx4 {v(XW+8*e+4*t,4)}, v14, s[40:43], {['0','s72','s73'][e]} offen offset:{1280*t} {WT}")
    def wq_loads(base, va):
        for t in range(10): a(f"buffer_load_dwordx4 {v(base+4*t,4)}, v{va}, s[52:55], {'0' if t == 0 else 's%d' % (83+t)} offen {WT}")
    def ln(wait_c):
        for p in range(5): a(f"v_pk_add_f32 {v(204+2*p,2)}, {v(204+2*p,2)}, v[214:215] op_sel_hi:[1,0] neg_lo:[0,1] neg_hi:[0,1]")
        a("""v_pk_mul_f32 v[14:15], v[204:205], v[204:205]
        v_pk_add_f32 v[204:205], v[204:205], v[206:207]
        v_pk_fma_f32 v[14:15], v[206:207], v[206:207], v[14:15]
        v_pk_add_f32 v[206:207], v[208:209], v[210:211]
        v_pk_fma_f32 v[14:15], v[208:209], v[208:209], v[14:15]
        v_pk_add_f32 v[204:205], v[204:205], v[212:213]
        v_pk_fma_f32 v[14:15], v[210:211], v[210:211], v[14:15]
        v_pk_add_f32 v[204:205], v[204:205], v[206:207]
        v_pk_fma_f32 v[14:15], v[212:213], v[212:213], v[14:15]
        v_add_f32 v204, v204, v205
        v_add_f32 v14, v14, v15""")
        for dp in ("row_ror:1 row_mask:0xf", "row_ror:2 row_mask:0xf", "row_ror:4 row_mask:0xf", "row_ror:8 row_mask:0xf", "row_bcast:15 row_mask:0xa", "row_bcast:31 row_mask:0xc"):
            a(f"v_add_f32_dpp v204, v204, v204 {dp} bank_mask:0xf\nv_add_f32_dpp v14, v14, v14 {dp} bank_mask:0xf")
        a(f"""v_readlane_b32 s72, v204, 63
        v_readlane_b32 s73, v14, 63
        v_mul_f32 v14, s72, v{C640}
        v_mul_f32 v15, s73, v{C640}
        v_add_f32 v214, v214, v14
        v_fma_f32 v15, -v14, v14, v15
        v_cvt_pk_bf16_f32 v14, v214, v15
        v_and_b32 v15, s81, v14
        v_lshlrev_b32 v214, 16, v14
        v_add_f32 v15, {f2u(1e-5)}, v15""")
        a(wait_c)
        pk = [f"v_pk_add_f32 {v(216+2*p,2)}, {v(216+2*p,2)}, v[214:215] op_sel_hi:[1,0] neg_lo:[0,1] neg_hi:[0,1]" for p in range(5)]
        cv = [f"v_cvt_pk_bf16_f32 v{204+p}, v{216+2*p}, v{217+2*p}" for p in range(5)]
        un = [f"v_lshlrev_b32 v{216+2*p}, 16, v{204+p}\nv_and_b32 v{217+2*p}, s81, v{204+p}" for p in range(5)]
        a("v_cvt_pk_bf16_f32 v15, v15, v15"); a(pk[0]); a("v_and_b32 v15, s81, v15"); a(pk[1]); a("v_sqrt_f32 v15, v15")
        a(pk[2]); a(pk[3]); a("v_cvt_pk_bf16_f32 v15, v15, v15"); a(pk[4]); a("v_and_b32 v15, s81, v15"); a(cv[0]); a("v_rcp_f32 v14, v15")
        for x in cv[1:] + un: a(x)
        for p in range(5): a(f"v_pk_mul_f32 {v(216+2*p,2)}, {v(216+2*p,2)}, v[14:15] op_sel_hi:[1,0]")
        for t in range(10): a(f"v_cvt_pk_bf16_f32 v{216+t}, v{216+t}, v{216+t}")
    def qgemv(base, acc, after, nxt):
        nxt = list(nxt); issued = 0
        for t in range(10):
            for r in range(4): a(f"v_and_b32 v{228+4*(t%2)+r}, v{216+t}, v{M8+r}")
            a(f"s_waitcnt vmcnt({9-t+after+issued})")
            a(f"v_mfma_f32_16x16x32_bf16 {v(acc,4)}, {v(228+4*(t%2),4)}, {v(base+4*t,4)}, {'0' if t==0 else v(acc,4)}")
            for k in range(o["il"]):
                if nxt: a(nxt.pop(0)); issued += 1
        return nxt
    def psum():
        a(f"""ds_read2st64_b32 v[204:205], v{PR} offset0:0 offset1:17
        ds_read2st64_b32 v[206:207], v{PR} offset0:1 offset1:18
        s_waitcnt lgkmcnt(1)
        v_add_f32 v204, v204, v205
        s_waitcnt lgkmcnt(0)
        v_add_f32 v206, v206, v207""")
        for dp in ("quad_perm:[1,0,3,2]", "quad_perm:[2,3,0,1]", "row_half_mirror"):
            a(f"v_add_f32_dpp v204, v204, v204 {dp} row_mask:0xf bank_mask:0xf\nv_add_f32_dpp v206, v206, v206 {dp} row_mask:0xf bank_mask:0xf")
    for i in range(28): assert (i * 37) >> 8 == i // 7
    for i in range(9): assert (i * 86) >> 8 == i // 3
    for col in range(0, 640, 2): assert (col * 52429) >> 19 == col // 10
    a("""L_aux:
    v_lshrrev_b32 v2, 3, v0
    v_and_b32 v3, 7, v0
    s_mul_i32 s72, s3, 80
    v_mul_u32_u24 v12, 10, v2
    v_add_u32 v12, s72, v12
    v_lshlrev_b32 v13, 2, v0
    s_lshl_b32 s72, s3, 8
    v_add_u32 v13, s72, v13
    s_and_b32 s78, s2, 7
    s_lshl_b32 s78, s78, 3
    s_lshr_b32 s72, s2, 3
    s_add_u32 s78, s78, s72
    s_lshl_b32 s72, s78, 7
    v_lshlrev_b32 v252, 13, v12
    v_lshl_add_u32 v252, v3, 4, v252
    v_add_u32 v252, s72, v252
    v_mul_u32_u24 v254, 20, v0
    v_lshlrev_b32 v255, 1, v12""")
    for t in range(1, 10): a(f"s_mov_b32 s{83+t}, {8192*t}")
    a("""s_mul_i32 s74, s2, 37
    s_lshr_b32 s74, s74, 8
    s_mul_i32 s75, s74, 7
    s_sub_u32 s75, s2, s75
    s_lshl_b32 s76, s74, 3
    s_sub_u32 s72, s2, 28
    s_mul_i32 s73, s72, 86
    s_lshr_b32 s73, s73, 8
    s_mul_i32 s79, s73, 3
    s_sub_u32 s72, s72, s79
    s_add_u32 s72, s72, 7
    s_mul_i32 s79, s73, 11
    s_cmp_ge_u32 s2, 28
    s_cselect_b32 s74, s73, s74
    s_cselect_b32 s75, s72, s75
    s_cselect_b32 s76, s79, s76
    s_add_u32 s79, s76, 8
    s_add_u32 s76, s76, s3
    s_mul_i32 s72, s76, 163840
    s_lshl_b32 s73, s75, 7
    s_add_u32 s72, s72, s73
    v_mul_u32_u24 v251, 20480, v2
    v_lshl_add_u32 v251, v3, 4, v251
    v_add_u32 v251, s72, v251
    s_mov_b32 s69, 5120
    s_mov_b32 s70, 10240
    s_mov_b32 s71, 15360
    s_sub_u32 s77, s2, 37
    s_waitcnt lgkmcnt(0)
    s_load_dword s93, s[26:27], %d""" % CAN)
    if o["stamps"]: a("v_mov_b32 v1, 0\nv_writelane_b32 v1, s100, 0")
    srd(28, 4, 1280); srd(52, 10, 5242880)
    if o["dyn"]:
        srd(48, 26, MBX)
        a(f"""s_lshr_b32 s72, s78, 1
        s_lshl_b32 s72, s72, 7
        s_add_u32 s72, s72, {CNT}
        s_and_b32 s73, s78, 1
        s_or_b32 s73, s73, s3
        s_cmp_eq_u32 s73, 0
        s_cbranch_scc0 L_nocnt
        v_mov_b32 v14, 1
        v_lshl_add_u32 v15, v0, 2, s72
        s_mov_b32 exec_hi, 0
        buffer_store_dword v14, v15, s[48:51], 0 offen sc1
        s_mov_b64 exec, -1
        L_nocnt:""")
    a("""buffer_load_dwordx4 v[228:231], v254, s[28:31], 0 offen
    buffer_load_dword v232, v254, s[28:31], 0 offen offset:16
    buffer_load_dwordx4 v[236:239], v255, s[28:31], 0 offen
    buffer_load_dword v233, v255, s[28:31], 0 offen offset:16
    buffer_load_dword v200, v13, s[28:31], 0 offen""")
    wq_loads(DN, 252)
    srd(48, 26, MBX); srd(40, 12, 5242880)
    a(f"s_mov_b32 s{SB}, 0x40000")
    if o["xearly"]:
        a("s_sub_u32 s72, s2, 28\ns_cmp_lt_u32 s72, 9\ns_cbranch_scc0 L_consts\ns_barrier")
        for x in wo_list(): a(x)
        xw_loads()
        a("L_consts:")
    stamp(1)
    masks(M8, 7, 14, 15)
    if SM: a("""v_and_b32 v14, 4, v0
        v_cmp_eq_u32 vcc, 0, v14
        v_mov_b32 v14, 0xffff
        v_cndmask_b32 v8, 0, v14, vcc
        v_cndmask_b32 v9, v14, 0, vcc
        v_and_b32 v14, 3, v0
        v_mul_u32_u24 v10, 0x5555, v14""")
    else: masks(M4, 15, 14, 15)
    a(f"""s_mov_b32 s81, 0xffff0000
    v_mov_b32 v{C640}, {f2u(1/640)}
    v_mov_b32 v{CG2}, {f2u(g1*0.044715)}
    v_lshrrev_b32 v14, 1, v13
    s_mov_b32 s72, 52429
    v_mul_lo_u32 v15, v14, s72
    v_lshrrev_b32 v15, 19, v15
    v_lshlrev_b32 v15, 1, v15
    v_add_u32 v14, v14, v15
    v_lshlrev_b32 v{HW}, 2, v14
    v_mul_u32_u24 v{HS}, 48, v0
    s_lshl_b32 s72, s3, 3
    v_add_u32 v14, s72, v2
    v_mul_u32_u24 v{HC}, 48, v14
    v_lshlrev_b32 v14, 2, v14
    v_mul_u32_u24 v15, 544, v3
    v_add_u32 v{PR}, v14, v15
    v_add_u32 v{PR}, {LP}, v{PR}""")
    a(f"""v_lshrrev_b32 v14, 5, v0
    v_bfe_u32 v15, v0, 3, 1
    v_cmp_eq_u32 vcc, v14, v15
    s_lshl_b32 s72, s3, 1
    v_add_u32 v14, s72, v14
    v_bfe_u32 v15, v0, 4, 1
    v_lshlrev_b32 v15, 4, v15
    v_lshl_add_u32 v15, v3, 5, v15
    v_lshlrev_b32 v201, 4, v0
    v_add_u32 v201, {LDUMP}, v201
    v_mul_u32_u24 v202, 544, v14
    v_add_u32 v202, v202, v15
    v_add_u32 v202, {LP}, v202
    v_cndmask_b32 v{PW}, v201, v202, vcc
    v_mul_u32_u24 v202, 320, v14
    v_add_u32 v202, v202, v15
    v_add_u32 v202, {LY}, v202
    v_cndmask_b32 v{YW}, v201, v202, vcc
    """)
    if o["xearly"]: a("s_sub_u32 s72, s2, 28\ns_cmp_lt_u32 s72, 9\ns_cbranch_scc1 L_xx\ns_waitcnt vmcnt(11)\nL_xx:\ns_waitcnt vmcnt(33)")
    else: a("s_waitcnt vmcnt(11)")
    for p in range(5):
        src = 228 + p; srcc = 236 + p if p < 4 else 233
        a(f"v_lshlrev_b32 v{204+2*p}, 16, v{src}\nv_and_b32 v{205+2*p}, s81, v{src}\nv_lshlrev_b32 v{216+2*p}, 16, v{srcc}\nv_and_b32 v{217+2*p}, s81, v{srcc}")
    if o["lnf"] and not o["al2"]:
        a("v_bfe_u32 v14, v0, 2, 1\nv_cmp_eq_u32 vcc, 1, v14")
        for e in range(5): a(f"v_cndmask_b32 v{96+e}, v{216+e}, v{221+e}, vcc")
    a("v_readfirstlane_b32 s72, v204\nv_mov_b32 v214, s72")
    ln("")
    stamp(13)
    if o["xearly"]:
        a("s_sub_u32 s72, s2, 28\ns_cmp_lt_u32 s72, 9\ns_cbranch_scc0 L_q_n")
        qgemv(DN, 204, 22, [])
        a("s_branch L_q_sum\nL_q_n:")
    qgemv(DN, 204, 0, [])
    a("L_q_sum:")
    stamp(18)
    a(f"""ds_write_b128 v{PW}, v[204:207]
    s_waitcnt lgkmcnt(0)""")
    nonce(NS, TS)
    a(f"""v_and_b32 v14, 1, v0
    v_cmp_eq_u32 vcc, 0, v14
    v_mov_b32 v14, s{TS}
    v_mov_b32 v15, s{TS+1}
    v_mov_b32 v{E0}, s{TS+2}
    v_mov_b32 v{E0+1}, s{TS+3}
    v_cndmask_b32 v{E0}, v{E0}, v14, vcc
    v_cndmask_b32 v{E0+1}, v{E0+1}, v15, vcc
    s_barrier
    s_cmp_lg_u32 s3, 0
    s_cbranch_scc1 L_q_1
    v_lshlrev_b32 v14, 2, v0""")
    stamp(14)
    for r in range(16): a(f"ds_read_b32 v{204+r}, v14 offset:{LP+544*r}")
    a(f"""v_and_b32 v14, 15, v0
    v_mul_u32_u24 v224, 24, v14
    v_add_u32 v225, 8, v224
    v_add_u32 v226, 16, v224
    v_cmp_gt_u32 vcc, 11, v14
    v_lshlrev_b32 v14, 4, v14
    v_lshrrev_b32 v15, 4, v0
    v_lshl_add_u32 v14, v15, 9, v14
    s_lshr_b32 s72, s78, 1
    s_mul_i32 s72, s72, 3072
    s_and_b32 s73, s78, 1
    s_lshl_b32 s73, s73, 8
    s_add_u32 s72, s72, s73
    v_mov_b32 v15, {OOB}
    v_cndmask_b32 v14, v15, v14, vcc
    v_cmp_gt_u32 vcc, 32, v0
    v_cndmask_b32 v15, v15, v14, vcc
    v_mov_b32 v223, s{NS}
    s_waitcnt lgkmcnt(0)""")
    for w in (4, 2, 1):
        for p in range(w): a(f"v_pk_add_f32 {v(204+2*p,2)}, {v(204+2*p,2)}, {v(204+2*p+2*w,2)}")
    a(f"""v_add_f32 v204, v204, v205
    v_mov_b32_dpp v205, v204 quad_perm:[1,0,3,2] row_mask:0xf bank_mask:0xf
    v_cvt_pk_bf16_f32 v204, v204, v205
    ds_bpermute_b32 v220, v224, v204
    ds_bpermute_b32 v221, v225, v204
    ds_bpermute_b32 v222, v226, v204
    s_waitcnt lgkmcnt(0)
    buffer_store_dwordx4 v[220:223], v14, s[48:51], s72 offen sc1
    buffer_store_dwordx4 v[220:223], v15, s[48:51], s72 offen offset:2048 sc1
    L_q_1:
    s_barrier""")
    stamp(15)
    if o["dry"]:
        a(f"""s_mov_b32 s82, 1
        s_mov_b32 s50, 0
        s_mov_b32 s{SB}, 0
        s_cmp_ge_u32 s2, 37
        s_cbranch_scc1 L_ffn
        s_branch L_wo
        L_real:
        s_mov_b32 s82, 0
        s_mov_b32 s50, {MBX}
        s_mov_b32 s{SB}, 0x40000""")
        stamp(17)
    if o["trig"]:
        if o["trig"][1] == 0: a("s_cmp_lt_u32 s2, 37\ns_cbranch_scc1 L_go")
        elif not o["xtrig"]: a("s_sub_u32 s72, s2, 28\ns_cmp_lt_u32 s72, 9\ns_cbranch_scc1 L_go")
        a(f"""s_cmp_lg_u32 s3, 0
        s_cbranch_scc1 L_go1
        s_lshl_b32 s72, s2, 7
        s_add_u32 s72, s72, {PG}
        v_min_u32 v205, {3 * o["tw"] - 1}, v0
        v_lshlrev_b32 v205, 2, v205
        L_tr:
        buffer_load_dword v204, v205, s[48:51], s72 offen sc1
        s_waitcnt vmcnt(0)
        v_cmp_eq_u32 vcc, s{NS}, v204
        s_cbranch_vccnz L_go1
        s_sleep 4""")
        spin("L_tr", SB)
        a("L_go1:\ns_barrier\nL_go:")
        stamp(16)
    a("s_cmp_ge_u32 s2, 37\ns_cbranch_scc1 L_ld_f")
    if o["xearly"]: a("s_cmp_ge_u32 s2, 28\ns_cbranch_scc1 L_wo")
    for x in wo_list(): a(x)
    if not o["xearly"]:
        a("s_cmp_lt_u32 s2, 28\ns_cbranch_scc1 L_wo")
        xw_loads()
    a(f"""L_wo:
    s_mul_i32 s83, s75, {o["r1"] * 6554}
    s_lshr_b32 s83, s83, 16
    s_mul_i32 s83, s83, {ORS}
    s_add_u32 s83, s83, {OM}
    s_mul_i32 s72, s76, 3840
    s_add_u32 s72, s72, s83
    v_lshlrev_b32 v202, 3, v0
    v_add_u32 v203, s72, v202
    v_and_b32 v14, 15, v0
    v_cmp_gt_u32 vcc, 6, v14
    v_cndmask_b32 v205, 0, 1.0, vcc
    v_min_u32 v14, 5, v14
    v_mul_u32_u24 v14, 640, v14
    v_add_u32 v204, s72, v14
    s_lshl_b32 s72, s3, 9
    s_add_u32 s72, s72, {LO}
    v_add_u32 v202, s72, v202
    v_lshlrev_b32 v206, 6, v2
    v_add_u32 v206, s72, v206
    v_lshrrev_b32 v14, 2, v0
    v_and_b32 v15, 3, v0
    v_lshlrev_b32 v14, 4, v14
    v_cmp_gt_u32 vcc, {o["r2"]}, v15
    v_mul_u32_u24 v208, {YRS}, v15
    v_mul_u32_u24 v15, 320, v15
    v_add_u32 v207, v14, v15
    v_add_u32 v14, v14, v208
    s_mul_i32 s72, s74, 2560
    s_lshl_b32 s73, s75, 8
    s_add_u32 s72, s72, s73
    s_add_u32 s72, s72, {YM}
    v_add_u32 v14, s72, v14
    v_mov_b32 v15, {OOB}
    v_cndmask_b32 v208, v15, v14, vcc""")
    if o["g2"]: a(f"""s_lshl_b32 s72, s2, 7
        s_add_u32 s72, s72, {SOON}
        v_mov_b32 v94, s{NS}
        v_lshl_add_u32 v95, v0, 2, s72
        v_cmp_gt_u32 vcc, 32, v0
        v_cndmask_b32 v95, v15, v95, vcc""")
    if SM:
        a(f"""v_bfe_u32 v14, v0, 4, 1
        v_bfe_u32 v15, v0, 3, 1
        v_lshl_add_u32 v14, v14, 2, v15
        v_lshrrev_b32 v15, 5, v0
        v_lshl_add_u32 v209, v14, 1, v15
        s_lshl_b32 s72, s3, 9
        s_add_u32 s72, s72, {LO}
        v_lshl_add_u32 v206, v209, 5, s72""")
        for r in range(252, 256): a(f"v_mov_b32 v{r}, 0")
    XW, XO, XM, XA, XT, XOA, XMA, XE, XLW, XLR, XS = 16, 40, 46, 49, 50, 52, 53, 54, 55, 56, 58
    def wo_body(ex):
        t_ = "x" if ex else ""
        if ex:
            a(f"""v_lshrrev_b32 v14, 4, v0
            v_min_u32 v14, 2, v14
            v_add_u32 v14, s79, v14
            v_min_u32 v14, 31, v14
            v_mul_u32_u24 v14, 3840, v14
            v_add_u32 v14, s83, v14
            v_and_b32 v15, 15, v0
            v_lshl_add_u32 v{XOA}, v15, 2, v14
            s_lshl_b32 s72, s3, 6
            v_add_u32 v{XOA}, s72, v{XOA}
            v_min_u32 v15, 5, v15
            v_mul_u32_u24 v15, 640, v15
            v_add_u32 v{XMA}, v14, v15
            v_and_b32 v14, 3, v0
            v_lshlrev_b32 v14, 3, v14
            v_lshrrev_b32 v{XE}, v14, s{NS}
            v_and_b32 v{XE}, 0xff, v{XE}
            s_lshl_b32 s72, s3, 8
            s_add_u32 s72, s72, {LD}
            v_lshl_add_u32 v{XLW}, v0, 2, s72
            v_lshl_add_u32 v{XLR}, {'v209, 2' if SM else 'v2, 3'}, s72
            s_cmp_lg_u32 s74, 0
            s_cbranch_scc1 L_noz
            s_cmp_lg_u32 s3, 0
            s_cbranch_scc1 L_noz""")
            for k in range(4): a(f"v_mov_b32 v{212+k}, s{TS+k}")
            a("s_mov_b32 s72, 7680\nbuffer_store_dwordx4 v[212:215], v208, s[48:51], s72 offen sc1\nL_noz:")
        if o["gate"]:
            a(f"""L_h1a{t_}:
            buffer_load_dword v210, v204, s[48:51], 0 offen offset:520 sc1
            s_waitcnt vmcnt(0)
            v_cmp_eq_u32 vcc, s{NS}, v210
            s_and_b32 s72, vcc_lo, 63
            s_bcnt1_i32_b32 s72, s72
            s_cmp_ge_u32 s72, {o["gthr"]}
            s_cbranch_scc1 L_h1{t_}""")
            spin(f"L_h1a{t_}", SB)
        a(f"L_h1{t_}:")
        SETS = [(160, 172, 40, 46), (64, 76, 80, 86), (176, 188, 192, 90)]
        def h1_issue(i):
            ob, mb, xo, xm = SETS[i]
            if i == 0: stamp(19)
            a(f"buffer_load_dwordx3 {v(mb,3)}, v204, s[48:51], 0 offen offset:512 sc1")
            if ex: a(f"buffer_load_dwordx3 {v(xm,3)}, v{XMA}, s[48:51], 0 offen offset:512 sc1")
            for c in range(6): a(f"buffer_load_dwordx2 {v(ob+2*c,2)}, v203, s[48:51], 0 offen offset:{640*c} sc1")
            if ex:
                for c in range(6): a(f"buffer_load_dword v{xo+c}, v{XOA}, s[48:51], 0 offen offset:{640*c} sc1")
        def h1_check(i):
            ob, mb, xo, xm = SETS[i]
            a(f"v_xor_b32 v{mb+2}, s{NS}, v{mb+2}")
            if ex: a(f"v_xor_b32 v{xm+2}, s{NS}, v{xm+2}")
            chk(list(range(ob, ob+12)) + (list(range(xo, xo+6)) if ex else []), [f"v{E0}", f"v{E0+1}"] * 6 + [f"v{XE}"] * 6, (14, 15))
            a(f"v_or3_b32 v14, v14, v{mb+2}, v{xm+2}" if ex else f"v_or_b32 v14, v14, v{mb+2}")
            a("v_cmp_ne_u32 vcc, 0, v14")
        def comb(m, tmp, src, n, dst):
            m0, l0 = m, m + 1; m = tmp; l = tmp + 1; D = "row_mask:0xf bank_mask:0xf"
            q_ = [f"v_max_f32_dpp v{tmp}, v{m0}, v{m0} quad_perm:[1,0,3,2] {D}", f"v_mul_f32 v{l}, v{l0}, v205",
                  f"v_max_f32_dpp v{tmp}, v{tmp}, v{tmp} quad_perm:[2,3,0,1] {D}", f"v_max_f32_dpp v{tmp}, v{tmp}, v{tmp} row_half_mirror {D}",
                  f"v_sub_f32 v{m}, v{m0}, v{tmp}", f"v_exp_f32 v{m}, v{m}", f"v_mul_f32 v{l}, v{m}, v{l}"]
            U = untag(range(src, src + 6*n)); k_ = (len(U) + 5) // 6
            q_ = [y_ for i_, x_ in enumerate(q_) for y_ in [x_] + U[k_*i_:k_*(i_+1)]]
            q_ += [f"v_mul_f32_dpp v{dst+e}, v{m}, v{src+e} row_newbcast:0 {D}" for e in range(n)]
            q_ += [f"v_add_f32_dpp v{l}, v{l}, v{l} quad_perm:[1,0,3,2] {D}"]
            seq = [f"v_fmac_f32_dpp v{dst+e}, v{m}, v{src+n*c+e} row_newbcast:{c} {D}" for c in range(1, 6) for e in range(n)]
            seq.insert(n, f"v_add_f32_dpp v{l}, v{l}, v{l} quad_perm:[2,3,0,1] {D}")
            seq.insert(2*n+1, f"v_add_f32_dpp v{l}, v{l}, v{l} row_half_mirror {D}")
            seq.insert(3*n+2, f"v_rcp_f32 v{l}, v{l}")
            q_ += seq
            q_ += [f"v_mul_f32_dpp v{dst+e}, v{l}, v{dst+e} row_newbcast:0 {D}" for e in range(n)]
            q_ += [f"v_cvt_pk_bf16_f32 v{dst+e}, v{dst+e}, v{dst+e}" for e in range(n)]
            return q_
        def h1_leave(i):
            ob, mb, xo, xm = SETS[i]
            stamp(3)
            A1 = comb(mb, 14, ob, 2, 224); A2 = comb(xm, XT, xo, 1, XA) if ex else []
            k2 = 0
            for k1, x in enumerate(A1):
                a(x)
                while k2 < len(A2) and k2 * len(A1) <= k1 * len(A2): a(A2[k2]); k2 += 1
            for x in A2[k2:]: a(x)
        if o["skip"]:
            ob, mb, xo, xm = SETS[0]; AC = 64
            k_, d_ = o["p1"]
            L_ = [(AC+12, f"buffer_load_dwordx3 {v(mb,3)}, v204, s[48:51], 0 offen offset:512 sc1")]
            if ex: L_ += [(AC+13, f"buffer_load_dwordx3 {v(xm,3)}, v{XMA}, s[48:51], 0 offen offset:512 sc1")]
            L_ += [(AC+c, f"buffer_load_dwordx2 {v(ob+2*c,2)}, v203, s[48:51], 0 offen offset:{640*c} sc1") for c in range(6)]
            if ex: L_ += [(AC+6+c, f"buffer_load_dword v{xo+c}, v{XOA}, s[48:51], 0 offen offset:{640*c} sc1") for c in range(6)]
            h1_issue(0)
            X2 = ex and o["x2"]
            if X2:
                a("s_mov_b32 s64, 0")
                for r in list(range(252, 256)) + list(range(80, 84)): a(f"v_mov_b32 v{r}, 0")
            a("s_waitcnt vmcnt(0)")
            a(f"L_h1s{t_}:\nv_xor_b32 v{AC+12}, s{NS}, v{mb+2}")
            if ex: a(f"v_xor_b32 v{AC+13}, s{NS}, v{xm+2}")
            for c in range(6): a(f"v_msad_u8 v{AC+c}, v{ob+2*c}, v{E0}, 0")
            if ex:
                for c in range(6): a(f"v_msad_u8 v{AC+6+c}, v{xo+c}, v{XE}, 0")
            for c in range(6): a(f"v_msad_u8 v{AC+c}, v{ob+2*c+1}, v{E0+1}, v{AC+c}")
            if X2:
                def tiles_(tl, waits):
                    for t, (c_, w_) in enumerate(tl):
                        if t in waits: a(f"s_waitcnt lgkmcnt({waits[t]})")
                        for r in range(4): a(f"v_and_b32 v{228+4*(t%3)+r}, v{c_}, v{M8+r}")
                        if t > 0: a(f"v_mfma_f32_16x16x32_bf16 v[252:255], {v(228+4*((t-1)%3),4)}, {v(tl[t-1][1],4)}, v[252:255]")
                    t = len(tl) - 1
                    a(f"v_mfma_f32_16x16x32_bf16 v[252:255], {v(228+4*(t%3),4)}, {v(tl[t][1],4)}, v[252:255]")
                a(f"""v_or3_b32 v14, v{AC+12}, v{AC}, v{AC+1}
                v_or3_b32 v15, v{AC+13}, v{AC+6}, v{AC+7}
                v_or3_b32 v14, v14, v{AC+2}, v{AC+3}
                v_or3_b32 v15, v15, v{AC+8}, v{AC+9}
                v_or3_b32 v14, v14, v{AC+4}, v{AC+5}
                v_or3_b32 v15, v15, v{AC+10}, v{AC+11}
                v_cmp_ne_u32 s[60:61], 0, v14
                v_cmp_ne_u32 s[62:63], 0, v15
                s_or_b64 vcc, s[60:61], s[62:63]
                s_cbranch_scc0 L_x2p""")
                for n, (r, ld) in enumerate(L_): a(f"v_cmp_ne_u32 vcc, 0, v{r}\ns_cbranch_vccz L_h1k{t_}{n}\n{ld}\nL_h1k{t_}{n}:")
                a(f"""s_sub_u32 s{SB}, s{SB}, 1
                s_cbranch_scc0 L_x2p
                s_mov_b32 s{SB}, 0
                s_waitcnt vmcnt(0)
                s_mov_b64 s[60:61], 0
                s_mov_b64 s[62:63], 0
                L_x2p:
                s_bitcmp1_b32 s64, 0
                s_cbranch_scc1 L_x2m
                s_cmp_lg_u64 s[60:61], 0
                s_cbranch_scc1 L_x2m
                s_or_b32 s64, s64, 1
                v_mov_b32 v{E0}, 0
                v_mov_b32 v{E0+1}, 0""")
                stamp(3)
                for x in comb(mb, 14, ob, 2, 224): a(x)
                a("ds_write_b64 v202, v[224:225]")
                if SM:
                    for k in (0, 2, 1, 3): a(f"ds_read_b128 {v(212+4*k,4)}, v206 offset:{16*(k&1)+128*(k>>1)}")
                    sm_tiles([(212+u, 220+u, WO+8*u) for u in range(8)], {0: 2, 4: 0})
                else:
                    for k in range(4): a(f"ds_read_b128 {v(212+4*k,4)}, v206 offset:{16*k}")
                    tiles_([(212+t, WO+4*t) for t in range(16)], {0: 3, 4: 2, 8: 1, 12: 0})
                a(f"""L_x2m:
                s_bitcmp1_b32 s64, 1
                s_cbranch_scc1 L_x2e
                s_cmp_lg_u64 s[62:63], 0
                s_cbranch_scc1 L_x2e
                s_or_b32 s64, s64, 2
                v_mov_b32 v{XE}, 0""")
                for x in comb(xm, XT, xo, 1, XA): a(x)
                a(f"ds_write_b32 v{XLW}, v{XA}")
                if SM:
                    for e in range(3): a(f"ds_read2_b32 {v(XS+2*e,2)}, v{XLR} offset0:{16*e} offset1:{16*e+4}")
                    sm_tiles([(XS+2*e, XS+2*e+1, XW+8*e) for e in range(3)], {0: 2, 1: 1, 2: 0}, 80 if o["det"] else 252)
                else:
                    for e in range(3): a(f"ds_read_b64 {v(XS+2*e,2)}, v{XLR} offset:{64*e}")
                    tiles_([(XS+t, XW+4*t) for t in range(6)], {0: 2, 2: 1, 4: 0})
                a(f"""L_x2e:
                s_waitcnt vmcnt(0)
                s_cmp_lg_u32 s64, 3
                s_cbranch_scc1 L_h1s{t_}""")
                if o["det"]: a("v_pk_add_f32 v[252:253], v[252:253], v[80:81]\nv_pk_add_f32 v[254:255], v[254:255], v[82:83]")
                return
            if ex: a(f"""v_or3_b32 v15, v{AC+6}, v{AC+7}, v{AC+8}
                v_or3_b32 v14, v{AC+9}, v{AC+10}, v{AC+11}
                v_or3_b32 v15, v15, v{AC+12}, v{AC+13}
                v_or3_b32 v14, v14, v{AC}, v{AC+1}
                v_or3_b32 v15, v15, v{AC+2}, v{AC+3}
                v_or3_b32 v14, v14, v{AC+4}, v{AC+5}
                v_or_b32 v14, v14, v15""")
            else: a(f"""v_or3_b32 v14, v{AC+12}, v{AC}, v{AC+1}
                v_or3_b32 v15, v{AC+2}, v{AC+3}, v{AC+4}
                v_or3_b32 v14, v14, v15, v{AC+5}""")
            a(f"v_cmp_ne_u32 vcc, 0, v14\ns_cbranch_vccz L_h1ok{t_}")
            stamp(19)
            if k_ == 1:
                for n, (r, ld) in enumerate(L_): a(f"v_cmp_ne_u32 vcc, 0, v{r}\ns_cbranch_vccz L_h1k{t_}{n}\n{ld}\nL_h1k{t_}{n}:")
                a("s_waitcnt vmcnt(0)")
            else:
                MS = [60, 62, 64, 66, 84, 86, 88, 90, 4, 6, 8, 10, 14, 16]
                for n, (r, ld) in enumerate(L_): a(f"v_cmp_ne_u32 s[{MS[n]}:{MS[n]+1}], 0, v{r}")
                for n, (r, ld) in enumerate(L_): a(f"s_cmp_lg_u64 s[{MS[n]}:{MS[n]+1}], 0\ns_cselect_b64 exec, -1, 0\n{ld}")
                a("s_mov_b64 exec, -1")
                if d_: a(f"s_sleep {d_}")
                a(f"s_waitcnt vmcnt({(k_-1)*len(L_)})")
            spin(f"L_h1s{t_}", SB)
            a(f"L_h1ok{t_}:")
            if o["g2"]:
                a(f"""s_cmp_lg_u32 s3, 0
                s_cbranch_scc1 L_nsoon{t_}
                buffer_store_dword v94, v95, s[48:51], 0 offen sc1
                L_nsoon{t_}:""")
            h1_leave(0)
        else: poll(f"h1p{t_}", o["p1"], 14 if ex else 7, h1_issue, h1_check, h1_leave, SB)
        a("ds_write_b64 v202, v[224:225]")
        if SM:
            for k in (0, 2, 1, 3): a(f"ds_read_b128 {v(212+4*k,4)}, v206 offset:{16*(k&1)+128*(k>>1)}")
            sm_tiles([(212+u, 220+u, WO+8*u) for u in range(8)], {0: 2, 4: 0})
            return
        if ex: a(f"ds_write_b32 v{XLW}, v{XA}")
        for k in range(4): a(f"ds_read_b128 {v(212+4*k,4)}, v206 offset:{16*k}")
        if ex:
            for e in range(3): a(f"ds_read_b64 {v(XS+2*e,2)}, v{XLR} offset:{64*e}")
        tiles = [(212+t, WO+4*t) for t in range(16)] + ([(XS+t, XW+4*t) for t in range(6)] if ex else [])
        for t, (c_, w_) in enumerate(tiles):
            if t % 4 == 0 and t <= 16: a(f"s_waitcnt lgkmcnt({max(0, 3 - t//4 + (3 if ex and t < 16 else 0))})")
            ab = 228 + 4 * (t % 3)
            for r in range(4): a(f"v_and_b32 v{ab+r}, v{c_}, v{M8+r}")
            if t > 0: a(f"v_mfma_f32_16x16x32_bf16 v[252:255], {v(228+4*((t-1)%3),4)}, {v(tiles[t-1][1],4)}, {'0' if t==1 else 'v[252:255]'}")
        t = len(tiles) - 1
        a(f"v_mfma_f32_16x16x32_bf16 v[252:255], {v(228+4*(t%3),4)}, {v(tiles[t][1],4)}, v[252:255]")
    a("s_cmp_ge_u32 s2, 28\ns_cbranch_scc0 L_wo4")
    wo_body(True)
    a("s_branch L_wo_acc\nL_wo4:")
    wo_body(False)
    a("L_wo_acc:")
    if o["xm"] == 2: a("s_mov_b32 exec_lo, 0x00ff00ff\ns_mov_b32 exec_hi, 0xff00ff00")
    a(f"""ds_write_b128 v{YW}, v[252:255]
    {'s_mov_b64 exec, -1' if o["xm"] == 2 else ''}
    s_waitcnt lgkmcnt(0)
    s_barrier""")
    stamp(4)
    a("s_cmp_lg_u32 s3, 0\ns_cbranch_scc1 L_wo_done")
    for k in range(4): a(f"ds_read_b128 {v(212+4*k,4)}, v207 offset:{LY+1280*k}")
    a(f"v_mov_b32 v{VM}, 0xff")
    a("""s_waitcnt lgkmcnt(2)
    v_pk_add_f32 v[212:213], v[212:213], v[216:217]
    v_pk_add_f32 v[214:215], v[214:215], v[218:219]
    s_waitcnt lgkmcnt(0)
    v_pk_add_f32 v[220:221], v[220:221], v[224:225]
    v_pk_add_f32 v[222:223], v[222:223], v[226:227]
    v_pk_add_f32 v[212:213], v[212:213], v[220:221]
    v_pk_add_f32 v[214:215], v[214:215], v[222:223]""")
    for dp in ("quad_perm:[1,0,3,2]", "quad_perm:[2,3,0,1]"):
        for r in range(212, 216): a(f"v_add_f32_dpp v{r}, v{r}, v{r} {dp} row_mask:0xf bank_mask:0xf")
    tag4(212, VM, TS)
    a("buffer_store_dwordx4 v[212:215], v208, s[48:51], 0 offen sc1\nL_wo_done:")
    stamp(5)
    a("""s_cmp_ge_u32 s2, 20
    s_cbranch_scc1 L_aux_end
    s_cmp_lg_u32 s3, 7
    s_cbranch_scc1 L_aux_end""")
    srd(52, 22, 1280)
    if o["dry"]: a("s_cmp_eq_u32 s82, 1\ns_cselect_b32 s54, 0, s54")
    a(f"""s_lshl_b32 s72, s2, 7
    v_mul_u32_u24 v14, 2560, v2
    v_lshl_add_u32 v14, v3, 4, v14
    v_add_u32 v14, s72, v14
    s_and_b32 s73, s2, {o['r2']-1}
    s_mul_i32 s73, s73, {YRS}
    s_add_u32 s73, s73, {YM}
    v_add_u32 v202, s73, v14
    v_mov_b32 v15, {OOB}
    v_cmp_gt_u32 vcc, 32, v0
    v_cndmask_b32 v202, v15, v202, vcc
    v_add_u32 v203, {DM}, v14
    v_add_u32 v204, {DM+61440}, v14
    v_cmp_gt_u32 vcc, 24, v0
    v_cndmask_b32 v204, v15, v204, vcc
    v_bfe_u32 v14, v0, 4, 1
    v_lshrrev_b32 v205, 5, v0
    v_lshl_add_u32 v14, v14, 1, v205
    v_lshl_add_u32 v14, v3, 2, v14
    v_lshlrev_b32 v14, 1, v14
    s_lshl_b32 s72, s2, 6
    v_add_u32 v14, s72, v14
    buffer_load_ushort v206, v14, s[28:31], 0 offen
    v_bfe_u32 v205, v0, 3, 1
    v_cmp_eq_u32 vcc, 0, v205
    v_cndmask_b32 v205, v15, v14, vcc
    s_mov_b32 s72, 20480
    s_mov_b32 s73, 40960
    s_mov_b32 s60, 0xffffff
    s_mov_b32 s61, 0
    L_ry:
    buffer_load_dwordx4 v[212:215], v202, s[48:51], 0 offen sc1
    s_waitcnt vmcnt(0)""")
    TR = [f"s{TS+k}" for k in range(4)]
    chk(range(212, 216), TR, (14, 15))
    a("v_cmp_ne_u32 vcc, 0, v14\ns_cmp_eq_u32 vcc_lo, 0\ns_cbranch_scc1 L_ryok")
    spin("L_ry", SB)
    def rs4(b):
        a(f"""v_permlane32_swap_b32 v{b}, v{b+1}
        v_permlane32_swap_b32 v{b+2}, v{b+3}
        v_add_f32 v{b}, v{b}, v{b+1}
        v_add_f32 v{b+2}, v{b+2}, v{b+3}
        v_permlane16_swap_b32 v{b}, v{b+2}
        v_add_f32 v{b}, v{b}, v{b+2}
        v_add_f32_dpp v{b}, v{b}, v{b} row_ror:8 row_mask:0xf bank_mask:0xf""")
    def canary():
        a(f"""s_cmp_lg_u32 s2, 0
        s_cbranch_scc1 L_nocan
        v_mov_b32 v14, s93
        v_lshlrev_b32 v15, 2, v0
        v_add_u32 v15, {CAN}, v15
        {'s_mov_b32 exec_hi, 0' if o["can"] else 's_mov_b64 exec, 1'}
        buffer_store_dword v14, v15, s[48:51], 0 offen sc1
        s_mov_b64 exec, -1
        L_nocan:""")
    a("L_ryok:")
    if o["can"]: canary()
    for x in untag(range(212, 216)): a(x)
    rs4(212)
    a("""v_cvt_pk_bf16_f32 v212, v212, v212
    v_lshlrev_b32 v206, 16, v206
    v_and_b32 v212, s81, v212
    v_add_f32 v212, v212, v206
    v_cvt_pk_bf16_f32 v212, v212, v212
    v_and_b32 v206, s81, v212""")
    stamp(6)
    def h3_issue(i):
        b = 96 + 16*i
        a(f"""buffer_load_dwordx4 {v(b,4)}, v203, s[48:51], 0 offen sc1
        buffer_load_dwordx4 {v(b+4,4)}, v203, s[48:51], s72 offen sc1
        buffer_load_dwordx4 {v(b+8,4)}, v203, s[48:51], s73 offen sc1
        buffer_load_dwordx4 {v(b+12,4)}, v204, s[48:51], 0 offen sc1""")
    def h3_check(i):
        b = 96 + 16*i
        chk(range(b+12, b+16), TR, (207, 208))
        chk(range(b, b+12), TR * 3, (14, 15))
        a("v_cndmask_b32 v207, 0, v207, s[60:61]\nv_or_b32 v14, v14, v207\nv_cmp_ne_u32 vcc, 0, v14")
    def h3_leave(i):
        b = 96 + 16*i
        for x in untag(range(b, b+16)): a(x)
        a(f"""v_pk_add_f32 v[212:213], {v(b,2)}, {v(b+4,2)}
        v_pk_add_f32 v[220:221], {v(b+8,2)}, {v(b+12,2)}
        v_pk_add_f32 v[214:215], {v(b+2,2)}, {v(b+6,2)}
        v_pk_add_f32 v[222:223], {v(b+10,2)}, {v(b+14,2)}""")
    poll("rd", o["p3"], 4, h3_issue, h3_check, h3_leave, SB)
    a("""v_pk_add_f32 v[212:213], v[212:213], v[220:221]
    v_pk_add_f32 v[214:215], v[214:215], v[222:223]""")
    rs4(212)
    OUTP = o["outp"]
    a(f"""v_cvt_pk_bf16_f32 v212, v212, v212
    v_and_b32 v212, s81, v212
    v_add_f32 v212, v212, v206
    v_cvt_pk_bf16_f32 v212, v212, v212
    buffer_store_short v212, v205, s[52:55], 0 offen {OUTP}
""")
    if not o["can"]: canary()
    stamp(7)
    a("s_branch L_aux_end")
    DW, DR, DS = 250, 251, 201
    a("L_ld_f:")
    gu_setup()
    for x in gu_list(): a(x)
    if o["gb"]: a("s_barrier")
    DNL = dn_loads()
    a(f"""L_ffn:
    v_and_b32 v14, 15, v0
    v_lshrrev_b32 v15, 4, v0
    v_lshlrev_b32 v14, 5, v14
    v_lshl_add_u32 v14, v15, 4, v14
    s_mul_i32 s72, s3, 2688
    s_add_u32 s72, s72, {LD}
    v_add_u32 v14, s72, v14
    v_lshlrev_b32 v15, 4, v0
    v_add_u32 v15, {LDUMP}, v15
    v_cmp_gt_u32 vcc, 32, v0
    v_cndmask_b32 v{DW}, v15, v14, vcc
    v_lshrrev_b32 v14, 1, v0
    v_lshlrev_b32 v14, 4, v14
    s_lshl_b32 s72, s3, 9
    v_add_u32 v14, s72, v14
    v_and_b32 v15, 1, v0
    v_cmp_eq_u32 vcc, 0, v15
    v_mul_u32_u24 v15, 2688, v15
    v_add_u32 v{DR}, v14, v15
    s_mul_i32 s72, s77, 2560
    s_add_u32 s72, s72, {DM}
    v_add_u32 v14, s72, v14
    v_mov_b32 v15, {OOB}
    v_cndmask_b32 v{DS}, v15, v14, vcc
    """)
    def mf(t):
        ab = 228 + 4 * (t % 3)
        if SM: smf(204, ab, GU+16*t); smf(208, ab, GU+16*t+8); return
        a(f"v_mfma_f32_16x16x32_bf16 v[204:207], {v(ab,4)}, {v(GU+8*t,4)}, {'0' if t==0 else 'v[204:207]'}")
        a(f"v_mfma_f32_16x16x32_bf16 v[208:211], {v(ab,4)}, {v(GU+8*t+4,4)}, {'0' if t==0 else 'v[208:211]'}")
    if o["lnf"]:
        X5, ER, SG, SU, YA, STW, STR, HD = 96, 101, 105, 106, 107, 108, 109, 220
        D = "row_mask:0xf bank_mask:0xf"
        a(f"""s_mov_b32 s82, 0x3f803f80
        v_lshrrev_b32 v14, 2, v0""")
        if SM: a("v_mov_b32 v14, v111")
        for e in range(4): a(f"v_add_u32 v15, {e}, v14\nv_and_b32 v15, 3, v15\nv_lshlrev_b32 v15, 3, v15\nv_bfe_u32 v{ER+e}, s{NS}, v15, 8")
        a(f"""s_and_b32 s72, s2, {o['r2']-1}
        s_mul_i32 s72, s72, {YRS}
        s_add_u32 s72, s72, {YM}
        v_and_b32 v15, 3, v0
        v_mul_u32_u24 v15, 2560, v15
        v_add_u32 v15, s72, v15""")
        if o["al2"]: a(f"v_lshl_add_u32 v{YA}, v111, 4, v15\nv_lshl_add_u32 v111, v111, 2, v15")
        elif SM: a(f"v_lshl_add_u32 v{YA}, v111, 2, v15")
        else: a(f"""v_and_b32 v14, 1, v14
        v_mul_u32_u24 v14, 20, v14
        v_lshl_add_u32 v14, v12, 2, v14
        v_add_u32 v{YA}, v14, v15""")
        a(f"""
        v_lshlrev_b32 v{STR}, 3, v3
        s_lshl_b32 s72, s3, 3
        v_mov_b32 v14, s72
        v_lshlrev_b32 v15, 4, v0
        v_add_u32 v15, {LDUMP}, v15
        v_cmp_eq_u32 vcc, 63, v0
        v_cndmask_b32 v{STW}, v15, v14, vcc""")
        for r in range(4): a(f"v_and_b32 v{228+r}, s82, v{8+(r&1) if SM else M8+r}")
        if SM:
            for r in list(range(204, 212)) + list(range(DA, DA+20)): a(f"v_mov_b32 v{r}, 0")
        DL = o["dl"]
        if DL:
            a(f"s_waitcnt vmcnt({10 - DL})")
            for i in range(2):
                a(f"buffer_load_dwordx4 {v(112+6*i,4)}, v{YA}, s[48:51], 0 offen sc1\nbuffer_load_dword v{116+6*i}, v{YA}, s[48:51], 0 offen offset:16 sc1")
                for x in (DNL[:DL//2], DNL[DL//2:])[i]: a(x)
        else: a("s_waitcnt vmcnt(10)")
        if o["hp"]: a(f"buffer_load_dwordx4 v[112:115], v{YA}, s[48:51], 0 offen sc1\nbuffer_load_dword v116, v{YA}, s[48:51], 0 offen offset:16 sc1")
        if SM:
            for e in range(5): a(f"v_lshlrev_b32 v{96+e}, 16, v{96+e}")
            for t in range(5): smf(204, 228, GU+16*t); smf(208, 228, GU+16*t+8)
        if o["al2"]: a("v_lshlrev_b32 v96, 16, v98\nv_and_b32 v97, s81, v98\nv_lshlrev_b32 v98, 16, v99\nv_and_b32 v99, s81, v99\nv_lshlrev_b32 v100, 16, v100")
        for t in range(0 if SM else 10):
            a(f"v_mfma_f32_16x16x32_bf16 v[204:207], v[228:231], {v(GU+8*t,4)}, {'0' if t==0 else 'v[204:207]'}")
            a(f"v_mfma_f32_16x16x32_bf16 v[208:211], v[228:231], {v(GU+8*t+4,4)}, {'0' if t==0 else 'v[208:211]'}")
        a(f"""ds_write_b128 v{PW}, v[204:207]
        ds_write_b128 v{PW}, v[208:211] offset:256
        s_waitcnt lgkmcnt(0)
        s_barrier""")
        psum()
        a(f"v_mov_b32 v{SG}, v204\nv_mov_b32 v{SU}, v206")
        if SM:
            for r in range(204, 212): a(f"v_mov_b32 v{r}, 0")
        if o["g2"]:
            a(f"""s_cmp_lg_u32 s3, 0
            s_cbranch_scc1 L_g2ok
            v_min_u32 v14, 36, v0
            v_lshlrev_b32 v14, 7, v14
            v_add_u32 v14, {SOON}, v14
            L_g2:
            buffer_load_dword v15, v14, s[48:51], 0 offen sc1
            s_waitcnt vmcnt(0)
            v_cmp_eq_u32 vcc, s{NS}, v15
            s_and_b32 vcc_hi, vcc_hi, 31
            s_bcnt1_i32_b64 s72, vcc
            s_cmp_ge_u32 s72, {o["g2"]}
            s_cbranch_scc1 L_g2ok""")
            spin("L_g2", SB)
            a("L_g2ok:")
        a("s_barrier")
        def h2_issue(i):
            b = 112 + 6*i
            a(f"buffer_load_dwordx4 {v(b,4)}, v{YA}, s[48:51], 0 offen sc1")
            if o["al2"]: a(f"buffer_load_dword v{b+4}, v111, s[48:51], 0 offen offset:2048 sc1")
            else: a(f"buffer_load_dword v{b+4}, v{YA}, s[48:51], 0 offen offset:16 sc1")
        def h2_check(i):
            b = 112 + 6*i
            chk(range(b, b+5), TR + [f"v{ER}"] if o["al2"] else [f"v{ER+(e&3)}" for e in range(5)], (14, 15))
            a("v_cmp_ne_u32 vcc, 0, v14")
        def h2_leave(i):
            b = 112 + 6*i
            stamp(6)
            for x in untag(range(b, b+5)): a(x)
            for e in range(5): a(f"v_add_f32_dpp v{212+e}, v{b+e}, v{b+e} quad_perm:[1,0,3,2] {D}")
        if DL:
            for i in range(2):
                a(f"s_waitcnt vmcnt({(DL + 2, DL - DL//2)[i]})"); h2_check(i); a(f"s_cbranch_vccz L_h2ok{i}")
        poll("h2", o["p2"], 2, h2_issue, h2_check, h2_leave, SB, 1 if o["hp"] else 0)
        for e in range(5): a(f"v_add_f32_dpp v{212+e}, v{212+e}, v{212+e} quad_perm:[2,3,0,1] {D}")
        a(f"""v_cvt_pk_bf16_f32 v218, v212, v213
        v_cvt_pk_bf16_f32 v219, v214, v215
        v_cvt_pk_bf16_f32 v216, v216, v216
        v_lshlrev_b32 v212, 16, v218
        v_and_b32 v213, s81, v218
        v_lshlrev_b32 v214, 16, v219
        v_and_b32 v215, s81, v219
        v_and_b32 v216, s81, v216""")
        for e in range(5): a(f"v_add_f32 v{212+e}, v{212+e}, v{X5+e}")
        for e in range(5): a(f"v_cvt_pk_bf16_f32 v{HD+e}, v{212+e}, v{212+e}")
        stamp(9)
        st = []
        for e in range(5): st += [f"v_dot2_f32_bf16 v226, v{HD+e}, s82, {'0' if e == 0 else 'v226'}", f"v_dot2_f32_bf16 v227, v{HD+e}, v{HD+e}, {'0' if e == 0 else 'v227'}"]
        for dp in ("row_half_mirror row_mask:0xf", "row_mirror row_mask:0xf", "row_bcast:15 row_mask:0xa", "row_bcast:31 row_mask:0xc"):
            st += [f"v_add_f32_dpp v226, v226, v226 {dp} bank_mask:0xf", f"v_add_f32_dpp v227, v227, v227 {dp} bank_mask:0xf"]
        st += [f"ds_write_b64 v{STW}, v[226:227]"]
        NT = 5 if SM else 10
        for t in range(NT):
            ab = 228 + 4 * (t % 3)
            for r in range(4):
                if SM: a(f"v_and_b32 v{ab+r}, v{HD+t}, v{8+(r&1)}" if r in (0, 3) else f"v_and_b32_dpp v{ab+r}, v{HD+t}, v{8+(r&1)} row_half_mirror {D}")
                elif (r < 2) == (t < 5): a(f"v_and_b32 v{ab+r}, v{HD+t%5}, v{M8+r}")
                else: a(f"v_and_b32_dpp v{ab+r}, v{HD+t%5}, v{M8+r} row_half_mirror {D}")
            if t > 0:
                mf(t - 1)
                for _ in range(4 if SM else 2):
                    if st: a(st.pop(0))
        mf(NT - 1)
        for x in st: a(x)
        if o["xm"] == 2: a("s_mov_b32 exec_lo, 0x00ff00ff\ns_mov_b32 exec_hi, 0xff00ff00")
        a(f"""ds_write_b128 v{PW}, v[204:207]
        ds_write_b128 v{PW}, v[208:211] offset:256
        {'s_mov_b64 exec, -1' if o["xm"] == 2 else ''}
        s_waitcnt lgkmcnt(0)
        s_barrier""")
        stamp(10)
        a(f"""ds_read_b64 v[212:213], v{STR}
        ds_read2st64_b32 v[204:205], v{PR} offset0:0 offset1:17
        ds_read2st64_b32 v[206:207], v{PR} offset0:1 offset1:18
        s_waitcnt lgkmcnt(2)""")
        DP = ("quad_perm:[1,0,3,2]", "quad_perm:[2,3,0,1]", "row_half_mirror")
        for dp in DP: a(f"v_add_f32_dpp v212, v212, v212 {dp} {D}\nv_add_f32_dpp v213, v213, v213 {dp} {D}")
        a(f"""v_mul_f32 v212, {f2u(1/1280)}, v212
        v_mul_f32 v213, {f2u(1/1280)}, v213
        s_waitcnt lgkmcnt(0)
        v_fma_f32 v213, -v212, v212, v213
        v_add_f32 v204, v204, v205
        v_max_f32 v213, 0, v213
        v_add_f32 v206, v206, v207
        v_cvt_pk_bf16_f32 v212, v212, v213
        v_add_f32_dpp v204, v204, v204 {DP[0]} {D}
        v_and_b32 v213, s81, v212
        v_add_f32_dpp v206, v206, v206 {DP[0]} {D}
        v_add_f32 v213, {f2u(1e-5)}, v213
        v_add_f32_dpp v204, v204, v204 {DP[1]} {D}
        v_cvt_pk_bf16_f32 v213, v213, v213
        v_add_f32_dpp v206, v206, v206 {DP[1]} {D}
        v_and_b32 v213, s81, v213
        v_add_f32_dpp v204, v204, v204 {DP[2]} {D}
        v_sqrt_f32 v213, v213
        v_add_f32_dpp v206, v206, v206 {DP[2]} {D}
        v_lshlrev_b32 v212, 16, v212
        v_cvt_pk_bf16_f32 v213, v213, v213
        v_fma_f32 v204, -v212, v{SG}, v204
        v_and_b32 v213, s81, v213
        v_fma_f32 v206, -v212, v{SU}, v206
        v_rcp_f32 v213, v213
        v_mul_f32 v204, v204, v213
        v_mul_f32 v206, v206, v213""")
    else:
        a(f"""s_waitcnt vmcnt(0)
        s_cmp_ge_u32 s3, 5
        s_cbranch_scc1 L_lng_bar
        v_lshlrev_b32 v14, 1, v13
        s_and_b32 s72, s2, {o['r2']-1}
        s_mul_i32 s72, s72, {YRS}
        s_add_u32 s72, s72, {YM}
        v_add_u32 v14, s72, v14
        s_mov_b32 s72, 5120
        L_h2:
        buffer_load_dwordx2 v[212:213], v14, s[48:51], 0 offen sc1
        buffer_load_dwordx2 v[214:215], v14, s[48:51], 0 offen offset:2560 sc1
        buffer_load_dwordx2 v[216:217], v14, s[48:51], s72 offen sc1
        buffer_load_dwordx2 v[218:219], v14, s[48:51], s72 offen offset:2560 sc1
        s_waitcnt vmcnt(0)""")
        chk(range(212, 220), [f"v{E0}", f"v{E0+1}"] * 4, (15, 202))
        a("v_cmp_ne_u32 vcc, 0, v15\ns_cbranch_vccz L_h2ok")
        spin("L_h2", SB)
        a("L_h2ok:")
        stamp(6)
        a("""v_pk_add_f32 v[212:213], v[212:213], v[214:215]
        v_pk_add_f32 v[216:217], v[216:217], v[218:219]
        v_lshlrev_b32 v202, 16, v200
        v_pk_add_f32 v[212:213], v[212:213], v[216:217]
        v_and_b32 v203, s81, v200
        v_cvt_pk_bf16_f32 v212, v212, v213
        v_lshlrev_b32 v214, 16, v212
        v_and_b32 v215, s81, v212
        v_pk_add_f32 v[202:203], v[202:203], v[214:215]
        v_cvt_pk_bf16_f32 v212, v202, v203
        v_lshlrev_b32 v202, 16, v212
        v_and_b32 v203, s81, v212""")
        a(f"""    ds_write_b64 v{HW}, v[202:203]
        s_waitcnt lgkmcnt(0)
        L_lng_bar:
        s_barrier
        v_mov_b32 v14, 0
        ds_read_b128 v[204:207], v{HS}
        ds_read_b32 v214, v14
        ds_read_b128 v[208:211], v{HS} offset:16
        ds_read_b64 v[212:213], v{HS} offset:32
        ds_read_b128 v[216:219], v{HC}
        ds_read_b128 v[220:223], v{HC} offset:16
        ds_read_b64 v[224:225], v{HC} offset:32""")
        stamp(8)
        a("s_waitcnt lgkmcnt(3)")
        ln("s_waitcnt lgkmcnt(0)")
        stamp(9)
        def mf(t):
            ab = 228 + 4 * (t % 3)
            a(f"v_mfma_f32_16x16x32_bf16 v[204:207], {v(ab,4)}, {v(GU+8*t,4)}, {'0' if t==0 else 'v[204:207]'}")
            a(f"v_mfma_f32_16x16x32_bf16 v[208:211], {v(ab,4)}, {v(GU+8*t+4,4)}, {'0' if t==0 else 'v[208:211]'}")
        for t in range(10):
            ab = 228 + 4 * (t % 3)
            for r in range(4): a(f"v_and_b32 v{ab+r}, v{216+t}, v{M8+r}")
            if t > 0: mf(t - 1)
        mf(9)
        a(f"""ds_write_b128 v{PW}, v[204:207]
        ds_write_b128 v{PW}, v[208:211] offset:256
        s_waitcnt lgkmcnt(0)
        s_barrier""")
        stamp(10)
        psum()
    a(f"""
    v_cvt_pk_bf16_f32 v204, v204, v206
    v_lshlrev_b32 v205, 16, v204
    v_and_b32 v206, s81, v204
    v_mul_f32 v207, v205, v205
    v_fmaak_f32 v207, v207, v{CG2}, {f2u(g1)}
    v_mul_f32 v207, v207, v205
    v_exp_f32 v207, v207
    v_add_f32 v207, 1.0, v207
    v_rcp_f32 v207, v207
    v_mul_f32 v207, v207, v205
    v_cvt_pk_bf16_f32 v207, v207, v207
    v_and_b32 v207, s81, v207
    v_mul_f32 v207, v207, v206
    v_cvt_pk_bf16_f32 v207, v207, v207""")
    if SM:
        for r in range(4): a(f"v_and_b32_dpp v{228+r}, v207, v{8+(r&1)} row_newbcast:{8*(r>>1)} row_mask:0xf bank_mask:0xf")
        if o["dl"]: a("s_waitcnt vmcnt(0)")
        for b in range(5): smf(DA+4*b, 228, DN+8*b)
    for t in range(0 if SM else 2):
        for r in range(4): a(f"v_and_b32_dpp v{228+4*t+r}, v207, v{M4+r} row_newbcast:{8*t} row_mask:0xf bank_mask:0xf")
    for t in range(0 if SM else 2):
        for b in range(5): a(f"v_mfma_f32_16x16x32_bf16 {v(208+4*b,4)}, {v(228+4*t,4)}, {v(DN+20*t+4*b,4)}, {'0' if t==0 else v(208+4*b,4)}")
    if o["xm"]: a("s_mov_b32 exec_hi, 0")
    for b in range(5): a(f"ds_write_b128 v{DW}, {v(DA+4*b,4)} offset:{512*b}")
    if o["xm"]: a("s_mov_b32 exec_hi, -1")
    a("s_waitcnt lgkmcnt(0)\ns_barrier")
    stamp(11)
    a("s_cmp_ge_u32 s3, 5\ns_cbranch_scc1 L_aux_end")
    for k in range(4): a(f"ds_read_b128 {v(212+4*k,4)}, v{DR} offset:{LD+5376*k}")
    a(f"v_mov_b32 v{VM}, 0xff")
    a("""s_waitcnt lgkmcnt(2)
    v_pk_add_f32 v[212:213], v[212:213], v[216:217]
    v_pk_add_f32 v[214:215], v[214:215], v[218:219]
    s_waitcnt lgkmcnt(0)
    v_pk_add_f32 v[220:221], v[220:221], v[224:225]
    v_pk_add_f32 v[222:223], v[222:223], v[226:227]
    v_pk_add_f32 v[212:213], v[212:213], v[220:221]
    v_pk_add_f32 v[214:215], v[214:215], v[222:223]""")
    for r in range(212, 216): a(f"v_add_f32_dpp v{r}, v{r}, v{r} quad_perm:[1,0,3,2] row_mask:0xf bank_mask:0xf")
    tag4(212, VM, TS)
    a(f"buffer_store_dwordx4 v[212:215], v{DS}, s[48:51], 0 offen sc1")
    stamp(12)
    a("L_aux_end:")
    if o["dry"]: a("s_cmp_eq_u32 s82, 1\ns_cbranch_scc1 L_real")
    stamp_out()
    a("s_endpgm")
    head = open(f"cdna_kernels/{KN}.s.ref").read().split("; Override launch")[0] if o["hdr"] else ""
    return finish(o, head, a.text(), LDS_SIZE)
def kd(name, vg):
    return f""".p2align 6
.amdhsa_kernel {name}
  .amdhsa_next_free_vgpr {vg}
  .amdhsa_next_free_sgpr 102
  .amdhsa_accum_offset {vg}
  .amdhsa_group_segment_fixed_size 0
  .amdhsa_kernarg_size 96
  .amdhsa_user_sgpr_count 2
  .amdhsa_user_sgpr_kernarg_segment_ptr 1
  .amdhsa_system_sgpr_workgroup_id_x 1
.end_amdhsa_kernel
"""
def diag_kernel(k, w0, w1, K, op, nw=2048):
    self_ = op == "self"
    if self_: op = "max"
    init = "0" if op == "max" else "-1"
    return f""".globl diag_kernel
.p2align 8
.type diag_kernel,@function
diag_kernel:
s_memrealtime s[20:21]
s_cmp_lg_u32 s2, 0
s_cbranch_scc1 LD_end
s_load_dwordx2 s[4:5], s[0:1], 88
s_waitcnt lgkmcnt(0)
s_add_u32 s4, s4, {STAMP_OFF}
s_addc_u32 s5, s5, 0
s_mov_b32 s6, 0x100000
s_mov_b32 s7, 0x20000
v_mov_b32 v1, -1
v_mov_b32 v2, {init}
v_mov_b32 v8, {init}
v_mov_b32 v3, v0
s_mov_b32 s8, 0
s_mov_b32 s12, {w0}
s_mov_b32 s13, {w1}
LD_l:
v_lshlrev_b32 v4, 8, v3
buffer_load_dword v5, v4, s[4:7], 0 offen sc1
buffer_load_dword v6, v4, s[4:7], 0 offen offset:{4*k} sc1
s_waitcnt vmcnt(0)
v_min_u32 v1, v1, v5
v_cmp_le_u32 vcc, s12, v3
s_nop 4
v_cndmask_b32 v6, v8, v6, vcc
v_cmp_gt_u32 vcc, s13, v3
s_nop 4
v_cndmask_b32 v6, v8, v6, vcc
v_cmp_ne_u32 vcc, 0, v6
s_nop 4
v_cndmask_b32 v6, v8, v6, vcc
v_{op}_u32 v2, v2, v6
v_add_u32 v3, 64, v3
s_add_u32 s8, s8, 1
s_cmp_lt_u32 s8, {nw//64}
s_cbranch_scc1 LD_l
s_mov_b32 s8, 0
s_mov_b32 s9, -1
s_mov_b32 s10, {init}
LD_r:
s_nop 4
v_readlane_b32 s11, v1, s8
v_readlane_b32 s14, v2, s8
s_nop 4
s_min_u32 s9, s9, s11
s_{op}_u32 s10, s10, s14
s_add_u32 s8, s8, 1
s_cmp_lt_u32 s8, 64
s_cbranch_scc1 LD_r
{"s_mov_b32 s10, s20" if self_ else ""}
s_sub_u32 s10, s10, s9
s_min_u32 s10, s10, 20000
s_mul_i32 s10, s10, {K}
s_memrealtime s[16:17]
s_waitcnt lgkmcnt(0)
LD_s:
s_memrealtime s[18:19]
s_waitcnt lgkmcnt(0)
s_sub_u32 s18, s18, s16
s_cmp_lt_u32 s18, s10
s_cbranch_scc1 LD_s
LD_end:
s_endpgm
"""
def finish(o, head, text, lds, grid=256, blk=512, vg=256):
    if o["diag"]:
        L = f"; @launch kernel={KN}_kernel grid=({grid},1,1) block=({blk},1,1) lds={lds}\n; @launch kernel=diag_kernel grid=(1,1,1) block=(64,1,1) lds=0\n"
        text = text + diag_kernel(*o["diag"]); extra = kd("diag_kernel", 16)
    elif o.get("pre") or o.get("post"):
        L = f"; @launch kernel={KN}_kernel grid=({grid},1,1) block=({blk},1,1) lds={lds}\n"
        e = lambda n, g, b, l: f"; @launch kernel=empty_kernel grid=({g},1,1) block=({b},1,1) lds={l}\n" * n
        if o.get("pre"): L = e(*o["pre"]) + L
        if o.get("post"): L = L + e(*o["post"])
        text = text + ".globl empty_kernel\n.p2align 8\n.type empty_kernel,@function\nempty_kernel:\ns_endpgm\n"; extra = kd("empty_kernel", o.get("evg", 16))
    else:
        L = f"; @launch grid=({grid},1,1) block=({blk},1,1) lds={lds}\n"; extra = ""
    return head + L + f""".amdgcn_target "amdgcn-amd-amdhsa--gfx950"
.text
.globl {KN}_kernel
.p2align 8
.type {KN}_kernel,@function
""" + text + '.section .rodata,"a"\n' + kd(KN + "_kernel", vg) + extra
def _old(a, head):
    return head + f"""; @launch grid=(256,1,1) block=(512,1,1) lds={LDS_SIZE}
.amdgcn_target "amdgcn-amd-amdhsa--gfx950"
.text
.globl {KN}_kernel
.p2align 8
.type {KN}_kernel,@function
""" + a.text() + f""".section .rodata,"a"
.p2align 6
.amdhsa_kernel {KN}_kernel
  .amdhsa_next_free_vgpr 256
  .amdhsa_next_free_sgpr 102
  .amdhsa_accum_offset 256
  .amdhsa_group_segment_fixed_size 0
  .amdhsa_kernarg_size 96
  .amdhsa_user_sgpr_count 2
  .amdhsa_user_sgpr_kernarg_segment_ptr 1
  .amdhsa_system_sgpr_workgroup_id_x 1
.end_amdhsa_kernel
"""
if __name__ == "__main__":
    kw = {}
    out = f"cdna_kernels/{KN}.s"
    for x in sys.argv[1:]:
        k, val = x.split("=", 1)
        if k == "out": out = val
        else: kw[k] = eval(val)
    open(out, "w").write(gen(**kw))
```
